```python
import torch

def _softmax(x, axis=-1):
    return torch.softmax(x, dim=axis)
def _gelu(x):
    return torch.nn.functional.gelu(x, approximate="tanh")
def _silu(x):
    return torch.nn.functional.silu(x)
def _sigmoid(x):
    return torch.sigmoid(x)
def _layernorm(x, axis=-1, eps=1e-5):
    m = x.mean(dim=axis, keepdim=True)
    v = x.var(dim=axis, keepdim=True, unbiased=False)
    return (x - m) / torch.sqrt(v + eps)
def _scatter_add(tgt, idx, src, axis=0):
    return tgt.clone().index_add_(axis, idx, src)
def _segment_sum(src, seg, n):
    out = torch.zeros((n,) + src.shape[1:], dtype=src.dtype)
    return out.index_add_(0, seg, src)
def _pad(x, pw):
    flat = tuple(v for pair in reversed(pw) for v in pair)
    return torch.nn.functional.pad(x, flat)

kernel_name = 'standalone__mha_block_cached__near_ridge'

def setup_inputs():

    _w = (lambda a: (lambda t: t.to(torch.bfloat16) if t.is_floating_point() else t)(torch.as_tensor(a)))
    B, Sq, D = 8, 96, 512
    H, Sk, Dh = 32, 512, 128
    return {
        "x": _w((lambda *s: torch.randn(*s, dtype=torch.bfloat16) * 0.8)(B, Sq, D)),
        "k_cache": _w((lambda *s: torch.randn(*s, dtype=torch.bfloat16) * 0.8)(B, H, Sk, Dh)),
        "v_cache": _w((lambda *s: torch.randn(*s, dtype=torch.bfloat16) * 0.05)(B, H, Sk, Dh)),
        "wq": _w((lambda *s: torch.randn(*s, dtype=torch.bfloat16) * 0.8)(D, H * Dh) * (D ** -0.5)),
        "wo": _w((lambda *s: torch.randn(*s, dtype=torch.bfloat16) * 0.05)(H * Dh, D) * ((H * Dh) ** -0.5)),
    }

def reference(x, k_cache, v_cache, wq, wo):
    B, Sq, D = x.shape
    H, Dh = 32, 128
    q = (lambda x, *d: x.permute(*d))((x @ wq).reshape(B, Sq, H, Dh), 0, 2, 1, 3)
    scores = torch.einsum("bhqd,bhkd->bhqk", q, k_cache) * (Dh ** -0.5)
    p = _softmax(scores, axis=-1)
    o = torch.einsum("bhqk,bhkd->bhqd", p, v_cache)
    return (lambda x, *d: x.permute(*d))(o, 0, 2, 1, 3).reshape(B, Sq, H * Dh) @ wo
```

```python
import re

REG_RE = re.compile(r'^(-|\|)?(abs\()?([vas])(\d+|\[(\d+):(\d+)\])\)?\|?$')
TRANS = ('v_exp_', 'v_log_', 'v_rcp_', 'v_rsq_', 'v_sqrt_', 'v_sin_', 'v_cos_')


def regs_of(tok):
    tok = tok.strip()
    if tok in ('vcc',):
        return [('s', 'vcc_lo'), ('s', 'vcc_hi')]
    if tok in ('vcc_lo', 'vcc_hi'):
        return [('s', tok)]
    if tok == 'exec':
        return [('s', 'exec_lo'), ('s', 'exec_hi')]
    if tok in ('exec_lo', 'exec_hi'):
        return [('s', tok)]
    if tok == 'm0':
        return [('s', 'm0')]
    m = REG_RE.match(tok)
    if not m:
        return []
    k = m.group(3)
    if m.group(5) is not None:
        return [(k, i) for i in range(int(m.group(5)), int(m.group(6)) + 1)]
    return [(k, int(m.group(4)))]


class Ins:
    def __init__(self, text):
        self.text = text
        t = text.split(';')[0].split('//')[0].strip()
        self.label = None
        self.op = None
        self.kind = 'none'
        self.w = set()
        self.r = set()
        self.target = None
        self.ws = 1
        if not t or t.startswith('.'):
            self.kind = 'directive' if t else 'none'
            self.ws = 0
            return
        if t.endswith(':'):
            self.label = t[:-1]
            self.kind = 'label'
            self.ws = 0
            return
        parts = t.split(None, 1)
        op = parts[0]
        self.op = op
        rest = parts[1] if len(parts) > 1 else ''
        ops = []
        depth = 0
        cur = ''
        for ch in rest:
            if ch in '[(':
                depth += 1
            if ch in '])':
                depth -= 1
            if ch == ',' and depth == 0:
                ops.append(cur.strip())
                cur = ''
            else:
                cur += ch
        if cur.strip():
            ops.append(cur.strip())
        mods = []
        if ops:
            sp = ops[-1].split()
            ops[-1] = sp[0]
            mods = sp[1:]
        self.ops = ops
        self.mods = mods
        R = lambda i: set(regs_of(ops[i])) if i < len(ops) else set()
        allr = lambda a: set().union(*[R(i) for i in range(a, len(ops))]) if len(ops) > a else set()
        self.trans = False
        self.permlane = False
        self.readlane = False
        self.dpp = any(m.startswith(('row_', 'quad_perm', 'wave_', 'row_bcast')) for m in mods)
        if op.startswith('v_mfma'):
            self.kind = 'mfma'
            self.w = R(0)
            self.A = R(1)
            self.B = R(2)
            self.C = R(3)
            self.r = self.A | self.B | self.C
            self.passes = 8 if '32x32x16' in op else 4 if '16x16x32' in op else None
            assert self.passes
        elif op.startswith('v_'):
            self.kind = 'valu'
            self.trans = op.startswith(TRANS)
            if op.startswith('v_permlane') and 'swap' in op:
                self.permlane = True
                self.w = R(0) | R(1)
                self.r = R(0) | R(1)
            elif op.startswith(('v_readfirstlane', 'v_readlane')):
                self.readlane = True
                self.w = R(0)
                self.r = allr(1)
                self.lanesel = R(2)
            elif op.startswith('v_writelane'):
                self.w = R(0)
                self.r = allr(0)
                self.lanesel = R(2)
            elif op.startswith('v_cmp'):
                assert not op.startswith('v_cmpx')
                self.w = R(0)
                self.r = allr(1)
            elif op.startswith(('v_add_co', 'v_sub_co', 'v_addc_co', 'v_subb_co', 'v_subrev_co')):
                self.w = R(0) | R(1)
                self.r = allr(2)
            elif op.startswith(('v_fmac', 'v_mac', 'v_pk_fmac', 'v_dot2c')):
                self.w = R(0)
                self.r = allr(0)
            elif op == 'v_nop':
                pass
            else:
                self.w = R(0)
                self.r = allr(1)
                if op.startswith('v_cndmask') and len(ops) == 3:
                    self.r |= set(regs_of('vcc'))
        elif op.startswith(('buffer_', 'global_')):
            self.kind = 'vmem'
            self.ldsdma = ('lds' in mods) or ('_lds_' in op)
            self.widestore = False
            if op.startswith(('buffer_wbl2', 'buffer_inv')):
                pass
            elif op.startswith('buffer_load'):
                if self.ldsdma:
                    self.r = allr(0) | {('s', 'm0')}
                else:
                    self.w = R(0)
                    self.r = allr(1)
            elif op.startswith('buffer_store'):
                self.r = allr(0)
                self.sdata = R(0)
                self.widestore = 'x4' in op or 'x3' in op
            elif op.startswith('buffer_atomic'):
                self.r = allr(0)
                if 'sc0' in mods:
                    self.w = R(0)
            elif op.startswith('global_load_lds'):
                self.r = allr(0) | {('s', 'm0')}
            elif op.startswith('global_load'):
                self.w = R(0)
                self.r = allr(1)
            elif op.startswith('global_store'):
                self.r = allr(0)
                self.sdata = R(1)
                self.widestore = 'x4' in op or 'x3' in op
            elif op.startswith('global_atomic'):
                if 'sc0' in mods:
                    self.w = R(0)
                    self.r = allr(1)
                else:
                    self.r = allr(0)
            else:
                raise ValueError(text)
        elif op.startswith('ds_'):
            self.kind = 'ds'
            if op.startswith(('ds_read', 'ds_bpermute', 'ds_permute', 'ds_swizzle')) or '_rtn' in op:
                self.w = R(0)
                self.r = allr(1)
            else:
                self.r = allr(0)
        elif op.startswith(('s_load', 's_buffer_load', 's_memtime', 's_memrealtime', 's_atomic')):
            self.kind = 'smem'
            self.w = R(0)
            self.r = allr(1)
        elif op.startswith(('s_branch', 's_cbranch')):
            self.kind = 'branch'
            self.target = ops[0]
            self.uncond = op == 's_branch'
        elif op == 's_endpgm':
            self.kind = 'end'
        elif op == 's_nop':
            self.kind = 'nop'
            self.ws = int(ops[0], 0) + 1
        elif op.startswith('s_'):
            self.kind = 'salu'
            if op.startswith(('s_cmp', 's_waitcnt', 's_barrier', 's_sleep', 's_setprio', 's_bitcmp', 's_setreg')):
                self.r = allr(0)
            elif 'saveexec' in op:
                self.w = R(0) | set(regs_of('exec'))
                self.r = allr(1)
            else:
                self.w = R(0)
                self.r = allr(1)
                if op.startswith(('s_addk', 's_mulk', 's_cmov')):
                    self.r |= R(0)
        else:
            raise ValueError('unknown instruction: ' + text)


def need_ws(p, c):
    n = 0
    vw = {x for x in p.w if x[0] in 'va'}
    sw = {x for x in p.w if x[0] == 's'}
    if p.kind == 'valu':
        if c.kind == 'mfma' and (vw & c.r):
            n = max(n, 2)
        if c.kind == 'valu':
            if c.permlane and (vw & c.r):
                n = max(n, 2)
            if c.dpp and (vw & c.r):
                n = max(n, 2)
            if c.readlane and (vw & c.r):
                n = max(n, 1)
            if p.trans and not c.trans and (vw & (c.r | c.w)):
                n = max(n, 1)
            if sw & c.r:
                n = max(n, 2)
                if sw & getattr(c, 'lanesel', set()):
                    n = max(n, 4)
        if c.kind == 'vmem' and (sw & c.r):
            n = max(n, 5)
        if c.kind in ('salu', 'smem') and (sw & c.r):
            n = max(n, 1)
        if c.kind == 'branch' and sw:
            pass
    if p.kind == 'salu':
        if ('s', 'm0') in p.w and c.kind == 'vmem' and c.ldsdma:
            n = max(n, 1)
    if p.kind == 'vmem' and getattr(p, 'widestore', False):
        if c.kind == 'valu' and (p.sdata & c.w):
            n = max(n, 2)
        elif c.kind in ('vmem', 'ds', 'mfma') and (p.sdata & c.w):
            n = max(n, 1)
    if p.kind == 'mfma':
        P = p.passes
        if c.kind == 'mfma':
            if p.w & c.C:
                if not (p.w == c.C and c.passes == P):
                    n = max(n, {4: 6, 8: 10}[P])
            elif p.w & c.w and p.w != c.w:
                n = max(n, {4: 6, 8: 10}[P])
            if p.w & (c.A | c.B):
                n = max(n, {4: 8, 8: 12}[P])
        elif c.kind in ('valu', 'vmem', 'ds'):
            if p.w & (c.r | c.w):
                n = max(n, {4: 8, 8: 12}[P])
            if c.kind == 'valu' and (p.C & c.w):
                n = max(n, {4: 3, 8: 7}[P])
    return n


MAXD = 12


def pad_hazards(lines, verbose=False):
    ins = [Ins(l) for l in lines]
    total = 0
    while True:
        labels = {x.label: i for i, x in enumerate(ins) if x.kind == 'label'}
        preds = [[] for _ in ins]
        for i, x in enumerate(ins):
            if x.kind == 'branch':
                if x.target in labels:
                    preds[labels[x.target]].append(i)
                else:
                    raise ValueError('unknown label ' + x.target)
            if i + 1 < len(ins):
                if not (x.kind == 'end' or (x.kind == 'branch' and x.uncond)):
                    preds[i + 1].append(i)
        fix = None
        for i, c in enumerate(ins):
            if c.kind in ('label', 'none', 'directive', 'nop', 'end'):
                continue
            worst = 0
            why = None
            seen = {}
            stack = [(p, 0) for p in preds[i]]
            while stack:
                j, d = stack.pop()
                if d >= MAXD:
                    continue
                if seen.get(j, 99) <= d:
                    continue
                seen[j] = d
                p = ins[j]
                if p.kind in ('valu', 'salu', 'vmem', 'mfma'):
                    n = need_ws(p, c) - d
                    if n > worst:
                        worst = n
                        why = p.text
                for q in preds[j]:
                    stack.append((q, d + p.ws))
            if worst > 0:
                fix = (i, worst, why)
                break
        if not fix:
            break
        i, n, why = fix
        if verbose:
            print('pad %d before [%s] after [%s]' % (n, ins[i].text.strip(), why.strip()))
        ins.insert(i, Ins('    s_nop %d' % (n - 1)))
        total += n
    return [x.text for x in ins], total


class Asm:
    def __init__(self):
        self.lines = []

    def __call__(self, s, *a):
        for l in (s % a if a else s).split('\n'):
            l = l.strip()
            if not l:
                continue
            if l.endswith(':') or l.startswith('.'):
                self.lines.append(l)
            else:
                self.lines.append('    ' + l)

    def c(self, s):
        self.lines.append('    ; ' + s)

    def label(self, s):
        self.lines.append(s + ':')


def v(i, n=1):
    return 'v%d' % i if n == 1 else 'v[%d:%d]' % (i, i + n - 1)


def a(i, n=1):
    return 'a%d' % i if n == 1 else 'a[%d:%d]' % (i, i + n - 1)


def s(i, n=1):
    return 's%d' % i if n == 1 else 's[%d:%d]' % (i, i + n - 1)
```

```python
import sys
from asmlib import Asm, pad_hazards, v, a, s

OPT = dict(kv_pol='nt', w_pol='nt', x_pol='', o_pol='', ws_off=0, prof=0, k2_pol='')
for arg in sys.argv[2:]:
    k, val = arg.split('=')
    OPT[k] = int(val, 0) if isinstance(OPT[k], int) else val

NAME = 'standalone__mha_block_cached__near_ridge'
SLOT = 32768
C_SCALE = 0x3e0293ee
MFMA = 'v_mfma_f32_32x32x16_bf16'


class Lds:
    def __init__(self, A):
        self.A = A
        self.q = []

    def read(self, text, tag):
        self.A(text)
        self.q.append(tag)

    def need(self, *tags):
        idx = max([i for i, t in enumerate(self.q) if t in tags], default=-1)
        if idx < 0:
            return
        n = len(self.q) - 1 - idx
        self.A('s_waitcnt lgkmcnt(%d)', min(n, 15))
        self.q = self.q[idx + 1:]

    def drain(self):
        if self.q:
            self.A('s_waitcnt lgkmcnt(0)')
        self.q = []


def srd(A, d, base, off_lo_reg, size):
    if off_lo_reg is None:
        A('s_mov_b32 %s, %s', s(d), s(base))
        A('s_mov_b32 %s, %s', s(d + 1), s(base + 1))
    else:
        A('s_add_u32 %s, %s, %s', s(d), s(base), s(off_lo_reg))
        A('s_addc_u32 %s, %s, 0', s(d + 1), s(base + 1))
    if isinstance(size, str):
        A('s_mov_b32 %s, %s', s(d + 2), size)
    else:
        A('s_mov_b32 %s, 0x%x', s(d + 2), size)
    A('s_mov_b32 %s, 0x20000', s(d + 3))


def stamp(A, idx, sreg=90):
    if not OPT['prof']:
        return
    A('s_memrealtime %s', s(sreg, 2))
    A('s_waitcnt lgkmcnt(0)')
    A('v_writelane_b32 v255, %s, %d', s(sreg), idx)


def stamp_flush(A, wsbase, kern):
    if not OPT['prof']:
        return
    A('s_lshl_b32 s92, s2, 2')
    A('s_add_u32 s92, s92, s40')
    A('s_lshl_b32 s92, s92, 8')
    A('s_add_u32 s92, s92, 0x%x', (128 << 20) + kern * (1 << 20))
    srd(A, 96, wsbase, 92, 256)
    A('v_mbcnt_lo_u32_b32 v254, -1, 0')
    A('v_mbcnt_hi_u32_b32 v254, -1, v254')
    A('v_lshlrev_b32 v254, 2, v254')
    A('buffer_store_dword v255, v254, s[96:99], 0 offen')


def dma(A, voffs, srdreg, soff, pol):
    for j in range(4):
        A('buffer_load_dwordx4 %s, %s, %s offen offset:%d %s lds', v(voffs[j]), s(srdreg, 4), s(soff), 1024 * j, pol)


def gemm_chunk_loop(A, lbl, nchunks, nslots, vacc, vWa, vBa, vWb, vBb, a_rows, b_off, b_xor, sSlot, sCnt):
    L = Lds(A)
    FA = [[0 + 16 * p + 4 * mt for mt in range(4)] for p in range(2)]
    FB = [32, 36]

    def set_addr():
        for mt in range(4):
            A('v_add_u32 %s, %s, %s', v(vWa + mt), s(sSlot), v(vWb + mt))
        A('v_add_u32 %s, %s, %s', v(vBa), s(sSlot), v(vBb))
        if b_xor:
            for k in range(1, 4):
                A('v_xor_b32 %s, %d, %s', v(vBa + k), 32 * k, v(vBa))

    def reads(ks):
        p = ks & 1
        out = []
        if b_xor:
            out.append(('ds_read_b128 %s, %s offset:%d' % (a(FB[p], 4), v(vBa + ks), b_off), ('B', ks)))
        else:
            out.append(('ds_read_b128 %s, %s offset:%d' % (a(FB[p], 4), v(vBa), b_off + 1024 * ks), ('B', ks)))
        for mt in range(4):
            for aa in range(2):
                out.append(('ds_read_b64_tr_b16 %s, %s offset:%d' % (a(FA[p][mt] + 2 * aa, 2), v(vWa + mt), a_rows(ks, aa) * 256), ('A', ks, mt)))
        return out

    def next_slot():
        A('s_add_u32 %s, %s, 0x%x', s(sSlot), s(sSlot), SLOT)
        A('s_cmp_eq_u32 %s, 0x%x', s(sSlot), SLOT * nslots)
        A('s_cselect_b32 %s, 0, %s', s(sSlot), s(sSlot))

    A('s_mov_b32 %s, 0', s(sCnt))
    set_addr()
    A('s_barrier')
    for t, tag in reads(0):
        L.read(t, tag)
    q0 = list(L.q)
    A.label(lbl)
    for ks in range(4):
        p = ks & 1
        if ks < 3:
            nxt = reads(ks + 1)
        else:
            L.drain()
            next_slot()
            A('s_add_u32 %s, %s, 1', s(sCnt), s(sCnt))
            A('s_cmp_eq_u32 %s, %d', s(sCnt), nchunks)
            A('s_cbranch_scc1 %s_last', lbl)
            set_addr()
            A('s_barrier')
            nxt = reads(0)
        split = [3, 2, 2, 2]
        pos = 0
        for mt in range(4):
            L.need(('B', ks), ('A', ks, mt))
            A('%s %s, %s, %s, %s', MFMA, v(vacc + 16 * mt, 16), a(FA[p][mt], 4), a(FB[p], 4), v(vacc + 16 * mt, 16))
            for t, tag in nxt[pos:pos + split[mt]]:
                L.read(t, tag)
            pos += split[mt]
    assert L.q == q0, (L.q, q0)
    A('s_branch %s', lbl)
    A.label(lbl + '_last')
    for mt in range(4):
        A('%s %s, %s, %s, %s', MFMA, v(vacc + 16 * mt, 16), a(FA[1][mt], 4), a(FB[1], 4), v(vacc + 16 * mt, 16))


def tr_lane_bases(A, vdst, hrow, sigma, vt):
    A('v_lshrrev_b32 %s, 5, v1', v(vt))
    A('v_mul_u32_u24 %s, %d, %s', v(vt), hrow, v(vt))
    A('v_bfe_u32 %s, v1, 2, 2', v(vt + 1))
    A('v_add_u32 %s, %s, %s', v(vt), v(vt), v(vt + 1))
    A('v_lshlrev_b32 %s, 8, %s', v(vt), v(vt))
    A('v_bfe_u32 %s, v1, 4, 1', v(vt + 2))
    A('v_lshl_add_u32 %s, %s, 5, %s', v(vt), v(vt + 2), v(vt))
    if sigma:
        A('v_and_b32 %s, 1, v1', v(vt + 2))
        A('v_lshl_add_u32 %s, %s, 4, %s', v(vt), v(vt + 2), v(vt))
        A('v_bfe_u32 %s, v1, 1, 1', v(vt + 2))
        A('v_lshl_add_u32 %s, %s, 3, %s', v(vt), v(vt + 2), v(vt))
    else:
        A('v_and_b32 %s, 3, v1', v(vt + 2))
        A('v_lshl_add_u32 %s, %s, 3, %s', v(vt), v(vt + 2), v(vt))
    for mt in range(4):
        A('v_xor_b32 %s, %d, %s', v(vt + 2), mt, v(vt + 1))
        A('v_lshl_add_u32 %s, %s, 6, %s', v(vdst + mt), v(vt + 2), v(vt))


def load_args(A):
    A('s_load_dwordx4 s[4:7], s[0:1], 0')
    A('s_load_dwordx4 s[8:11], s[0:1], 16')
    A('s_load_dwordx4 s[12:15], s[0:1], 32')
    A('s_load_dwordx4 s[16:19], s[0:1], 48')
    A('v_lshrrev_b32 v2, 6, v0')
    A('v_and_b32 v1, 63, v0')
    A('v_readfirstlane_b32 s40, v2')


def kernel1():
    A = Asm()
    sX, sK, sV, sW, sO = 20, 24, 28, 32, 36
    A('s_cmp_ge_u32 s2, 256')
    A('s_cbranch_scc1 K1_end')
    load_args(A)
    if OPT['prof']:
        A('v_mov_b32 v255, 0')
    A('s_and_b32 s41, s2, 7')
    A('s_lshr_b32 s42, s2, 3')
    A('s_and_b32 s43, s42, 7')
    A('s_lshr_b32 s44, s42, 3')
    A('s_lshl_b32 s45, s41, 2')
    A('s_add_u32 s45, s45, s44')
    A('s_lshl_b32 s46, s44, 1')
    A('s_add_u32 s46, s46, s43')
    A('s_and_b32 s46, s46, 7')
    A('s_lshl_b32 s47, s43, 5')
    A('s_add_u32 s47, s47, s45')
    A('s_waitcnt lgkmcnt(0)')
    stamp(A, 0)
    A('s_mul_i32 s48, s43, 98304')
    srd(A, sX, 4, 48, 98304)
    A('s_lshl_b32 s48, s47, 17')
    srd(A, sK, 6, 48, 131072)
    srd(A, sV, 8, 48, 131072)
    A('s_lshl_b32 s48, s45, 8')
    A('s_sub_u32 s49, 0x400000, s48')
    srd(A, sW, 10, 48, 's49')
    A('s_mul_i32 s48, s47, 24576')
    A('s_add_u32 s48, s48, 0x%x', OPT['ws_off'])
    srd(A, sO, 18, 48, 24576)
    A('s_cmp_eq_u32 s40, 3')
    A('s_cbranch_scc1 K1_loader')

    vQ, vO, vS, vP = 4, 36, 100, 164
    vWb, vXb, vWa, vXa = 196, 200, 201, 205
    vKb, vKa, vVb, vVa = 209, 210, 218, 222
    vM, vL, vT = 226, 227, 230
    sSlot, sCnt, sC = 50, 51, 52
    A.c('lane bases')
    tr_lane_bases(A, vWb, 8, True, vT)
    tr_lane_bases(A, vVb, 4, False, vT)
    A('v_and_b32 %s, 31, v1', v(vT))
    A('s_lshl_b32 s53, s40, 5')
    A('v_add_u32 %s, s53, %s', v(vT), v(vT))
    A('v_bfe_u32 %s, %s, 1, 3', v(vT + 1), v(vT))
    A('v_lshrrev_b32 %s, 5, v1', v(vT + 2))
    A('v_xor_b32 %s, %s, %s', v(vT + 1), v(vT + 1), v(vT + 2))
    A('v_lshlrev_b32 %s, 4, %s', v(vT + 1), v(vT + 1))
    A('v_lshl_add_u32 %s, %s, 7, %s', v(vXb), v(vT), v(vT + 1))
    A('v_and_b32 %s, 31, v1', v(vT))
    A('v_and_b32 %s, 15, v1', v(vT + 1))
    A('v_xor_b32 %s, %s, %s', v(vT + 1), v(vT + 1), v(vT + 2))
    A('v_lshlrev_b32 %s, 4, %s', v(vT + 1), v(vT + 1))
    A('v_lshl_add_u32 %s, %s, 8, %s', v(vKb), v(vT), v(vT + 1))
    for i in range(64):
        A('v_mov_b32 %s, 0', v(vS + i))
    for i in range(64):
        A('v_mov_b32 %s, 0', v(vO + i))
    A('v_mov_b32 %s, 0xff800000', v(vM))
    A('v_mov_b32 %s, 0', v(vL))
    A('v_mov_b32 %s, 0', v(vL + 1))
    A('s_mov_b32 %s, 0x%x', s(sC), C_SCALE)
    A('s_mov_b32 %s, 0', s(sSlot))
    A.c('Q projection')
    gemm_chunk_loop(A, 'K1_qp', 8, 5, vS, vWa, vXa, vWb, vXb, lambda ks, aa: 16 * ks + 4 * aa, 16384, True, sSlot, sCnt)
    stamp(A, 1)
    for i in range(32):
        A('v_cvt_pk_bf16_f32 %s, %s, %s', v(vQ + i), v(vS + 2 * i), v(vS + 2 * i + 1))

    A.c('attention loop')
    L = Lds(A)

    def next_slot():
        A('s_add_u32 %s, %s, 0x%x', s(sSlot), s(sSlot), SLOT)
        A('s_cmp_eq_u32 %s, 0x%x', s(sSlot), SLOT * 5)
        A('s_cselect_b32 %s, 0, %s', s(sSlot), s(sSlot))

    A('s_mov_b32 %s, 0', s(sCnt))
    A.label('K1_att')
    A('v_add_u32 %s, %s, %s', v(vKa), s(sSlot), v(vKb))
    for k in range(1, 8):
        A('v_xor_b32 %s, %d, %s', v(vKa + k), 32 * k, v(vKa))
    next_slot()
    for mt in range(4):
        A('v_add_u32 %s, %s, %s', v(vVa + mt), s(sSlot), v(vVb + mt))
    next_slot()
    A('s_barrier')
    KF = [[32 * p + 4 * k for k in range(8)] for p in range(2)]

    def kread(t, k):
        return ('ds_read_b128 %s, %s offset:%d' % (a(KF[t & 1][k], 4), v(vKa + k), 8192 * t), ('K', t, k))

    for k in range(8):
        L.read(*kread(0, k))
    vMx = vT

    def max_ops(t):
        r = vS + 16 * t
        ops = []
        if t == 0:
            ops.append('v_max3_f32 %s, %s, %s, %s' % (v(vMx), v(r), v(r + 1), v(vM)))
            rest = range(2, 16, 2)
        else:
            rest = range(0, 16, 2)
        for i in rest:
            ops.append('v_max3_f32 %s, %s, %s, %s' % (v(vMx), v(r + i), v(r + i + 1), v(vMx)))
        return ops

    for t in range(4):
        mo = max_ops(t - 1) if t > 0 else []
        for k in range(8):
            L.need(('K', t, k))
            A('%s %s, %s, %s, %s', MFMA, v(vS + 16 * t, 16), a(KF[t & 1][k], 4), v(vQ + 4 * k, 4), '0' if k == 0 else v(vS + 16 * t, 16))
            if t < 3:
                L.read(*kread(t + 1, k))
            if k >= 3 and mo:
                n = 2 if k < 6 else 1
                for o in mo[:n]:
                    A(o)
                mo = mo[n:]
        assert not mo
    for o in max_ops(3):
        A(o)
    A('v_mov_b32 %s, %s', v(vT + 1), v(vMx))
    A('v_permlane32_swap_b32 %s, %s', v(vT + 1), v(vMx))
    A('v_max_f32 %s, %s, %s', v(vMx), v(vMx), v(vT + 1))
    A('v_mul_f32 %s, %s, %s', v(vT + 2), s(sC), v(vMx))
    A('v_fma_f32 %s, %s, %s, -%s', v(vT + 3), v(vM), s(sC), v(vT + 2))
    A('v_exp_f32 %s, %s', v(vT + 4), v(vT + 3))
    A('v_mov_b32 %s, %s', v(vM), v(vMx))
    for i in range(64):
        A('v_fma_f32 %s, %s, %s, -%s', v(vS + i), v(vS + i), s(sC), v(vT + 2))
        if i == 1:
            A('v_mul_f32 %s, %s, %s', v(vL), v(vT + 4), v(vL))
            A('v_mul_f32 %s, %s, %s', v(vL + 1), v(vT + 4), v(vL + 1))
        if i >= 1:
            A('v_exp_f32 %s, %s', v(vS + i - 1), v(vS + i - 1))
        if i >= 3 and i % 2 == 1:
            j = i - 3
            A('v_add_f32 %s, %s, %s', v(vL), v(vS + j), v(vL))
            A('v_add_f32 %s, %s, %s', v(vL + 1), v(vS + j + 1), v(vL + 1))
            A('v_cvt_pk_bf16_f32 %s, %s, %s', v(vP + j // 2), v(vS + j), v(vS + j + 1))
    A('v_exp_f32 %s, %s', v(vS + 63), v(vS + 63))
    A('v_mov_b32 %s, %s', v(vT + 5), v(vT + 4))
    A('v_add_f32 %s, %s, %s', v(vL), v(vS + 62), v(vL))
    A('v_add_f32 %s, %s, %s', v(vL + 1), v(vS + 63), v(vL + 1))
    A('v_cvt_pk_bf16_f32 %s, %s, %s', v(vP + 31), v(vS + 62), v(vS + 63))
    for i in range(0, 64, 2):
        A('v_pk_mul_f32 %s, %s, %s', v(vO + i, 2), v(vO + i, 2), v(vT + 4, 2))
    A('s_barrier')
    VF = [[64 + 16 * p + 4 * mt for mt in range(4)] for p in range(2)]

    def vreads(p):
        out = []
        for mt in range(4):
            for aa in range(2):
                out.append(('ds_read_b64_tr_b16 %s, %s offset:%d' % (a(VF[p & 1][mt] + 2 * aa, 2), v(vVa + mt), (16 * p + 8 * aa) * 256), ('V', p, mt)))
        return out

    for t_, tag in vreads(0):
        L.read(t_, tag)
    for p in range(8):
        nxt = vreads(p + 1) if p < 7 else []
        for mt in range(4):
            L.need(('V', p, mt))
            A('%s %s, %s, %s, %s', MFMA, v(vO + 16 * mt, 16), a(VF[p & 1][mt], 4), v(vP + 4 * p, 4), v(vO + 16 * mt, 16))
            for t_, tag in nxt[2 * mt:2 * mt + 2]:
                L.read(t_, tag)
    assert not L.q
    A('s_add_u32 %s, %s, 1', s(sCnt), s(sCnt))
    A('s_cmp_lt_u32 %s, 4', s(sCnt))
    A('s_cbranch_scc1 K1_att')
    stamp(A, 2)
    A.c('epilogue: normalise, convert, store O fragments')
    A('v_add_f32 %s, %s, %s', v(vL), v(vL), v(vL + 1))
    A('v_mov_b32 %s, %s', v(vT), v(vL))
    A('v_permlane32_swap_b32 %s, %s', v(vT), v(vL))
    A('v_add_f32 %s, %s, %s', v(vL), v(vL), v(vT))
    A('v_rcp_f32 %s, %s', v(vT), v(vL))
    A('v_lshlrev_b32 %s, 4, v1', v(vT + 2))
    A('s_lshl_b32 s53, s40, 13')
    A('v_mov_b32 %s, %s', v(vT + 1), v(vT))
    for f in range(8):
        for i in range(4):
            r = vO + 8 * f + 2 * i
            A('v_pk_mul_f32 %s, %s, %s', v(r, 2), v(r, 2), v(vT, 2))
        for i in range(4):
            r = vO + 8 * f + 2 * i
            A('v_cvt_pk_bf16_f32 %s, %s, %s', v(vP + 4 * f + i), v(r), v(r + 1))
        if f == 4:
            A('s_add_u32 s53, s53, 4096')
        A('buffer_store_dwordx4 %s, %s, %s, s53 offen offset:%d %s', v(vP + 4 * f, 4), v(vT + 2), s(sO, 4), 1024 * (f & 3), OPT['o_pol'])
    if OPT['prof']:
        stamp(A, 3)
        A('s_waitcnt vmcnt(0)')
        stamp(A, 4)
        stamp_flush(A, 18, 0)
    A('s_endpgm')

    A.label('K1_loader')
    lX, lW, lK, lV, lT = 4, 8, 12, 16, 20
    A('v_lshrrev_b32 %s, 4, v1', v(lT))
    A('v_and_b32 %s, 15, v1', v(lT + 1))
    A('v_lshlrev_b32 %s, 2, %s', v(lT + 2), v(lT))
    A('v_xor_b32 %s, %s, %s', v(lT + 2), v(lT + 2), v(lT + 1))
    A('v_lshlrev_b32 %s, 4, %s', v(lT + 2), v(lT + 2))
    A('v_lshl_add_u32 %s, %s, 13, %s', v(lW), v(lT), v(lT + 2))
    for j in range(1, 4):
        A('v_add_u32 %s, 0x%x, %s', v(lW + j), j * (32768 - 1024), v(lW))
    A('v_lshrrev_b32 %s, 3, v1', v(lT + 3))
    A('v_and_b32 %s, 7, v1', v(lT + 4))
    A('v_xor_b32 %s, %s, %s', v(lT + 4), v(lT + 4), v(lT))
    A('v_lshlrev_b32 %s, 4, %s', v(lT + 4), v(lT + 4))
    A('v_lshl_add_u32 %s, %s, 10, %s', v(lX), v(lT + 3), v(lT + 4))
    A('v_xor_b32 %s, 64, %s', v(lX + 1), v(lX))
    A('v_add_u32 %s, 0x%x, %s', v(lX + 2), 2 * 7168, v(lX))
    A('v_add_u32 %s, 0x%x, %s', v(lX + 3), 3 * 7168, v(lX + 1))
    A('v_add_u32 %s, 0x%x, %s', v(lX + 1), 7168, v(lX + 1))

    def issue_w(j):
        slot = (j % 5) * SLOT
        A('s_add_u32 s54, s46, %d', j)
        A('s_and_b32 s54, s54, 7')
        A('s_lshl_b32 s55, s54, 19')
        A('s_lshl_b32 s56, s54, 7')
        for g in range(3):
            A('s_mov_b32 m0, 0x%x', slot + 16384 + 4096 * g)
            if g:
                A('s_add_u32 s56, s56, 0x8000')
            dma(A, [lX, lX + 1, lX + 2, lX + 3], sX, 56, OPT['x_pol'])
        for g in range(4):
            A('s_mov_b32 m0, 0x%x', slot + 4096 * g)
            if g:
                A('s_add_u32 s55, s55, 0x20000')
            dma(A, [lW, lW + 1, lW + 2, lW + 3], sW, 55, OPT['w_pol'])
        return 28

    def issue_kv(i):
        slot = (i % 5) * SLOT
        blk, isv = (i - 8) >> 1, (i - 8) & 1
        for g in range(8):
            A('s_mov_b32 m0, 0x%x', slot + 4096 * g)
            A('s_mov_b32 s55, 0x%x', blk * 32768 + 4096 * g)
            if isv:
                dma(A, [lV] * 4, sV, 55, OPT['kv_pol'])
            else:
                dma(A, [lK, lK + 1, lK + 2, lK + 3], sK, 55, OPT['kv_pol'])
        return 32

    issue = lambda i: issue_w(i) if i < 8 else issue_kv(i)
    n = [0] * 18
    n[0] = issue(0)
    n[1] = issue(1)
    A('v_lshl_add_u32 %s, %s, 8, %s', v(lV), v(lT), v(lT + 2))
    for j in range(4):
        A('v_add_u32 %s, %d, %s', v(lT + 3), 4 * j, v(lT))
        A('v_xor_b32 %s, %s, %s', v(lT + 3), v(lT + 3), v(lT + 1))
        A('v_lshlrev_b32 %s, 4, %s', v(lT + 3), v(lT + 3))
        A('v_lshl_add_u32 %s, %s, 8, %s', v(lK + j), v(lT), v(lT + 3))
    for i in range(16):
        A('s_waitcnt vmcnt(%d)', n[i + 1])
        stamp(A, 1 + i)
        A('s_barrier')
        if i + 2 < 16:
            n[i + 2] = issue(i + 2)
    stamp(A, 17)
    stamp_flush(A, 18, 0)
    A.label('K1_end')
    A('s_endpgm')
    return A.lines


def kernel2():
    A = Asm()
    sO, sW, sOut = 20, 24, 28
    A('s_cmp_ge_u32 s2, 32')
    A('s_cbranch_scc1 K2_end')
    load_args(A)
    A('s_and_b32 s43, s2, 7')
    A('s_lshr_b32 s44, s2, 3')
    A('s_waitcnt lgkmcnt(0)')
    A('s_mul_i32 s48, s43, %d', 32 * 24576)
    A('s_add_u32 s48, s48, 0x%x', OPT['ws_off'])
    srd(A, sO, 18, 48, 32 * 24576)
    A('s_lshl_b32 s48, s44, 8')
    A('s_sub_u32 s49, 0x400000, s48')
    srd(A, sW, 12, 48, 's49')
    A('s_mul_i32 s48, s43, 98304')
    srd(A, sOut, 14, 48, 98304)
    A('s_cmp_eq_u32 s40, 3')
    A('s_cbranch_scc1 K2_loader')
    vAcc, vWb, vBb, vWa, vBa, vT, vP = 4, 68, 72, 73, 77, 84, 96
    tr_lane_bases(A, vWb, 4, True, vT)
    A('s_lshl_b32 s53, s40, 12')
    A('v_lshlrev_b32 %s, 4, v1', v(vBb))
    A('v_add_u32 %s, s53, %s', v(vBb), v(vBb))
    for i in range(64):
        A('v_mov_b32 %s, 0', v(vAcc + i))
    A('s_mov_b32 s50, 0')
    gemm_chunk_loop(A, 'K2_g', 64, 4, vAcc, vWa, vBa, vWb, vBb, lambda ks, aa: 16 * ks + 8 * aa, 16384, False, 50, 51)
    A('v_and_b32 %s, 31, v1', v(vT))
    A('s_lshl_b32 s53, s40, 5')
    A('v_add_u32 %s, s53, %s', v(vT), v(vT))
    A('v_lshlrev_b32 %s, 10, %s', v(vT), v(vT))
    A('v_lshrrev_b32 %s, 5, v1', v(vT + 1))
    A('v_lshl_add_u32 %s, %s, 4, %s', v(vT), v(vT + 1), v(vT))
    A('s_lshl_b32 s53, s44, 8')
    for f in range(8):
        for i in range(4):
            r = vAcc + 8 * f + 2 * i
            A('v_cvt_pk_bf16_f32 %s, %s, %s', v(vP + 4 * f + i), v(r), v(r + 1))
        A('buffer_store_dwordx4 %s, %s, %s, s53 offen offset:%d', v(vP + 4 * f, 4), v(vT), s(sOut, 4), 32 * f)
    A('s_endpgm')

    A.label('K2_loader')
    lO, lW, lT = 4, 8, 20
    A('v_lshrrev_b32 %s, 4, v1', v(lT))
    A('v_and_b32 %s, 15, v1', v(lT + 1))
    A('v_lshlrev_b32 %s, 2, %s', v(lT + 2), v(lT))
    A('v_xor_b32 %s, %s, %s', v(lT + 2), v(lT + 2), v(lT + 1))
    A('v_lshlrev_b32 %s, 4, %s', v(lT + 2), v(lT + 2))
    A('v_lshl_add_u32 %s, %s, 10, %s', v(lW), v(lT), v(lT + 2))
    for j in range(1, 4):
        A('v_add_u32 %s, 0x%x, %s', v(lW + j), j * (4096 - 1024), v(lW))
    A('v_lshlrev_b32 %s, 4, v1', v(lO))

    def issue():
        A('s_and_b32 s54, s60, 3')
        A('s_lshl_b32 s54, s54, 15')
        A('s_lshr_b32 s55, s60, 1')
        A('s_mul_i32 s55, s55, 24576')
        A('s_and_b32 s56, s60, 1')
        A('s_lshl_b32 s56, s56, 12')
        A('s_add_u32 s55, s55, s56')
        A('s_lshl_b32 s56, s60, 16')
        for g in range(3):
            A('s_add_u32 m0, s54, 0x%x', 16384 + 4096 * g)
            if g:
                A('s_add_u32 s55, s55, 0x2000')
            dma(A, [lO] * 4, sO, 55, OPT['k2_pol'])
        for g in range(4):
            A('s_add_u32 m0, s54, 0x%x', 4096 * g)
            if g:
                A('s_add_u32 s56, s56, 0x4000')
            dma(A, [lW, lW + 1, lW + 2, lW + 3], sW, 56, OPT['k2_pol'])
        A('s_add_u32 s60, s60, 1')

    A('s_mov_b32 s60, 0')
    issue()
    issue()
    A.label('K2_ld')
    A('s_waitcnt vmcnt(28)')
    A('s_barrier')
    issue()
    A('s_cmp_lt_u32 s60, 64')
    A('s_cbranch_scc1 K2_ld')
    A('s_waitcnt vmcnt(28)')
    A('s_barrier')
    A('s_waitcnt vmcnt(0)')
    A('s_barrier')
    A.label('K2_end')
    A('s_endpgm')
    return A.lines


def kd(name, nv, acc):
    return '''.amdhsa_kernel %s
  .amdhsa_next_free_vgpr %d
  .amdhsa_next_free_sgpr 102
  .amdhsa_accum_offset %d
  .amdhsa_group_segment_fixed_size 0
  .amdhsa_kernarg_size 64
  .amdhsa_user_sgpr_count 2
  .amdhsa_user_sgpr_kernarg_segment_ptr 1
  .amdhsa_system_sgpr_workgroup_id_x 1
.end_amdhsa_kernel''' % (name, nv, acc)


def main():
    k1, n1 = pad_hazards(kernel1(), verbose='-v' in sys.argv[0])
    k2, n2 = pad_hazards(kernel2())
    out = []
    out.append('; %s : Q-proj + attention kernel, then output projection kernel' % NAME)
    out.append('; @launch kernel=attn_kernel grid=(256,1,1) block=(256,1,1) lds=163840')
    out.append('; @launch kernel=proj_kernel grid=(32,1,1) block=(256,1,1) lds=131072')
    out.append('.amdgcn_target "amdgcn-amd-amdhsa--gfx950"')
    out.append('.text')
    for nm, body in (('attn_kernel', k1), ('proj_kernel', k2)):
        out.append('.globl %s\n.p2align 8\n.type %s,@function\n%s:' % (nm, nm, nm))
        out += body
    out.append('.section .rodata,"a"')
    out.append('.p2align 6')
    out.append(kd('attn_kernel', 512, 256))
    out.append('.p2align 6')
    out.append(kd('proj_kernel', 512, 256))
    open(sys.argv[1], 'w').write('\n'.join(out) + '\n')
    print('wrote', sys.argv[1], 'pads', n1, n2)


main()
```

```python
import sys
from asmlib import Asm, pad_hazards, v, a, s

OPT = dict(kv_pol='nt', w_pol='', x_pol='', wo_pol='', prof=0, ahead=3, pfcode=1)
for arg in sys.argv[2:]:
    k, val = arg.split('=')
    OPT[k] = int(val, 0) if isinstance(OPT[k], int) else val

NAME = 'standalone__mha_block_cached__near_ridge'
SLOT = 32768
C_SCALE = 0x3e0293ee
MFMA = 'v_mfma_f32_32x32x16_bf16'
WS_O, WS_P, WS_F = 0, 8 << 20, 24 << 20
SPIN_MAX = 1 << 20

sX, sK, sV, sW, sWo, sO, sPo, sF, sOut, sDbg = 20, 24, 28, 32, 36, 56, 60, 64, 68, 72
sWave, sHg, sB, sHh, sH, sRot = 40, 41, 43, 44, 45, 46
sSlot, sCnt, sC = 50, 51, 52
sT = 76


class Lds:
    def __init__(self, A):
        self.A = A
        self.q = []

    def read(self, text, tag):
        self.A(text)
        self.q.append(tag)

    def need(self, *tags):
        idx = max([i for i, t in enumerate(self.q) if t in tags], default=-1)
        if idx < 0:
            return
        n = len(self.q) - 1 - idx
        self.A('s_waitcnt lgkmcnt(%d)', min(n, 15))
        self.q = self.q[idx + 1:]

    def drain(self):
        if self.q:
            self.A('s_waitcnt lgkmcnt(0)')
        self.q = []


def srd(A, d, base, off, size):
    if off is None:
        A('s_mov_b32 %s, %s', s(d), s(base))
        A('s_mov_b32 %s, %s', s(d + 1), s(base + 1))
    else:
        A('s_add_u32 %s, %s, %s', s(d), s(base), off)
        A('s_addc_u32 %s, %s, 0', s(d + 1), s(base + 1))
    A('s_mov_b32 %s, %s', s(d + 2), size if isinstance(size, str) else '0x%x' % size)
    A('s_mov_b32 %s, 0x20000', s(d + 3))


def stamp(A, idx, sreg=90):
    if not OPT['prof']:
        return
    A('s_memrealtime %s', s(sreg, 2))
    A('s_waitcnt lgkmcnt(0)')
    A('v_writelane_b32 v255, %s, %d', s(sreg), idx)


def stamp_flush(A):
    if not OPT['prof']:
        return
    A('s_lshl_b32 s92, s2, 2')
    A('s_add_u32 s92, s92, %s', s(sWave))
    A('s_lshl_b32 s92, s92, 8')
    A('s_add_u32 s92, s92, 0x%x', 128 << 20)
    srd(A, 96, 18, 's92', 256)
    A('v_lshlrev_b32 v254, 2, v1')
    A('buffer_store_dword v255, v254, s[96:99], 0 offen')


def dma(A, voffs, srdreg, soff, pol):
    for j in range(4):
        A('buffer_load_dwordx4 %s, %s, %s offen offset:%d %s lds', v(voffs[j]), s(srdreg, 4), s(soff), 1024 * j, pol)


def next_slot(A, n=1):
    A('s_add_u32 %s, %s, 0x%x', s(sSlot), s(sSlot), SLOT * n)
    A('s_cmp_ge_u32 %s, 0x%x', s(sSlot), SLOT * 5)
    A('s_cselect_b32 %s, 0x%x, 0', s(sT), SLOT * 5)
    A('s_sub_u32 %s, %s, %s', s(sSlot), s(sSlot), s(sT))


def qproj_loop(A, lbl, vacc, vWa, vBa, vWb, vBb):
    L = Lds(A)
    FA = [[0 + 16 * p + 4 * mt for mt in range(4)] for p in range(2)]
    FB = [32, 36]

    def set_addr():
        for mt in range(4):
            A('v_add_u32 %s, %s, %s', v(vWa + mt), s(sSlot), v(vWb + mt))
        A('v_add_u32 %s, %s, %s', v(vBa), s(sSlot), v(vBb))
        for k in range(1, 4):
            A('v_xor_b32 %s, %d, %s', v(vBa + k), 32 * k, v(vBa))

    def reads(ks):
        p = ks & 1
        out = [('ds_read_b128 %s, %s offset:%d' % (a(FB[p], 4), v(vBa + ks), 16384), ('B', ks))]
        for mt in range(4):
            for aa in range(2):
                out.append(('ds_read_b64_tr_b16 %s, %s offset:%d' % (a(FA[p][mt] + 2 * aa, 2), v(vWa + mt), (16 * ks + 4 * aa) * 256), ('A', ks, mt)))
        return out

    A('s_mov_b32 %s, 0', s(sCnt))
    set_addr()
    A('s_barrier')
    for t, tag in reads(0):
        L.read(t, tag)
    q0 = list(L.q)
    A.label(lbl)
    for ks in range(4):
        p = ks & 1
        if ks < 3:
            nxt = reads(ks + 1)
        else:
            L.drain()
            next_slot(A)
            A('s_add_u32 %s, %s, 1', s(sCnt), s(sCnt))
            A('s_cmp_eq_u32 %s, 8', s(sCnt))
            A('s_cbranch_scc1 %s_last', lbl)
            set_addr()
            A('s_barrier')
            nxt = reads(0)
        split = [3, 2, 2, 2]
        pos = 0
        for mt in range(4):
            L.need(('B', ks), ('A', ks, mt))
            A('%s %s, %s, %s, %s', MFMA, v(vacc + 16 * mt, 16), a(FA[p][mt], 4), a(FB[p], 4), v(vacc + 16 * mt, 16))
            for t, tag in nxt[pos:pos + split[mt]]:
                L.read(t, tag)
            pos += split[mt]
    assert L.q == q0, (L.q, q0)
    A('s_branch %s', lbl)
    A.label(lbl + '_last')
    for mt in range(4):
        A('%s %s, %s, %s, %s', MFMA, v(vacc + 16 * mt, 16), a(FA[1][mt], 4), a(FB[1], 4), v(vacc + 16 * mt, 16))


def tr_lane_base(A, vt, hrow, sigma):
    A('v_lshrrev_b32 %s, 5, v1', v(vt))
    A('v_mul_u32_u24 %s, %d, %s', v(vt), hrow, v(vt))
    A('v_bfe_u32 %s, v1, 2, 2', v(vt + 1))
    A('v_add_u32 %s, %s, %s', v(vt), v(vt), v(vt + 1))
    A('v_lshlrev_b32 %s, 8, %s', v(vt), v(vt))
    A('v_bfe_u32 %s, v1, 4, 1', v(vt + 2))
    A('v_lshl_add_u32 %s, %s, 5, %s', v(vt), v(vt + 2), v(vt))
    if sigma:
        A('v_and_b32 %s, 1, v1', v(vt + 2))
        A('v_lshl_add_u32 %s, %s, 4, %s', v(vt), v(vt + 2), v(vt))
        A('v_bfe_u32 %s, v1, 1, 1', v(vt + 2))
        A('v_lshl_add_u32 %s, %s, 3, %s', v(vt), v(vt + 2), v(vt))
    else:
        A('v_and_b32 %s, 3, v1', v(vt + 2))
        A('v_lshl_add_u32 %s, %s, 3, %s', v(vt), v(vt + 2), v(vt))


def tr_lane_bases(A, vdst, hrow, sigma, vt):
    tr_lane_base(A, vt, hrow, sigma)
    for mt in range(4):
        A('v_xor_b32 %s, %d, %s', v(vt + 2), mt, v(vt + 1))
        A('v_lshl_add_u32 %s, %s, 6, %s', v(vdst + mt), v(vt + 2), v(vt))


def wo_lane_base(A, vdst, vt):
    tr_lane_base(A, vt, 4, True)
    A('v_xor_b32 %s, %s, %s', v(vt + 2), s(sWave), v(vt + 1))
    A('v_lshl_add_u32 %s, %s, 6, %s', v(vdst), v(vt + 2), v(vt))


AWO = 128
LB = [73728, 0, 24576, 49152]
vAcc = 100
vBl = 240


def wo_reads(A, j, vaddr):
    for f in range(8):
        for aa in range(2):
            A('ds_read_b64_tr_b16 %s, %s offset:%d', a(AWO + 32 * j + 4 * f + 2 * aa, 2), v(vaddr), (16 * f + 8 * aa) * 256)


def spin(A, lbl, load, cond_ok):
    A('s_mov_b32 %s, 0', s(sT + 8))
    A.label(lbl)
    load()
    A('s_waitcnt vmcnt(0)')
    cond_ok()
    A('s_cbranch_scc1 %s_ok', lbl)
    A('s_add_u32 %s, %s, 1', s(sT + 8), s(sT + 8))
    A('s_cmp_lt_u32 %s, 0x%x', s(sT + 8), SPIN_MAX)
    A('s_cbranch_scc1 %s', lbl)
    A.label(lbl + '_ok')


def gemm_block(A, j, first, last, store):
    L = Lds(A)
    order = [(qt, f) for qt in range(3) for f in range(8)]
    NB = 6

    def rd(i):
        qt, f = order[i]
        off = LB[j] + qt * 8192 + f * 1024
        base = vBl + (off >> 16)
        L.read('ds_read_b128 %s, %s offset:%d' % (a(4 * (i % NB), 4), v(base), off & 0xffff), i)

    for i in range(NB - 1):
        rd(i)
    for i, (qt, f) in enumerate(order):
        L.need(i)
        acc = v(vAcc + 16 * qt, 16)
        A('%s %s, %s, %s, %s', MFMA, acc, a(AWO + 32 * j + 4 * f, 4), a(4 * (i % NB), 4), '0' if (first and f == 0) else acc)
        if i + NB - 1 < len(order):
            rd(i + NB - 1)
        if last and f == 3 and qt > 0:
            store(qt - 1)
    if last:
        store(2)


def kernel():
    A = Asm()
    A('s_cmp_ge_u32 s2, 256')
    A('s_cbranch_scc1 L_end')
    A('s_load_dwordx4 s[4:7], s[0:1], 0')
    A('s_load_dwordx4 s[8:11], s[0:1], 16')
    A('s_load_dwordx4 s[12:15], s[0:1], 32')
    A('s_load_dwordx4 s[16:19], s[0:1], 48')
    A('v_lshrrev_b32 v2, 6, v0')
    A('v_and_b32 v1, 63, v0')
    A('v_readfirstlane_b32 %s, v2', s(sWave))
    if OPT['prof']:
        A('v_mov_b32 v255, 0')
        stamp(A, 0)
    A('s_and_b32 %s, s2, 7', s(sHg))
    A('s_bfe_u32 %s, s2, 0x30003', s(sB))
    A('s_lshr_b32 %s, s2, 6', s(sHh))
    A('s_lshl_b32 %s, %s, 2', s(sH), s(sHg))
    A('s_add_u32 %s, %s, %s', s(sH), s(sH), s(sHh))
    A('s_lshl_b32 %s, %s, 1', s(sRot), s(sHh))
    A('s_add_u32 %s, %s, %s', s(sRot), s(sRot), s(sB))
    A('s_cmp_lg_u32 %s, 3', s(sWave))
    A('s_cbranch_scc1 L_compute')

    lX, lW, lK, lV, lWo, lT, lA, lP = 4, 8, 12, 16, 20, 24, 32, 34
    A('v_lshrrev_b32 %s, 4, v1', v(lT))
    A('v_and_b32 %s, 15, v1', v(lT + 1))
    A('v_lshlrev_b32 %s, 2, %s', v(lT + 2), v(lT))
    A('v_xor_b32 %s, %s, %s', v(lT + 2), v(lT + 2), v(lT + 1))
    A('v_lshlrev_b32 %s, 4, %s', v(lT + 2), v(lT + 2))
    A('v_lshl_add_u32 %s, %s, 13, %s', v(lW), v(lT), v(lT + 2))
    for j in range(1, 4):
        A('v_add_u32 %s, 0x%x, %s', v(lW + j), j * (32768 - 1024), v(lW))
    A('v_lshrrev_b32 %s, 3, v1', v(lT + 3))
    A('v_and_b32 %s, 7, v1', v(lT + 4))
    A('v_xor_b32 %s, %s, %s', v(lT + 4), v(lT + 4), v(lT))
    A('v_lshlrev_b32 %s, 4, %s', v(lT + 4), v(lT + 4))
    A('v_lshl_add_u32 %s, %s, 10, %s', v(lX), v(lT + 3), v(lT + 4))
    A('v_xor_b32 %s, 64, %s', v(lX + 1), v(lX))
    A('v_add_u32 %s, 0x%x, %s', v(lX + 2), 2 * 7168, v(lX))
    A('v_add_u32 %s, 0x%x, %s', v(lX + 3), 3 * 7168, v(lX + 1))
    A('v_add_u32 %s, 0x%x, %s', v(lX + 1), 7168, v(lX + 1))
    A('s_mul_i32 %s, %s, 98304', s(sT), s(sB))
    A('s_lshl_b32 %s, %s, 8', s(sT + 1), s(sH))
    A('s_sub_u32 %s, 0x400000, %s', s(sT + 2), s(sT + 1))
    A('s_waitcnt lgkmcnt(0)')
    srd(A, sX, 4, s(sT), 98304)
    srd(A, sW, 10, s(sT + 1), s(sT + 2))
    stamp(A, 30)

    items = ['W%d' % i for i in range(8)]
    for j in range(4):
        items += ['K%d' % j, 'O%d' % j, 'V%d' % j]
    NI = len(items)

    def issue(i):
        kind, j = items[i][0], int(items[i][1])
        slot = (i % 5) * SLOT
        if kind == 'W':
            A('s_add_u32 %s, %s, %d', s(sT), s(sRot), j)
            A('s_and_b32 %s, %s, 7', s(sT), s(sT))
            A('s_mov_b32 m0, 0x%x', slot + 16384)
            A('s_lshl_b32 %s, %s, 7', s(sT + 2), s(sT))
            A('s_lshl_b32 %s, %s, 19', s(sT + 1), s(sT))
            for g in range(3):
                if g:
                    A('s_addk_i32 m0, 0x1000')
                    A('s_add_u32 %s, %s, 0x8000', s(sT + 2), s(sT + 2))
                dma(A, [lX, lX + 1, lX + 2, lX + 3], sX, sT + 2, OPT['x_pol'])
            for g in range(4):
                if g:
                    A('s_addk_i32 m0, 0x1000')
                    A('s_add_u32 %s, %s, 0x20000', s(sT + 1), s(sT + 1))
                else:
                    A('s_mov_b32 m0, 0x%x', slot)
                dma(A, [lW, lW + 1, lW + 2, lW + 3], sW, sT + 1, OPT['w_pol'])
            return 28
        A('s_mov_b32 m0, 0x%x', slot)
        if kind == 'O':
            A('s_add_u32 %s, %s, %d', s(sT), s(sHh), j)
            A('s_and_b32 %s, %s, 3', s(sT), s(sT))
            A('s_lshl_b32 %s, %s, 17', s(sT), s(sT))
        else:
            A('s_mov_b32 %s, 0x%x', s(sT), j * 32768)
        for g in range(8):
            if g:
                A('s_addk_i32 m0, 0x1000')
                A('s_addk_i32 %s, 0x%x', s(sT), 0x4000 if kind == 'O' else 0x1000)
            if kind == 'K':
                dma(A, [lK, lK + 1, lK + 2, lK + 3], sK, sT, OPT['kv_pol'])
            elif kind == 'V':
                dma(A, [lV] * 4, sV, sT, OPT['kv_pol'])
            else:
                dma(A, [lWo, lWo + 1, lWo + 2, lWo + 3], sWo, sT, OPT['wo_pol'])
        return 32

    AH = OPT['ahead']
    n = [0] * (NI + 8)
    n[0] = issue(0)
    stamp(A, 31)
    n[1] = issue(1)
    stamp(A, 1)
    A('s_lshl_b32 %s, %s, 5', s(sT), s(sB))
    A('s_add_u32 %s, %s, %s', s(sT), s(sT), s(sH))
    A('s_lshl_b32 %s, %s, 17', s(sT), s(sT))
    srd(A, sK, 6, s(sT), 131072)
    srd(A, sV, 8, s(sT), 131072)
    A('s_lshl_b32 %s, %s, 19', s(sT), s(sHg))
    A('s_lshl_b32 %s, %s, 8', s(sT + 1), s(sHh))
    A('s_add_u32 %s, %s, %s', s(sT), s(sT), s(sT + 1))
    A('s_sub_u32 %s, 0x80000, %s', s(sT + 2), s(sT + 1))
    srd(A, sWo, 12, s(sT), s(sT + 2))
    A('v_lshl_add_u32 %s, %s, 8, %s', v(lV), v(lT), v(lT + 2))
    A('v_lshl_add_u32 %s, %s, 10, %s', v(lWo), v(lT), v(lT + 2))
    for j in range(1, 4):
        A('v_add_u32 %s, 0x%x, %s', v(lWo + j), j * (4096 - 1024), v(lWo))
    for j in range(4):
        A('v_add_u32 %s, %d, %s', v(lT + 3), 4 * j, v(lT))
        A('v_xor_b32 %s, %s, %s', v(lT + 3), v(lT + 3), v(lT + 1))
        A('v_lshlrev_b32 %s, 4, %s', v(lT + 3), v(lT + 3))
        A('v_lshl_add_u32 %s, %s, 8, %s', v(lK + j), v(lT), v(lT + 3))
    wo_lane_base(A, lA, lT)
    for i in range(2, AH):
        n[i] = issue(i)
    for i in range(NI):
        A('s_waitcnt vmcnt(%d)', min(63, sum(n[i + 1:i + AH])))
        if i > 0 and items[i - 1][0] == 'O':
            A('s_waitcnt lgkmcnt(0)')
        stamp(A, 2 + i)
        A('s_barrier')
        if items[i][0] == 'O':
            A('v_add_u32 %s, 0x%x, %s', v(lA + 1), (i % 5) * SLOT, v(lA))
            wo_reads(A, int(items[i][1]), lA + 1)
        if i + AH < NI:
            n[i + AH] = issue(i + AH)
    tail_srds(A)
    A('v_mov_b32 %s, 0', v(lP))

    def ld_cnt():
        A('buffer_load_dword %s, %s, %s, 0 offen sc1', v(lP + 1), v(lP), s(sDbg, 4))

    def ok_cnt():
        A('v_readfirstlane_b32 %s, %s', s(sT), v(lP + 1))
        A('s_cmp_ge_u32 %s, 256', s(sT))
    spin(A, 'L_cnt', ld_cnt, ok_cnt)
    A('v_lshrrev_b32 %s, 2, v1', v(lP))
    A('v_min_u32 %s, 2, %s', v(lP), v(lP))
    A('v_add_u32 %s, %s, %s', v(lP), s(sHh), v(lP))
    A('v_add_u32 %s, 1, %s', v(lP), v(lP))
    A('v_and_b32 %s, 3, %s', v(lP), v(lP))
    A('v_lshlrev_b32 %s, 14, %s', v(lP), v(lP))
    A('v_and_b32 %s, 3, v1', v(lP + 1))
    A('v_min_u32 %s, 2, %s', v(lP + 1), v(lP + 1))
    A('v_lshl_add_u32 %s, %s, 2, %s', v(lP), v(lP + 1), v(lP))
    A('s_and_b32 %s, s2, 63', s(sT + 1))
    A('s_lshl_b32 %s, %s, 8', s(sT + 1), s(sT + 1))

    def ld_f1():
        A('buffer_load_dword %s, %s, %s, %s offen sc1', v(lP + 1), v(lP), s(sF, 4), s(sT + 1))

    def ok_all():
        A('v_cmp_ne_u32 vcc, 1, %s', v(lP + 1))
        A('s_cmp_eq_u64 vcc, 0')
    spin(A, 'L_f1', ld_f1, ok_all)
    stamp(A, 22)
    for j in range(1, 4):
        A('s_add_u32 %s, %s, %d', s(sT), s(sHh), j)
        A('s_and_b32 %s, %s, 3', s(sT), s(sT))
        A('s_lshl_b32 %s, %s, 6', s(sT), s(sT))
        A('s_and_b32 %s, s2, 63', s(sT + 1))
        A('s_add_u32 %s, %s, %s', s(sT), s(sT), s(sT + 1))
        A('s_mov_b32 m0, 0x%x', LB[j])
        A('s_mul_i32 %s, %s, 24576', s(sT), s(sT))
        for g in range(6):
            if g:
                A('s_addk_i32 m0, 0x1000')
                A('s_addk_i32 %s, 0x1000', s(sT))
            dma(A, [vBl] * 4, sO, sT, 'sc1')
    A('s_branch L_tail')

    A.label('L_compute')
    vQ, vO, vS, vP = 4, 36, 100, 164
    vWb, vXb, vWa, vXa = 196, 200, 201, 205
    vKb, vKa, vVb, vVa = 209, 210, 218, 222
    vM, vL, vT, vOb, vOa = 226, 227, 230, 238, 239
    A('s_waitcnt lgkmcnt(0)')
    tail_srds(A)
    A('s_cmp_lg_u32 %s, 0', s(sWave))
    A('s_cbranch_scc1 L_noreset')
    for i in range(4):
        A('v_mov_b32 %s, 0', v(vO + i))
    A('v_lshlrev_b32 %s, 7, v1', v(vT))
    A('s_lshl_b32 %s, s2, 8', s(sT))
    A('s_mov_b64 exec, 3')
    A('buffer_store_dwordx4 %s, %s, %s, %s offen sc1', v(vO, 4), v(vT), s(sF, 4), s(sT))
    A('s_mov_b64 exec, -1')
    if OPT['pfcode']:
        A('s_getpc_b64 %s', s(sT + 2, 2))
        A('s_and_b32 %s, %s, 0xffffff80', s(sT + 2), s(sT + 2))
        A('global_load_dword v250, %s, %s', v(vT), s(sT + 2, 2))
    A.label('L_noreset')
    tr_lane_bases(A, vWb, 8, True, vT)
    tr_lane_bases(A, vVb, 4, False, vT)
    wo_lane_base(A, vOb, vT)
    A('v_and_b32 %s, 31, v1', v(vT))
    A('s_lshl_b32 %s, %s, 5', s(sT), s(sWave))
    A('v_add_u32 %s, %s, %s', v(vT), s(sT), v(vT))
    A('v_bfe_u32 %s, %s, 1, 3', v(vT + 1), v(vT))
    A('v_lshrrev_b32 %s, 5, v1', v(vT + 2))
    A('v_xor_b32 %s, %s, %s', v(vT + 1), v(vT + 1), v(vT + 2))
    A('v_lshlrev_b32 %s, 4, %s', v(vT + 1), v(vT + 1))
    A('v_lshl_add_u32 %s, %s, 7, %s', v(vXb), v(vT), v(vT + 1))
    A('v_and_b32 %s, 31, v1', v(vT))
    A('v_and_b32 %s, 15, v1', v(vT + 1))
    A('v_xor_b32 %s, %s, %s', v(vT + 1), v(vT + 1), v(vT + 2))
    A('v_lshlrev_b32 %s, 4, %s', v(vT + 1), v(vT + 1))
    A('v_lshl_add_u32 %s, %s, 8, %s', v(vKb), v(vT), v(vT + 1))
    for i in range(0, 64, 2):
        A('v_mov_b64 %s, 0', v(vS + i, 2))
    for i in range(0, 64, 2):
        A('v_mov_b64 %s, 0', v(vO + i, 2))
    A('v_mov_b32 %s, 0xff800000', v(vM))
    A('v_mov_b32 %s, 0', v(vL))
    A('v_mov_b32 %s, 0', v(vL + 1))
    A('s_mov_b32 %s, 0x%x', s(sC), C_SCALE)
    A('s_mov_b32 %s, 0', s(sSlot))
    stamp(A, 1)
    qproj_loop(A, 'L_qp', vS, vWa, vXa, vWb, vXb)
    stamp(A, 2)
    for i in range(32):
        A('v_cvt_pk_bf16_f32 %s, %s, %s', v(vQ + i), v(vS + 2 * i), v(vS + 2 * i + 1))

    L = Lds(A)
    A('s_mov_b32 %s, 0', s(sCnt))
    A('s_bfe_u32 %s, s2, 0x20003', s(sT + 10))
    A('s_lshl_b32 %s, %s, 4', s(sT + 9), s(sWave))
    A('s_add_u32 %s, %s, %s', s(sT + 10), s(sT + 10), s(sT + 9))
    A.label('L_att')
    A('s_cmp_lg_u32 %s, %s', s(sCnt), s(sT + 10))
    A('s_cbranch_scc1 L_noatom')
    A('s_waitcnt vmcnt(0)')
    A('v_mov_b32 %s, 1', v(vT + 1))
    A('v_mov_b32 %s, 0', v(vT))
    A('s_mov_b64 exec, 1')
    A('buffer_atomic_add %s, %s, %s, 0 offen sc1', v(vT + 1), v(vT), s(sDbg, 4))
    A('s_mov_b64 exec, -1')
    A.label('L_noatom')
    A('v_add_u32 %s, %s, %s', v(vKa), s(sSlot), v(vKb))
    for k in range(1, 8):
        A('v_xor_b32 %s, %d, %s', v(vKa + k), 32 * k, v(vKa))
    next_slot(A)
    A('v_add_u32 %s, %s, %s', v(vOa), s(sSlot), v(vOb))
    next_slot(A)
    for mt in range(4):
        A('v_add_u32 %s, %s, %s', v(vVa + mt), s(sSlot), v(vVb + mt))
    next_slot(A)
    A('s_barrier')
    KF = [[32 * p + 4 * k for k in range(8)] for p in range(2)]

    def kread(t, k):
        return ('ds_read_b128 %s, %s offset:%d' % (a(KF[t & 1][k], 4), v(vKa + k), 8192 * t), ('K', t, k))

    for k in range(8):
        L.read(*kread(0, k))
    vMx = vT

    def max_ops(t):
        r = vS + 16 * t
        ops = []
        if t == 0:
            ops.append('v_max3_f32 %s, %s, %s, %s' % (v(vMx), v(r), v(r + 1), v(vM)))
            rest = range(2, 16, 2)
        else:
            rest = range(0, 16, 2)
        for i in rest:
            ops.append('v_max3_f32 %s, %s, %s, %s' % (v(vMx), v(r + i), v(r + i + 1), v(vMx)))
        return ops

    for t in range(4):
        mo = max_ops(t - 1) if t > 0 else []
        for k in range(8):
            L.need(('K', t, k))
            A('%s %s, %s, %s, %s', MFMA, v(vS + 16 * t, 16), a(KF[t & 1][k], 4), v(vQ + 4 * k, 4), '0' if k == 0 else v(vS + 16 * t, 16))
            if t < 3:
                L.read(*kread(t + 1, k))
            if k >= 4 and mo:
                for o in mo[:2]:
                    A(o)
                mo = mo[2:]
        assert not mo
    for o in max_ops(3):
        A(o)
    A('v_mov_b32 %s, %s', v(vT + 1), v(vMx))
    A('v_permlane32_swap_b32 %s, %s', v(vT + 1), v(vMx))
    A('v_max_f32 %s, %s, %s', v(vMx), v(vMx), v(vT + 1))
    A('v_mul_f32 %s, %s, %s', v(vT + 2), s(sC), v(vMx))
    A('v_fma_f32 %s, %s, %s, -%s', v(vT + 3), v(vM), s(sC), v(vT + 2))
    A('v_exp_f32 %s, %s', v(vT + 4), v(vT + 3))
    A('v_mov_b32 %s, %s', v(vM), v(vMx))
    for i in range(64):
        A('v_fma_f32 %s, %s, %s, -%s', v(vS + i), v(vS + i), s(sC), v(vT + 2))
        if i == 1:
            A('v_mul_f32 %s, %s, %s', v(vL), v(vT + 4), v(vL))
            A('v_mul_f32 %s, %s, %s', v(vL + 1), v(vT + 4), v(vL + 1))
        if i >= 1:
            A('v_exp_f32 %s, %s', v(vS + i - 1), v(vS + i - 1))
        if i >= 3 and i % 2 == 1:
            j = i - 3
            A('v_add_f32 %s, %s, %s', v(vL), v(vS + j), v(vL))
            A('v_add_f32 %s, %s, %s', v(vL + 1), v(vS + j + 1), v(vL + 1))
            A('v_cvt_pk_bf16_f32 %s, %s, %s', v(vP + j // 2), v(vS + j), v(vS + j + 1))
    A('v_exp_f32 %s, %s', v(vS + 63), v(vS + 63))
    A('v_mov_b32 %s, %s', v(vT + 5), v(vT + 4))
    A('v_add_f32 %s, %s, %s', v(vL), v(vS + 62), v(vL))
    A('v_add_f32 %s, %s, %s', v(vL + 1), v(vS + 63), v(vL + 1))
    A('v_cvt_pk_bf16_f32 %s, %s, %s', v(vP + 31), v(vS + 62), v(vS + 63))
    A('s_barrier')
    for j in range(4):
        if j < 3:
            A('s_cmp_lg_u32 %s, %d', s(sCnt), j)
            A('s_cbranch_scc1 L_wo%d', j + 1)
        wo_reads(A, j, vOa)
        if j < 3:
            A('s_branch L_wodone')
            A.label('L_wo%d' % (j + 1))
    A.label('L_wodone')
    for i in range(0, 64, 2):
        A('v_pk_mul_f32 %s, %s, %s', v(vO + i, 2), v(vO + i, 2), v(vT + 4, 2))
    A('s_waitcnt lgkmcnt(0)')
    A('s_barrier')
    VF = [[64 + 16 * p + 4 * mt for mt in range(4)] for p in range(2)]

    def vreads(p):
        out = []
        for mt in range(4):
            for aa in range(2):
                out.append(('ds_read_b64_tr_b16 %s, %s offset:%d' % (a(VF[p & 1][mt] + 2 * aa, 2), v(vVa + mt), (16 * p + 8 * aa) * 256), ('V', p, mt)))
        return out

    for t_, tag in vreads(0):
        L.read(t_, tag)
    for p in range(8):
        nxt = vreads(p + 1) if p < 7 else []
        for mt in range(4):
            L.need(('V', p, mt))
            A('%s %s, %s, %s, %s', MFMA, v(vO + 16 * mt, 16), a(VF[p & 1][mt], 4), v(vP + 4 * p, 4), v(vO + 16 * mt, 16))
            for t_, tag in nxt[2 * mt:2 * mt + 2]:
                L.read(t_, tag)
    assert not L.q
    A('s_add_u32 %s, %s, 1', s(sCnt), s(sCnt))
    A('s_cmp_lt_u32 %s, 4', s(sCnt))
    A('s_cbranch_scc1 L_att')
    stamp(A, 3)
    A.c('normalise, convert, publish O fragments (global outbox + own LDS region)')
    A('v_add_f32 %s, %s, %s', v(vL), v(vL), v(vL + 1))
    A('v_mov_b32 %s, %s', v(vT), v(vL))
    A('v_permlane32_swap_b32 %s, %s', v(vT), v(vL))
    A('v_add_f32 %s, %s, %s', v(vL), v(vL), v(vT))
    A('v_rcp_f32 %s, %s', v(vT), v(vL))
    A('s_lshl_b32 %s, %s, 13', s(sT + 1), s(sWave))
    A('s_mul_i32 %s, s2, 24576', s(sT))
    A('s_add_u32 %s, %s, %s', s(sT), s(sT), s(sT + 1))
    A('s_add_u32 %s, %s, 0x%x', s(sT + 1), s(sT + 1), LB[0])
    A('v_mov_b32 %s, %s', v(vT + 1), v(vT))
    A('v_add_u32 %s, %s, %s', v(vT + 2), s(sT + 1), v(vBl))
    for f in range(8):
        for i in range(4):
            r = vO + 8 * f + 2 * i
            A('v_pk_mul_f32 %s, %s, %s', v(r, 2), v(r, 2), v(vT, 2))
        for i in range(4):
            r = vO + 8 * f + 2 * i
            A('v_cvt_pk_bf16_f32 %s, %s, %s', v(vP + 4 * f + i), v(r), v(r + 1))
        if f == 4:
            A('s_addk_i32 %s, 0x1000', s(sT))
        A('buffer_store_dwordx4 %s, %s, %s, %s offen offset:%d sc1', v(vP + 4 * f, 4), v(vBl), s(sO, 4), s(sT), 1024 * (f & 3))
    for f in range(8):
        A('ds_write_b128 %s, %s offset:%d', v(vT + 2), v(vP + 4 * f, 4), 1024 * f)
    stamp(A, 4)
    A('s_lshl_b32 %s, s2, 8', s(sT))
    A('s_lshl_b32 %s, %s, 2', s(sT + 1), s(sWave))
    A('s_add_u32 %s, %s, %s', s(sT), s(sT), s(sT + 1))
    A('v_mov_b32 %s, 1', v(vT))
    A('v_mov_b32 %s, 0', v(vT + 1))
    A('s_waitcnt vmcnt(0)')
    A('s_mov_b64 exec, 1')
    A('buffer_store_dword %s, %s, %s, %s offen sc1', v(vT), v(vT + 1), s(sF, 4), s(sT))
    A('s_mov_b64 exec, -1')
    stamp(A, 5)
    A('s_waitcnt lgkmcnt(0)')

    A.label('L_tail')
    vU = 230
    A('s_barrier')
    stamp(A, 23)
    gemm_block(A, 0, True, False, None)
    stamp(A, 24)
    A('s_and_b32 %s, s2, 0xf8', s(sT))
    A('s_lshl_b32 %s, %s, 1', s(sT + 1), s(sWave))
    A('s_add_u32 %s, %s, %s', s(sT), s(sT), s(sT + 1))
    A('s_mul_i32 %s, %s, 49152', s(sT), s(sT))
    A('s_mul_i32 %s, %s, 6144', s(sT + 1), s(sHg))
    A('s_add_u32 %s, %s, %s', s(sT + 4), s(sT), s(sT + 1))

    def store(qt):
        for t in range(2):
            o = 2 * qt + t
            off = (o // 3) * 49152 + (o % 3) * 2048
            A('s_add_u32 %s, %s, 0x%x', s(sT + 5), s(sT + 4), off)
            for hf in range(2):
                A('buffer_store_dwordx4 %s, %s, %s, %s offen offset:%d sc1', v(vAcc + 16 * qt + 8 * t + 4 * hf, 4), v(vBl), s(sPo, 4), s(sT + 5), 1024 * hf)

    for j in range(1, 4):
        A('s_waitcnt vmcnt(%d)', 24 * (3 - j))
        A('s_barrier')
        gemm_block(A, j, False, j == 3, store)
    stamp(A, 25)
    A('s_lshl_b32 %s, s2, 8', s(sT))
    A('s_lshl_b32 %s, %s, 2', s(sT + 1), s(sWave))
    A('s_add_u32 %s, %s, %s', s(sT), s(sT), s(sT + 1))
    A('v_mov_b32 %s, 1', v(vU))
    A('v_mov_b32 %s, 0', v(vU + 1))
    A('s_waitcnt vmcnt(0)')
    A('s_mov_b64 exec, 1')
    A('buffer_store_dword %s, %s, %s, %s offen offset:128 sc1', v(vU), v(vU + 1), s(sF, 4), s(sT))
    A('s_mov_b64 exec, -1')
    stamp(A, 26)
    A('s_cmp_lg_u32 %s, 3', s(sWave))
    A('s_cbranch_scc1 L_red')
    A('v_and_b32 %s, 7, v1', v(vU))
    A('v_lshlrev_b32 %s, 8, %s', v(vU), v(vU))
    A('s_and_b32 %s, s2, 0xf8', s(sT))
    A('s_lshl_b32 %s, %s, 8', s(sT), s(sT))
    A('s_lshr_b32 %s, %s, 1', s(sT + 1), s(sHg))
    A('s_lshl_b32 %s, %s, 2', s(sT + 1), s(sT + 1))
    A('s_add_u32 %s, %s, %s', s(sT + 1), s(sT), s(sT + 1))

    def ld_f2():
        A('buffer_load_dword %s, %s, %s, %s offen offset:128 sc1', v(vU + 1), v(vU), s(sF, 4), s(sT + 1))

    def ok_f2():
        A('v_cmp_ne_u32 vcc, 1, %s', v(vU + 1))
        A('s_cmp_eq_u64 vcc, 0')
    spin(A, 'L_f2', ld_f2, ok_f2)
    stamp(A, 27)
    A('s_barrier')
    stamp_flush(A)
    A('s_endpgm')

    A.label('L_red')
    vR = 4
    A('s_mul_i32 %s, s2, 49152', s(sT))
    A('s_lshl_b32 %s, %s, 11', s(sT + 1), s(sWave))
    A('s_add_u32 %s, %s, %s', s(sT), s(sT), s(sT + 1))
    A('s_and_b32 %s, %s, 1', s(sT + 1), s(sHg))
    A('s_mul_i32 %s, %s, 3', s(sT + 1), s(sT + 1))
    A('s_add_u32 %s, %s, %s', s(sT + 1), s(sT + 1), s(sWave))
    A('s_lshr_b32 %s, %s, 1', s(sT + 2), s(sT + 1))
    A('s_lshl_b32 %s, %s, 15', s(sT + 2), s(sT + 2))
    A('s_and_b32 %s, %s, 1', s(sT + 1), s(sT + 1))
    A('s_lshl_b32 %s, %s, 5', s(sT + 1), s(sT + 1))
    A('s_add_u32 %s, %s, %s', s(sT + 2), s(sT + 2), s(sT + 1))
    A('s_lshr_b32 %s, %s, 1', s(sT + 1), s(sHg))
    A('s_lshl_b32 %s, %s, 6', s(sT + 1), s(sT + 1))
    A('s_add_u32 %s, %s, %s', s(sT + 2), s(sT + 2), s(sT + 1))
    A('s_lshl_b32 %s, %s, 8', s(sT + 1), s(sHh))
    A('s_add_u32 %s, %s, %s', s(sT + 2), s(sT + 2), s(sT + 1))
    A('v_and_b32 %s, 31, v1', v(vU))
    A('v_lshlrev_b32 %s, 10, %s', v(vU), v(vU))
    A('v_lshrrev_b32 %s, 5, v1', v(vU + 1))
    A('v_lshl_add_u32 %s, %s, 4, %s', v(vU), v(vU + 1), v(vU))
    A('s_barrier')
    for k in range(8):
        for hf in range(2):
            A('buffer_load_dwordx4 %s, %s, %s, %s offen offset:%d sc1', v(vR + 8 * k + 4 * hf, 4), v(vBl), s(sPo, 4), s(sT), 1024 * hf)
        if k < 7:
            A('s_addk_i32 %s, 0x1800', s(sT))
    for k in range(1, 8):
        A('s_waitcnt vmcnt(%d)', 2 * (7 - k))
        for i in range(0, 8, 2):
            A('v_pk_add_f32 %s, %s, %s', v(vR + i, 2), v(vR + i, 2), v(vR + 8 * k + i, 2))
    for i in range(4):
        A('v_cvt_pk_bf16_f32 %s, %s, %s', v(vR + 8 + i), v(vR + 2 * i), v(vR + 2 * i + 1))
    A('buffer_store_dwordx4 %s, %s, %s, %s offen', v(vR + 8, 4), v(vU), s(sOut, 4), s(sT + 2))
    if OPT['prof']:
        stamp(A, 28)
        A('s_waitcnt vmcnt(0)')
        stamp(A, 29)
        stamp_flush(A)
    A.label('L_end')
    A('s_endpgm')
    return A.lines


def tail_srds(A):
    srd(A, sO, 18, '0x%x' % WS_O if WS_O else None, 256 * 24576)
    srd(A, sPo, 18, '0x%x' % WS_P, 256 * 49152)
    srd(A, sF, 18, '0x%x' % WS_F, 256 * 256)
    srd(A, sDbg, 16, None, 256)
    A('s_mul_i32 %s, %s, 98304', s(sT), s(sB))
    srd(A, sOut, 14, s(sT), 98304)
    A('v_lshlrev_b32 %s, 4, v1', v(vBl))
    A('v_add_u32 %s, 0x10000, %s', v(vBl + 1), v(vBl))


def main():
    k, n = pad_hazards(kernel())
    out = ['; %s : fused Q-proj + attention + output projection' % NAME,
           '; @launch grid=(256,1,1) block=(256,1,1) lds=163840',
           '.amdgcn_target "amdgcn-amd-amdhsa--gfx950"', '.text',
           '.globl %s_kernel\n.p2align 8\n.type %s_kernel,@function\n%s_kernel:' % (NAME, NAME, NAME)]
    out += k
    out.append('''.section .rodata,"a"
.p2align 6
.amdhsa_kernel %s_kernel
  .amdhsa_next_free_vgpr 512
  .amdhsa_next_free_sgpr 102
  .amdhsa_accum_offset 256
  .amdhsa_group_segment_fixed_size 0
  .amdhsa_kernarg_size 64
  .amdhsa_user_sgpr_count 2
  .amdhsa_user_sgpr_kernarg_segment_ptr 1
  .amdhsa_system_sgpr_workgroup_id_x 1
.end_amdhsa_kernel''' % NAME)
    open(sys.argv[1], 'w').write('\n'.join(out) + '\n')
    print('wrote', sys.argv[1], 'pads', n)


main()
```

```python
import sys
from asmlib import Asm, pad_hazards, v, a, s

OPT = dict(kv_pol='nt', w_pol='', x_pol='', wo_pol='', prof=0, la=10, law=11, pfcode=1, force_remote=0, early2=1, ws_off=0, out_pol='', p_pol='sc1')
for arg in sys.argv[2:]:
    k, val = arg.split('=')
    OPT[k] = int(val, 0) if isinstance(OPT[k], int) else val

NAME = 'standalone__mha_block_cached__near_ridge'
C_SCALE = 0x3e0293ee
MFMA = 'v_mfma_f32_32x32x16_bf16'
WS_O, WS_P, WS_F = OPT['ws_off'], OPT['ws_off'] + (6 << 20), OPT['ws_off'] + (12 << 20)
SPIN_MAX = 1 << 20
WSTR = 28672
KVS = [114688, 0, 65536]
RB = [49152, 73728, 98304]
ROWN = 122880
STAT = 147456

sX, sK, sV, sW, sWo, sO, sPo, sF, sOut, sDbg = 20, 24, 28, 32, 36, 56, 60, 64, 68, 72
sWave, sHg, sB, sHh, sH, sRot = 40, 41, 43, 44, 45, 46
sSlot, sCnt, sC = 47, 48, 50
sS0, sS1, sS2, sLocal, sSel = 52, 53, 54, 55, 42
sT = 76
AWO = 128
vBl = 240
vAcc = 4


class Lds:
    def __init__(self, A):
        self.A = A
        self.q = []

    def read(self, text, tag):
        self.A(text)
        self.q.append(tag)

    def need(self, *tags):
        idx = max([i for i, t in enumerate(self.q) if t in tags], default=-1)
        if idx < 0:
            return
        n = len(self.q) - 1 - idx
        self.A('s_waitcnt lgkmcnt(%d)', min(n, 15))
        self.q = self.q[idx + 1:]

    def drain(self):
        if self.q:
            self.A('s_waitcnt lgkmcnt(0)')
        self.q = []


def srd(A, d, base, off, size):
    if off is None:
        A('s_mov_b32 %s, %s', s(d), s(base))
        A('s_mov_b32 %s, %s', s(d + 1), s(base + 1))
    else:
        A('s_add_u32 %s, %s, %s', s(d), s(base), off)
        A('s_addc_u32 %s, %s, 0', s(d + 1), s(base + 1))
    A('s_mov_b32 %s, %s', s(d + 2), size if isinstance(size, str) else '0x%x' % size)
    A('s_mov_b32 %s, 0x20000', s(d + 3))


def stamp(A, idx, op='s_memrealtime'):
    if not OPT['prof']:
        return
    A('%s s[90:91]', op)
    A('s_waitcnt lgkmcnt(0)')
    A('v_writelane_b32 v255, s90, %d', idx)


def stampd(A, base, mul, cnt=None):
    if OPT['prof'] < 2:
        return
    A('s_memrealtime s[90:91]')
    A('s_mul_i32 m0, %s, %d', s(sCnt if cnt is None else cnt), mul)
    A('s_add_u32 m0, m0, %d', base)
    A('s_waitcnt lgkmcnt(0)')
    A('v_writelane_b32 v255, s90, m0')


def stamp_flush(A):
    if not OPT['prof']:
        return
    A('s_lshl_b32 s92, s2, 2')
    A('s_add_u32 s92, s92, %s', s(sWave))
    A('s_lshl_b32 s92, s92, 8')
    A('s_add_u32 s92, s92, 0x%x', 128 << 20)
    srd(A, 96, 18, 's92', 256)
    A('v_lshlrev_b32 v254, 2, v1')
    A('buffer_store_dword v255, v254, s[96:99], 0 offen')


def dma(A, voffs, srdreg, soff, pol):
    for j in range(4):
        A('buffer_load_dwordx4 %s, %s, %s offen offset:%d %s lds', v(voffs[j]), s(srdreg, 4), s(soff), 1024 * j, pol)


def tr_lane_base(A, vt, hrow, sigma):
    A('v_lshrrev_b32 %s, 5, v1', v(vt))
    A('v_mul_u32_u24 %s, %d, %s', v(vt), hrow, v(vt))
    A('v_bfe_u32 %s, v1, 2, 2', v(vt + 1))
    A('v_add_u32 %s, %s, %s', v(vt), v(vt), v(vt + 1))
    A('v_lshlrev_b32 %s, 8, %s', v(vt), v(vt))
    A('v_bfe_u32 %s, v1, 4, 1', v(vt + 2))
    A('v_lshl_add_u32 %s, %s, 5, %s', v(vt), v(vt + 2), v(vt))
    if sigma:
        A('v_and_b32 %s, 1, v1', v(vt + 2))
        A('v_lshl_add_u32 %s, %s, 4, %s', v(vt), v(vt + 2), v(vt))
        A('v_bfe_u32 %s, v1, 1, 1', v(vt + 2))
        A('v_lshl_add_u32 %s, %s, 3, %s', v(vt), v(vt + 2), v(vt))
    else:
        A('v_and_b32 %s, 3, v1', v(vt + 2))
        A('v_lshl_add_u32 %s, %s, 3, %s', v(vt), v(vt + 2), v(vt))


def tr_lane_bases(A, vdst, hrow, sigma, vt):
    tr_lane_base(A, vt, hrow, sigma)
    for mt in range(4):
        A('v_xor_b32 %s, %d, %s', v(vt + 2), mt, v(vt + 1))
        A('v_lshl_add_u32 %s, %s, 6, %s', v(vdst + mt), v(vt + 2), v(vt))


def wo_lane_base(A, vdst, vt):
    tr_lane_base(A, vt, 4, True)
    A('v_xor_b32 %s, %s, %s', v(vt + 2), s(sWave), v(vt + 1))
    A('v_lshl_add_u32 %s, %s, 6, %s', v(vdst), v(vt + 2), v(vt))


def wo_reads(A, j, half, vaddr):
    for f in range(4):
        for aa in range(2):
            A('ds_read_b64_tr_b16 %s, %s offset:%d', a(AWO + 32 * j + 16 * half + 4 * f + 2 * aa, 2), v(vaddr), (16 * f + 8 * aa) * 256)


def tail_srds(A):
    srd(A, sO, 18, '0x%x' % WS_O if WS_O else None, 256 * 24576)
    srd(A, sPo, 18, '0x%x' % WS_P, 256 * 24576)
    srd(A, sF, 18, '0x%x' % WS_F, 256 * 256)
    srd(A, sDbg, 16, None, 256)
    A('s_mul_i32 %s, %s, 98304', s(sT), s(sB))
    srd(A, sOut, 14, s(sT), 98304)
    A('v_lshlrev_b32 %s, 4, v1', v(vBl))


def plan():
    groups = []
    steps = []
    for i in range(8):
        base = WSTR * (i % 5)
        for g in range(3):
            groups.append(('x', i, g, base + 16384 + 4096 * g, i))
        for g in range(4):
            groups.append(('w', i, g, base + 4096 * g, i))
        steps.append(['W%d' % i, len(groups) - 1, i - 1])
    for t in range(8):
        base = KVS[t % 3]
        j, isv = t >> 1, t & 1
        kv = lambda g: ('v' if isv else 'k', j, g, base + 16384 + 4096 * g, 8 + t)
        wo = lambda g: ('o', j, 4 * isv + g, base + 4096 * g, 8 + t)
        if t == 0:
            seq = [kv(g) for g in range(3, 8)] + [kv(0), wo(0), kv(1), wo(1), kv(2), wo(2), wo(3)]
        elif t == 7:
            seq = [wo(g) for g in range(4)] + [kv(g) for g in range(8)]
        else:
            seq = []
            for q in range(4):
                seq += [wo(q), kv(2 * q), kv(2 * q + 1)]
        groups += seq
        if t < 7:
            steps.append(['%s%d' % ('KV'[isv], j), len(groups) - 1, 8 + t])
        else:
            e = len(groups) - 1
            for q in range(4):
                steps.append(['V3' + 'abcd'[q], e - 6 + 2 * q, 15])
    return steps, groups


def loader(A):
    lX, lW, lK, lV, lWo, lT, lA, lP = 200, 204, 208, 212, 216, 220, 228, 234
    A('v_lshrrev_b32 %s, 4, v1', v(lT))
    A('v_and_b32 %s, 15, v1', v(lT + 1))
    A('v_lshrrev_b32 %s, 3, v1', v(lT + 3))
    A('v_and_b32 %s, 7, v1', v(lT + 4))
    A('v_xor_b32 %s, %s, %s', v(lT + 4), v(lT + 4), v(lT))
    A('v_lshlrev_b32 %s, 4, %s', v(lT + 4), v(lT + 4))
    A('v_lshl_add_u32 %s, %s, 10, %s', v(lX), v(lT + 3), v(lT + 4))
    A('v_xor_b32 %s, 64, %s', v(lX + 1), v(lX))
    A('v_add_u32 %s, 0x%x, %s', v(lX + 2), 2 * 7168, v(lX))
    A('v_add_u32 %s, 0x%x, %s', v(lX + 3), 3 * 7168, v(lX + 1))
    A('v_add_u32 %s, 0x%x, %s', v(lX + 1), 7168, v(lX + 1))
    A('v_lshlrev_b32 %s, 2, %s', v(lT + 2), v(lT))
    A('v_xor_b32 %s, %s, %s', v(lT + 2), v(lT + 2), v(lT + 1))
    A('v_lshlrev_b32 %s, 4, %s', v(lT + 2), v(lT + 2))
    A('v_lshl_add_u32 %s, %s, 13, %s', v(lW), v(lT), v(lT + 2))
    for j in range(1, 4):
        A('v_add_u32 %s, 0x%x, %s', v(lW + j), j * (32768 - 1024), v(lW))
    A('s_mul_i32 %s, %s, 98304', s(sT), s(sB))
    A('s_lshl_b32 %s, %s, 8', s(sT + 1), s(sH))
    A('s_sub_u32 %s, 0x400000, %s', s(sT + 2), s(sT + 1))
    A('s_waitcnt lgkmcnt(0)')
    srd(A, sX, 4, s(sT), 98304)
    srd(A, sW, 10, s(sT + 1), s(sT + 2))
    stamp(A, 30)

    def setup2():
        A('s_lshl_b32 %s, %s, 5', s(sT), s(sB))
        A('s_add_u32 %s, %s, %s', s(sT), s(sT), s(sH))
        A('s_lshl_b32 %s, %s, 17', s(sT), s(sT))
        srd(A, sK, 6, s(sT), 131072)
        srd(A, sV, 8, s(sT), 131072)
        A('s_lshl_b32 %s, %s, 19', s(sT), s(sHg))
        A('s_lshl_b32 %s, %s, 8', s(sT + 1), s(sHh))
        A('s_add_u32 %s, %s, %s', s(sT), s(sT), s(sT + 1))
        A('s_sub_u32 %s, 0x80000, %s', s(sT + 2), s(sT + 1))
        srd(A, sWo, 12, s(sT), s(sT + 2))
        A('v_lshl_add_u32 %s, %s, 8, %s', v(lV), v(lT), v(lT + 2))
        A('v_lshl_add_u32 %s, %s, 10, %s', v(lWo), v(lT), v(lT + 2))
        for j in range(1, 4):
            A('v_add_u32 %s, 0x%x, %s', v(lWo + j), j * (4096 - 1024), v(lWo))
        for j in range(4):
            A('v_add_u32 %s, %d, %s', v(lT + 3), 4 * j, v(lT))
            A('v_xor_b32 %s, %s, %s', v(lT + 3), v(lT + 3), v(lT + 1))
            A('v_lshlrev_b32 %s, 4, %s', v(lT + 3), v(lT + 3))
            A('v_lshl_add_u32 %s, %s, 8, %s', v(lK + j), v(lT), v(lT + 3))
        wo_lane_base(A, lA, lT)
        tail_srds(A)
        A('s_and_b32 %s, s2, 63', s(sT + 1))
        for j in range(1, 4):
            A('s_add_u32 %s, %s, %d', s(sT), s(sHh), j)
            A('s_and_b32 %s, %s, 3', s(sT), s(sT))
            A('s_lshl_b32 %s, %s, 6', s(sT), s(sT))
            A('s_add_u32 %s, %s, %s', s(sT), s(sT), s(sT + 1))
            A('s_mul_i32 %s, %s, 24576', s(sT + 10 + j), s(sT))
        A('v_lshrrev_b32 %s, 2, v1', v(lP))
        A('v_min_u32 %s, 2, %s', v(lP), v(lP))
        A('v_add_u32 %s, %s, %s', v(lP), s(sHh), v(lP))
        A('v_add_u32 %s, 1, %s', v(lP), v(lP))
        A('v_and_b32 %s, 3, %s', v(lP), v(lP))
        A('v_lshlrev_b32 %s, 6, %s', v(lP), v(lP))
        A('v_add_u32 %s, %s, %s', v(lP), s(sT + 1), v(lP))
        A('v_lshlrev_b32 %s, 8, %s', v(lP), v(lP))
        A('v_and_b32 %s, 3, v1', v(lP + 1))
        A('v_min_u32 %s, 2, %s', v(lP + 1), v(lP + 1))
        A('v_lshl_add_u32 %s, %s, 2, %s', v(lP), v(lP + 1), v(lP))
        A('v_mov_b32 %s, 0x%x', v(lP + 2), STAT)
        A('v_mov_b32 %s, 0', v(lP + 3))

    steps, groups = plan()
    st = dict(m0=None, key=None, so=None)
    sXo, sWq, sG, sOo = sT + 3, sT + 4, sT + 5, sT + 6

    def issue(gi):
        kind, j, g, lds, _ = groups[gi]
        if st['m0'] is not None and 0 < lds - st['m0'] < 32768:
            A('s_addk_i32 m0, 0x%x', lds - st['m0'])
        else:
            A('s_mov_b32 m0, 0x%x', lds)
        st['m0'] = lds
        if kind == 'x':
            if g == 0:
                A('s_add_u32 %s, %s, %d', s(sT), s(sRot), j)
                A('s_and_b32 %s, %s, 7', s(sT), s(sT))
                A('s_lshl_b32 %s, %s, 7', s(sXo), s(sT))
                A('s_lshl_b32 %s, %s, 19', s(sWq), s(sT))
            else:
                A('s_add_u32 %s, %s, 0x8000', s(sXo), s(sXo))
            dma(A, [lX, lX + 1, lX + 2, lX + 3], sX, sXo, OPT['x_pol'])
        elif kind == 'w':
            if g:
                A('s_add_u32 %s, %s, 0x20000', s(sWq), s(sWq))
            dma(A, [lW, lW + 1, lW + 2, lW + 3], sW, sWq, OPT['w_pol'])
        elif kind == 'o':
            if g == 0:
                A('s_add_u32 %s, %s, %d', s(sT), s(sHh), j)
                A('s_and_b32 %s, %s, 3', s(sT), s(sT))
                A('s_lshl_b32 %s, %s, 17', s(sOo), s(sT))
            else:
                A('s_addk_i32 %s, 0x4000', s(sOo))
            dma(A, [lWo, lWo + 1, lWo + 2, lWo + 3], sWo, sOo, OPT['wo_pol'])
        else:
            off = j * 32768 + 4096 * g
            if st['so'] is not None and off - st['so'] == 4096:
                A('s_addk_i32 %s, 0x1000', s(sG))
            else:
                A('s_mov_b32 %s, 0x%x', s(sG), off)
            st['so'] = off
            if kind == 'k':
                dma(A, [lK, lK + 1, lK + 2, lK + 3], sK, sG, OPT['kv_pol'])
            else:
                dma(A, [lV] * 4, sV, sG, OPT['kv_pol'])

    def free(gi, cert):
        lds = groups[gi][3]
        return all(not (p[3] < lds + 4096 and lds < p[3] + 4096) or p[4] < cert for p in groups[:gi])

    nxt = 0
    cert = 0
    did2 = False
    pend = False
    for i, (name, e, c) in enumerate(steps):
        la = OPT['law'] if i < 8 else OPT['la']
        while nxt < len(groups) and nxt <= e + la and free(nxt, cert):
            if nxt == 11 and not did2:
                stamp(A, 31)
                setup2()
                did2 = True
            issue(nxt)
            nxt += 1
        assert nxt > e, (name, nxt, e)
        A('s_waitcnt vmcnt(%d)%s', 4 * (nxt - 1 - e), ' lgkmcnt(0)' if pend else '')
        pend = False
        stamp(A, 2 + i)
        A('s_barrier')
        cert = max(cert, c)
        if 8 <= i <= 15:
            t = i - 8
            A('v_add_u32 %s, 0x%x, %s', v(lA + 1), KVS[t % 3], v(lA))
            wo_reads(A, t >> 1, t & 1, lA + 1)
            pend = True
            if i == 15:
                A('ds_write_b32 %s, %s', v(lP + 2), v(lP + 3))
    assert nxt == len(groups)

    sIss, sN, sNl, sOrd, sRound, sSp = sT + 3, sT + 4, sT + 5, sT + 6, sCnt, sT + 7

    def poll_step(tag):
        A('buffer_load_dword %s, %s, %s, 0 offen sc1', v(lP + 1), v(lP), s(sF, 4))
        A('s_waitcnt vmcnt(0)')
        A('s_mov_b32 %s, %s', s(sNl), s(sN))
        A('v_cmp_eq_u32 vcc, 1, %s', v(lP + 1))
        A('s_andn2_b32 %s, vcc_lo, %s', s(sT), s(sIss))
        for j in range(1, 4):
            A('s_bfe_u32 %s, %s, 0x%x', s(sT + 1), s(sT), (4 << 16) | (4 * (j - 1)))
            A('s_cmp_lg_u32 %s, 15', s(sT + 1))
            A('s_cbranch_scc1 L_%s_n%d', tag, j)
            A('s_mul_i32 %s, %s, 24576', s(sT + 1), s(sN))
            A('s_add_u32 m0, %s, 0x%x', s(sT + 1), RB[0])
            A('s_mov_b32 %s, %s', s(sT + 2), s(sT + 10 + j))
            A('s_lshl_b32 %s, %s, 2', s(sT + 1), s(sN))
            A('s_lshl_b32 %s, %d, %s', s(sT + 1), j, s(sT + 1))
            A('s_or_b32 %s, %s, %s', s(sOrd), s(sOrd), s(sT + 1))
            A('s_or_b32 %s, %s, 0x%x', s(sIss), s(sIss), 15 << (4 * (j - 1)))
            A('s_add_u32 %s, %s, 1', s(sN), s(sN))
            for g in range(6):
                if g:
                    A('s_addk_i32 m0, 0x1000')
                    A('s_addk_i32 %s, 0x1000', s(sT + 2))
                dma(A, [vBl] * 4, sO, sT + 2, 'sc1')
            A.label('L_%s_n%d' % (tag, j))

    for r in (sIss, sN, sNl, sOrd, sRound, sSp):
        A('s_mov_b32 %s, 0', s(r))
    A.label('L_mgr')
    A('s_cmp_eq_u32 %s, 3', s(sNl))
    A('s_cbranch_scc1 L_mgr_nopoll')
    poll_step('p')
    A.label('L_mgr_nopoll')
    A('s_add_u32 %s, %s, 1', s(sSp), s(sSp))
    A('s_cmp_ge_u32 %s, 0x%x', s(sSp), SPIN_MAX)
    A('s_cbranch_scc1 L_mgr_go')
    A('s_cmp_lg_u32 %s, 0', s(sRound))
    A('s_cbranch_scc1 L_mgr_r')
    A('ds_read_b32 %s, %s', v(lP + 1), v(lP + 2))
    A('s_waitcnt lgkmcnt(0)')
    A('v_readfirstlane_b32 %s, %s', s(sT), v(lP + 1))
    A('s_cmp_lt_u32 %s, 3', s(sT))
    A('s_cbranch_scc1 L_mgr')
    A('s_branch L_round0')
    A.label('L_mgr_r')
    A('s_cmp_lt_u32 %s, %s', s(sNl), s(sRound))
    A('s_cbranch_scc1 L_mgr')
    A.label('L_mgr_go')
    A('s_cmp_eq_u32 %s, 0', s(sRound))
    A('s_cbranch_scc1 L_round0')
    A('v_mov_b32 %s, %s', v(lP + 1), s(sOrd))
    A('ds_write_b32 %s, %s offset:16', v(lP + 2), v(lP + 1))
    A('s_waitcnt lgkmcnt(0)')
    A('s_branch L_round')


def qproj(A, vacc, vWa, vBa, vWb, vBb):
    L = Lds(A)
    FA = [[0 + 16 * p + 4 * mt for mt in range(4)] for p in range(2)]
    FB = [32, 36]

    def reads(ks):
        p = ks & 1
        out = [('ds_read_b128 %s, %s offset:%d' % (a(FB[p], 4), v(vBa + ks), 16384), ('B', ks))]
        for mt in range(4):
            for aa in range(2):
                out.append(('ds_read_b64_tr_b16 %s, %s offset:%d' % (a(FA[p][mt] + 2 * aa, 2), v(vWa + mt), (16 * ks + 4 * aa) * 256), ('A', ks, mt)))
        return out

    def addr_w():
        return ['v_add_u32 %s, %s, %s' % (v(vWa + mt), s(sSlot), v(vWb + mt)) for mt in range(4)]

    def addr_b():
        return ['v_add_u32 %s, %s, %s' % (v(vBa), s(sSlot), v(vBb))] + ['v_xor_b32 %s, %d, %s' % (v(vBa + k), 32 * k, v(vBa)) for k in range(1, 4)]

    def mfma(ks, mt):
        p = ks & 1
        L.need(('B', ks), ('A', ks, mt))
        A('%s %s, %s, %s, %s', MFMA, v(vacc + 16 * mt, 16), a(FA[p][mt], 4), a(FB[p], 4), v(vacc + 16 * mt, 16))

    A('s_mov_b32 %s, 0', s(sCnt))
    for o in addr_w() + addr_b():
        A(o)
    A('s_barrier')
    for t, tag in reads(0):
        L.read(t, tag)
    q0 = list(L.q)
    A.label('L_qp')
    for ks in range(3):
        nxt = reads(ks + 1)
        for mt in range(4):
            mfma(ks, mt)
            for t, tag in nxt[3 * mt:3 * mt + 3]:
                L.read(t, tag)
            if ks == 2 and mt == 3:
                A('s_add_u32 %s, %s, 0x%x', s(sSlot), s(sSlot), WSTR)
                A('s_cmp_eq_u32 %s, 0x%x', s(sSlot), WSTR * 5)
                A('s_cselect_b32 %s, 0, %s', s(sSlot), s(sSlot))
                for o in addr_w()[:2] + addr_b()[:1]:
                    A(o)
    qs = list(L.q)
    A('s_add_u32 %s, %s, 1', s(sCnt), s(sCnt))
    A('s_cmp_eq_u32 %s, 8', s(sCnt))
    A('s_cbranch_scc1 L_qp_last')
    nxt = reads(0)
    extra = [addr_w()[2:], addr_b()[1:], [], []]
    for mt in range(4):
        mfma(3, mt)
        if mt == 0:
            stampd(A, 32, 2)
            A('s_barrier')
            stampd(A, 33, 2)
        for t, tag in nxt[3 * mt:3 * mt + 3]:
            L.read(t, tag)
        for o in extra[mt]:
            A(o)
    assert L.q == q0, (L.q, q0)
    A('s_branch L_qp')
    A.label('L_qp_last')
    L.q = qs
    for mt in range(4):
        mfma(3, mt)


def compute(A):
    vQ, vO, vS, vP = 4, 36, 100, 164
    vWb, vXb, vWa, vXa = 196, 200, 201, 205
    vKb, vKa, vVb, vVa = 209, 210, 218, 222
    vM, vL, vT, vOb, vOa, vD = 226, 228, 230, 238, 239, 244
    A('s_waitcnt lgkmcnt(0)')
    tail_srds(A)
    A('s_cmp_lg_u32 %s, 0', s(sWave))
    A('s_cbranch_scc1 L_noreset')
    A('v_mov_b64 %s, 0', v(vO, 2))
    A('v_mov_b64 %s, 0', v(vO + 2, 2))
    A('s_lshl_b32 %s, s2, 8', s(sT))
    A('s_mov_b64 exec, 0xffff')
    A('buffer_store_dwordx4 %s, %s, %s, %s offen sc1', v(vO, 4), v(vBl), s(sF, 4), s(sT))
    A('s_mov_b64 exec, -1')
    if OPT['pfcode']:
        A('v_lshlrev_b32 %s, 7, v1', v(vT))
        A('s_getpc_b64 %s', s(sT + 2, 2))
        A('s_and_b32 %s, %s, 0xffffff80', s(sT + 2), s(sT + 2))
        A('global_load_dword v250, %s, %s', v(vT), s(sT + 2, 2))
    A.label('L_noreset')
    tr_lane_bases(A, vWb, 8, True, vT)
    A('v_and_b32 %s, 31, v1', v(vT))
    A('s_lshl_b32 %s, %s, 5', s(sT), s(sWave))
    A('v_add_u32 %s, %s, %s', v(vT), s(sT), v(vT))
    A('v_bfe_u32 %s, %s, 1, 3', v(vT + 1), v(vT))
    A('v_lshrrev_b32 %s, 5, v1', v(vT + 2))
    A('v_xor_b32 %s, %s, %s', v(vT + 1), v(vT + 1), v(vT + 2))
    A('v_lshlrev_b32 %s, 4, %s', v(vT + 1), v(vT + 1))
    A('v_lshl_add_u32 %s, %s, 7, %s', v(vXb), v(vT), v(vT + 1))
    A('v_and_b32 %s, 31, v1', v(vT))
    A('v_and_b32 %s, 15, v1', v(vT + 1))
    A('v_xor_b32 %s, %s, %s', v(vT + 1), v(vT + 1), v(vT + 2))
    A('v_lshlrev_b32 %s, 4, %s', v(vT + 1), v(vT + 1))
    A('v_lshl_add_u32 %s, %s, 8, %s', v(vKb), v(vT), v(vT + 1))
    A('v_add_u32 %s, 0x4000, %s', v(vKb), v(vKb))
    tr_lane_bases(A, vVb, 4, False, vT)
    for mt in range(4):
        A('v_add_u32 %s, 0x4000, %s', v(vVb + mt), v(vVb + mt))
    wo_lane_base(A, vOb, vT)
    A('v_lshlrev_b32 %s, 2, v1', v(vD + 1))
    for i in range(0, 64, 2):
        A('v_mov_b64 %s, 0', v(vS + i, 2))
    for i in range(0, 64, 2):
        A('v_mov_b64 %s, 0', v(vO + i, 2))
    A('v_mov_b32 %s, 0xff800000', v(vM))
    A('v_mov_b64 %s, 0', v(vL, 2))
    A('s_mov_b32 %s, 0x%x', s(sC), C_SCALE)
    A('s_mov_b32 %s, 0x%x', s(sC + 1), C_SCALE)
    A('s_mov_b32 %s, 0', s(sSlot))
    for i in range(3):
        A('s_mov_b32 %s, 0x%x', s(sS0 + i), KVS[i])
    A('s_lshr_b32 %s, s2, 3', s(sT))
    A('s_mul_i32 %s, %s, 0x5556', s(sT + 1), s(sT))
    A('s_lshr_b32 %s, %s, 16', s(sT + 1), s(sT + 1))
    A('s_mul_i32 %s, %s, 3', s(sT + 1), s(sT + 1))
    A('s_sub_u32 %s, %s, %s', s(sSel), s(sT), s(sT + 1))
    A('s_lshl_b32 %s, %s, 4', s(sT), s(sWave))
    A('s_add_u32 %s, %s, %s', s(sSel), s(sSel), s(sT))
    stamp(A, 1)
    stamp(A, 60, 's_memtime')
    qproj(A, vS, vWa, vXa, vWb, vXb)
    stamp(A, 2)
    stamp(A, 61, 's_memtime')
    for i in range(32):
        A('v_cvt_pk_bf16_f32 %s, %s, %s', v(vQ + i), v(vS + 2 * i), v(vS + 2 * i + 1))

    L = Lds(A)
    A('s_mov_b32 %s, 0', s(sCnt))
    A.label('L_att')
    A('s_cmp_lg_u32 %s, %s', s(sCnt), s(sSel))
    A('s_cbranch_scc1 L_norep')
    A('s_getreg_b32 %s, hwreg(HW_REG_XCC_ID, 0, 4)', s(sT))
    A('s_add_u32 %s, %s, 1', s(sT), s(sT))
    A('v_mov_b32 %s, %s', v(vT + 1), s(sT))
    A('v_mov_b32 %s, 0', v(vT))
    A('s_waitcnt vmcnt(0)')
    A('s_mov_b64 exec, 1')
    A('buffer_store_byte %s, %s, %s, s2 offen sc1', v(vT + 1), v(vT), s(sDbg, 4))
    A('s_mov_b64 exec, -1')
    A.label('L_norep')
    A('s_cmp_lg_u32 %s, 3', s(sCnt))
    A('s_cbranch_scc1 L_nodbg')
    A('buffer_load_dword %s, %s, %s, 0 offen sc1', v(vD), v(vD + 1), s(sDbg, 4))
    A.label('L_nodbg')
    A('v_add_u32 %s, %s, %s', v(vKa), s(sS0), v(vKb))
    for k in range(1, 8):
        A('v_xor_b32 %s, %d, %s', v(vKa + k), 32 * k, v(vKa))
    A('v_add_u32 %s, %s, %s', v(vOa), s(sS0), v(vOb))
    for mt in range(4):
        A('v_add_u32 %s, %s, %s', v(vVa + mt), s(sS1), v(vVb + mt))
    stampd(A, 6, 4)
    A('s_barrier')
    stampd(A, 7, 4)
    KF = [[32 * p + 4 * k for k in range(8)] for p in range(2)]

    def kread(t, k):
        return ('ds_read_b128 %s, %s offset:%d' % (a(KF[t & 1][k], 4), v(vKa + k), 8192 * t), ('K', t, k))

    for k in range(8):
        L.read(*kread(0, k))
    vMx = vT

    def max_ops(t):
        r = vS + 16 * t
        ops = []
        if t == 0:
            ops.append('v_max3_f32 %s, %s, %s, %s' % (v(vMx), v(r), v(r + 1), v(vM)))
            rest = range(2, 16, 2)
        else:
            rest = range(0, 16, 2)
        for i in rest:
            ops.append('v_max3_f32 %s, %s, %s, %s' % (v(vMx), v(r + i), v(r + i + 1), v(vMx)))
        return ops

    for t in range(4):
        mo = max_ops(t - 1) if t > 0 else []
        for k in range(8):
            L.need(('K', t, k))
            A('%s %s, %s, %s, %s', MFMA, v(vS + 16 * t, 16), a(KF[t & 1][k], 4), v(vQ + 4 * k, 4), '0' if k == 0 else v(vS + 16 * t, 16))
            if t < 3:
                L.read(*kread(t + 1, k))
            if k >= 4 and mo:
                for o in mo[:2]:
                    A(o)
                mo = mo[2:]
        assert not mo

    def wo_switch(half, tag, nj):
        for j in range(nj):
            if j < nj - 1:
                A('s_cmp_lg_u32 %s, %d', s(sCnt), j)
                A('s_cbranch_scc1 L_wo%s%d', tag, j + 1)
            wo_reads(A, j, half, vOa)
            if j < nj - 1:
                A('s_branch L_wo%sdone', tag)
                A.label('L_wo%s%d' % (tag, j + 1))
        A.label('L_wo%sdone' % tag)

    wo_switch(0, 'a', 4)
    for o in max_ops(3):
        A(o)
    A('v_mov_b32 %s, %s', v(vT + 1), v(vMx))
    A('v_permlane32_swap_b32 %s, %s', v(vT + 1), v(vMx))
    A('v_max_f32 %s, %s, %s', v(vMx), v(vMx), v(vT + 1))
    A('v_mul_f32 %s, %s, %s', v(vT + 2), s(sC), v(vMx))
    A('v_fma_f32 %s, %s, %s, -%s', v(vT + 3), v(vM), s(sC), v(vT + 2))
    A('v_exp_f32 %s, %s', v(vT + 4), v(vT + 3))
    A('v_mov_b32 %s, %s', v(vM), v(vMx))
    fma = lambda i: A('v_pk_fma_f32 %s, %s, %s, %s op_sel_hi:[1,1,0] neg_lo:[0,0,1] neg_hi:[0,0,1]', v(vS + i, 2), v(vS + i, 2), s(sC, 2), v(vT + 2, 2))
    fma(0)
    A('v_pk_mul_f32 %s, %s, %s op_sel_hi:[1,0]', v(vL, 2), v(vL, 2), v(vT + 4, 2))
    for i in range(0, 64, 2):
        if i + 2 < 64:
            fma(i + 2)
        A('v_exp_f32 %s, %s', v(vS + i), v(vS + i))
        A('v_exp_f32 %s, %s', v(vS + i + 1), v(vS + i + 1))
        if i >= 2:
            A('v_pk_add_f32 %s, %s, %s', v(vL, 2), v(vL, 2), v(vS + i - 2, 2))
            A('v_cvt_pk_bf16_f32 %s, %s, %s', v(vP + i // 2 - 1), v(vS + i - 2), v(vS + i - 1))
    A('v_pk_mul_f32 %s, %s, %s op_sel_hi:[1,0]', v(vO, 2), v(vO, 2), v(vT + 4, 2))
    A('v_pk_add_f32 %s, %s, %s', v(vL, 2), v(vL, 2), v(vS + 62, 2))
    A('v_cvt_pk_bf16_f32 %s, %s, %s', v(vP + 31), v(vS + 62), v(vS + 63))
    for i in range(2, 64, 2):
        A('v_pk_mul_f32 %s, %s, %s op_sel_hi:[1,0]', v(vO + i, 2), v(vO + i, 2), v(vT + 4, 2))
    A('v_add_u32 %s, %s, %s', v(vOa), s(sS1), v(vOb))
    A('s_cmp_eq_u32 %s, 3', s(sCnt))
    A('s_cbranch_scc1 L_last')
    A('s_waitcnt lgkmcnt(0)')
    stampd(A, 8, 4)
    A('s_barrier')
    stampd(A, 9, 4)
    VF = [[64 + 16 * p + 4 * mt for mt in range(4)] for p in range(2)]

    def vread(p, mt, buf=None):
        b = VF[p & 1][mt] if buf is None else buf
        return [('ds_read_b64_tr_b16 %s, %s offset:%d' % (a(b + 2 * aa, 2), v(vVa + mt), (16 * p + 8 * aa) * 256), ('V', p, mt)) for aa in range(2)]

    def pv(p, mt, buf=None):
        b = VF[p & 1][mt] if buf is None else buf
        L.need(('V', p, mt))
        A('%s %s, %s, %s, %s', MFMA, v(vO + 16 * mt, 16), a(b, 4), v(vP + 4 * p, 4), v(vO + 16 * mt, 16))

    def pv_range(p0, p1):
        for mt in range(4):
            for x in vread(p0, mt):
                L.read(*x)
        for p in range(p0, p1):
            for mt in range(4):
                pv(p, mt)
                if p + 1 < p1:
                    for x in vread(p + 1, mt):
                        L.read(*x)

    pv_range(0, 8)
    assert not L.q
    wo_switch(1, 'b', 3)
    A('s_mov_b32 %s, %s', s(sT), s(sS0))
    A('s_mov_b32 %s, %s', s(sS0), s(sS2))
    A('s_mov_b32 %s, %s', s(sS2), s(sS1))
    A('s_mov_b32 %s, %s', s(sS1), s(sT))
    A('s_add_u32 %s, %s, 1', s(sCnt), s(sCnt))
    A('s_waitcnt lgkmcnt(0)')
    A('s_branch L_att')

    A.label('L_last')
    A('v_add_f32 %s, %s, %s', v(vL), v(vL), v(vL + 1))
    A('v_mov_b32 %s, %s', v(vT), v(vL))
    A('v_permlane32_swap_b32 %s, %s', v(vT), v(vL))
    A('v_add_f32 %s, %s, %s', v(vL), v(vL), v(vT))
    A('v_rcp_f32 %s, %s', v(vT), v(vL))
    A('s_mov_b32 %s, 0', s(sT + 1))
    A.label('L_chk')
    A('s_waitcnt vmcnt(0)')
    A('v_add_u32 %s, 0x7f7f7f7f, %s', v(vD + 2), v(vD))
    A('v_or_b32 %s, 0x7f7f7f7f, %s', v(vD + 2), v(vD + 2))
    A('v_cmp_ne_u32 vcc, -1, %s', v(vD + 2))
    A('s_cmp_eq_u64 vcc, 0')
    A('s_cbranch_scc1 L_chk_ok')
    A('buffer_load_dword %s, %s, %s, 0 offen sc1', v(vD), v(vD + 1), s(sDbg, 4))
    A('s_add_u32 %s, %s, 1', s(sT + 1), s(sT + 1))
    A('s_cmp_lt_u32 %s, 0x%x', s(sT + 1), SPIN_MAX)
    A('s_cbranch_scc1 L_chk')
    A('s_waitcnt vmcnt(0)')
    A.label('L_chk_ok')
    A('s_and_b32 %s, s2, 3', s(sT))
    A('s_lshl_b32 %s, %s, 3', s(sT), s(sT))
    A('v_lshrrev_b32 %s, %s, %s', v(vD), s(sT), v(vD))
    A('v_and_b32 %s, 0xff, %s', v(vD), v(vD))
    A('s_bfe_u32 %s, s2, 0x40002', s(sT))
    for k in range(4):
        A('v_readlane_b32 %s, %s, %s', s(sT + 2 + k), v(vD), s(sT))
        if k < 3:
            A('s_add_u32 %s, %s, 16', s(sT), s(sT))
    A('s_xor_b32 %s, %s, %s', s(sT + 3), s(sT + 3), s(sT + 2))
    A('s_xor_b32 %s, %s, %s', s(sT + 4), s(sT + 4), s(sT + 2))
    A('s_xor_b32 %s, %s, %s', s(sT + 5), s(sT + 5), s(sT + 2))
    A('s_or_b32 %s, %s, %s', s(sT + 3), s(sT + 3), s(sT + 4))
    A('s_or_b32 %s, %s, %s', s(sLocal), s(sT + 3), s(sT + 5))
    if OPT['force_remote']:
        A('s_mov_b32 %s, 1', s(sLocal))
    A('s_lshl_b32 %s, %s, 13', s(sT + 1), s(sWave))
    A('s_mul_i32 %s, s2, 24576', s(sT + 6))
    A('s_add_u32 %s, %s, %s', s(sT + 6), s(sT + 6), s(sT + 1))
    A('s_add_u32 %s, %s, 0x1000', s(sT + 7), s(sT + 6))
    A('s_add_u32 %s, %s, 0x%x', s(sT + 1), s(sT + 1), ROWN)
    A('v_add_u32 %s, %s, %s', v(vT + 2), s(sT + 1), v(vBl))
    A('s_lshl_b32 %s, s2, 8', s(sT + 8))
    A('s_lshl_b32 %s, %s, 2', s(sT + 1), s(sWave))
    A('s_add_u32 %s, %s, %s', s(sT + 8), s(sT + 8), s(sT + 1))
    A('v_mov_b32 %s, 1', v(vT + 4))
    A('v_mov_b32 %s, 0', v(vT + 5))
    A('v_mov_b32 %s, 0x%x', v(vT + 3), STAT)
    A('s_waitcnt lgkmcnt(0)')
    stamp(A, 20)
    A('s_barrier')
    stamp(A, 21)
    pv_range(0, 2)
    wo_reads(A, 3, 1, vOa)
    A('s_waitcnt lgkmcnt(0)')
    for q in (1, 2):
        A('s_barrier')
        pv_range(2 * q, 2 * q + 2)
    A('s_cmp_eq_u32 %s, 0', s(sLocal))
    A('s_cbranch_scc1 L_pub_local')
    for pol, tag in (('sc1', 'remote'), ('', 'local')):
        A.label('L_pub_' + tag)
        A('s_barrier')
        stamp(A, 3)
        seq = [(mt, p) for mt in range(4) for p in (6, 7)]
        buf = lambda i: 64 + 4 * i
        for i in range(6):
            for x in vread(seq[i][1], seq[i][0], buf(i)):
                L.read(*x)

        def fin(mt, part):
            f = 2 * mt + part
            for i in range(4):
                r = vO + 8 * f + 2 * i
                A('v_pk_mul_f32 %s, %s, %s op_sel_hi:[1,0]', v(r, 2), v(r, 2), v(vT, 2))
            for i in range(4):
                r = vO + 8 * f + 2 * i
                A('v_cvt_pk_bf16_f32 %s, %s, %s', v(vP + 4 * f + i), v(r), v(r + 1))
            A('buffer_store_dwordx4 %s, %s, %s, %s offen offset:%d %s', v(vP + 4 * f, 4), v(vBl), s(sO, 4), s(sT + 6 + (f >> 2)), 1024 * (f & 3), pol)

        for i, (mt, p) in enumerate(seq):
            pv(p, mt, buf(i))
            if i < 2:
                for x in vread(seq[6 + i][1], seq[6 + i][0], buf(6 + i)):
                    L.read(*x)
            if i >= 4:
                fin((i - 4) >> 1, i & 1)
        for f in range(4, 8):
            fin(f >> 1, f & 1)
        for f in range(8):
            A('ds_write_b128 %s, %s offset:%d', v(vT + 2), v(vP + 4 * f, 4), 1024 * f)
        stamp(A, 4)
        A('s_waitcnt vmcnt(0)')
        A('s_mov_b64 exec, 1')
        A('buffer_store_dword %s, %s, %s, %s offen %s', v(vT + 4), v(vT + 5), s(sF, 4), s(sT + 8), pol)
        A('s_waitcnt lgkmcnt(0)')
        A('ds_add_u32 %s, %s', v(vT + 3), v(vT + 4))
        A('s_mov_b64 exec, -1')
        stamp(A, 5)
        A('s_mov_b32 %s, 0', s(sCnt))
        A('s_waitcnt lgkmcnt(0)')
        if tag == 'remote':
            A('s_branch L_round0')


def tail(A):
    vU = 230
    vB0 = 243
    NB = 6
    order = [(qt, f) for qt in range(3) for f in range(8)]

    def block(j, pre):
        L = Lds(A)

        def rd(i):
            qt, f = order[i]
            L.read('ds_read_b128 %s, %s offset:%d' % (a(4 * (i % NB), 4), v(vB0), qt * 8192 + f * 1024), i)

        if pre:
            L.q = list(range(NB - 1))
        else:
            for i in range(NB - 1):
                rd(i)
        for i, (qt, f) in enumerate(order):
            L.need(i)
            acc = v(vAcc + 48 * j + 16 * qt, 16)
            A('%s %s, %s, %s, %s', MFMA, acc, a(AWO + 32 * j + 4 * f, 4), a(4 * (i % NB), 4), '0' if f == 0 else acc)
            if i + NB - 1 < len(order):
                rd(i + NB - 1)

    A.label('L_round0')
    A('v_add_u32 %s, 0x%x, %s', v(vB0), ROWN, v(vBl))
    A('v_mov_b32 %s, 0x%x', v(vU), STAT)
    A('s_barrier')
    stamp(A, 23)
    block(0, False)
    stamp(A, 24)
    A('v_add_u32 %s, 0x%x, %s', v(vB0), RB[0] - 24576, v(vBl))
    A.label('L_next')
    A('s_add_u32 %s, %s, 1', s(sCnt), s(sCnt))
    A('s_cmp_eq_u32 %s, 4', s(sCnt))
    A('s_cbranch_scc1 L_sum')
    A('v_add_u32 %s, 0x6000, %s', v(vB0), v(vB0))
    A('s_cmp_eq_u32 %s, 3', s(sWave))
    A('s_cbranch_scc1 L_mgr')
    A.label('L_round')
    A('s_barrier')
    A('ds_read_b32 %s, %s offset:16', v(vU + 1), v(vU))
    for i in range(NB - 1):
        qt, f = order[i]
        A('ds_read_b128 %s, %s offset:%d', a(4 * i, 4), v(vB0), qt * 8192 + f * 1024)
    A('s_lshl_b32 %s, %s, 2', s(sT), s(sCnt))
    A('s_sub_u32 %s, %s, 4', s(sT), s(sT))
    A('s_waitcnt lgkmcnt(%d)', NB - 1)
    A('v_readfirstlane_b32 %s, %s', s(sT + 1), v(vU + 1))
    A('s_lshr_b32 %s, %s, %s', s(sT + 1), s(sT + 1), s(sT))
    A('s_and_b32 %s, %s, 3', s(sT + 1), s(sT + 1))
    stampd(A, 47, 1)
    A('s_cmp_eq_u32 %s, 2', s(sT + 1))
    A('s_cbranch_scc1 L_blk2')
    A('s_cmp_eq_u32 %s, 3', s(sT + 1))
    A('s_cbranch_scc1 L_blk3')
    for j in (1, 2, 3):
        if j > 1:
            A.label('L_blk%d' % j)
        block(j, True)
        A('s_branch L_next')

    A.label('L_sum')
    stamp(A, 25)
    A('s_and_b32 %s, s2, 0xf8', s(sT))
    A('s_lshl_b32 %s, %s, 1', s(sT + 1), s(sWave))
    A('s_add_u32 %s, %s, %s', s(sT + 2), s(sT), s(sT + 1))
    A('s_mul_i32 %s, %s, 24576', s(sT), s(sT + 2))
    A('s_mul_i32 %s, %s, 3072', s(sT + 1), s(sHg))
    A('s_add_u32 %s, %s, %s', s(sT + 4), s(sT), s(sT + 1))
    A('s_add_u32 %s, %s, 24576', s(sT + 5), s(sT + 4))
    A('s_lshl_b32 %s, %s, 8', s(sT + 2), s(sT + 2))
    A('s_lshl_b32 %s, %s, 2', s(sT + 1), s(sHg))
    A('s_add_u32 %s, %s, %s', s(sT + 2), s(sT + 2), s(sT + 1))
    A('v_lshlrev_b32 %s, 8, v1', v(vU + 1))
    A('v_mov_b32 %s, 1', v(vU))
    vPk = 200
    for o in range(6):
        r = vAcc + 8 * o
        for i in range(0, 8, 2):
            A('v_pk_add_f32 %s, %s, %s', v(r + i, 2), v(r + i, 2), v(r + 48 + i, 2))
        for i in range(0, 8, 2):
            A('v_pk_add_f32 %s, %s, %s', v(r + 96 + i, 2), v(r + 96 + i, 2), v(r + 144 + i, 2))
        for i in range(0, 8, 2):
            A('v_pk_add_f32 %s, %s, %s', v(r + i, 2), v(r + i, 2), v(r + 96 + i, 2))
        for i in range(4):
            A('v_cvt_pk_bf16_f32 %s, %s, %s', v(vPk + 4 * o + i), v(r + 2 * i), v(r + 2 * i + 1))
        A('buffer_store_dwordx4 %s, %s, %s, %s offen offset:%d sc1', v(vPk + 4 * o, 4), v(vBl), s(sPo, 4), s(sT + 4 + o // 3), 1024 * (o % 3))
    stamp(A, 26)
    A('s_waitcnt vmcnt(0)')
    A('s_mov_b64 exec, 3')
    A('buffer_store_dword %s, %s, %s, %s offen offset:128 sc1', v(vU), v(vU + 1), s(sF, 4), s(sT + 2))
    A('s_mov_b64 exec, -1')
    stamp(A, 27)
    A('s_cmp_lg_u32 %s, 3', s(sWave))
    A('s_cbranch_scc1 L_red')
    stamp_flush(A)
    A('s_endpgm')

    A.label('L_red')
    vR, vF = 4, 40
    sGot, sLand, sNew, sSp = sT + 6, sT + 7, sT + 8, sT + 9
    A('s_mul_i32 %s, s2, 24576', s(sT))
    A('s_lshl_b32 %s, %s, 10', s(sT + 1), s(sWave))
    A('s_add_u32 %s, %s, %s', s(sT), s(sT), s(sT + 1))
    A('s_lshl_b32 %s, s2, 8', s(sT + 3))
    A('v_and_b32 %s, 7, v1', v(vU))
    A('v_lshlrev_b32 %s, 2, %s', v(vU), v(vU))
    A('s_mov_b32 %s, 0', s(sGot))
    A('s_mov_b32 %s, 0', s(sLand))
    A('s_mov_b32 %s, 0', s(sSp))
    A('buffer_load_dword %s, %s, %s, %s offen offset:128 sc1', v(vU + 1), v(vU), s(sF, 4), s(sT + 3))
    A('s_and_b32 %s, %s, 1', s(sT + 1), s(sHg))
    A('s_mul_i32 %s, %s, 3', s(sT + 1), s(sT + 1))
    A('s_add_u32 %s, %s, %s', s(sT + 1), s(sT + 1), s(sWave))
    A('s_lshr_b32 %s, %s, 1', s(sT + 2), s(sT + 1))
    A('s_lshl_b32 %s, %s, 15', s(sT + 2), s(sT + 2))
    A('s_and_b32 %s, %s, 1', s(sT + 1), s(sT + 1))
    A('s_lshl_b32 %s, %s, 5', s(sT + 1), s(sT + 1))
    A('s_add_u32 %s, %s, %s', s(sT + 2), s(sT + 2), s(sT + 1))
    A('s_lshr_b32 %s, %s, 1', s(sT + 1), s(sHg))
    A('s_lshl_b32 %s, %s, 6', s(sT + 1), s(sT + 1))
    A('s_add_u32 %s, %s, %s', s(sT + 2), s(sT + 2), s(sT + 1))
    A('s_lshl_b32 %s, %s, 8', s(sT + 1), s(sHh))
    A('s_add_u32 %s, %s, %s', s(sT + 2), s(sT + 2), s(sT + 1))
    A('v_and_b32 %s, 31, v1', v(vU + 2))
    A('v_lshlrev_b32 %s, 10, %s', v(vU + 2), v(vU + 2))
    A('v_lshrrev_b32 %s, 5, v1', v(vU + 3))
    A('v_lshl_add_u32 %s, %s, 4, %s', v(vU + 2), v(vU + 3), v(vU + 2))
    A.label('L_p2')
    A('s_waitcnt vmcnt(0)')
    A('v_cmp_eq_u32 vcc, 1, %s', v(vU + 1))
    A('s_andn2_b32 %s, %s, %s', s(sT + 4), s(sGot), s(sLand))
    A('s_mov_b32 %s, %s', s(sLand), s(sGot))
    A('s_and_b32 %s, vcc_lo, 0xff', s(sNew))
    if not OPT['early2']:
        A('s_cmp_eq_u32 %s, 0xff', s(sNew))
        A('s_cselect_b32 %s, 0xff, 0', s(sNew))
    A('s_andn2_b32 %s, %s, %s', s(sNew), s(sNew), s(sGot))
    A('s_cbranch_scc0 L_p2_noload')
    A('s_or_b32 %s, %s, %s', s(sGot), s(sGot), s(sNew))
    for k in range(8):
        A('s_bitcmp1_b32 %s, %d', s(sNew), k)
        A('s_cbranch_scc0 L_p2_l%d', k)
        if k < 2:
            A('buffer_load_dwordx4 %s, %s, %s, %s offen offset:%d sc1', v(vR + 4 * k, 4), v(vBl), s(sPo, 4), s(sT), 3072 * k)
        else:
            A('s_add_u32 %s, %s, 0x%x', s(sT + 1), s(sT), 3072 * k)
            A('buffer_load_dwordx4 %s, %s, %s, %s offen sc1', v(vR + 4 * k, 4), v(vBl), s(sPo, 4), s(sT + 1))
        A.label('L_p2_l%d' % k)
    A.label('L_p2_noload')
    A('s_cmp_eq_u32 %s, 0xff', s(sGot))
    A('s_cbranch_scc1 L_p2_nopoll')
    A('buffer_load_dword %s, %s, %s, %s offen offset:128 sc1', v(vU + 1), v(vU), s(sF, 4), s(sT + 3))
    A.label('L_p2_nopoll')
    A('s_cmp_eq_u32 %s, 0', s(sT + 4))
    A('s_cbranch_scc1 L_p2_nounp')
    for k in range(8):
        A('s_bitcmp1_b32 %s, %d', s(sT + 4), k)
        A('s_cbranch_scc0 L_p2_u%d', k)
        for i in range(4):
            A('v_lshlrev_b32 %s, 16, %s', v(vF + 8 * k + 2 * i), v(vR + 4 * k + i))
            A('v_and_b32 %s, 0xffff0000, %s', v(vF + 8 * k + 2 * i + 1), v(vR + 4 * k + i))
        A.label('L_p2_u%d' % k)
    A.label('L_p2_nounp')
    A('s_cmp_eq_u32 %s, 0xff', s(sLand))
    A('s_cbranch_scc1 L_p2_done')
    A('s_add_u32 %s, %s, 1', s(sSp), s(sSp))
    A('s_cmp_lt_u32 %s, 0x%x', s(sSp), SPIN_MAX)
    A('s_cbranch_scc1 L_p2')
    A('s_waitcnt vmcnt(0)')
    A.label('L_p2_done')
    stamp(A, 28)
    for step in (8, 16, 32):
        for k in range(0, 64, 2 * step):
            for i in range(0, 8, 2):
                A('v_pk_add_f32 %s, %s, %s', v(vF + k + i, 2), v(vF + k + i, 2), v(vF + k + step + i, 2))
    for i in range(4):
        A('v_cvt_pk_bf16_f32 %s, %s, %s', v(vR + i), v(vF + 2 * i), v(vF + 2 * i + 1))
    A('buffer_store_dwordx4 %s, %s, %s, %s offen %s', v(vR, 4), v(vU + 2), s(sOut, 4), s(sT + 2), OPT['out_pol'])
    if OPT['prof']:
        A('s_waitcnt vmcnt(0)')
        stamp(A, 29)
        stamp_flush(A)


def kernel():
    A = Asm()
    A('s_cmp_ge_u32 s2, 256')
    A('s_cbranch_scc1 L_end')
    A('s_load_dwordx4 s[4:7], s[0:1], 0')
    A('s_load_dwordx4 s[8:11], s[0:1], 16')
    A('s_load_dwordx4 s[12:15], s[0:1], 32')
    A('s_load_dwordx4 s[16:19], s[0:1], 48')
    A('v_lshrrev_b32 v2, 6, v0')
    A('v_and_b32 v1, 63, v0')
    A('v_readfirstlane_b32 %s, v2', s(sWave))
    if OPT['prof']:
        A('v_mov_b32 v255, 0')
        stamp(A, 0)
    A('s_and_b32 %s, s2, 7', s(sHg))
    A('s_bfe_u32 %s, s2, 0x30003', s(sB))
    A('s_lshr_b32 %s, s2, 6', s(sHh))
    A('s_lshl_b32 %s, %s, 2', s(sH), s(sHg))
    A('s_add_u32 %s, %s, %s', s(sH), s(sH), s(sHh))
    A('s_lshl_b32 %s, %s, 1', s(sRot), s(sHh))
    A('s_add_u32 %s, %s, %s', s(sRot), s(sRot), s(sB))
    A('s_cmp_lg_u32 %s, 3', s(sWave))
    A('s_cbranch_scc1 L_compute')
    loader(A)
    A.label('L_compute')
    compute(A)
    tail(A)
    A.label('L_end')
    A('s_endpgm')
    return A.lines


def main():
    k, n = pad_hazards(kernel())
    out = ['; %s : fused Q-proj + attention + output projection' % NAME,
           '; @launch grid=(256,1,1) block=(256,1,1) lds=163840',
           '.amdgcn_target "amdgcn-amd-amdhsa--gfx950"', '.text',
           '.globl %s_kernel\n.p2align 8\n.type %s_kernel,@function\n%s_kernel:' % (NAME, NAME, NAME)]
    out += k
    out.append('''.section .rodata,"a"
.p2align 6
.amdhsa_kernel %s_kernel
  .amdhsa_next_free_vgpr 512
  .amdhsa_next_free_sgpr 102
  .amdhsa_accum_offset 256
  .amdhsa_group_segment_fixed_size 0
  .amdhsa_kernarg_size 64
  .amdhsa_user_sgpr_count 2
  .amdhsa_user_sgpr_kernarg_segment_ptr 1
  .amdhsa_system_sgpr_workgroup_id_x 1
.end_amdhsa_kernel''' % NAME)
    open(sys.argv[1], 'w').write('\n'.join(out) + '\n')
    print('wrote', sys.argv[1], 'pads', n)


main()
```

```python
import sys
from asmlib import Asm, pad_hazards, v, a, s

OPT = dict(kv_pol='nt', w_pol='', x_pol='', wo_pol='', prof=0, la=10, law='8,11,14,18,21,21,21,21', pfcode=1, force_remote=0, early2=1, ovl=0, nowo=0, rg=1, pkpub=0, strict=0, pkfin=1, nfin=5, dsw=4, ws_off=0, out_pol='', p_pol='sc1')
for arg in sys.argv[2:]:
    k, val = arg.split('=')
    OPT[k] = int(val, 0) if isinstance(OPT[k], int) else val

NAME = 'standalone__mha_block_cached__near_ridge'
C_SCALE = 0x3e0293ee
MFMA = 'v_mfma_f32_32x32x16_bf16'
WS_O, WS_P, WS_F = OPT['ws_off'], OPT['ws_off'] + (6 << 20), OPT['ws_off'] + (12 << 20)
SPIN_MAX = 1 << 20
WSTR = 28672
KVS = [114688, 0, 65536]
RB = [49152, 73728, 98304]
ROWN = 122880
STAT = 147456

sX, sK, sV, sW, sWo, sO, sPo, sF, sOut, sDbg = 20, 24, 28, 32, 36, 56, 60, 64, 68, 72
sWave, sHg, sB, sHh, sH, sRot = 40, 41, 43, 44, 45, 46
sSlot, sCnt, sC = 47, 48, 50
sS0, sS1, sS2, sLocal, sSel = 52, 53, 54, 55, 42
sIss, sLand, sDone, sPst = 52, 53, 54, 94
sT = 76
AWO = 128
vBl = 240
vSt = 241
lP = 234
vAcc = 4


class Lds:
    def __init__(self, A):
        self.A = A
        self.q = []

    def read(self, text, tag):
        self.A(text)
        self.q.append(tag)

    def need(self, *tags):
        idx = max([i for i, t in enumerate(self.q) if t in tags], default=-1)
        if idx < 0:
            return
        n = len(self.q) - 1 - idx
        self.A('s_waitcnt lgkmcnt(%d)', min(n, 15))
        self.q = self.q[idx + 1:]

    def drain(self):
        if self.q:
            self.A('s_waitcnt lgkmcnt(0)')
        self.q = []


def srd(A, d, base, off, size):
    if off is None:
        A('s_mov_b32 %s, %s', s(d), s(base))
        A('s_mov_b32 %s, %s', s(d + 1), s(base + 1))
    else:
        A('s_add_u32 %s, %s, %s', s(d), s(base), off)
        A('s_addc_u32 %s, %s, 0', s(d + 1), s(base + 1))
    A('s_mov_b32 %s, %s', s(d + 2), size if isinstance(size, str) else '0x%x' % size)
    A('s_mov_b32 %s, 0x20000', s(d + 3))


def stamp(A, idx, op='s_memrealtime'):
    if not OPT['prof']:
        return
    A('%s s[90:91]', op)
    A('s_waitcnt lgkmcnt(0)')
    A('v_writelane_b32 v255, s90, %d', idx)


def stampd(A, base, mul, cnt=None):
    if OPT['prof'] < 2:
        return
    A('s_memrealtime s[90:91]')
    A('s_mul_i32 m0, %s, %d', s(sCnt if cnt is None else cnt), mul)
    A('s_add_u32 m0, m0, %d', base)
    A('s_waitcnt lgkmcnt(0)')
    A('v_writelane_b32 v255, s90, m0')


def stamp_flush(A):
    if not OPT['prof']:
        return
    A('s_lshl_b32 s92, s2, 2')
    A('s_add_u32 s92, s92, %s', s(sWave))
    A('s_lshl_b32 s92, s92, 8')
    A('s_add_u32 s92, s92, 0x%x', 128 << 20)
    srd(A, 96, 18, 's92', 256)
    A('v_lshlrev_b32 v254, 2, v1')
    A('buffer_store_dword v255, v254, s[96:99], 0 offen')


def dma(A, voffs, srdreg, soff, pol):
    for j in range(4):
        A('buffer_load_dwordx4 %s, %s, %s offen offset:%d %s lds', v(voffs[j]), s(srdreg, 4), s(soff), 1024 * j, pol)


def tr_lane_base(A, vt, hrow, sigma):
    A('v_lshrrev_b32 %s, 5, v1', v(vt))
    A('v_mul_u32_u24 %s, %d, %s', v(vt), hrow, v(vt))
    A('v_bfe_u32 %s, v1, 2, 2', v(vt + 1))
    A('v_add_u32 %s, %s, %s', v(vt), v(vt), v(vt + 1))
    A('v_lshlrev_b32 %s, 8, %s', v(vt), v(vt))
    A('v_bfe_u32 %s, v1, 4, 1', v(vt + 2))
    A('v_lshl_add_u32 %s, %s, 5, %s', v(vt), v(vt + 2), v(vt))
    if sigma:
        A('v_and_b32 %s, 1, v1', v(vt + 2))
        A('v_lshl_add_u32 %s, %s, 4, %s', v(vt), v(vt + 2), v(vt))
        A('v_bfe_u32 %s, v1, 1, 1', v(vt + 2))
        A('v_lshl_add_u32 %s, %s, 3, %s', v(vt), v(vt + 2), v(vt))
    else:
        A('v_and_b32 %s, 3, v1', v(vt + 2))
        A('v_lshl_add_u32 %s, %s, 3, %s', v(vt), v(vt + 2), v(vt))


def tr_lane_bases(A, vdst, hrow, sigma, vt):
    tr_lane_base(A, vt, hrow, sigma)
    for mt in range(4):
        A('v_xor_b32 %s, %d, %s', v(vt + 2), mt, v(vt + 1))
        A('v_lshl_add_u32 %s, %s, 6, %s', v(vdst + mt), v(vt + 2), v(vt))


def wo_lane_base(A, vdst, vt):
    tr_lane_base(A, vt, 4, True)
    A('v_xor_b32 %s, %s, %s', v(vt + 2), s(sWave), v(vt + 1))
    A('v_lshl_add_u32 %s, %s, 6, %s', v(vdst), v(vt + 2), v(vt))


def wo_reads(A, j, half, vaddr):
    for f in range(4):
        for aa in range(2):
            A('ds_read_b64_tr_b16 %s, %s offset:%d', a(AWO + 32 * j + 16 * half + 4 * f + 2 * aa, 2), v(vaddr), (16 * f + 8 * aa) * 256)


def tail_srds(A):
    srd(A, sO, 18, '0x%x' % WS_O if WS_O else None, 256 * 24576)
    srd(A, sPo, 18, '0x%x' % WS_P, 256 * 24576)
    srd(A, sF, 18, '0x%x' % WS_F, 256 * 256)
    srd(A, sDbg, 16, None, 256)
    A('s_mul_i32 %s, %s, 98304', s(sT), s(sB))
    srd(A, sOut, 14, s(sT), 98304)
    A('v_lshlrev_b32 %s, 4, v1', v(vBl))
    A('v_mov_b32 %s, 0x%x', v(vSt), STAT)


STEPS = ['K0', 'K1', 'V0', 'K2', 'V1', 'K3', 'V2', 'V3']


def plan():
    groups = []
    steps = []
    for i in range(8):
        base = WSTR * (i % 5)
        for g in range(3):
            groups.append(('x', i, g, base + 16384 + 4096 * g, i))
        for g in range(4):
            groups.append(('w', i, g, base + 4096 * g, i))
        steps.append(['W%d' % i, len(groups) - 1, i if OPT['strict'] else i - 1])
    for t, nm in enumerate(STEPS):
        base = KVS[t % 3]
        kv = lambda g: (nm[0].lower(), int(nm[1]), g, base + 16384 + 4096 * g, 8 + t)
        wo = lambda g: ('o', t >> 1, 4 * (t & 1) + g, base + 4096 * g, 8 + t)
        if t == 0:
            seq = [kv(g) for g in range(3, 8)] + [kv(0), wo(0), kv(1), wo(1), kv(2), wo(2), wo(3)]
        elif t == 7:
            seq = [wo(g) for g in range(4)] + [kv(g) for g in range(8)]
        else:
            seq = []
            for q in range(4):
                seq += [wo(q), kv(2 * q), kv(2 * q + 1)]
        if OPT['nowo']:
            seq = [x for x in seq if x[0] != 'o']
        groups += seq
        if t < 7:
            steps.append([nm, len(groups) - 1, 8 + t])
        else:
            e = len(groups) - 1
            for q in range(4):
                steps.append(['V3' + 'abcd'[q], e - 6 + 2 * q, 15])
    return steps, groups


def loader(A):
    lX, lW, lK, lV, lWo, lT, lA = 200, 204, 208, 212, 216, 220, 228
    A('v_lshrrev_b32 %s, 4, v1', v(lT))
    A('v_and_b32 %s, 15, v1', v(lT + 1))
    A('v_lshrrev_b32 %s, 3, v1', v(lT + 3))
    A('v_and_b32 %s, 7, v1', v(lT + 4))
    A('v_xor_b32 %s, %s, %s', v(lT + 4), v(lT + 4), v(lT))
    A('v_lshlrev_b32 %s, 4, %s', v(lT + 4), v(lT + 4))
    A('v_lshl_add_u32 %s, %s, 10, %s', v(lX), v(lT + 3), v(lT + 4))
    A('v_xor_b32 %s, 64, %s', v(lX + 1), v(lX))
    A('v_add_u32 %s, 0x%x, %s', v(lX + 2), 2 * 7168, v(lX))
    A('v_add_u32 %s, 0x%x, %s', v(lX + 3), 3 * 7168, v(lX + 1))
    A('v_add_u32 %s, 0x%x, %s', v(lX + 1), 7168, v(lX + 1))
    A('v_lshlrev_b32 %s, 2, %s', v(lT + 2), v(lT))
    A('v_xor_b32 %s, %s, %s', v(lT + 2), v(lT + 2), v(lT + 1))
    A('v_lshlrev_b32 %s, 4, %s', v(lT + 2), v(lT + 2))
    A('v_lshl_add_u32 %s, %s, 13, %s', v(lW), v(lT), v(lT + 2))
    for j in range(1, 4):
        A('v_add_u32 %s, 0x%x, %s', v(lW + j), j * (32768 - 1024), v(lW))
    A('s_mul_i32 %s, %s, 98304', s(sT), s(sB))
    A('s_lshl_b32 %s, %s, 8', s(sT + 1), s(sH))
    A('s_sub_u32 %s, 0x400000, %s', s(sT + 2), s(sT + 1))
    A('s_waitcnt lgkmcnt(0)')
    srd(A, sX, 4, s(sT), 98304)
    srd(A, sW, 10, s(sT + 1), s(sT + 2))
    stamp(A, 30)

    def setup2():
        A('s_lshl_b32 %s, %s, 5', s(sT), s(sB))
        A('s_add_u32 %s, %s, %s', s(sT), s(sT), s(sH))
        A('s_lshl_b32 %s, %s, 17', s(sT), s(sT))
        srd(A, sK, 6, s(sT), 131072)
        srd(A, sV, 8, s(sT), 131072)
        A('s_lshl_b32 %s, %s, 19', s(sT), s(sHg))
        A('s_lshl_b32 %s, %s, 8', s(sT + 1), s(sHh))
        A('s_add_u32 %s, %s, %s', s(sT), s(sT), s(sT + 1))
        A('s_sub_u32 %s, 0x80000, %s', s(sT + 2), s(sT + 1))
        srd(A, sWo, 12, s(sT), s(sT + 2))
        A('v_lshl_add_u32 %s, %s, 8, %s', v(lV), v(lT), v(lT + 2))
        A('v_lshl_add_u32 %s, %s, 10, %s', v(lWo), v(lT), v(lT + 2))
        for j in range(1, 4):
            A('v_add_u32 %s, 0x%x, %s', v(lWo + j), j * (4096 - 1024), v(lWo))
        for j in range(4):
            A('v_add_u32 %s, %d, %s', v(lT + 3), 4 * j, v(lT))
            A('v_xor_b32 %s, %s, %s', v(lT + 3), v(lT + 3), v(lT + 1))
            A('v_lshlrev_b32 %s, 4, %s', v(lT + 3), v(lT + 3))
            A('v_lshl_add_u32 %s, %s, 8, %s', v(lK + j), v(lT), v(lT + 3))
        wo_lane_base(A, lA, lT)
        tail_srds(A)
        if OPT['rg']:
            A('s_lshl_b32 %s, %s, 12', s(sT + 8), s(sB))
        else:
            A('s_mov_b32 %s, 0', s(sT + 8))
        A('s_and_b32 %s, s2, 63', s(sT + 1))
        for j in range(1, 4):
            A('s_add_u32 %s, %s, %d', s(sT), s(sHh), j)
            A('s_and_b32 %s, %s, 3', s(sT), s(sT))
            A('s_lshl_b32 %s, %s, 6', s(sT), s(sT))
            A('s_add_u32 %s, %s, %s', s(sT), s(sT), s(sT + 1))
            A('s_mul_i32 %s, %s, 24576', s(sT + 10 + j), s(sT))
        A('v_lshrrev_b32 %s, 2, v1', v(lP))
        A('v_min_u32 %s, 2, %s', v(lP), v(lP))
        A('v_add_u32 %s, %s, %s', v(lP), s(sHh), v(lP))
        A('v_add_u32 %s, 1, %s', v(lP), v(lP))
        A('v_and_b32 %s, 3, %s', v(lP), v(lP))
        A('v_lshlrev_b32 %s, 6, %s', v(lP), v(lP))
        A('v_add_u32 %s, %s, %s', v(lP), s(sT + 1), v(lP))
        A('v_lshlrev_b32 %s, 8, %s', v(lP), v(lP))
        A('v_and_b32 %s, 3, v1', v(lP + 1))
        A('v_min_u32 %s, 2, %s', v(lP + 1), v(lP + 1))
        A('v_lshl_add_u32 %s, %s, 2, %s', v(lP), v(lP + 1), v(lP))
        A('v_mov_b64 %s, 0', v(lP + 2, 2))

    steps, groups = plan()
    st = dict(m0=None, key=None, so=None)
    sXo, sWq, sG, sOo, sGk, sGv, sRg = sT + 3, sT + 4, sT + 5, sT + 6, sT + 7, sT + 7, sT + 8

    def issue(gi):
        kind, j, g, lds, _ = groups[gi]
        if st['m0'] is not None and 0 < lds - st['m0'] < 32768:
            A('s_addk_i32 m0, 0x%x', lds - st['m0'])
        else:
            A('s_mov_b32 m0, 0x%x', lds)
        st['m0'] = lds
        if kind == 'x':
            if g == 0:
                A('s_add_u32 %s, %s, %d', s(sT), s(sRot), j)
                A('s_and_b32 %s, %s, 7', s(sT), s(sT))
                A('s_lshl_b32 %s, %s, 7', s(sXo), s(sT))
                A('s_lshl_b32 %s, %s, 19', s(sWq), s(sT))
            else:
                A('s_add_u32 %s, %s, 0x8000', s(sXo), s(sXo))
            dma(A, [lX, lX + 1, lX + 2, lX + 3], sX, sXo, OPT['x_pol'])
        elif kind == 'w':
            if g:
                A('s_add_u32 %s, %s, 0x20000', s(sWq), s(sWq))
            dma(A, [lW, lW + 1, lW + 2, lW + 3], sW, sWq, OPT['w_pol'])
        elif kind == 'o':
            if g == 0:
                A('s_add_u32 %s, %s, %d', s(sT), s(sHh), j)
                A('s_and_b32 %s, %s, 3', s(sT), s(sT))
                A('s_lshl_b32 %s, %s, 17', s(sOo), s(sT))
            else:
                A('s_addk_i32 %s, 0x4000', s(sOo))
            dma(A, [lWo, lWo + 1, lWo + 2, lWo + 3], sWo, sOo, OPT['wo_pol'])
        else:
            sR = sGk if kind == 'k' else sGv
            if st.get(kind) == (j, g - 1):
                A('s_addk_i32 %s, 0x1000', s(sR))
            else:
                A('s_add_u32 %s, %s, 0x%x', s(sR), s(sRg), 4096 * g)
            st[kind] = (j, g)
            A('s_and_b32 %s, %s, 0x7000', s(sG), s(sR))
            if j:
                A('s_or_b32 %s, %s, 0x%x', s(sG), s(sG), j * 32768)
            if kind == 'k':
                dma(A, [lK, lK + 1, lK + 2, lK + 3], sK, sG, OPT['kv_pol'])
            else:
                dma(A, [lV] * 4, sV, sG, OPT['kv_pol'])

    def free(gi, cert):
        lds = groups[gi][3]
        return all(not (p[3] < lds + 4096 and lds < p[3] + 4096) or p[4] < cert for p in groups[:gi])

    nxt = 0
    cert = 0
    did2 = False
    pend = False
    for i, (name, e, c) in enumerate(steps):
        la = int(OPT['law'].split(',')[i]) if i < 8 else OPT['la']
        while nxt < len(groups) and nxt <= e + la and free(nxt, cert):
            if nxt == 11 and not did2:
                stamp(A, 31)
                setup2()
                did2 = True
            issue(nxt)
            nxt += 1
        assert nxt > e, (name, nxt, e)
        A('s_waitcnt vmcnt(%d)%s', min(60, 4 * (nxt - 1 - e)), ' lgkmcnt(0)' if pend else '')
        pend = False
        stamp(A, 2 + i)
        A('s_barrier')
        cert = max(cert, c)
        if 8 <= i <= 15:
            t = i - 8
            A('v_add_u32 %s, 0x%x, %s', v(lA + 1), KVS[t % 3], v(lA))
            wo_reads(A, t >> 1, t & 1, lA + 1)
            pend = True
            if i == 15:
                A('ds_write_b64 %s, %s', v(vSt), v(lP + 2, 2))
    assert nxt == len(groups)

    A('s_mov_b32 %s, 0', s(sIss))
    A('s_mov_b32 %s, 0', s(sLand))
    A('s_branch L_tail')


def qproj(A, vacc, vWa, vBa, vWb, vBb):
    L = Lds(A)
    FA = [[0 + 16 * p + 4 * mt for mt in range(4)] for p in range(2)]
    FB = [32, 36]

    def reads(ks):
        p = ks & 1
        out = [('ds_read_b128 %s, %s offset:%d' % (a(FB[p], 4), v(vBa + ks), 16384), ('B', ks))]
        for mt in range(4):
            for aa in range(2):
                out.append(('ds_read_b64_tr_b16 %s, %s offset:%d' % (a(FA[p][mt] + 2 * aa, 2), v(vWa + mt), (16 * ks + 4 * aa) * 256), ('A', ks, mt)))
        return out

    def addr_w():
        return ['v_add_u32 %s, %s, %s' % (v(vWa + mt), s(sSlot), v(vWb + mt)) for mt in range(4)]

    def addr_b():
        return ['v_add_u32 %s, %s, %s' % (v(vBa), s(sSlot), v(vBb))] + ['v_xor_b32 %s, %d, %s' % (v(vBa + k), 32 * k, v(vBa)) for k in range(1, 4)]

    def mfma(ks, mt):
        p = ks & 1
        L.need(('B', ks), ('A', ks, mt))
        A('%s %s, %s, %s, %s', MFMA, v(vacc + 16 * mt, 16), a(FA[p][mt], 4), a(FB[p], 4), v(vacc + 16 * mt, 16))

    A('s_mov_b32 %s, 0', s(sCnt))
    for o in addr_w() + addr_b():
        A(o)
    A('s_barrier')
    for t, tag in reads(0):
        L.read(t, tag)
    q0 = list(L.q)
    A.label('L_qp')
    for ks in range(3):
        nxt = reads(ks + 1)
        for mt in range(4):
            mfma(ks, mt)
            for t, tag in nxt[3 * mt:3 * mt + 3]:
                L.read(t, tag)
            if ks == 2 and mt == 3:
                A('s_add_u32 %s, %s, 0x%x', s(sSlot), s(sSlot), WSTR)
                A('s_cmp_eq_u32 %s, 0x%x', s(sSlot), WSTR * 5)
                A('s_cselect_b32 %s, 0, %s', s(sSlot), s(sSlot))
                for o in addr_w()[:2] + addr_b()[:1]:
                    A(o)
    qs = list(L.q)
    A('s_add_u32 %s, %s, 1', s(sCnt), s(sCnt))
    A('s_cmp_eq_u32 %s, 8', s(sCnt))
    A('s_cbranch_scc1 L_qp_last')
    nxt = reads(0)
    extra = [addr_w()[2:], addr_b()[1:], [], []]
    for mt in range(4):
        mfma(3, mt)
        if mt == 0:
            if OPT['strict']:
                L.drain()
            stampd(A, 32, 2)
            A('s_barrier')
            stampd(A, 33, 2)
        for t, tag in nxt[3 * mt:3 * mt + 3]:
            L.read(t, tag)
        for o in extra[mt]:
            A(o)
    assert L.q == q0, (L.q, q0)
    A('s_branch L_qp')
    A.label('L_qp_last')
    L.q = qs
    for mt in range(4):
        mfma(3, mt)


def compute(A):
    vQ, vO, vS, vP = 4, 36, 100, 164
    vWb, vXb, vWa, vXa = 196, 200, 201, 205
    vKb, vKa, vVb, vVa = 209, 210, 218, 222
    vM, vL, vT, vOb, vOa, vD = 226, 228, 230, 238, 239, 244
    if OPT['pfcode']:
        A('s_cmp_lg_u32 %s, 1', s(sWave))
        A('s_cbranch_scc1 L_nopf')
        A('s_getpc_b64 %s', s(sT + 2, 2))
        A.label('L_pc')
        A('s_sub_u32 %s, %s, L_pc-%s_kernel', s(sT + 2), s(sT + 2), NAME)
        A('s_subb_u32 %s, %s, 0', s(sT + 3), s(sT + 3))
        A('s_lshr_b32 %s, s2, 3', s(sT))
        A('s_lshl_b32 %s, %s, 10', s(sT), s(sT))
        A('v_lshl_add_u32 %s, v1, 7, %s', v(vT), s(sT))
        A('v_min_u32 %s, L_end-%s_kernel, %s', v(vT), NAME, v(vT))
        A('s_mov_b64 exec, 0xff')
        A('global_load_dword v250, %s, %s', v(vT), s(sT + 2, 2))
        A('s_mov_b64 exec, -1')
        A.label('L_nopf')
    A('s_waitcnt lgkmcnt(0)')
    tail_srds(A)
    A('s_cmp_lg_u32 %s, 0', s(sWave))
    A('s_cbranch_scc1 L_noreset')
    A('v_mov_b64 %s, 0', v(vO, 2))
    A('v_mov_b64 %s, 0', v(vO + 2, 2))
    A('s_lshl_b32 %s, s2, 8', s(sT))
    A('s_mov_b64 exec, 0xffff')
    A('buffer_store_dwordx4 %s, %s, %s, %s offen sc1', v(vO, 4), v(vBl), s(sF, 4), s(sT))
    A('s_mov_b64 exec, -1')
    A.label('L_noreset')
    tr_lane_bases(A, vWb, 8, True, vT)
    A('v_and_b32 %s, 31, v1', v(vT))
    A('s_lshl_b32 %s, %s, 5', s(sT), s(sWave))
    A('v_add_u32 %s, %s, %s', v(vT), s(sT), v(vT))
    A('v_bfe_u32 %s, %s, 1, 3', v(vT + 1), v(vT))
    A('v_lshrrev_b32 %s, 5, v1', v(vT + 2))
    A('v_xor_b32 %s, %s, %s', v(vT + 1), v(vT + 1), v(vT + 2))
    A('v_lshlrev_b32 %s, 4, %s', v(vT + 1), v(vT + 1))
    A('v_lshl_add_u32 %s, %s, 7, %s', v(vXb), v(vT), v(vT + 1))
    A('v_and_b32 %s, 31, v1', v(vT))
    A('v_and_b32 %s, 15, v1', v(vT + 1))
    A('v_xor_b32 %s, %s, %s', v(vT + 1), v(vT + 1), v(vT + 2))
    A('v_lshlrev_b32 %s, 4, %s', v(vT + 1), v(vT + 1))
    A('v_lshl_add_u32 %s, %s, 8, %s', v(vKb), v(vT), v(vT + 1))
    A('v_add_u32 %s, 0x4000, %s', v(vKb), v(vKb))
    tr_lane_bases(A, vVb, 4, False, vT)
    for mt in range(4):
        A('v_add_u32 %s, 0x4000, %s', v(vVb + mt), v(vVb + mt))
    wo_lane_base(A, vOb, vT)
    A('v_lshlrev_b32 %s, 2, v1', v(vD + 1))
    for i in range(0, 64, 2):
        A('v_mov_b64 %s, 0', v(vS + i, 2))
    for i in range(0, 64, 2):
        A('v_mov_b64 %s, 0', v(vO + i, 2))
    A('v_mov_b32 %s, 0xff800000', v(vM))
    A('v_mov_b64 %s, 0', v(vL, 2))
    A('s_mov_b32 %s, 0x%x', s(sC), C_SCALE)
    A('s_mov_b32 %s, 0x%x', s(sC + 1), C_SCALE)
    A('s_mov_b32 %s, 0', s(sSlot))
    for i in range(3):
        A('s_mov_b32 %s, 0x%x', s(sS0 + i), KVS[i])
    A('s_bfe_u32 %s, s2, 0x10003', s(sSel))
    A('s_lshl_b32 %s, %s, 4', s(sT), s(sWave))
    A('s_add_u32 %s, %s, %s', s(sSel), s(sSel), s(sT))
    stamp(A, 1)
    stamp(A, 60, 's_memtime')
    qproj(A, vS, vWa, vXa, vWb, vXb)
    stamp(A, 2)
    stamp(A, 61, 's_memtime')
    for i in range(32):
        A('v_cvt_pk_bf16_f32 %s, %s, %s', v(vQ + i), v(vS + 2 * i), v(vS + 2 * i + 1))

    L = Lds(A)
    vAl = vT + 4
    A('s_mov_b32 %s, 0', s(sCnt))
    A.label('L_att')
    A('s_cmp_lg_u32 %s, %s', s(sCnt), s(sSel))
    A('s_cbranch_scc1 L_norep')
    A('s_getreg_b32 %s, hwreg(HW_REG_XCC_ID, 0, 4)', s(sT))
    A('s_add_u32 %s, %s, 1', s(sT), s(sT))
    A('v_mov_b32 %s, %s', v(vT + 1), s(sT))
    A('v_mov_b32 %s, 0', v(vT))
    A('s_waitcnt vmcnt(0)')
    A('s_mov_b64 exec, 1')
    A('buffer_store_byte %s, %s, %s, s2 offen sc1', v(vT + 1), v(vT), s(sDbg, 4))
    A('s_mov_b64 exec, -1')
    A.label('L_norep')
    A('s_cmp_lg_u32 %s, 3', s(sCnt))
    A('s_cbranch_scc1 L_nodbg')
    A('buffer_load_dword %s, %s, %s, 0 offen sc1', v(vD), v(vD + 1), s(sDbg, 4))
    A.label('L_nodbg')
    A('v_add_u32 %s, %s, %s', v(vKa), s(sS0), v(vKb))
    for k in range(1, 8):
        A('v_xor_b32 %s, %d, %s', v(vKa + k), 32 * k, v(vKa))
    A('v_add_u32 %s, %s, %s', v(vOa), s(sS0), v(vOb))
    stampd(A, 6, 4)
    A('s_barrier')
    stampd(A, 7, 4)
    KF = [[32 * p + 4 * k for k in range(8)] for p in range(2)]

    def kread(t, k):
        return ('ds_read_b128 %s, %s offset:%d' % (a(KF[t & 1][k], 4), v(vKa + k), 8192 * t), ('K', t, k))

    for k in range(8):
        L.read(*kread(0, k))
    vMx = vT

    def max_ops(t):
        r = vS + 16 * t
        ops = []
        if t == 0:
            ops.append('v_max3_f32 %s, %s, %s, %s' % (v(vMx), v(r), v(r + 1), v(vM)))
            rest = range(2, 16, 2)
        else:
            rest = range(0, 16, 2)
        for i in rest:
            ops.append('v_max3_f32 %s, %s, %s, %s' % (v(vMx), v(r + i), v(r + i + 1), v(vMx)))
        return ops

    for t in range(4):
        mo = max_ops(t - 1) if t > 0 else []
        for k in range(8):
            L.need(('K', t, k))
            A('%s %s, %s, %s, %s', MFMA, v(vS + 16 * t, 16), a(KF[t & 1][k], 4), v(vQ + 4 * k, 4), '0' if k == 0 else v(vS + 16 * t, 16))
            if t < 3:
                L.read(*kread(t + 1, k))
            if k >= 4 and mo:
                for o in mo[:2]:
                    A(o)
                mo = mo[2:]
        assert not mo

    def wo_switch(tag, cases):
        for n, (c, t) in enumerate(cases):
            last = n == len(cases) - 1
            if not last:
                A('s_cmp_lg_u32 %s, %d', s(sCnt), c)
                A('s_cbranch_scc1 L_wo%s%d', tag, n + 1)
            wo_reads(A, t >> 1, t & 1, vOa)
            if not last:
                A('s_branch L_wo%sdone', tag)
                A.label('L_wo%s%d' % (tag, n + 1))
        A.label('L_wo%sdone' % tag)

    wo_switch('a', [(c, STEPS.index('K%d' % c)) for c in range(4)])
    for o in max_ops(3):
        A(o)
    A('v_mov_b32 %s, %s', v(vT + 1), v(vMx))
    A('v_permlane32_swap_b32 %s, %s', v(vT + 1), v(vMx))
    A('v_max_f32 %s, %s, %s', v(vMx), v(vMx), v(vT + 1))
    A('v_mul_f32 %s, %s, %s', v(vT + 2), s(sC), v(vMx))
    A('v_fma_f32 %s, %s, %s, -%s', v(vT + 3), v(vM), s(sC), v(vT + 2))
    A('v_exp_f32 %s, %s', v(vAl), v(vT + 3))
    A('v_mov_b32 %s, %s', v(vM), v(vMx))
    fma = lambda i: A('v_pk_fma_f32 %s, %s, %s, %s op_sel_hi:[1,1,0] neg_lo:[0,0,1] neg_hi:[0,0,1]', v(vS + i, 2), v(vS + i, 2), s(sC, 2), v(vT + 2, 2))
    fma(0)
    A('v_pk_mul_f32 %s, %s, %s op_sel_hi:[1,0]', v(vL, 2), v(vL, 2), v(vAl, 2))
    for i in range(0, 64, 2):
        if i + 2 < 64:
            fma(i + 2)
        A('v_exp_f32 %s, %s', v(vS + i), v(vS + i))
        A('v_exp_f32 %s, %s', v(vS + i + 1), v(vS + i + 1))
        if i >= 2:
            A('v_pk_add_f32 %s, %s, %s', v(vL, 2), v(vL, 2), v(vS + i - 2, 2))
            A('v_cvt_pk_bf16_f32 %s, %s, %s', v(vS + i // 2 - 1), v(vS + i - 2), v(vS + i - 1))
    for mt in range(4):
        A('v_add_u32 %s, %s, %s', v(vVa + mt), s(sS1), v(vVb + mt))
    A('v_pk_add_f32 %s, %s, %s', v(vL, 2), v(vL, 2), v(vS + 62, 2))
    A('v_cvt_pk_bf16_f32 %s, %s, %s', v(vS + 31), v(vS + 62), v(vS + 63))
    A('v_add_u32 %s, %s, %s', v(vOa), s(sS1), v(vOb))
    A('s_waitcnt lgkmcnt(0)')
    A('s_cmp_eq_u32 %s, 0', s(sCnt))
    A('s_cbranch_scc1 L_first')
    stampd(A, 8, 4)
    A('s_barrier')
    stampd(A, 9, 4)
    VF = [[64 + 16 * p + 4 * mt for mt in range(4)] for p in range(2)]

    def vread(p, mt, buf=None):
        b = VF[p & 1][mt] if buf is None else buf
        return [('ds_read_b64_tr_b16 %s, %s offset:%d' % (a(b + 2 * aa, 2), v(vVa + mt), (16 * p + 8 * aa) * 256), ('V', p, mt)) for aa in range(2)]

    def pv(p, mt, buf=None):
        b = VF[p & 1][mt] if buf is None else buf
        L.need(('V', p, mt))
        A('%s %s, %s, %s, %s', MFMA, v(vO + 16 * mt, 16), a(b, 4), v(vP + 4 * p, 4), v(vO + 16 * mt, 16))

    def pv_range(p0, p1):
        for mt in range(4):
            for x in vread(p0, mt):
                L.read(*x)
        for p in range(p0, p1):
            for mt in range(4):
                pv(p, mt)
                if p + 1 < p1:
                    for x in vread(p + 1, mt):
                        L.read(*x)

    pv_range(0, 8)
    assert not L.q
    wo_switch('b', [(c, STEPS.index('V%d' % (c - 1))) for c in (1, 2, 3)])
    A('s_mov_b32 %s, %s', s(sT), s(sS0))
    A('s_mov_b32 %s, %s', s(sS0), s(sS2))
    A('s_mov_b32 %s, %s', s(sS2), s(sS1))
    A('s_mov_b32 %s, %s', s(sS1), s(sT))
    A('s_branch L_join')
    A.label('L_first')
    A('s_mov_b32 %s, %s', s(sT), s(sS0))
    A('s_mov_b32 %s, %s', s(sS0), s(sS1))
    A('s_mov_b32 %s, %s', s(sS1), s(sS2))
    A('s_mov_b32 %s, %s', s(sS2), s(sT))
    A.label('L_join')
    for i in range(0, 32, 2):
        A('v_mov_b64 %s, %s', v(vP + i, 2), v(vS + i, 2))
    for i in range(0, 64, 2):
        A('v_pk_mul_f32 %s, %s, %s op_sel_hi:[1,0]', v(vO + i, 2), v(vO + i, 2), v(vAl, 2))
    A('s_add_u32 %s, %s, 1', s(sCnt), s(sCnt))
    A('s_cmp_lt_u32 %s, 4', s(sCnt))
    A('s_waitcnt lgkmcnt(0)')
    A('s_cbranch_scc1 L_att')

    for mt in range(4):
        A('v_add_u32 %s, %s, %s', v(vVa + mt), s(sS0), v(vVb + mt))
    A('v_add_u32 %s, %s, %s', v(vOa), s(sS0), v(vOb))
    stamp(A, 20)
    A('s_barrier')
    stamp(A, 21)
    pv_range(0, 2)
    wo_reads(A, 3, 1, vOa)
    A('v_add_f32 %s, %s, %s', v(vL), v(vL), v(vL + 1))
    A('v_mov_b32 %s, %s', v(vT), v(vL))
    A('v_permlane32_swap_b32 %s, %s', v(vT), v(vL))
    A('v_add_f32 %s, %s, %s', v(vL), v(vL), v(vT))
    A('v_rcp_f32 %s, %s', v(vT), v(vL))
    A('s_mov_b32 %s, 0', s(sT + 1))
    A.label('L_chk')
    A('s_waitcnt vmcnt(0)')
    A('v_add_u32 %s, 0x7f7f7f7f, %s', v(vD + 2), v(vD))
    A('v_or_b32 %s, 0x7f7f7f7f, %s', v(vD + 2), v(vD + 2))
    A('v_cmp_ne_u32 vcc, -1, %s', v(vD + 2))
    A('s_cmp_eq_u64 vcc, 0')
    A('s_cbranch_scc1 L_chk_ok')
    A('buffer_load_dword %s, %s, %s, 0 offen sc1', v(vD), v(vD + 1), s(sDbg, 4))
    A('s_add_u32 %s, %s, 1', s(sT + 1), s(sT + 1))
    A('s_cmp_lt_u32 %s, 0x%x', s(sT + 1), SPIN_MAX)
    A('s_cbranch_scc1 L_chk')
    A('s_waitcnt vmcnt(0)')
    A.label('L_chk_ok')
    A('s_waitcnt lgkmcnt(0)')
    A('s_barrier')
    pv_range(2, 4)
    A('s_and_b32 %s, s2, 3', s(sT))
    A('s_lshl_b32 %s, %s, 3', s(sT), s(sT))
    A('v_lshrrev_b32 %s, %s, %s', v(vD), s(sT), v(vD))
    A('v_and_b32 %s, 0xff, %s', v(vD), v(vD))
    A('s_bfe_u32 %s, s2, 0x40002', s(sT))
    for k in range(4):
        A('v_readlane_b32 %s, %s, %s', s(sT + 2 + k), v(vD), s(sT))
        if k < 3:
            A('s_add_u32 %s, %s, 16', s(sT), s(sT))
    A('s_xor_b32 %s, %s, %s', s(sT + 3), s(sT + 3), s(sT + 2))
    A('s_xor_b32 %s, %s, %s', s(sT + 4), s(sT + 4), s(sT + 2))
    A('s_xor_b32 %s, %s, %s', s(sT + 5), s(sT + 5), s(sT + 2))
    A('s_or_b32 %s, %s, %s', s(sT + 3), s(sT + 3), s(sT + 4))
    A('s_or_b32 %s, %s, %s', s(sLocal), s(sT + 3), s(sT + 5))
    if OPT['force_remote']:
        A('s_mov_b32 %s, 1', s(sLocal))
    A('s_barrier')
    pv_range(4, 6)
    A('s_lshl_b32 %s, %s, 13', s(sT + 1), s(sWave))
    A('s_mul_i32 %s, s2, 24576', s(sT + 6))
    A('s_add_u32 %s, %s, %s', s(sT + 6), s(sT + 6), s(sT + 1))
    A('s_add_u32 %s, %s, 0x1000', s(sT + 7), s(sT + 6))
    A('s_add_u32 %s, %s, 0x%x', s(sT + 1), s(sT + 1), ROWN)
    A('v_add_u32 %s, %s, %s', v(vT + 2), s(sT + 1), v(vBl))
    A('s_lshl_b32 %s, s2, 8', s(sT + 8))
    A('s_lshl_b32 %s, %s, 2', s(sT + 1), s(sWave))
    A('s_add_u32 %s, %s, %s', s(sT + 8), s(sT + 8), s(sT + 1))
    A('v_mov_b32 %s, 1', v(vT + 4))
    A('v_mov_b32 %s, 0', v(vT + 5))
    A('s_mov_b32 %s, 14', s(sIss))
    A('s_mov_b32 %s, 14', s(sLand))
    A('s_cmp_eq_u32 %s, 0', s(sLocal))
    A('s_cbranch_scc1 L_pub_local')
    for pol, tag in (('sc1', 'remote'), ('', 'local')):
        A.label('L_pub_' + tag)
        A('s_barrier')
        stamp(A, 3)
        seq = [(mt, p) for mt in range(4) for p in (6, 7)]
        buf = lambda i: 64 + 4 * i
        for i in range(6):
            for x in vread(seq[i][1], seq[i][0], buf(i)):
                L.read(*x)

        def fin(f):
            for i in range(4):
                r = vO + 8 * f + 2 * i
                if f >= 4 or OPT['pkpub']:
                    A('v_pk_mul_f32 %s, %s, %s op_sel_hi:[1,0]', v(r, 2), v(r, 2), v(vT, 2))
                else:
                    A('v_mul_f32 %s, %s, %s', v(r), v(vT), v(r))
                    A('v_mul_f32 %s, %s, %s', v(r + 1), v(vT), v(r + 1))
            for i in range(4):
                r = vO + 8 * f + 2 * i
                A('v_cvt_pk_bf16_f32 %s, %s, %s', v(vS + 4 * f + i), v(r), v(r + 1))
            A('buffer_store_dwordx4 %s, %s, %s, %s offen offset:%d %s', v(vS + 4 * f, 4), v(vBl), s(sO, 4), s(sT + 6 + (f >> 2)), 1024 * (f & 3), pol)

        for i, (mt, p) in enumerate(seq):
            pv(p, mt, buf(i))
            if i < 2:
                for x in vread(seq[6 + i][1], seq[6 + i][0], buf(6 + i)):
                    L.read(*x)
            if i >= 4:
                fin(i - 4)
        for f in range(4, 8):
            fin(f)
        stamp(A, 4)
        for f in range(OPT['dsw']):
            A('ds_write_b128 %s, %s offset:%d', v(vT + 2), v(vS + 4 * f, 4), 1024 * f)
        A('s_waitcnt vmcnt(0)')
        A('s_mov_b64 exec, 1')
        A('buffer_store_dword %s, %s, %s, %s offen %s', v(vT + 4), v(vT + 5), s(sF, 4), s(sT + 8), pol)
        A('s_mov_b64 exec, -1')
        stamp(A, 5)
        for f in range(OPT['dsw'], 8):
            A('ds_write_b128 %s, %s offset:%d', v(vT + 2), v(vS + 4 * f, 4), 1024 * f)
        A('s_mov_b64 exec, 1')
        A('s_waitcnt lgkmcnt(0)')
        A('ds_add_u32 %s, %s', v(vSt), v(vT + 4))
        A('s_mov_b64 exec, -1')
        if tag == 'remote':
            A('s_branch L_tail')


def tail(A):
    vU = 230
    vB0 = 243
    vTm = 196
    vPk = 212
    NB = 6
    order = [(qt, f) for qt in range(3) for f in range(8)]
    OOB = 0x7f000000

    def fin_ops(qt, pk=True):
        ops = []
        for t in range(2):
            o = 2 * qt + t
            r = vAcc + 8 * o
            if pk:
                for i in range(0, 8, 2):
                    ops.append('v_pk_add_f32 %s, %s, %s' % (v(vTm + i, 2), v(r + i, 2), v(r + 48 + i, 2)))
                    ops.append('v_pk_add_f32 %s, %s, %s' % (v(vTm + 8 + i, 2), v(r + 96 + i, 2), v(r + 144 + i, 2)))
                for i in range(0, 8, 2):
                    ops.append('v_pk_add_f32 %s, %s, %s' % (v(vTm + i, 2), v(vTm + i, 2), v(vTm + 8 + i, 2)))
            else:
                for i in range(8):
                    ops.append('v_add_f32 %s, %s, %s' % (v(vTm + i), v(r + i), v(r + 48 + i)))
                    ops.append('v_add_f32 %s, %s, %s' % (v(vTm + 8 + i), v(r + 96 + i), v(r + 144 + i)))
                for i in range(8):
                    ops.append('v_add_f32 %s, %s, %s' % (v(vTm + i), v(vTm + i), v(vTm + 8 + i)))
            for i in range(4):
                ops.append('v_cvt_pk_bf16_f32 %s, %s, %s' % (v(vPk + 4 * t + i), v(vTm + 2 * i), v(vTm + 2 * i + 1)))
            ops.append('buffer_store_dwordx4 %s, %s, %s, %s offen offset:%d %s' % (v(vPk + 4 * t, 4), v(vBl), s(sPo, 4), s(sPst + o // 3), 1024 * (o % 3), OPT['p_pol']))
        return ops

    def block(j):
        L = Lds(A)
        stampd(A, 48, 2)
        A('v_add_u32 %s, 0x%x, %s', v(vB0), ROWN if j == 0 else RB[j - 1], v(vBl))

        def rd(i):
            qt, f = order[i]
            L.read('ds_read_b128 %s, %s offset:%d' % (a(4 * (i % NB), 4), v(vB0), qt * 8192 + f * 1024), i)

        for i in range(NB - 1):
            rd(i)
        A('s_or_b32 %s, %s, %d', s(sDone), s(sDone), 1 << j)
        A('s_cmp_eq_u32 %s, 15', s(sDone))
        A('s_cselect_b32 %s, %s, 0x%x', s(sPst), s(sT + 8), OOB)
        A('s_cselect_b32 %s, %s, 0x%x', s(sPst + 1), s(sT + 9), OOB)
        pend = []
        for i, (qt, f) in enumerate(order):
            L.need(i)
            acc = v(vAcc + 48 * j + 16 * qt, 16)
            A('%s %s, %s, %s, %s', MFMA, acc, a(AWO + 32 * j + 4 * f, 4), a(4 * (i % NB), 4), '0' if f == 0 else acc)
            if i + NB - 1 < len(order):
                rd(i + NB - 1)
            if OPT['ovl'] and qt > 0 and f == 3:
                pend += fin_ops(qt - 1, OPT['pkfin'])
            n = OPT['nfin']
            for o in pend[:n]:
                A(o)
            pend = pend[n:]
            if i == 20:
                L.read('ds_read_b64 %s, %s' % (v(vU, 2), v(vSt)), 'st')
        L.drain()
        if OPT['prof'] >= 2:
            stampd(A, 49, 2)
            A('s_add_u32 %s, %s, 1', s(sCnt), s(sCnt))
            A('s_cmp_eq_u32 %s, 15', s(sDone))
        A('s_cbranch_scc0 L_post')
        for o in pend:
            A(o)
        A('s_branch L_sum')

    A.label('L_tail')
    stamp(A, 23)
    A('s_and_b32 %s, s2, 0xf8', s(sT))
    A('s_lshl_b32 %s, %s, 1', s(sT + 1), s(sWave))
    A('s_add_u32 %s, %s, %s', s(sT + 10), s(sT), s(sT + 1))
    A('s_mul_i32 %s, %s, 24576', s(sT), s(sT + 10))
    A('s_mul_i32 %s, %s, 3072', s(sT + 1), s(sHg))
    A('s_add_u32 %s, %s, %s', s(sT + 8), s(sT), s(sT + 1))
    A('s_add_u32 %s, %s, 24576', s(sT + 9), s(sT + 8))
    A('s_mov_b32 %s, 0', s(sDone))
    A('s_mov_b32 %s, 0', s(sCnt))
    A('s_mov_b32 %s, 0', s(sT + 7))
    A.label('L_loop')
    A('s_cmp_eq_u32 %s, 14', s(sLand))
    A('s_cbranch_scc1 L_status')
    A.label('L_poll')
    A('buffer_load_dword %s, %s, %s, 0 offen sc1', v(lP + 1), v(lP), s(sF, 4))
    A('s_waitcnt vmcnt(0)')
    A('v_cmp_eq_u32 vcc, 1, %s', v(lP + 1))
    A('s_cmp_eq_u32 %s, %s', s(sLand), s(sIss))
    A('s_cbranch_scc1 L_noland')
    A('s_mov_b32 %s, %s', s(sLand), s(sIss))
    A('v_mov_b32 %s, %s', v(lP + 1), s(sLand))
    A('ds_write_b32 %s, %s offset:4', v(vSt), v(lP + 1))
    A.label('L_noland')
    for j in range(1, 4):
        A('s_bitcmp1_b32 %s, %d', s(sIss), j)
        A('s_cbranch_scc1 L_p_n%d', j)
        A('s_bfe_u32 %s, vcc_lo, 0x%x', s(sT + 1), (4 << 16) | (4 * (j - 1)))
        A('s_cmp_lg_u32 %s, 15', s(sT + 1))
        A('s_cbranch_scc1 L_p_n%d', j)
        A('s_mov_b32 m0, 0x%x', RB[j - 1])
        A('s_or_b32 %s, %s, %d', s(sIss), s(sIss), 1 << j)
        for g in range(6):
            if g:
                A('s_addk_i32 m0, 0x1000')
                A('s_addk_i32 %s, 0x1000', s(sT + 10 + j))
            dma(A, [vBl] * 4, sO, sT + 10 + j, 'sc1')
        A.label('L_p_n%d' % j)
    A.label('L_status')
    A('ds_read_b64 %s, %s', v(vU, 2), v(vSt))
    A('s_waitcnt lgkmcnt(0)')
    A.label('L_disp')
    A('v_readfirstlane_b32 %s, %s', s(sT), v(vU))
    A('v_readfirstlane_b32 %s, %s', s(sT + 1), v(vU + 1))
    A('s_cmp_eq_u32 %s, 3', s(sT))
    A('s_addc_u32 %s, %s, 0', s(sT + 1), s(sT + 1))
    A('s_andn2_b32 %s, %s, %s', s(sT + 1), s(sT + 1), s(sDone))
    if True:
        pass
    for j in (1, 2, 3, 0):
        A('s_bitcmp1_b32 %s, %d', s(sT + 1), j)
        A('s_cbranch_scc1 L_blk%d', j)
    A('s_add_u32 %s, %s, 1', s(sT + 7), s(sT + 7))
    A('s_cmp_lt_u32 %s, 0x%x', s(sT + 7), SPIN_MAX)
    A('s_cbranch_scc1 L_loop')
    A('s_branch L_sum')
    A.label('L_post')
    A('s_cmp_eq_u32 %s, 14', s(sLand))
    A('s_cbranch_scc1 L_disp')
    A('s_branch L_poll')
    for j in (1, 2, 3, 0):
        A.label('L_blk%d' % j)
        block(j)

    A.label('L_sum')
    stamp(A, 25)
    A('s_lshl_b32 %s, %s, 8', s(sT + 2), s(sT + 10))
    A('s_lshl_b32 %s, %s, 2', s(sT + 1), s(sHg))
    A('s_add_u32 %s, %s, %s', s(sT + 2), s(sT + 2), s(sT + 1))
    A('v_lshlrev_b32 %s, 8, v1', v(vU + 1))
    A('v_mov_b32 %s, 1', v(vU))
    for qt in range(0 if not OPT['ovl'] else 2, 3):
        for o in fin_ops(qt):
            A(o)
    stamp(A, 26)
    A('s_waitcnt vmcnt(0)')
    A('s_mov_b64 exec, 3')
    A('buffer_store_dword %s, %s, %s, %s offen offset:128 sc1', v(vU), v(vU + 1), s(sF, 4), s(sT + 2))
    A('s_mov_b64 exec, -1')
    stamp(A, 27)
    A('s_cmp_lg_u32 %s, 3', s(sWave))
    A('s_cbranch_scc1 L_red')
    stamp_flush(A)
    A('s_endpgm')

    A.label('L_red')
    vR, vF = 4, 40
    sGot, sLd2, sNew, sSp = sT + 6, sT + 7, sT + 8, sT + 9
    A('s_mul_i32 %s, s2, 24576', s(sT))
    A('s_lshl_b32 %s, %s, 10', s(sT + 1), s(sWave))
    A('s_add_u32 %s, %s, %s', s(sT), s(sT), s(sT + 1))
    A('s_lshl_b32 %s, s2, 8', s(sT + 3))
    A('v_and_b32 %s, 7, v1', v(vU))
    A('v_lshlrev_b32 %s, 2, %s', v(vU), v(vU))
    A('s_mov_b32 %s, 0', s(sGot))
    A('s_mov_b32 %s, 0', s(sLd2))
    A('s_mov_b32 %s, 0', s(sSp))
    A('buffer_load_dword %s, %s, %s, %s offen offset:128 sc1', v(vU + 1), v(vU), s(sF, 4), s(sT + 3))
    A('s_and_b32 %s, %s, 1', s(sT + 1), s(sHg))
    A('s_mul_i32 %s, %s, 3', s(sT + 1), s(sT + 1))
    A('s_add_u32 %s, %s, %s', s(sT + 1), s(sT + 1), s(sWave))
    A('s_lshr_b32 %s, %s, 1', s(sT + 2), s(sT + 1))
    A('s_lshl_b32 %s, %s, 15', s(sT + 2), s(sT + 2))
    A('s_and_b32 %s, %s, 1', s(sT + 1), s(sT + 1))
    A('s_lshl_b32 %s, %s, 5', s(sT + 1), s(sT + 1))
    A('s_add_u32 %s, %s, %s', s(sT + 2), s(sT + 2), s(sT + 1))
    A('s_lshr_b32 %s, %s, 1', s(sT + 1), s(sHg))
    A('s_lshl_b32 %s, %s, 6', s(sT + 1), s(sT + 1))
    A('s_add_u32 %s, %s, %s', s(sT + 2), s(sT + 2), s(sT + 1))
    A('s_lshl_b32 %s, %s, 8', s(sT + 1), s(sHh))
    A('s_add_u32 %s, %s, %s', s(sT + 2), s(sT + 2), s(sT + 1))
    A('v_and_b32 %s, 31, v1', v(vU + 2))
    A('v_lshlrev_b32 %s, 10, %s', v(vU + 2), v(vU + 2))
    A('v_lshrrev_b32 %s, 5, v1', v(vU + 3))
    A('v_lshl_add_u32 %s, %s, 4, %s', v(vU + 2), v(vU + 3), v(vU + 2))
    A.label('L_p2')
    A('s_waitcnt vmcnt(0)')
    A('v_cmp_eq_u32 vcc, 1, %s', v(vU + 1))
    A('s_andn2_b32 %s, %s, %s', s(sT + 4), s(sGot), s(sLd2))
    A('s_mov_b32 %s, %s', s(sLd2), s(sGot))
    A('s_and_b32 %s, vcc_lo, 0xff', s(sNew))
    if not OPT['early2']:
        A('s_cmp_eq_u32 %s, 0xff', s(sNew))
        A('s_cselect_b32 %s, 0xff, 0', s(sNew))
    A('s_andn2_b32 %s, %s, %s', s(sNew), s(sNew), s(sGot))
    A('s_cbranch_scc0 L_p2_noload')
    A('s_or_b32 %s, %s, %s', s(sGot), s(sGot), s(sNew))
    for k in range(8):
        A('s_bitcmp1_b32 %s, %d', s(sNew), k)
        A('s_cbranch_scc0 L_p2_l%d', k)
        if k < 2:
            A('buffer_load_dwordx4 %s, %s, %s, %s offen offset:%d sc1', v(vR + 4 * k, 4), v(vBl), s(sPo, 4), s(sT), 3072 * k)
        else:
            A('s_add_u32 %s, %s, 0x%x', s(sT + 1), s(sT), 3072 * k)
            A('buffer_load_dwordx4 %s, %s, %s, %s offen sc1', v(vR + 4 * k, 4), v(vBl), s(sPo, 4), s(sT + 1))
        A.label('L_p2_l%d' % k)
    A.label('L_p2_noload')
    A('s_cmp_eq_u32 %s, 0xff', s(sGot))
    A('s_cbranch_scc1 L_p2_nopoll')
    A('buffer_load_dword %s, %s, %s, %s offen offset:128 sc1', v(vU + 1), v(vU), s(sF, 4), s(sT + 3))
    A.label('L_p2_nopoll')
    A('s_cmp_eq_u32 %s, 0', s(sT + 4))
    A('s_cbranch_scc1 L_p2_nounp')
    for k in range(8):
        A('s_bitcmp1_b32 %s, %d', s(sT + 4), k)
        A('s_cbranch_scc0 L_p2_u%d', k)
        for i in range(4):
            A('v_lshlrev_b32 %s, 16, %s', v(vF + 8 * k + 2 * i), v(vR + 4 * k + i))
            A('v_and_b32 %s, 0xffff0000, %s', v(vF + 8 * k + 2 * i + 1), v(vR + 4 * k + i))
        A.label('L_p2_u%d' % k)
    A.label('L_p2_nounp')
    A('s_cmp_eq_u32 %s, 0xff', s(sLd2))
    A('s_cbranch_scc1 L_p2_done')
    A('s_add_u32 %s, %s, 1', s(sSp), s(sSp))
    A('s_cmp_lt_u32 %s, 0x%x', s(sSp), SPIN_MAX)
    A('s_cbranch_scc1 L_p2')
    A('s_waitcnt vmcnt(0)')
    A.label('L_p2_done')
    stamp(A, 28)
    for step in (8, 16, 32):
        for k in range(0, 64, 2 * step):
            for i in range(0, 8, 2):
                A('v_pk_add_f32 %s, %s, %s', v(vF + k + i, 2), v(vF + k + i, 2), v(vF + k + step + i, 2))
    for i in range(4):
        A('v_cvt_pk_bf16_f32 %s, %s, %s', v(vR + i), v(vF + 2 * i), v(vF + 2 * i + 1))
    A('buffer_store_dwordx4 %s, %s, %s, %s offen %s', v(vR, 4), v(vU + 2), s(sOut, 4), s(sT + 2), OPT['out_pol'])
    if OPT['prof']:
        A('s_waitcnt vmcnt(0)')
        stamp(A, 29)
        stamp_flush(A)


def kernel():
    A = Asm()
    A('s_cmp_ge_u32 s2, 256')
    A('s_cbranch_scc1 L_end')
    A('s_load_dwordx4 s[4:7], s[0:1], 0')
    A('s_load_dwordx4 s[8:11], s[0:1], 16')
    A('s_load_dwordx4 s[12:15], s[0:1], 32')
    A('s_load_dwordx4 s[16:19], s[0:1], 48')
    A('v_lshrrev_b32 v2, 6, v0')
    A('v_and_b32 v1, 63, v0')
    A('v_readfirstlane_b32 %s, v2', s(sWave))
    if OPT['prof']:
        A('v_mov_b32 v255, 0')
        stamp(A, 0)
    A('s_and_b32 %s, s2, 7', s(sHg))
    A('s_bfe_u32 %s, s2, 0x30003', s(sB))
    A('s_lshr_b32 %s, s2, 6', s(sHh))
    A('s_lshl_b32 %s, %s, 2', s(sH), s(sHg))
    A('s_add_u32 %s, %s, %s', s(sH), s(sH), s(sHh))
    A('s_lshl_b32 %s, %s, 1', s(sRot), s(sHh))
    A('s_add_u32 %s, %s, %s', s(sRot), s(sRot), s(sB))
    A('s_cmp_lg_u32 %s, 3', s(sWave))
    A('s_cbranch_scc1 L_compute')
    loader(A)
    A.label('L_compute')
    compute(A)
    tail(A)
    A.label('L_end')
    A('s_endpgm')
    return A.lines


def main():
    k, n = pad_hazards(kernel())
    out = ['; %s : fused Q-proj + attention + output projection' % NAME,
           '; @launch grid=(256,1,1) block=(256,1,1) lds=163840',
           '.amdgcn_target "amdgcn-amd-amdhsa--gfx950"', '.text',
           '.globl %s_kernel\n.p2align 8\n.type %s_kernel,@function\n%s_kernel:' % (NAME, NAME, NAME)]
    out += k
    out.append('''.section .rodata,"a"
.p2align 6
.amdhsa_kernel %s_kernel
  .amdhsa_next_free_vgpr 512
  .amdhsa_next_free_sgpr 102
  .amdhsa_accum_offset 256
  .amdhsa_group_segment_fixed_size 0
  .amdhsa_kernarg_size 64
  .amdhsa_user_sgpr_count 2
  .amdhsa_user_sgpr_kernarg_segment_ptr 1
  .amdhsa_system_sgpr_workgroup_id_x 1
.end_amdhsa_kernel''' % NAME)
    open(sys.argv[1], 'w').write('\n'.join(out) + '\n')
    print('wrote', sys.argv[1], 'pads', n)


main()
```

```python
import sys
from asmlib import Asm, pad_hazards, v, a, s

OPT = dict(kv_pol='nt', w_pol='', x_pol='', wo_pol='', prof=0, la=6, law='8,11,14,18,21,21,21,21', pfcode=1, force_remote=0, early2=1, ovl=0, probe_t=0, probe_k=0, probe_q=0, pl=1, touch=3, mgr1=1, st='0',  xo=0, cap=7, cap0=0, hx=0, nowo=0, rg=1, pkpub=0, strict=0, pkfin=1, nfin=5, dsw=4, ws_off=0, out_pol='', p_pol='sc1')
for arg in sys.argv[2:]:
    k, val = arg.split('=')
    OPT[k] = int(val, 0) if isinstance(OPT[k], int) else val

NAME = 'standalone__mha_block_cached__near_ridge'
C_SCALE = 0x3e0293ee
MFMA = 'v_mfma_f32_32x32x16_bf16'
WS_O, WS_P, WS_F = OPT['ws_off'], OPT['ws_off'] + (6 << 20), OPT['ws_off'] + (12 << 20)
SPIN_MAX = 1 << 20
WSTR = 28672
KVS = [114688, 0, 65536]
RB = [49152, 73728, 98304]
ROWN = 122880
STAT = 147456

sX, sK, sV, sW, sWo, sO, sPo, sF, sOut, sDbg = 20, 24, 28, 32, 36, 56, 60, 64, 68, 72
sWave, sHg, sB, sHh, sH, sRot = 40, 41, 43, 44, 45, 46
sSlot, sCnt, sC = 47, 48, 50
sS0, sS1, sS2, sLocal, sSel = 52, 53, 54, 55, 42
sIss, sLand, sDone, sPst = 52, 53, 54, 94
sFo = 99
sT = 76
AWO = 128
vBl = 240
vSt = 241
lP = 234
vAcc = 4


class Lds:
    def __init__(self, A):
        self.A = A
        self.q = []

    def read(self, text, tag):
        self.A(text)
        self.q.append(tag)

    def need(self, *tags):
        idx = max([i for i, t in enumerate(self.q) if t in tags], default=-1)
        if idx < 0:
            return
        n = len(self.q) - 1 - idx
        self.A('s_waitcnt lgkmcnt(%d)', min(n, 15))
        self.q = self.q[idx + 1:]

    def drain(self):
        if self.q:
            self.A('s_waitcnt lgkmcnt(0)')
        self.q = []


def srd(A, d, base, off, size):
    if off is None:
        A('s_mov_b32 %s, %s', s(d), s(base))
        A('s_mov_b32 %s, %s', s(d + 1), s(base + 1))
    else:
        A('s_add_u32 %s, %s, %s', s(d), s(base), off)
        A('s_addc_u32 %s, %s, 0', s(d + 1), s(base + 1))
    A('s_mov_b32 %s, %s', s(d + 2), size if isinstance(size, str) else '0x%x' % size)
    A('s_mov_b32 %s, 0x20000', s(d + 3))


def stamp(A, idx, op='s_memrealtime'):
    if not OPT['prof'] or (OPT['prof'] == 9 and idx not in (0, 3, 25, 29, 58)):
        return
    if OPT['prof'] == 3 and idx not in map(int, OPT['st'].split(',')):
        return
    A('%s s[90:91]', op)
    A('s_waitcnt lgkmcnt(0)')
    A('v_writelane_b32 v255, s90, %d', idx)


def stampd(A, base, mul, cnt=None):
    if OPT['prof'] != 2:
        return
    A('s_memrealtime s[90:91]')
    A('s_mul_i32 m0, %s, %d', s(sCnt if cnt is None else cnt), mul)
    A('s_add_u32 m0, m0, %d', base)
    A('s_waitcnt lgkmcnt(0)')
    A('v_writelane_b32 v255, s90, m0')


def stamp_flush(A):
    if not OPT['prof']:
        return
    A('s_lshl_b32 s92, s2, 2')
    A('s_add_u32 s92, s92, %s', s(sWave))
    A('s_lshl_b32 s92, s92, 8')
    A('s_add_u32 s92, s92, 0x%x', 128 << 20)
    srd(A, 24, 18, 's92', 256)
    A('v_lshlrev_b32 v254, 2, v1')
    A('buffer_store_dword v255, v254, s[24:27], 0 offen')


def dma(A, voffs, srdreg, soff, pol):
    for j in range(4):
        A('buffer_load_dwordx4 %s, %s, %s offen offset:%d %s lds', v(voffs[j]), s(srdreg, 4), s(soff), 1024 * j, pol)


def tr_lane_base(A, vt, hrow, sigma):
    A('v_lshrrev_b32 %s, 5, v1', v(vt))
    A('v_mul_u32_u24 %s, %d, %s', v(vt), hrow, v(vt))
    A('v_bfe_u32 %s, v1, 2, 2', v(vt + 1))
    A('v_add_u32 %s, %s, %s', v(vt), v(vt), v(vt + 1))
    A('v_lshlrev_b32 %s, 8, %s', v(vt), v(vt))
    A('v_bfe_u32 %s, v1, 4, 1', v(vt + 2))
    A('v_lshl_add_u32 %s, %s, 5, %s', v(vt), v(vt + 2), v(vt))
    if sigma:
        A('v_and_b32 %s, 1, v1', v(vt + 2))
        A('v_lshl_add_u32 %s, %s, 4, %s', v(vt), v(vt + 2), v(vt))
        A('v_bfe_u32 %s, v1, 1, 1', v(vt + 2))
        A('v_lshl_add_u32 %s, %s, 3, %s', v(vt), v(vt + 2), v(vt))
    else:
        A('v_and_b32 %s, 3, v1', v(vt + 2))
        A('v_lshl_add_u32 %s, %s, 3, %s', v(vt), v(vt + 2), v(vt))


def tr_lane_bases(A, vdst, hrow, sigma, vt):
    tr_lane_base(A, vt, hrow, sigma)
    for mt in range(4):
        A('v_xor_b32 %s, %d, %s', v(vt + 2), mt, v(vt + 1))
        A('v_lshl_add_u32 %s, %s, 6, %s', v(vdst + mt), v(vt + 2), v(vt))


def wo_lane_base(A, vdst, vt):
    tr_lane_base(A, vt, 4, True)
    A('v_xor_b32 %s, %s, %s', v(vt + 2), s(sWave), v(vt + 1))
    A('v_lshl_add_u32 %s, %s, 6, %s', v(vdst), v(vt + 2), v(vt))


def wo_reads(A, j, half, vaddr):
    for f in range(4):
        for aa in range(2):
            A('ds_read_b64_tr_b16 %s, %s offset:%d', a(AWO + 32 * j + 16 * half + 4 * f + 2 * aa, 2), v(vaddr), (16 * f + 8 * aa) * 256)


sFl, sFb = 4, sF
sMa, sMb = 96, 97


def check_land(A, tag):
    A('s_cmp_eq_u32 %s, 14', s(sLand))
    A('s_cbranch_scc1 L_cl_%s', tag)
    A('s_getreg_b32 %s, hwreg(HW_REG_IB_STS)', s(sT))
    A('s_and_b32 %s, %s, 15', s(sT + 1), s(sT))
    A('s_bfe_u32 %s, %s, 0x20016', s(sT), s(sT))
    A('s_lshl4_add_u32 %s, %s, %s', s(sT), s(sT), s(sT + 1))
    A('s_cmp_le_u32 %s, 48', s(sT))
    A('s_cselect_b32 %s, %s, 0', s(sT + 1), s(sMb))
    A('s_cmp_le_u32 %s, 24', s(sT))
    A('s_cselect_b32 %s, %s, %s', s(sT + 1), s(sMa), s(sT + 1))
    A('s_cmp_eq_u32 %s, 0', s(sT))
    A('s_cselect_b32 %s, %s, %s', s(sT + 1), s(sIss), s(sT + 1))
    A('s_andn2_b32 %s, %s, %s', s(sT), s(sT + 1), s(sLand))
    A('s_cbranch_scc0 L_cl_%s', tag)
    A('s_or_b32 %s, %s, %s', s(sLand), s(sLand), s(sT + 1))
    A('v_mov_b32 %s, %s', v(lP + 1), s(sLand))
    A('ds_write_b32 %s, %s offset:4', v(vSt), v(lP + 1))
    if OPT['prof'] in (2, 3):
        stamp(A, 57)
    A.label('L_cl_%s' % tag)


def burn(A, tag, n):
    if not n:
        return
    A('s_mov_b32 s98, %d', n)
    A.label('L_burn_' + tag)
    for i in range(14):
        A('v_mov_b32 v252, v253')
    A('s_sub_u32 s98, s98, 1')
    A('s_cmp_lg_u32 s98, 0')
    A('s_cbranch_scc1 L_burn_%s', tag)


def tail_srds(A):
    srd(A, sO, 18, '0x%x' % WS_O if WS_O else None, 256 * 24576)
    srd(A, sPo, 18, '0x%x' % WS_P, 256 * 24576)
    srd(A, sF, 18, '0x%x' % WS_F, 256 * 256)
    srd(A, sDbg, 16, None, 256)
    A('s_mul_i32 %s, %s, 98304', s(sT), s(sB))
    srd(A, sOut, 14, s(sT), 98304)
    A('v_lshlrev_b32 %s, 4, v1', v(vBl))
    A('v_mov_b32 %s, 0x%x', v(vSt), STAT)


STEPS = ['K0', 'K1', 'V0', 'K2', 'V1', 'K3', 'V2', 'V3']


def plan():
    groups = []
    steps = []
    for i in range(8):
        base = WSTR * (i % 5)
        for g in range(3):
            groups.append(('x', i, g, base + 16384 + 4096 * g, i))
        for g in range(4):
            groups.append(('w', i, g, base + 4096 * g, i))
        steps.append(['W%d' % i, len(groups) - 1, i if OPT['strict'] else i - 1])
    for t, nm in enumerate(STEPS):
        base = KVS[t % 3]
        kv = lambda g: (nm[0].lower(), int(nm[1]), g, base + 16384 + 4096 * g, 8 + t)
        wo = lambda g: ('o', t >> 1, 4 * (t & 1) + g, base + 4096 * g, 8 + t)
        if t == 0:
            seq = [kv(g) for g in range(3, 8)] + [kv(0), wo(0), kv(1), wo(1), kv(2), wo(2), wo(3)]
        elif t == 7:
            seq = [wo(g) for g in range(4)] + [kv(g) for g in range(8)]
        else:
            seq = []
            for q in range(4):
                seq += [wo(q), kv(2 * q), kv(2 * q + 1)]
        if OPT['nowo']:
            seq = [x for x in seq if x[0] != 'o']
        groups += seq
        if t < 7:
            steps.append([nm, len(groups) - 1, 8 + t])
        else:
            e = len(groups) - 1
            for q in range(4):
                steps.append(['V3' + 'abcd'[q], e - 6 + 2 * q, 15])
    return steps, groups


def loader(A):
    lX, lW, lK, lV, lWo, lT, lA = 200, 204, 208, 212, 216, 220, 228
    A('v_lshrrev_b32 %s, 4, v1', v(lT))
    A('v_and_b32 %s, 15, v1', v(lT + 1))
    A('v_lshrrev_b32 %s, 3, v1', v(lT + 3))
    A('v_and_b32 %s, 7, v1', v(lT + 4))
    A('v_xor_b32 %s, %s, %s', v(lT + 4), v(lT + 4), v(lT))
    A('v_lshlrev_b32 %s, 4, %s', v(lT + 4), v(lT + 4))
    A('v_lshl_add_u32 %s, %s, 10, %s', v(lX), v(lT + 3), v(lT + 4))
    A('v_xor_b32 %s, 64, %s', v(lX + 1), v(lX))
    A('v_add_u32 %s, 0x%x, %s', v(lX + 2), 2 * 7168, v(lX))
    A('v_add_u32 %s, 0x%x, %s', v(lX + 3), 3 * 7168, v(lX + 1))
    A('v_add_u32 %s, 0x%x, %s', v(lX + 1), 7168, v(lX + 1))
    A('v_lshlrev_b32 %s, 2, %s', v(lT + 2), v(lT))
    A('v_xor_b32 %s, %s, %s', v(lT + 2), v(lT + 2), v(lT + 1))
    A('v_lshlrev_b32 %s, 4, %s', v(lT + 2), v(lT + 2))
    A('v_lshl_add_u32 %s, %s, 13, %s', v(lW), v(lT), v(lT + 2))
    for j in range(1, 4):
        A('v_add_u32 %s, 0x%x, %s', v(lW + j), j * (32768 - 1024), v(lW))
    A('s_mul_i32 %s, %s, 98304', s(sT), s(sB))
    A('s_lshl_b32 %s, %s, 8', s(sT + 1), s(sH))
    A('s_sub_u32 %s, 0x400000, %s', s(sT + 2), s(sT + 1))
    A('s_waitcnt lgkmcnt(0)')
    srd(A, sX, 4, s(sT), 98304)
    srd(A, sW, 10, s(sT + 1), s(sT + 2))
    stamp(A, 30)

    def setup2():
        A('s_lshl_b32 %s, %s, 5', s(sT), s(sB))
        A('s_add_u32 %s, %s, %s', s(sT), s(sT), s(sH))
        A('s_lshl_b32 %s, %s, 17', s(sT), s(sT))
        srd(A, sK, 6, s(sT), 131072)
        srd(A, sV, 8, s(sT), 131072)
        A('s_lshl_b32 %s, %s, 19', s(sT), s(sHg))
        A('s_lshl_b32 %s, %s, 8', s(sT + 1), s(sHh))
        A('s_add_u32 %s, %s, %s', s(sT), s(sT), s(sT + 1))
        A('s_sub_u32 %s, 0x80000, %s', s(sT + 2), s(sT + 1))
        srd(A, sWo, 12, s(sT), s(sT + 2))
        A('v_lshl_add_u32 %s, %s, 8, %s', v(lV), v(lT), v(lT + 2))
        A('v_lshl_add_u32 %s, %s, 10, %s', v(lWo), v(lT), v(lT + 2))
        for j in range(1, 4):
            A('v_add_u32 %s, 0x%x, %s', v(lWo + j), j * (4096 - 1024), v(lWo))
        for j in range(4):
            A('v_add_u32 %s, %d, %s', v(lT + 3), 4 * j, v(lT))
            A('v_xor_b32 %s, %s, %s', v(lT + 3), v(lT + 3), v(lT + 1))
            A('v_lshlrev_b32 %s, 4, %s', v(lT + 3), v(lT + 3))
            A('v_lshl_add_u32 %s, %s, 8, %s', v(lK + j), v(lT), v(lT + 3))
        wo_lane_base(A, lA, lT)
        tail_srds(A)
        if OPT['rg']:
            A('s_lshl_b32 %s, %s, 12', s(sT + 8), s(sB))
        else:
            A('s_mov_b32 %s, 0', s(sT + 8))
        A('s_and_b32 %s, s2, 63', s(sT + 1))
        for j in range(1, 4):
            A('%s %s, %s, %d', 's_xor_b32' if OPT['xo'] else 's_add_u32', s(sT), s(sHh), j)
            A('s_and_b32 %s, %s, 3', s(sT), s(sT))
            if OPT['hx']:
                A('s_xor_b32 %s, %s, %d', s(sT), s(sT), OPT['hx'])
            A('s_lshl_b32 %s, %s, 6', s(sT), s(sT))
            A('s_add_u32 %s, %s, %s', s(sT), s(sT), s(sT + 1))
            A('s_mul_i32 %s, %s, 24576', s(sT + 10 + j), s(sT))
            A('s_lshl_b32 %s, %s, 8', s(sFo + j - 1), s(sT))
        A('v_lshrrev_b32 %s, 2, v1', v(lP))
        A('v_min_u32 %s, 2, %s', v(lP), v(lP))
        A('v_add_u32 %s, 1, %s', v(lP), v(lP))
        A('%s %s, %s, %s', 'v_xor_b32' if OPT['xo'] else 'v_add_u32', v(lP), s(sHh), v(lP))
        A('v_and_b32 %s, 3, %s', v(lP), v(lP))
        if OPT['hx']:
            A('v_xor_b32 %s, %d, %s', v(lP), OPT['hx'], v(lP))
        A('v_lshlrev_b32 %s, 6, %s', v(lP), v(lP))
        A('v_add_u32 %s, %s, %s', v(lP), s(sT + 1), v(lP))
        A('v_lshlrev_b32 %s, 8, %s', v(lP), v(lP))
        A('v_and_b32 %s, 3, v1', v(lP + 1))
        A('v_min_u32 %s, 2, %s', v(lP + 1), v(lP + 1))
        A('v_lshl_add_u32 %s, %s, 2, %s', v(lP), v(lP + 1), v(lP))
        A('v_mov_b64 %s, 0', v(lP + 2, 2))

    steps, groups = plan()
    st = dict(m0=None, key=None, so=None)
    sXo, sWq, sG, sOo, sGk, sGv, sRg = sT + 3, sT + 4, sT + 5, sT + 6, sT + 7, sT + 7, sT + 8

    def issue(gi):
        kind, j, g, lds, _ = groups[gi]
        if OPT['cap'] and gi >= 56 + OPT['cap0']:
            A('s_waitcnt vmcnt(%d)', 4 * (OPT['cap'] - 1))
        if st['m0'] is not None and 0 < lds - st['m0'] < 32768:
            A('s_addk_i32 m0, 0x%x', lds - st['m0'])
        else:
            A('s_mov_b32 m0, 0x%x', lds)
        st['m0'] = lds
        if kind == 'x':
            if g == 0:
                A('s_add_u32 %s, %s, %d', s(sT), s(sRot), j)
                A('s_and_b32 %s, %s, 7', s(sT), s(sT))
                A('s_lshl_b32 %s, %s, 7', s(sXo), s(sT))
                A('s_lshl_b32 %s, %s, 19', s(sWq), s(sT))
            else:
                A('s_add_u32 %s, %s, 0x8000', s(sXo), s(sXo))
            dma(A, [lX, lX + 1, lX + 2, lX + 3], sX, sXo, OPT['x_pol'])
        elif kind == 'w':
            if g:
                A('s_add_u32 %s, %s, 0x20000', s(sWq), s(sWq))
            dma(A, [lW, lW + 1, lW + 2, lW + 3], sW, sWq, OPT['w_pol'])
        elif kind == 'o':
            if g == 0:
                A('%s %s, %s, %d', 's_xor_b32' if OPT['xo'] else 's_add_u32', s(sT), s(sHh), j)
                A('s_and_b32 %s, %s, 3', s(sT), s(sT))
                A('s_lshl_b32 %s, %s, 17', s(sOo), s(sT))
            else:
                A('s_addk_i32 %s, 0x4000', s(sOo))
            dma(A, [lWo, lWo + 1, lWo + 2, lWo + 3], sWo, sOo, OPT['wo_pol'])
        else:
            sR = sGk if kind == 'k' else sGv
            if st.get(kind) == (j, g - 1):
                A('s_addk_i32 %s, 0x1000', s(sR))
            else:
                A('s_add_u32 %s, %s, 0x%x', s(sR), s(sRg), 4096 * g)
            st[kind] = (j, g)
            A('s_and_b32 %s, %s, 0x7000', s(sG), s(sR))
            if j:
                A('s_or_b32 %s, %s, 0x%x', s(sG), s(sG), j * 32768)
            if kind == 'k':
                dma(A, [lK, lK + 1, lK + 2, lK + 3], sK, sG, OPT['kv_pol'])
            else:
                dma(A, [lV] * 4, sV, sG, OPT['kv_pol'])

    def free(gi, cert):
        lds = groups[gi][3]
        return all(not (p[3] < lds + 4096 and lds < p[3] + 4096) or p[4] < cert for p in groups[:gi])

    nxt = 0
    cert = 0
    did2 = False
    pend = False
    for i, (name, e, c) in enumerate(steps):
        la = int(OPT['law'].split(',')[i]) if i < 8 else OPT['la']
        while nxt < len(groups) and nxt <= e + la and free(nxt, cert):
            if nxt == 11 and not did2:
                stamp(A, 31)
                setup2()
                did2 = True
            issue(nxt)
            nxt += 1
        assert nxt > e, (name, nxt, e)
        A('s_waitcnt vmcnt(%d)%s', min(60, 4 * (nxt - 1 - e)), ' lgkmcnt(0)' if pend else '')
        pend = False
        stamp(A, 2 + i)
        A('s_barrier')
        cert = max(cert, c)
        if 8 <= i <= 15:
            t = i - 8
            A('v_add_u32 %s, 0x%x, %s', v(lA + 1), KVS[t % 3], v(lA))
            wo_reads(A, t >> 1, t & 1, lA + 1)
            pend = True
            if i == 15:
                A('ds_write_b64 %s, %s', v(vSt), v(lP + 2, 2))
    assert nxt == len(groups)

    A('ds_read_b32 %s, %s offset:8', v(lP + 1), v(vSt))
    for r in (sIss, sLand, sMa, sMb):
        A('s_mov_b32 %s, 0', s(r))
    A('s_waitcnt lgkmcnt(0)')
    A('v_readfirstlane_b32 %s, %s', s(sLocal), v(lP + 1))
    A('s_branch L_tail')


def qproj(A, vacc, vWa, vBa, vWb, vBb):
    L = Lds(A)
    FA = [[0 + 16 * p + 4 * mt for mt in range(4)] for p in range(2)]
    FB = [32, 36]

    def reads(ks):
        p = ks & 1
        out = [('ds_read_b128 %s, %s offset:%d' % (a(FB[p], 4), v(vBa + ks), 16384), ('B', ks))]
        for mt in range(4):
            for aa in range(2):
                out.append(('ds_read_b64_tr_b16 %s, %s offset:%d' % (a(FA[p][mt] + 2 * aa, 2), v(vWa + mt), (16 * ks + 4 * aa) * 256), ('A', ks, mt)))
        return out

    def addr_w():
        return ['v_add_u32 %s, %s, %s' % (v(vWa + mt), s(sSlot), v(vWb + mt)) for mt in range(4)]

    def addr_b():
        return ['v_add_u32 %s, %s, %s' % (v(vBa), s(sSlot), v(vBb))] + ['v_xor_b32 %s, %d, %s' % (v(vBa + k), 32 * k, v(vBa)) for k in range(1, 4)]

    def mfma(ks, mt):
        p = ks & 1
        L.need(('B', ks), ('A', ks, mt))
        A('%s %s, %s, %s, %s', MFMA, v(vacc + 16 * mt, 16), a(FA[p][mt], 4), a(FB[p], 4), v(vacc + 16 * mt, 16))

    A('s_mov_b32 %s, 0', s(sCnt))
    for o in addr_w() + addr_b():
        A(o)
    A('s_barrier')
    for t, tag in reads(0):
        L.read(t, tag)
    q0 = list(L.q)
    A.label('L_qp')
    for ks in range(3):
        nxt = reads(ks + 1)
        for mt in range(4):
            mfma(ks, mt)
            for t, tag in nxt[3 * mt:3 * mt + 3]:
                L.read(t, tag)
            if ks == 2 and mt == 3:
                A('s_add_u32 %s, %s, 0x%x', s(sSlot), s(sSlot), WSTR)
                A('s_cmp_eq_u32 %s, 0x%x', s(sSlot), WSTR * 5)
                A('s_cselect_b32 %s, 0, %s', s(sSlot), s(sSlot))
                for o in addr_w()[:2] + addr_b()[:1]:
                    A(o)
    qs = list(L.q)
    A('s_add_u32 %s, %s, 1', s(sCnt), s(sCnt))
    A('s_cmp_eq_u32 %s, 8', s(sCnt))
    A('s_cbranch_scc1 L_qp_last')
    nxt = reads(0)
    extra = [addr_w()[2:], addr_b()[1:], [], []]
    for mt in range(4):
        mfma(3, mt)
        if mt == 0:
            if OPT['strict']:
                L.drain()
            stampd(A, 32, 2)
            A('s_barrier')
            stampd(A, 33, 2)
        for t, tag in nxt[3 * mt:3 * mt + 3]:
            L.read(t, tag)
        for o in extra[mt]:
            A(o)
    assert L.q == q0, (L.q, q0)
    A('s_branch L_qp')
    A.label('L_qp_last')
    L.q = qs
    for mt in range(4):
        mfma(3, mt)


def compute(A):
    vQ, vO, vS, vP = 4, 36, 100, 164
    vWb, vXb, vWa, vXa = 196, 200, 201, 205
    vKb, vKa, vVb, vVa = 209, 210, 218, 222
    vM, vL, vT, vOb, vOa, vD = 226, 228, 230, 238, 239, 244
    if OPT['pfcode']:
        A('s_cmp_lg_u32 %s, 1', s(sWave))
        A('s_cbranch_scc1 L_nopf')
        A('s_getpc_b64 %s', s(sT + 2, 2))
        A.label('L_pc')
        A('s_sub_u32 %s, %s, L_pc-%s_kernel', s(sT + 2), s(sT + 2), NAME)
        A('s_subb_u32 %s, %s, 0', s(sT + 3), s(sT + 3))
        A('s_lshr_b32 %s, s2, 3', s(sT))
        A('s_lshl_b32 %s, %s, 10', s(sT), s(sT))
        A('v_lshl_add_u32 %s, v1, 7, %s', v(vT), s(sT))
        A('v_min_u32 %s, L_end-%s_kernel, %s', v(vT), NAME, v(vT))
        A('s_mov_b64 exec, 0xff')
        A('global_load_dword v250, %s, %s', v(vT), s(sT + 2, 2))
        A('s_mov_b64 exec, -1')
        A.label('L_nopf')
    A('s_waitcnt lgkmcnt(0)')
    tail_srds(A)
    A('s_cmp_lg_u32 %s, 0', s(sWave))
    A('s_cbranch_scc1 L_noreset')
    A('v_mov_b64 %s, 0', v(vO, 2))
    A('v_mov_b64 %s, 0', v(vO + 2, 2))
    A('s_lshl_b32 %s, s2, 8', s(sT))
    A('s_mov_b64 exec, 0xffff')
    A('buffer_store_dwordx4 %s, %s, %s, %s offen sc1', v(vO, 4), v(vBl), s(sF, 4), s(sT))
    A('s_mov_b64 exec, -1')
    A.label('L_noreset')
    tr_lane_bases(A, vWb, 8, True, vT)
    A('v_and_b32 %s, 31, v1', v(vT))
    A('s_lshl_b32 %s, %s, 5', s(sT), s(sWave))
    A('v_add_u32 %s, %s, %s', v(vT), s(sT), v(vT))
    A('v_bfe_u32 %s, %s, 1, 3', v(vT + 1), v(vT))
    A('v_lshrrev_b32 %s, 5, v1', v(vT + 2))
    A('v_xor_b32 %s, %s, %s', v(vT + 1), v(vT + 1), v(vT + 2))
    A('v_lshlrev_b32 %s, 4, %s', v(vT + 1), v(vT + 1))
    A('v_lshl_add_u32 %s, %s, 7, %s', v(vXb), v(vT), v(vT + 1))
    A('v_and_b32 %s, 31, v1', v(vT))
    A('v_and_b32 %s, 15, v1', v(vT + 1))
    A('v_xor_b32 %s, %s, %s', v(vT + 1), v(vT + 1), v(vT + 2))
    A('v_lshlrev_b32 %s, 4, %s', v(vT + 1), v(vT + 1))
    A('v_lshl_add_u32 %s, %s, 8, %s', v(vKb), v(vT), v(vT + 1))
    A('v_add_u32 %s, 0x4000, %s', v(vKb), v(vKb))
    tr_lane_bases(A, vVb, 4, False, vT)
    for mt in range(4):
        A('v_add_u32 %s, 0x4000, %s', v(vVb + mt), v(vVb + mt))
    wo_lane_base(A, vOb, vT)
    A('v_lshlrev_b32 %s, 2, v1', v(vD + 1))
    for i in range(0, 64, 2):
        A('v_mov_b64 %s, 0', v(vS + i, 2))
    for i in range(0, 64, 2):
        A('v_mov_b64 %s, 0', v(vO + i, 2))
    A('v_mov_b32 %s, 0xff800000', v(vM))
    A('v_mov_b64 %s, 0', v(vL, 2))
    A('s_mov_b32 %s, 0x%x', s(sC), C_SCALE)
    A('s_mov_b32 %s, 0x%x', s(sC + 1), C_SCALE)
    A('s_mov_b32 %s, 0', s(sSlot))
    for i in range(3):
        A('s_mov_b32 %s, 0x%x', s(sS0 + i), KVS[i])
    A('s_bfe_u32 %s, s2, 0x10003', s(sSel))
    A('s_lshl_b32 %s, %s, 4', s(sT), s(sWave))
    A('s_add_u32 %s, %s, %s', s(sSel), s(sSel), s(sT))
    stamp(A, 1)
    stamp(A, 60, 's_memtime')
    qproj(A, vS, vWa, vXa, vWb, vXb)
    burn(A, 'q', OPT['probe_q'])
    stamp(A, 2)
    stamp(A, 61, 's_memtime')
    for i in range(32):
        A('v_cvt_pk_bf16_f32 %s, %s, %s', v(vQ + i), v(vS + 2 * i), v(vS + 2 * i + 1))

    L = Lds(A)
    vAl = vT + 4
    A('s_mov_b32 %s, 0', s(sCnt))
    A.label('L_att')
    A('s_cmp_lg_u32 %s, %s', s(sCnt), s(sSel))
    A('s_cbranch_scc1 L_norep')
    A('s_getreg_b32 %s, hwreg(HW_REG_XCC_ID, 0, 4)', s(sT))
    A('s_add_u32 %s, %s, 1', s(sT), s(sT))
    A('v_mov_b32 %s, %s', v(vT + 1), s(sT))
    A('v_mov_b32 %s, 0', v(vT))
    A('s_waitcnt vmcnt(0)')
    A('s_mov_b64 exec, 1')
    A('buffer_store_byte %s, %s, %s, s2 offen sc1', v(vT + 1), v(vT), s(sDbg, 4))
    A('s_mov_b64 exec, -1')
    A.label('L_norep')
    A('s_cmp_lg_u32 %s, 3', s(sCnt))
    A('s_cbranch_scc1 L_nodbg')
    A('buffer_load_dword %s, %s, %s, 0 offen sc1', v(vD), v(vD + 1), s(sDbg, 4))
    A.label('L_nodbg')
    A('v_add_u32 %s, %s, %s', v(vKa), s(sS0), v(vKb))
    for k in range(1, 8):
        A('v_xor_b32 %s, %d, %s', v(vKa + k), 32 * k, v(vKa))
    A('v_add_u32 %s, %s, %s', v(vOa), s(sS0), v(vOb))
    stampd(A, 6, 4)
    A('s_barrier')
    stampd(A, 7, 4)
    KF = [[32 * p + 4 * k for k in range(8)] for p in range(2)]

    def kread(t, k):
        return ('ds_read_b128 %s, %s offset:%d' % (a(KF[t & 1][k], 4), v(vKa + k), 8192 * t), ('K', t, k))

    for k in range(8):
        L.read(*kread(0, k))
    vMx = vT

    def max_ops(t):
        r = vS + 16 * t
        ops = []
        if t == 0:
            ops.append('v_max3_f32 %s, %s, %s, %s' % (v(vMx), v(r), v(r + 1), v(vM)))
            rest = range(2, 16, 2)
        else:
            rest = range(0, 16, 2)
        for i in rest:
            ops.append('v_max3_f32 %s, %s, %s, %s' % (v(vMx), v(r + i), v(r + i + 1), v(vMx)))
        return ops

    for t in range(4):
        mo = max_ops(t - 1) if t > 0 else []
        for k in range(8):
            L.need(('K', t, k))
            A('%s %s, %s, %s, %s', MFMA, v(vS + 16 * t, 16), a(KF[t & 1][k], 4), v(vQ + 4 * k, 4), '0' if k == 0 else v(vS + 16 * t, 16))
            if t < 3:
                L.read(*kread(t + 1, k))
            if k >= 4 and mo:
                for o in mo[:2]:
                    A(o)
                mo = mo[2:]
        assert not mo

    def wo_switch(tag, cases):
        for n, (c, t) in enumerate(cases):
            last = n == len(cases) - 1
            if not last:
                A('s_cmp_lg_u32 %s, %d', s(sCnt), c)
                A('s_cbranch_scc1 L_wo%s%d', tag, n + 1)
            wo_reads(A, t >> 1, t & 1, vOa)
            if not last:
                A('s_branch L_wo%sdone', tag)
                A.label('L_wo%s%d' % (tag, n + 1))
        A.label('L_wo%sdone' % tag)

    wo_switch('a', [(c, STEPS.index('K%d' % c)) for c in range(4)])
    for o in max_ops(3):
        A(o)
    A('v_mov_b32 %s, %s', v(vT + 1), v(vMx))
    A('v_permlane32_swap_b32 %s, %s', v(vT + 1), v(vMx))
    A('v_max_f32 %s, %s, %s', v(vMx), v(vMx), v(vT + 1))
    A('v_mul_f32 %s, %s, %s', v(vT + 2), s(sC), v(vMx))
    A('v_fma_f32 %s, %s, %s, -%s', v(vT + 3), v(vM), s(sC), v(vT + 2))
    A('v_exp_f32 %s, %s', v(vAl), v(vT + 3))
    A('v_mov_b32 %s, %s', v(vM), v(vMx))
    burn(A, 'k', OPT['probe_k'])
    fma = lambda i: A('v_pk_fma_f32 %s, %s, %s, %s op_sel_hi:[1,1,0] neg_lo:[0,0,1] neg_hi:[0,0,1]', v(vS + i, 2), v(vS + i, 2), s(sC, 2), v(vT + 2, 2))
    fma(0)
    A('v_pk_mul_f32 %s, %s, %s op_sel_hi:[1,0]', v(vL, 2), v(vL, 2), v(vAl, 2))
    for i in range(0, 64, 2):
        if i + 2 < 64:
            fma(i + 2)
        A('v_exp_f32 %s, %s', v(vS + i), v(vS + i))
        A('v_exp_f32 %s, %s', v(vS + i + 1), v(vS + i + 1))
        if i >= 2:
            A('v_pk_add_f32 %s, %s, %s', v(vL, 2), v(vL, 2), v(vS + i - 2, 2))
            A('v_cvt_pk_bf16_f32 %s, %s, %s', v(vS + i // 2 - 1), v(vS + i - 2), v(vS + i - 1))
    for mt in range(4):
        A('v_add_u32 %s, %s, %s', v(vVa + mt), s(sS1), v(vVb + mt))
    A('v_pk_add_f32 %s, %s, %s', v(vL, 2), v(vL, 2), v(vS + 62, 2))
    A('v_cvt_pk_bf16_f32 %s, %s, %s', v(vS + 31), v(vS + 62), v(vS + 63))
    A('v_add_u32 %s, %s, %s', v(vOa), s(sS1), v(vOb))
    A('s_waitcnt lgkmcnt(0)')
    A('s_cmp_eq_u32 %s, 0', s(sCnt))
    A('s_cbranch_scc1 L_first')
    stampd(A, 8, 4)
    A('s_barrier')
    stampd(A, 9, 4)
    VF = [[64 + 16 * p + 4 * mt for mt in range(4)] for p in range(2)]

    def vread(p, mt, buf=None):
        b = VF[p & 1][mt] if buf is None else buf
        return [('ds_read_b64_tr_b16 %s, %s offset:%d' % (a(b + 2 * aa, 2), v(vVa + mt), (16 * p + 8 * aa) * 256), ('V', p, mt)) for aa in range(2)]

    def pv(p, mt, buf=None):
        b = VF[p & 1][mt] if buf is None else buf
        L.need(('V', p, mt))
        A('%s %s, %s, %s, %s', MFMA, v(vO + 16 * mt, 16), a(b, 4), v(vP + 4 * p, 4), v(vO + 16 * mt, 16))

    def pv_range(p0, p1):
        for mt in range(4):
            for x in vread(p0, mt):
                L.read(*x)
        for p in range(p0, p1):
            for mt in range(4):
                pv(p, mt)
                if p + 1 < p1:
                    for x in vread(p + 1, mt):
                        L.read(*x)

    pv_range(0, 8)
    assert not L.q
    wo_switch('b', [(c, STEPS.index('V%d' % (c - 1))) for c in (1, 2, 3)])
    A('s_mov_b32 %s, %s', s(sT), s(sS0))
    A('s_mov_b32 %s, %s', s(sS0), s(sS2))
    A('s_mov_b32 %s, %s', s(sS2), s(sS1))
    A('s_mov_b32 %s, %s', s(sS1), s(sT))
    A('s_branch L_join')
    A.label('L_first')
    A('s_mov_b32 %s, %s', s(sT), s(sS0))
    A('s_mov_b32 %s, %s', s(sS0), s(sS1))
    A('s_mov_b32 %s, %s', s(sS1), s(sS2))
    A('s_mov_b32 %s, %s', s(sS2), s(sT))
    A.label('L_join')
    for i in range(0, 32, 2):
        A('v_mov_b64 %s, %s', v(vP + i, 2), v(vS + i, 2))
    for i in range(0, 64, 2):
        A('v_pk_mul_f32 %s, %s, %s op_sel_hi:[1,0]', v(vO + i, 2), v(vO + i, 2), v(vAl, 2))
    A('s_add_u32 %s, %s, 1', s(sCnt), s(sCnt))
    A('s_cmp_lt_u32 %s, 4', s(sCnt))
    A('s_waitcnt lgkmcnt(0)')
    A('s_cbranch_scc1 L_att')

    for mt in range(4):
        A('v_add_u32 %s, %s, %s', v(vVa + mt), s(sS0), v(vVb + mt))
    A('v_add_u32 %s, %s, %s', v(vOa), s(sS0), v(vOb))
    stamp(A, 20)
    A('s_barrier')
    stamp(A, 21)
    if OPT['touch'] == 1:
        A('s_lshl_b32 %s, %s, 13', s(sT + 1), s(sWave))
        A('s_mul_i32 %s, s2, 24576', s(sT + 6))
        A('s_add_u32 %s, %s, %s', s(sT + 6), s(sT + 6), s(sT + 1))
        A('v_lshlrev_b32 v251, 7, v1')
        A('buffer_load_dword v250, v251, %s, %s offen', s(sO, 4), s(sT + 6))
    pv_range(0, 2)
    wo_reads(A, 3, 1, vOa)
    A('v_add_f32 %s, %s, %s', v(vL), v(vL), v(vL + 1))
    A('v_mov_b32 %s, %s', v(vT), v(vL))
    A('v_permlane32_swap_b32 %s, %s', v(vT), v(vL))
    A('v_add_f32 %s, %s, %s', v(vL), v(vL), v(vT))
    A('v_rcp_f32 %s, %s', v(vT), v(vL))
    A('s_mov_b32 %s, 0', s(sT + 1))
    A.label('L_chk')
    A('s_waitcnt vmcnt(0)')
    A('v_add_u32 %s, 0x7f7f7f7f, %s', v(vD + 2), v(vD))
    A('v_or_b32 %s, 0x7f7f7f7f, %s', v(vD + 2), v(vD + 2))
    A('v_cmp_ne_u32 vcc, -1, %s', v(vD + 2))
    A('s_cmp_eq_u64 vcc, 0')
    A('s_cbranch_scc1 L_chk_ok')
    A('buffer_load_dword %s, %s, %s, 0 offen sc1', v(vD), v(vD + 1), s(sDbg, 4))
    A('s_add_u32 %s, %s, 1', s(sT + 1), s(sT + 1))
    A('s_cmp_lt_u32 %s, 0x%x', s(sT + 1), SPIN_MAX)
    A('s_cbranch_scc1 L_chk')
    A('s_waitcnt vmcnt(0)')
    A.label('L_chk_ok')
    A('s_waitcnt lgkmcnt(0)')
    A('s_barrier')
    if OPT['touch'] == 2:
        A('s_lshl_b32 %s, %s, 13', s(sT + 1), s(sWave))
        A('s_mul_i32 %s, s2, 24576', s(sT + 6))
        A('s_add_u32 %s, %s, %s', s(sT + 6), s(sT + 6), s(sT + 1))
        A('v_lshlrev_b32 v251, 7, v1')
        A('buffer_load_dword v250, v251, %s, %s offen', s(sO, 4), s(sT + 6))
    pv_range(2, 4)
    A('s_and_b32 %s, s2, 3', s(sT))
    A('s_lshl_b32 %s, %s, 3', s(sT), s(sT))
    A('v_lshrrev_b32 %s, %s, %s', v(vD), s(sT), v(vD))
    A('v_and_b32 %s, 0xff, %s', v(vD), v(vD))
    A('s_bfe_u32 %s, s2, 0x40002', s(sT))
    for k in range(4):
        A('v_readlane_b32 %s, %s, %s', s(sT + 2 + k), v(vD), s(sT))
        if k < 3:
            A('s_add_u32 %s, %s, 16', s(sT), s(sT))
    A('s_xor_b32 %s, %s, %s', s(sT + 3), s(sT + 3), s(sT + 2))
    A('s_xor_b32 %s, %s, %s', s(sT + 4), s(sT + 4), s(sT + 2))
    A('s_xor_b32 %s, %s, %s', s(sT + 5), s(sT + 5), s(sT + 2))
    A('s_or_b32 %s, %s, %s', s(sT + 3), s(sT + 3), s(sT + 4))
    A('s_or_b32 %s, %s, %s', s(sLocal), s(sT + 3), s(sT + 5))
    if OPT['force_remote']:
        A('s_mov_b32 %s, 1', s(sLocal))
    A('s_barrier')
    if OPT['touch'] == 3:
        A('s_lshl_b32 %s, %s, 13', s(sT + 1), s(sWave))
        A('s_mul_i32 %s, s2, 24576', s(sT + 6))
        A('s_add_u32 %s, %s, %s', s(sT + 6), s(sT + 6), s(sT + 1))
        A('v_lshlrev_b32 v251, 7, v1')
        A('buffer_load_dword v250, v251, %s, %s offen', s(sO, 4), s(sT + 6))
    pv_range(4, 6)
    A('s_lshl_b32 %s, %s, 13', s(sT + 1), s(sWave))
    A('s_mul_i32 %s, s2, 24576', s(sT + 6))
    A('s_add_u32 %s, %s, %s', s(sT + 6), s(sT + 6), s(sT + 1))
    A('s_add_u32 %s, %s, 0x1000', s(sT + 7), s(sT + 6))
    A('s_add_u32 %s, %s, 0x%x', s(sT + 1), s(sT + 1), ROWN)
    A('v_add_u32 %s, %s, %s', v(vT + 2), s(sT + 1), v(vBl))
    A('s_lshl_b32 %s, s2, 8', s(sT + 8))
    A('s_lshl_b32 %s, %s, 2', s(sT + 1), s(sWave))
    A('s_add_u32 %s, %s, %s', s(sT + 8), s(sT + 8), s(sT + 1))
    A('v_mov_b32 %s, 1', v(vT + 4))
    A('v_mov_b32 %s, 0', v(vT + 5))
    A('s_mov_b32 %s, 14', s(sLand))
    A('s_mov_b32 %s, 14', s(sIss))
    A('v_mov_b32 %s, %s', v(vT + 3), s(sLocal))
    A('ds_write_b32 %s, %s offset:8', v(vSt), v(vT + 3))
    A('s_waitcnt lgkmcnt(0)')
    A('s_cmp_eq_u32 %s, 0', s(sLocal))
    A('s_cbranch_scc1 L_pub_local')
    for pol, fpol, tag in (('sc1', 'sc1', 'remote'), ('' if OPT['pl'] else 'sc1', '', 'local')):
        A.label('L_pub_' + tag)
        A('s_barrier')
        stamp(A, 3)
        seq = [(mt, p) for mt in range(4) for p in (6, 7)]
        buf = lambda i: 64 + 4 * i
        for i in range(6):
            for x in vread(seq[i][1], seq[i][0], buf(i)):
                L.read(*x)

        def fin(f):
            for i in range(4):
                r = vO + 8 * f + 2 * i
                if f >= 4 or OPT['pkpub']:
                    A('v_pk_mul_f32 %s, %s, %s op_sel_hi:[1,0]', v(r, 2), v(r, 2), v(vT, 2))
                else:
                    A('v_mul_f32 %s, %s, %s', v(r), v(vT), v(r))
                    A('v_mul_f32 %s, %s, %s', v(r + 1), v(vT), v(r + 1))
            for i in range(4):
                r = vO + 8 * f + 2 * i
                A('v_cvt_pk_bf16_f32 %s, %s, %s', v(vS + 4 * f + i), v(r), v(r + 1))
            A('buffer_store_dwordx4 %s, %s, %s, %s offen offset:%d %s', v(vS + 4 * f, 4), v(vBl), s(sO, 4), s(sT + 6 + (f >> 2)), 1024 * (f & 3), pol)

        for i, (mt, p) in enumerate(seq):
            pv(p, mt, buf(i))
            if i < 2:
                for x in vread(seq[6 + i][1], seq[6 + i][0], buf(6 + i)):
                    L.read(*x)
            if i >= 4:
                fin(i - 4)
        for f in range(4, 8):
            fin(f)
        stamp(A, 4)
        for f in range(OPT['dsw']):
            A('ds_write_b128 %s, %s offset:%d', v(vT + 2), v(vS + 4 * f, 4), 1024 * f)
        A('s_waitcnt vmcnt(0)')
        A('s_mov_b64 exec, 1')
        A('buffer_store_dword %s, %s, %s, %s offen %s', v(vT + 4), v(vT + 5), s(sF, 4), s(sT + 8), fpol)
        A('s_mov_b64 exec, -1')
        stamp(A, 5)
        for f in range(OPT['dsw'], 8):
            A('ds_write_b128 %s, %s offset:%d', v(vT + 2), v(vS + 4 * f, 4), 1024 * f)
        A('s_mov_b64 exec, 1')
        A('s_waitcnt lgkmcnt(0)')
        A('ds_add_u32 %s, %s', v(vSt), v(vT + 4))
        A('s_mov_b64 exec, -1')
        if tag == 'remote':
            A('s_branch L_tail')


def tail(A):
    vU = 230
    vB0 = 243
    vTm = 196
    vPk = 212
    NB = 6
    order = [(qt, f) for qt in range(3) for f in range(8)]
    OOB = 0x7f000000

    def fin_ops(qt, pk=True):
        ops = []
        for t in range(2):
            o = 2 * qt + t
            r = vAcc + 8 * o
            if pk:
                for i in range(0, 8, 2):
                    ops.append('v_pk_add_f32 %s, %s, %s' % (v(vTm + i, 2), v(r + i, 2), v(r + 48 + i, 2)))
                    ops.append('v_pk_add_f32 %s, %s, %s' % (v(vTm + 8 + i, 2), v(r + 96 + i, 2), v(r + 144 + i, 2)))
                for i in range(0, 8, 2):
                    ops.append('v_pk_add_f32 %s, %s, %s' % (v(vTm + i, 2), v(vTm + i, 2), v(vTm + 8 + i, 2)))
            else:
                for i in range(8):
                    ops.append('v_add_f32 %s, %s, %s' % (v(vTm + i), v(r + i), v(r + 48 + i)))
                    ops.append('v_add_f32 %s, %s, %s' % (v(vTm + 8 + i), v(r + 96 + i), v(r + 144 + i)))
                for i in range(8):
                    ops.append('v_add_f32 %s, %s, %s' % (v(vTm + i), v(vTm + i), v(vTm + 8 + i)))
            for i in range(4):
                ops.append('v_cvt_pk_bf16_f32 %s, %s, %s' % (v(vPk + 4 * t + i), v(vTm + 2 * i), v(vTm + 2 * i + 1)))
            ops.append('buffer_store_dwordx4 %s, %s, %s, %s offen offset:%d %s' % (v(vPk + 4 * t, 4), v(vBl), s(sPo, 4), s(sPst + o // 3), 1024 * (o % 3), OPT['p_pol']))
        return ops

    def block(j):
        L = Lds(A)
        stampd(A, 48, 2)
        A('v_add_u32 %s, 0x%x, %s', v(vB0), ROWN if j == 0 else RB[j - 1], v(vBl))

        def rd(i):
            qt, f = order[i]
            L.read('ds_read_b128 %s, %s offset:%d' % (a(4 * (i % NB), 4), v(vB0), qt * 8192 + f * 1024), i)

        for i in range(NB - 1):
            rd(i)
        A('s_or_b32 %s, %s, %d', s(sDone), s(sDone), 1 << j)
        A('s_cmp_eq_u32 %s, 15', s(sDone))
        A('s_cselect_b32 %s, %s, 0x%x', s(sPst), s(sT + 8), OOB)
        A('s_cselect_b32 %s, %s, 0x%x', s(sPst + 1), s(sT + 9), OOB)
        pend = []
        for i, (qt, f) in enumerate(order):
            L.need(i)
            acc = v(vAcc + 48 * j + 16 * qt, 16)
            A('%s %s, %s, %s, %s', MFMA, acc, a(AWO + 32 * j + 4 * f, 4), a(4 * (i % NB), 4), '0' if f == 0 else acc)
            if i + NB - 1 < len(order):
                rd(i + NB - 1)
            if OPT['ovl'] and qt > 0 and f == 3:
                pend += fin_ops(qt - 1, OPT['pkfin'])
            n = OPT['nfin']
            for o in pend[:n]:
                A(o)
            pend = pend[n:]
            if i in (7, 15):
                check_land(A, 'b%d_%d' % (j, i))
            if i == 20:
                L.read('ds_read_b64 %s, %s' % (v(vU, 2), v(vSt)), 'st')
        L.drain()
        if OPT['prof'] == 2:
            stampd(A, 49, 2)
            A('s_add_u32 %s, %s, 1', s(sCnt), s(sCnt))
        A('s_cmp_eq_u32 %s, 15', s(sDone))
        A('s_cbranch_scc0 L_post')
        for o in pend:
            A(o)
        A('s_branch L_sum')

    A.label('L_tail')
    stamp(A, 23)
    A('s_and_b32 %s, s2, 0xf8', s(sT))
    A('s_lshl_b32 %s, %s, 1', s(sT + 1), s(sWave))
    A('s_add_u32 %s, %s, %s', s(sT + 10), s(sT), s(sT + 1))
    A('s_mul_i32 %s, %s, 24576', s(sT), s(sT + 10))
    A('s_mul_i32 %s, %s, 3072', s(sT + 1), s(sHg))
    A('s_add_u32 %s, %s, %s', s(sT + 8), s(sT), s(sT + 1))
    A('s_add_u32 %s, %s, 24576', s(sT + 9), s(sT + 8))
    A('s_mov_b32 %s, 0', s(sDone))
    A('s_mov_b32 %s, 0', s(sCnt))
    A('s_mov_b32 %s, 0', s(sT + 7))
    A.label('L_loop')
    A('s_cmp_eq_u32 %s, 14', s(sIss))
    A('s_cbranch_scc1 L_nodisc')
    A('s_cmp_lg_u32 %s, 0', s(sLocal))
    A('s_cbranch_scc1 L_disc_v')
    for j in range(1, 4):
        A('s_load_dwordx4 %s, %s, %s glc', s(sFl + 4 * (j - 1), 4), s(sFb, 2), s(sFo + j - 1))
    A('s_waitcnt lgkmcnt(0)')
    A('s_mov_b32 %s, 0', s(sT))
    for j in range(1, 4):
        q = sFl + 4 * (j - 1)
        A('s_and_b32 %s, %s, %s', s(q), s(q), s(q + 1))
        A('s_and_b32 %s, %s, %s', s(q), s(q), s(q + 2))
        A('s_cmp_eq_u32 %s, 1', s(q))
        A('s_cselect_b32 %s, %d, 0', s(q), 1 << j)
        A('s_or_b32 %s, %s, %s', s(sT), s(sT), s(q))
    A('s_branch L_disc_j')
    A.label('L_disc_v')
    A('buffer_load_dword %s, %s, %s, 0 offen sc1', v(lP + 1), v(lP), s(sF, 4))
    A('s_waitcnt vmcnt(0)')
    A('v_cmp_eq_u32 vcc, 1, %s', v(lP + 1))
    A('s_mov_b32 %s, 0', s(sT))
    for j in range(1, 4):
        A('s_bfe_u32 %s, vcc_lo, 0x%x', s(sT + 1), (4 << 16) | (4 * (j - 1)))
        A('s_cmp_eq_u32 %s, 15', s(sT + 1))
        A('s_cselect_b32 %s, %d, 0', s(sT + 1), 1 << j)
        A('s_or_b32 %s, %s, %s', s(sT), s(sT), s(sT + 1))
    A.label('L_disc_j')
    A('s_andn2_b32 %s, %s, %s', s(sT), s(sT), s(sIss))
    for j in range(1, 4):
        A('s_bitcmp1_b32 %s, %d', s(sT), j)
        A('s_cbranch_scc0 L_p_n%d', j)
        if OPT['prof'] in (2, 3):
            stamp(A, 45)
        A('s_mov_b32 m0, 0x%x', RB[j - 1])
        A('s_mov_b32 %s, %s', s(sMb), s(sMa))
        A('s_mov_b32 %s, %s', s(sMa), s(sIss))
        A('s_or_b32 %s, %s, %d', s(sIss), s(sIss), 1 << j)
        for g in range(6):
            if g:
                A('s_addk_i32 m0, 0x1000')
                A('s_addk_i32 %s, 0x1000', s(sT + 10 + j))
            dma(A, [vBl] * 4, sO, sT + 10 + j, 'sc1')
        if OPT['prof'] in (2, 3):
            stamp(A, 46)
        A.label('L_p_n%d' % j)
    A.label('L_nodisc')
    check_land(A, 'l')
    A.label('L_status')
    A('ds_read_b64 %s, %s', v(vU, 2), v(vSt))
    A('s_waitcnt lgkmcnt(0)')
    A.label('L_disp')
    A('v_readfirstlane_b32 %s, %s', s(sT), v(vU))
    A('v_readfirstlane_b32 %s, %s', s(sT + 1), v(vU + 1))
    A('s_cmp_eq_u32 %s, 3', s(sT))
    A('s_addc_u32 %s, %s, 0', s(sT + 1), s(sT + 1))
    A('s_andn2_b32 %s, %s, %s', s(sT + 1), s(sT + 1), s(sDone))
    if OPT['mgr1']:
        A('s_cmp_eq_u32 %s, 14', s(sIss))
        A('s_cselect_b32 %s, %s, 0', s(sT + 1), s(sT + 1))
    for j in (1, 2, 3, 0):
        A('s_bitcmp1_b32 %s, %d', s(sT + 1), j)
        A('s_cbranch_scc1 L_blk%d', j)
    A('s_add_u32 %s, %s, 1', s(sT + 7), s(sT + 7))
    A('s_cmp_lt_u32 %s, 0x%x', s(sT + 7), SPIN_MAX)
    A('s_cbranch_scc1 L_loop')
    A('s_branch L_sum')
    A.label('L_post')
    A('s_cmp_eq_u32 %s, 14', s(sLand))
    A('s_cbranch_scc1 L_disp')
    A('s_branch L_loop')
    for j in (1, 2, 3, 0):
        A.label('L_blk%d' % j)
        block(j)

    A.label('L_sum')
    stamp(A, 25)
    A('s_lshl_b32 %s, %s, 8', s(sT + 2), s(sT + 10))
    A('s_lshl_b32 %s, %s, 2', s(sT + 1), s(sHg))
    A('s_add_u32 %s, %s, %s', s(sT + 2), s(sT + 2), s(sT + 1))
    A('v_lshlrev_b32 %s, 8, v1', v(vU + 1))
    A('v_mov_b32 %s, 1', v(vU))
    for qt in range(0 if not OPT['ovl'] else 2, 3):
        for o in fin_ops(qt):
            A(o)
    stamp(A, 26)
    A('s_waitcnt vmcnt(0)')
    A('s_mov_b64 exec, 3')
    A('buffer_store_dword %s, %s, %s, %s offen offset:128 sc1', v(vU), v(vU + 1), s(sF, 4), s(sT + 2))
    A('s_mov_b64 exec, -1')
    stamp(A, 27)
    A('s_cmp_lg_u32 %s, 3', s(sWave))
    A('s_cbranch_scc1 L_red')
    stamp_flush(A)
    A('s_endpgm')

    A.label('L_red')
    vR, vF = 4, 40
    sGot, sLd2, sNew, sSp = sT + 6, sT + 7, sT + 8, sT + 9
    A('s_mul_i32 %s, s2, 24576', s(sT))
    A('s_lshl_b32 %s, %s, 10', s(sT + 1), s(sWave))
    A('s_add_u32 %s, %s, %s', s(sT), s(sT), s(sT + 1))
    A('s_lshl_b32 %s, s2, 8', s(sT + 3))
    A('v_and_b32 %s, 7, v1', v(vU))
    A('v_lshlrev_b32 %s, 2, %s', v(vU), v(vU))
    A('s_mov_b32 %s, 0', s(sGot))
    A('s_mov_b32 %s, 0', s(sLd2))
    A('s_mov_b32 %s, 0', s(sSp))
    A('buffer_load_dword %s, %s, %s, %s offen offset:128 sc1', v(vU + 1), v(vU), s(sF, 4), s(sT + 3))
    A('s_and_b32 %s, %s, 1', s(sT + 1), s(sHg))
    A('s_mul_i32 %s, %s, 3', s(sT + 1), s(sT + 1))
    A('s_add_u32 %s, %s, %s', s(sT + 1), s(sT + 1), s(sWave))
    A('s_lshr_b32 %s, %s, 1', s(sT + 2), s(sT + 1))
    A('s_lshl_b32 %s, %s, 15', s(sT + 2), s(sT + 2))
    A('s_and_b32 %s, %s, 1', s(sT + 1), s(sT + 1))
    A('s_lshl_b32 %s, %s, 5', s(sT + 1), s(sT + 1))
    A('s_add_u32 %s, %s, %s', s(sT + 2), s(sT + 2), s(sT + 1))
    A('s_lshr_b32 %s, %s, 1', s(sT + 1), s(sHg))
    A('s_lshl_b32 %s, %s, 6', s(sT + 1), s(sT + 1))
    A('s_add_u32 %s, %s, %s', s(sT + 2), s(sT + 2), s(sT + 1))
    A('s_lshl_b32 %s, %s, 8', s(sT + 1), s(sHh))
    A('s_add_u32 %s, %s, %s', s(sT + 2), s(sT + 2), s(sT + 1))
    A('v_and_b32 %s, 31, v1', v(vU + 2))
    A('v_lshlrev_b32 %s, 10, %s', v(vU + 2), v(vU + 2))
    A('v_lshrrev_b32 %s, 5, v1', v(vU + 3))
    A('v_lshl_add_u32 %s, %s, 4, %s', v(vU + 2), v(vU + 3), v(vU + 2))
    A.label('L_p2')
    A('s_waitcnt vmcnt(0)')
    A('v_cmp_eq_u32 vcc, 1, %s', v(vU + 1))
    A('s_andn2_b32 %s, %s, %s', s(sT + 4), s(sGot), s(sLd2))
    A('s_mov_b32 %s, %s', s(sLd2), s(sGot))
    A('s_and_b32 %s, vcc_lo, 0xff', s(sNew))
    if not OPT['early2']:
        A('s_cmp_eq_u32 %s, 0xff', s(sNew))
        A('s_cselect_b32 %s, 0xff, 0', s(sNew))
    A('s_andn2_b32 %s, %s, %s', s(sNew), s(sNew), s(sGot))
    A('s_cbranch_scc0 L_p2_noload')
    A('s_or_b32 %s, %s, %s', s(sGot), s(sGot), s(sNew))
    for k in range(8):
        A('s_bitcmp1_b32 %s, %d', s(sNew), k)
        A('s_cbranch_scc0 L_p2_l%d', k)
        if k < 2:
            A('buffer_load_dwordx4 %s, %s, %s, %s offen offset:%d sc1', v(vR + 4 * k, 4), v(vBl), s(sPo, 4), s(sT), 3072 * k)
        else:
            A('s_add_u32 %s, %s, 0x%x', s(sT + 1), s(sT), 3072 * k)
            A('buffer_load_dwordx4 %s, %s, %s, %s offen sc1', v(vR + 4 * k, 4), v(vBl), s(sPo, 4), s(sT + 1))
        A.label('L_p2_l%d' % k)
    A.label('L_p2_noload')
    A('s_cmp_eq_u32 %s, 0xff', s(sGot))
    A('s_cbranch_scc1 L_p2_nopoll')
    A('buffer_load_dword %s, %s, %s, %s offen offset:128 sc1', v(vU + 1), v(vU), s(sF, 4), s(sT + 3))
    A.label('L_p2_nopoll')
    A('s_cmp_eq_u32 %s, 0', s(sT + 4))
    A('s_cbranch_scc1 L_p2_nounp')
    for k in range(8):
        A('s_bitcmp1_b32 %s, %d', s(sT + 4), k)
        A('s_cbranch_scc0 L_p2_u%d', k)
        for i in range(4):
            A('v_lshlrev_b32 %s, 16, %s', v(vF + 8 * k + 2 * i), v(vR + 4 * k + i))
            A('v_and_b32 %s, 0xffff0000, %s', v(vF + 8 * k + 2 * i + 1), v(vR + 4 * k + i))
        A.label('L_p2_u%d' % k)
    A.label('L_p2_nounp')
    A('s_cmp_eq_u32 %s, 0xff', s(sLd2))
    A('s_cbranch_scc1 L_p2_done')
    A('s_add_u32 %s, %s, 1', s(sSp), s(sSp))
    A('s_cmp_lt_u32 %s, 0x%x', s(sSp), SPIN_MAX)
    A('s_cbranch_scc1 L_p2')
    A('s_waitcnt vmcnt(0)')
    A.label('L_p2_done')
    burn(A, 't', OPT['probe_t'])
    stamp(A, 28)
    for step in (8, 16, 32):
        for k in range(0, 64, 2 * step):
            for i in range(0, 8, 2):
                A('v_pk_add_f32 %s, %s, %s', v(vF + k + i, 2), v(vF + k + i, 2), v(vF + k + step + i, 2))
    for i in range(4):
        A('v_cvt_pk_bf16_f32 %s, %s, %s', v(vR + i), v(vF + 2 * i), v(vF + 2 * i + 1))
    A('buffer_store_dwordx4 %s, %s, %s, %s offen %s', v(vR, 4), v(vU + 2), s(sOut, 4), s(sT + 2), OPT['out_pol'])
    if OPT['prof']:
        A('s_waitcnt vmcnt(0)')
        stamp(A, 29)
        stamp_flush(A)


def kernel():
    A = Asm()
    A('s_cmp_ge_u32 s2, 256')
    A('s_cbranch_scc1 L_end')
    if OPT['prof']:
        A('s_memrealtime s[92:93]')
    A('s_load_dwordx4 s[4:7], s[0:1], 0')
    A('s_load_dwordx4 s[8:11], s[0:1], 16')
    A('s_load_dwordx4 s[12:15], s[0:1], 32')
    A('s_load_dwordx4 s[16:19], s[0:1], 48')
    A('v_lshrrev_b32 v2, 6, v0')
    A('v_and_b32 v1, 63, v0')
    A('v_readfirstlane_b32 %s, v2', s(sWave))
    if OPT['prof']:
        A('v_mov_b32 v255, 0')
        A('s_waitcnt lgkmcnt(0)')
        A('v_writelane_b32 v255, s92, 0')
        stamp(A, 58)
    A('s_and_b32 %s, s2, 7', s(sHg))
    A('s_bfe_u32 %s, s2, 0x30003', s(sB))
    A('s_lshr_b32 %s, s2, 6', s(sHh))
    if OPT['hx']:
        A('s_xor_b32 %s, %s, %d', s(sHh), s(sHh), OPT['hx'])
    A('s_lshl_b32 %s, %s, 2', s(sH), s(sHg))
    A('s_add_u32 %s, %s, %s', s(sH), s(sH), s(sHh))
    A('s_lshl_b32 %s, %s, 1', s(sRot), s(sHh))
    A('s_add_u32 %s, %s, %s', s(sRot), s(sRot), s(sB))
    A('s_cmp_lg_u32 %s, 3', s(sWave))
    A('s_cbranch_scc1 L_compute')
    loader(A)
    A.label('L_compute')
    compute(A)
    tail(A)
    A.label('L_end')
    A('s_endpgm')
    return A.lines


def main():
    k, n = pad_hazards(kernel())
    out = ['; %s : fused Q-proj + attention + output projection' % NAME,
           '; @launch grid=(256,1,1) block=(256,1,1) lds=163840',
           '.amdgcn_target "amdgcn-amd-amdhsa--gfx950"', '.text',
           '.globl %s_kernel\n.p2align 8\n.type %s_kernel,@function\n%s_kernel:' % (NAME, NAME, NAME)]
    out += k
    out.append('''.section .rodata,"a"
.p2align 6
.amdhsa_kernel %s_kernel
  .amdhsa_next_free_vgpr 512
  .amdhsa_next_free_sgpr 102
  .amdhsa_accum_offset 256
  .amdhsa_group_segment_fixed_size 0
  .amdhsa_kernarg_size 64
  .amdhsa_user_sgpr_count 2
  .amdhsa_user_sgpr_kernarg_segment_ptr 1
  .amdhsa_system_sgpr_workgroup_id_x 1
.end_amdhsa_kernel''' % NAME)
    open(sys.argv[1], 'w').write('\n'.join(out) + '\n')
    print('wrote', sys.argv[1], 'pads', n)


main()
```

```python
import re

REG_RE = re.compile(r'^(-|\|)?(abs\()?([vas])(\d+|\[(\d+):(\d+)\])\)?\|?$')
TRANS = ('v_exp_', 'v_log_', 'v_rcp_', 'v_rsq_', 'v_sqrt_', 'v_sin_', 'v_cos_')


def regs_of(tok):
    tok = tok.strip()
    if tok in ('vcc',):
        return [('s', 'vcc_lo'), ('s', 'vcc_hi')]
    if tok in ('vcc_lo', 'vcc_hi'):
        return [('s', tok)]
    if tok == 'exec':
        return [('s', 'exec_lo'), ('s', 'exec_hi')]
    if tok in ('exec_lo', 'exec_hi'):
        return [('s', tok)]
    if tok == 'm0':
        return [('s', 'm0')]
    m = REG_RE.match(tok)
    if not m:
        return []
    k = m.group(3)
    if m.group(5) is not None:
        return [(k, i) for i in range(int(m.group(5)), int(m.group(6)) + 1)]
    return [(k, int(m.group(4)))]


class Ins:
    def __init__(self, text):
        self.text = text
        t = text.split(';')[0].split('//')[0].strip()
        self.label = None
        self.op = None
        self.kind = 'none'
        self.w = set()
        self.r = set()
        self.target = None
        self.ws = 1
        if not t or t.startswith('.'):
            self.kind = 'directive' if t else 'none'
            self.ws = 0
            return
        if t.endswith(':'):
            self.label = t[:-1]
            self.kind = 'label'
            self.ws = 0
            return
        parts = t.split(None, 1)
        op = parts[0]
        self.op = op
        rest = parts[1] if len(parts) > 1 else ''
        ops = []
        depth = 0
        cur = ''
        for ch in rest:
            if ch in '[(':
                depth += 1
            if ch in '])':
                depth -= 1
            if ch == ',' and depth == 0:
                ops.append(cur.strip())
                cur = ''
            else:
                cur += ch
        if cur.strip():
            ops.append(cur.strip())
        mods = []
        if ops:
            sp = ops[-1].split()
            ops[-1] = sp[0]
            mods = sp[1:]
        self.ops = ops
        self.mods = mods
        R = lambda i: set(regs_of(ops[i])) if i < len(ops) else set()
        allr = lambda a: set().union(*[R(i) for i in range(a, len(ops))]) if len(ops) > a else set()
        self.trans = False
        self.permlane = False
        self.readlane = False
        self.dpp = any(m.startswith(('row_', 'quad_perm', 'wave_', 'row_bcast')) for m in mods)
        if op.startswith('v_mfma'):
            self.kind = 'mfma'
            self.w = R(0)
            self.A = R(1)
            self.B = R(2)
            self.C = R(3)
            self.r = self.A | self.B | self.C
            self.passes = 8 if '32x32x16' in op else 4 if '16x16x32' in op else None
            assert self.passes
        elif op.startswith('v_'):
            self.kind = 'valu'
            self.trans = op.startswith(TRANS)
            if op.startswith('v_permlane') and 'swap' in op:
                self.permlane = True
                self.w = R(0) | R(1)
                self.r = R(0) | R(1)
            elif op.startswith(('v_readfirstlane', 'v_readlane')):
                self.readlane = True
                self.w = R(0)
                self.r = allr(1)
                self.lanesel = R(2)
            elif op.startswith('v_writelane'):
                self.w = R(0)
                self.r = allr(0)
                self.lanesel = R(2)
            elif op.startswith('v_cmp'):
                assert not op.startswith('v_cmpx')
                self.w = R(0)
                self.r = allr(1)
            elif op.startswith(('v_add_co', 'v_sub_co', 'v_addc_co', 'v_subb_co', 'v_subrev_co')):
                self.w = R(0) | R(1)
                self.r = allr(2)
            elif op.startswith(('v_fmac', 'v_mac', 'v_pk_fmac', 'v_dot2c')):
                self.w = R(0)
                self.r = allr(0)
            elif op == 'v_nop':
                pass
            else:
                self.w = R(0)
                self.r = allr(1)
                if op.startswith('v_cndmask') and len(ops) == 3:
                    self.r |= set(regs_of('vcc'))
        elif op.startswith(('buffer_', 'global_')):
            self.kind = 'vmem'
            self.ldsdma = ('lds' in mods) or ('_lds_' in op)
            self.widestore = False
            if op.startswith(('buffer_wbl2', 'buffer_inv')):
                pass
            elif op.startswith('buffer_load'):
                if self.ldsdma:
                    self.r = allr(0) | {('s', 'm0')}
                else:
                    self.w = R(0)
                    self.r = allr(1)
            elif op.startswith('buffer_store'):
                self.r = allr(0)
                self.sdata = R(0)
                self.widestore = 'x4' in op or 'x3' in op
            elif op.startswith('buffer_atomic'):
                self.r = allr(0)
                if 'sc0' in mods:
                    self.w = R(0)
            elif op.startswith('global_load_lds'):
                self.r = allr(0) | {('s', 'm0')}
            elif op.startswith('global_load'):
                self.w = R(0)
                self.r = allr(1)
            elif op.startswith('global_store'):
                self.r = allr(0)
                self.sdata = R(1)
                self.widestore = 'x4' in op or 'x3' in op
            elif op.startswith('global_atomic'):
                if 'sc0' in mods:
                    self.w = R(0)
                    self.r = allr(1)
                else:
                    self.r = allr(0)
            else:
                raise ValueError(text)
        elif op.startswith('ds_'):
            self.kind = 'ds'
            if op.startswith(('ds_read', 'ds_bpermute', 'ds_permute', 'ds_swizzle')) or '_rtn' in op:
                self.w = R(0)
                self.r = allr(1)
            else:
                self.r = allr(0)
        elif op.startswith(('s_load', 's_buffer_load', 's_memtime', 's_memrealtime', 's_atomic')):
            self.kind = 'smem'
            self.w = R(0)
            self.r = allr(0 if op.startswith('s_atomic') else 1)
        elif op.startswith(('s_branch', 's_cbranch')):
            self.kind = 'branch'
            self.target = ops[0]
            self.uncond = op == 's_branch'
        elif op == 's_call_b64':
            self.kind = 'branch'
            self.target = ops[1]
            self.uncond = False
            self.w = R(0)
        elif op == 's_setpc_b64':
            self.kind = 'end'
        elif op == 's_endpgm':
            self.kind = 'end'
        elif op == 's_nop':
            self.kind = 'nop'
            self.ws = int(ops[0], 0) + 1
        elif op.startswith('s_'):
            self.kind = 'salu'
            if op.startswith(('s_cmp', 's_waitcnt', 's_barrier', 's_sleep', 's_setprio', 's_bitcmp', 's_setreg')):
                self.r = allr(0)
            elif 'saveexec' in op:
                self.w = R(0) | set(regs_of('exec'))
                self.r = allr(1)
            else:
                self.w = R(0)
                self.r = allr(1)
                if op.startswith(('s_addk', 's_mulk', 's_cmov', 's_bitset')):
                    self.r |= R(0)
        else:
            raise ValueError('unknown instruction: ' + text)


def need_ws(p, c):
    n = 0
    vw = {x for x in p.w if x[0] in 'va'}
    sw = {x for x in p.w if x[0] == 's'}
    if p.kind == 'valu':
        if c.kind == 'mfma' and (vw & c.r):
            n = max(n, 2)
        if c.kind == 'valu':
            if c.permlane and (vw & c.r):
                n = max(n, 2)
            if c.dpp and (vw & c.r):
                n = max(n, 2)
            if c.readlane and (vw & c.r):
                n = max(n, 1)
            if p.trans and not c.trans and (vw & (c.r | c.w)):
                n = max(n, 1)
            if sw & c.r:
                n = max(n, 2)
                if sw & getattr(c, 'lanesel', set()):
                    n = max(n, 4)
        if c.kind == 'vmem' and (sw & c.r):
            n = max(n, 5)
        if c.kind in ('salu', 'smem') and (sw & c.r):
            n = max(n, 1)
        if c.kind == 'branch' and sw:
            pass
    if p.kind == 'salu':
        if ('s', 'm0') in p.w and c.kind == 'vmem' and c.ldsdma:
            n = max(n, 1)
    if p.kind == 'vmem' and getattr(p, 'widestore', False):
        if c.kind == 'valu' and (p.sdata & c.w):
            n = max(n, 2)
        elif c.kind in ('vmem', 'ds', 'mfma') and (p.sdata & c.w):
            n = max(n, 1)
    if p.kind == 'mfma':
        P = p.passes
        if c.kind == 'mfma':
            if p.w & c.C:
                if not (p.w == c.C and c.passes == P):
                    n = max(n, {4: 6, 8: 10}[P])
            elif p.w & c.w and p.w != c.w:
                n = max(n, {4: 6, 8: 10}[P])
            if p.w & (c.A | c.B):
                n = max(n, {4: 8, 8: 12}[P])
        elif c.kind in ('valu', 'vmem', 'ds'):
            if p.w & (c.r | c.w):
                n = max(n, {4: 8, 8: 12}[P])
            if c.kind == 'valu' and (p.C & c.w):
                n = max(n, {4: 3, 8: 7}[P])
    return n


MAXD = 12


def pad_hazards(lines, verbose=False):
    ins = [Ins(l) for l in lines]
    total = 0
    while True:
        labels = {x.label: i for i, x in enumerate(ins) if x.kind == 'label'}
        preds = [[] for _ in ins]
        for i, x in enumerate(ins):
            if x.kind == 'branch':
                if x.target in labels:
                    preds[labels[x.target]].append(i)
                else:
                    raise ValueError('unknown label ' + x.target)
            if i + 1 < len(ins):
                if not (x.kind == 'end' or (x.kind == 'branch' and x.uncond)):
                    preds[i + 1].append(i)
        fix = None
        for i, c in enumerate(ins):
            if c.kind in ('label', 'none', 'directive', 'nop', 'end'):
                continue
            worst = 0
            why = None
            seen = {}
            stack = [(p, 0) for p in preds[i]]
            while stack:
                j, d = stack.pop()
                if d >= MAXD:
                    continue
                if seen.get(j, 99) <= d:
                    continue
                seen[j] = d
                p = ins[j]
                if p.kind in ('valu', 'salu', 'vmem', 'mfma'):
                    n = need_ws(p, c) - d
                    if n > worst:
                        worst = n
                        why = p.text
                for q in preds[j]:
                    stack.append((q, d + p.ws))
            if worst > 0:
                fix = (i, worst, why)
                break
        if not fix:
            break
        i, n, why = fix
        if verbose:
            print('pad %d before [%s] after [%s]' % (n, ins[i].text.strip(), why.strip()))
        ins.insert(i, Ins('    s_nop %d' % (n - 1)))
        total += n
    return [x.text for x in ins], total


class Asm:
    def __init__(self):
        self.lines = []

    def __call__(self, s, *a):
        for l in (s % a if a else s).split('\n'):
            l = l.strip()
            if not l:
                continue
            if l.endswith(':') or l.startswith('.'):
                self.lines.append(l)
            else:
                self.lines.append('    ' + l)

    def c(self, s):
        self.lines.append('    ; ' + s)

    def label(self, s):
        self.lines.append(s + ':')


def v(i, n=1):
    return 'v%d' % i if n == 1 else 'v[%d:%d]' % (i, i + n - 1)


def a(i, n=1):
    return 'a%d' % i if n == 1 else 'a[%d:%d]' % (i, i + n - 1)


def s(i, n=1):
    return 's%d' % i if n == 1 else 's[%d:%d]' % (i, i + n - 1)
```

```python
import sys
from asmlib import Asm, pad_hazards, v, a, s

OPT = dict(kv_pol='nt', w_pol='', x_pol='', wo_pol='', prof=0, la=6, law='8,11,14,18,21,21,21,21', pfcode=1, force_remote=0, early2=1, ovl=0, cap1=0, la1=0, slp1=0, slp2=0, noout=0, wb=0, badmap=0, probe_t=0, probe_k=0, probe_q=0, pl=0, touch=0, mgr1=1, off3=1, clean=0, vpoll=1, plp='', lim=0, ldma='', st='0',  xo=0, cap=7, cap0=0, hx=0, nowo=0, rg=1, pkpub=0, strict=0, pkfin=1, nfin=5, dsw=4, ws_off=0, out_pol='', p_pol='sc1')
for arg in sys.argv[2:]:
    k, val = arg.split('=')
    OPT[k] = int(val, 0) if isinstance(OPT[k], int) else val

NAME = 'standalone__mha_block_cached__near_ridge'
C_SCALE = 0x3e0293ee
MFMA = 'v_mfma_f32_32x32x16_bf16'
WS_O, WS_P, WS_F = OPT['ws_off'], OPT['ws_off'] + (6 << 20), OPT['ws_off'] + (12 << 20)
SPIN_MAX = 1 << 20
WSTR = 28672
KVS = [114688, 0, 65536]
RB = [65536, 90112, 114688]
ROWN = 139264
XFER = 53248
AX = 32
STAT = 49152

sX, sK, sV, sW, sWo, sO, sPo, sF, sOut, sDbg = 20, 24, 28, 32, 36, 56, 60, 64, 68, 72
sWave, sHg, sB, sHh, sH, sRot = 40, 41, 43, 44, 45, 46
sSlot, sCnt, sC = 47, 48, 50
sS0, sS1, sS2, sLocal, sSel = 52, 53, 54, 55, 42
sIss, sLand, sDone, sPst = 52, 53, 54, 94
sFo = 99
sT = 76
AWO = 128
vBl = 240
vSt = 241
lP = 234
vAcc = 4


class Lds:
    def __init__(self, A):
        self.A = A
        self.q = []

    def read(self, text, tag):
        self.A(text)
        self.q.append(tag)

    def need(self, *tags):
        idx = max([i for i, t in enumerate(self.q) if t in tags], default=-1)
        if idx < 0:
            return
        n = len(self.q) - 1 - idx
        self.A('s_waitcnt lgkmcnt(%d)', min(n, 15))
        self.q = self.q[idx + 1:]

    def drain(self):
        if self.q:
            self.A('s_waitcnt lgkmcnt(0)')
        self.q = []


def srd(A, d, base, off, size):
    if off is None:
        A('s_mov_b32 %s, %s', s(d), s(base))
        A('s_mov_b32 %s, %s', s(d + 1), s(base + 1))
    else:
        A('s_add_u32 %s, %s, %s', s(d), s(base), off)
        A('s_addc_u32 %s, %s, 0', s(d + 1), s(base + 1))
    A('s_mov_b32 %s, %s', s(d + 2), size if isinstance(size, str) else '0x%x' % size)
    A('s_mov_b32 %s, 0x20000', s(d + 3))


def stamp(A, idx, op='s_memrealtime'):
    if not OPT['prof'] or (OPT['prof'] == 9 and idx not in (0, 3, 25, 29, 58)):
        return
    if OPT['prof'] in (3, 4) and idx not in map(int, OPT['st'].split(',')):
        return
    A('%s s[90:91]', op)
    A('s_waitcnt lgkmcnt(0)')
    A('v_writelane_b32 v255, s90, %d', idx)


def stampd(A, base, mul, cnt=None, lvl=2):
    if OPT['prof'] != lvl:
        return
    A('s_memrealtime s[90:91]')
    A('s_mul_i32 m0, %s, %d', s(sCnt if cnt is None else cnt), mul)
    A('s_add_u32 m0, m0, %d', base)
    A('s_waitcnt lgkmcnt(0)')
    A('v_writelane_b32 v255, s90, m0')


def stamp_flush(A):
    if not OPT['prof']:
        return
    A('s_lshl_b32 s92, s2, 2')
    A('s_add_u32 s92, s92, %s', s(sWave))
    A('s_lshl_b32 s92, s92, 8')
    A('s_add_u32 s92, s92, 0x%x', 128 << 20)
    srd(A, 24, 18, 's92', 256)
    A('v_lshlrev_b32 v254, 2, v1')
    A('buffer_store_dword v255, v254, s[24:27], 0 offen')


def dma(A, voffs, srdreg, soff, pol):
    for j in range(4):
        A('buffer_load_dwordx4 %s, %s, %s offen offset:%d %s lds', v(voffs[j]), s(srdreg, 4), s(soff), 1024 * j, pol)


def tr_lane_base(A, vt, hrow, sigma):
    A('v_lshrrev_b32 %s, 5, v1', v(vt))
    A('v_mul_u32_u24 %s, %d, %s', v(vt), hrow, v(vt))
    A('v_bfe_u32 %s, v1, 2, 2', v(vt + 1))
    A('v_add_u32 %s, %s, %s', v(vt), v(vt), v(vt + 1))
    A('v_lshlrev_b32 %s, 8, %s', v(vt), v(vt))
    A('v_bfe_u32 %s, v1, 4, 1', v(vt + 2))
    A('v_lshl_add_u32 %s, %s, 5, %s', v(vt), v(vt + 2), v(vt))
    if sigma:
        A('v_and_b32 %s, 1, v1', v(vt + 2))
        A('v_lshl_add_u32 %s, %s, 4, %s', v(vt), v(vt + 2), v(vt))
        A('v_bfe_u32 %s, v1, 1, 1', v(vt + 2))
        A('v_lshl_add_u32 %s, %s, 3, %s', v(vt), v(vt + 2), v(vt))
    else:
        A('v_and_b32 %s, 3, v1', v(vt + 2))
        A('v_lshl_add_u32 %s, %s, 3, %s', v(vt), v(vt + 2), v(vt))


def tr_lane_bases(A, vdst, hrow, sigma, vt):
    tr_lane_base(A, vt, hrow, sigma)
    for mt in range(4):
        A('v_xor_b32 %s, %d, %s', v(vt + 2), mt, v(vt + 1))
        A('v_lshl_add_u32 %s, %s, 6, %s', v(vdst + mt), v(vt + 2), v(vt))


def wo_lane_base(A, vdst, vt):
    tr_lane_base(A, vt, 4, True)
    A('v_xor_b32 %s, %s, %s', v(vt + 2), s(sWave), v(vt + 1))
    A('v_lshl_add_u32 %s, %s, 6, %s', v(vdst), v(vt + 2), v(vt))


def wo_reads(A, j, half, vaddr):
    for f in range(4):
        for aa in range(2):
            A('ds_read_b64_tr_b16 %s, %s offset:%d', a(AWO + 32 * j + 16 * half + 4 * f + 2 * aa, 2), v(vaddr), (16 * f + 8 * aa) * 256)


sFl, sFb = 4, sF
sAt = 98
sMa, sMb = 96, 97


def check_land(A, tag):
    A('s_cmp_eq_u32 %s, 14', s(sLand))
    A('s_cbranch_scc1 L_cl_%s', tag)
    A('s_getreg_b32 %s, hwreg(HW_REG_IB_STS)', s(sT))
    A('s_and_b32 %s, %s, 15', s(sT + 1), s(sT))
    A('s_bfe_u32 %s, %s, 0x20016', s(sT), s(sT))
    A('s_lshl4_add_u32 %s, %s, %s', s(sT), s(sT), s(sT + 1))
    A('s_cmp_le_u32 %s, 48', s(sT))
    A('s_cselect_b32 %s, %s, 0', s(sT + 1), s(sMb))
    A('s_cmp_le_u32 %s, 24', s(sT))
    A('s_cselect_b32 %s, %s, %s', s(sT + 1), s(sMa), s(sT + 1))
    A('s_cmp_eq_u32 %s, 0', s(sT))
    A('s_cselect_b32 %s, %s, %s', s(sT + 1), s(sIss), s(sT + 1))
    A('s_andn2_b32 %s, %s, %s', s(sT), s(sT + 1), s(sLand))
    A('s_cbranch_scc0 L_cl_%s', tag)
    A('s_or_b32 %s, %s, %s', s(sLand), s(sLand), s(sT + 1))
    A('v_mov_b32 %s, %s', v(lP + 1), s(sLand))
    A('ds_write_b32 %s, %s offset:4', v(vSt), v(lP + 1))
    stampd(A, 50, 1, 93, 4)
    if OPT['prof'] == 4:
        A('s_add_u32 s93, s93, 1')
    A.label('L_cl_%s' % tag)


def burn(A, tag, n):
    if not n:
        return
    A('s_mov_b32 s98, %d', n)
    A.label('L_burn_' + tag)
    for i in range(14):
        A('v_mov_b32 v252, v253')
    A('s_sub_u32 s98, s98, 1')
    A('s_cmp_lg_u32 s98, 0')
    A('s_cbranch_scc1 L_burn_%s', tag)


def tail_srds(A):
    srd(A, sO, 18, '0x%x' % WS_O if WS_O else None, 256 * 24576)
    srd(A, sPo, 18, '0x%x' % WS_P, 256 * 24576)
    srd(A, sF, 18, '0x%x' % WS_F, 256 * 256)
    srd(A, sDbg, 16, None, 256)
    A('s_mul_i32 %s, %s, 98304', s(sT), s(sB))
    srd(A, sOut, 14, s(sT), 98304)
    A('v_lshlrev_b32 %s, 4, v1', v(vBl))
    A('v_mov_b32 %s, 0x%x', v(vSt), STAT)


STEPS = ['K0', 'K1', 'V0', 'K2', 'V1', 'K3', 'V2', 'V3']


def plan():
    groups = []
    steps = []
    for i in range(8):
        base = WSTR * (i % 5)
        for g in range(3):
            groups.append(('x', i, g, base + 16384 + 4096 * g, i))
        for g in range(4):
            groups.append(('w', i, g, base + 4096 * g, i))
        steps.append(['W%d' % i, len(groups) - 1, i if OPT['strict'] else i - 1])
    for t, nm in enumerate(STEPS):
        base = KVS[t % 3]
        kv = lambda g: (nm[0].lower(), int(nm[1]), g, base + 16384 + 4096 * g, 8 + t)
        wo = lambda g: ('o', t >> 1, 4 * (t & 1) + g, base + 4096 * g, 8 + t)
        if t == 0:
            seq = [kv(g) for g in range(3, 8)] + [kv(0), wo(0), kv(1), wo(1), kv(2), wo(2), wo(3)]
        elif t == 7:
            seq = [wo(g) for g in range(4)] + [kv(g) for g in range(8)]
        else:
            seq = []
            for q in range(4):
                seq += [wo(q), kv(2 * q), kv(2 * q + 1)]
        if OPT['nowo']:
            seq = [x for x in seq if x[0] != 'o']
        groups += seq
        if t < 7:
            steps.append([nm, len(groups) - 1, 8 + t])
        else:
            e = len(groups) - 1
            for q in range(4):
                steps.append(['V3' + 'abcd'[q], e - 6 + 2 * q, 15])
    return steps, groups


def loader(A):
    lX, lW, lK, lV, lWo, lT, lA, lZ = 200, 204, 208, 212, 216, 220, 228, 196
    A('v_lshrrev_b32 %s, 4, v1', v(lT))
    A('v_and_b32 %s, 15, v1', v(lT + 1))
    A('v_lshrrev_b32 %s, 3, v1', v(lT + 3))
    A('v_and_b32 %s, 7, v1', v(lT + 4))
    A('v_xor_b32 %s, %s, %s', v(lT + 4), v(lT + 4), v(lT))
    A('v_lshlrev_b32 %s, 4, %s', v(lT + 4), v(lT + 4))
    A('v_lshl_add_u32 %s, %s, 10, %s', v(lX), v(lT + 3), v(lT + 4))
    A('v_xor_b32 %s, 64, %s', v(lX + 1), v(lX))
    A('v_add_u32 %s, 0x%x, %s', v(lX + 2), 2 * 7168, v(lX))
    A('v_add_u32 %s, 0x%x, %s', v(lX + 3), 3 * 7168, v(lX + 1))
    A('v_add_u32 %s, 0x%x, %s', v(lX + 1), 7168, v(lX + 1))
    A('v_lshlrev_b32 %s, 2, %s', v(lT + 2), v(lT))
    A('v_xor_b32 %s, %s, %s', v(lT + 2), v(lT + 2), v(lT + 1))
    A('v_lshlrev_b32 %s, 4, %s', v(lT + 2), v(lT + 2))
    A('v_lshl_add_u32 %s, %s, 13, %s', v(lW), v(lT), v(lT + 2))
    for j in range(1, 4):
        A('v_add_u32 %s, 0x%x, %s', v(lW + j), j * (32768 - 1024), v(lW))
    A('s_mul_i32 %s, %s, 98304', s(sT), s(sB))
    A('s_lshl_b32 %s, %s, 8', s(sT + 1), s(sH))
    A('s_sub_u32 %s, 0x400000, %s', s(sT + 2), s(sT + 1))
    A('s_waitcnt lgkmcnt(0)')
    srd(A, sX, 4, s(sT), 98304)
    srd(A, sW, 10, s(sT + 1), s(sT + 2))
    stamp(A, 30)

    def setup2():
        A('s_lshl_b32 %s, %s, 5', s(sT), s(sB))
        A('s_add_u32 %s, %s, %s', s(sT), s(sT), s(sH))
        A('s_lshl_b32 %s, %s, 17', s(sT), s(sT))
        srd(A, sK, 6, s(sT), 131072)
        srd(A, sV, 8, s(sT), 131072)
        A('s_lshl_b32 %s, %s, 19', s(sT), s(sHg))
        A('s_lshl_b32 %s, %s, 8', s(sT + 1), s(sHh))
        A('s_add_u32 %s, %s, %s', s(sT), s(sT), s(sT + 1))
        A('s_sub_u32 %s, 0x80000, %s', s(sT + 2), s(sT + 1))
        srd(A, sWo, 12, s(sT), s(sT + 2))
        A('v_lshl_add_u32 %s, %s, 8, %s', v(lV), v(lT), v(lT + 2))
        A('v_lshl_add_u32 %s, %s, 10, %s', v(lWo), v(lT), v(lT + 2))
        for j in range(1, 4):
            A('v_add_u32 %s, 0x%x, %s', v(lWo + j), j * (4096 - 1024), v(lWo))
        for j in range(4):
            A('v_add_u32 %s, %d, %s', v(lT + 3), 4 * j, v(lT))
            A('v_xor_b32 %s, %s, %s', v(lT + 3), v(lT + 3), v(lT + 1))
            A('v_lshlrev_b32 %s, 4, %s', v(lT + 3), v(lT + 3))
            A('v_lshl_add_u32 %s, %s, 8, %s', v(lK + j), v(lT), v(lT + 3))
        wo_lane_base(A, lA, lT)
        tail_srds(A)
        if OPT['rg']:
            A('s_lshl_b32 %s, %s, 12', s(sT + 8), s(sB))
        else:
            A('s_mov_b32 %s, 0', s(sT + 8))
        A('s_and_b32 %s, s2, 63', s(sT + 1))
        for j in range(1, 4):
            A('%s %s, %s, %d', 's_xor_b32' if OPT['xo'] else 's_add_u32', s(sT), s(sHh), j)
            A('s_and_b32 %s, %s, 3', s(sT), s(sT))
            if OPT['hx']:
                A('s_xor_b32 %s, %s, %d', s(sT), s(sT), OPT['hx'])
            A('s_lshl_b32 %s, %s, 6', s(sT), s(sT))
            A('s_add_u32 %s, %s, %s', s(sT), s(sT), s(sT + 1))
            A('s_mul_i32 %s, %s, 24576', s(sT + 10 + j), s(sT))
            A('s_lshl_b32 %s, %s, 8', s(sFo + j - 1), s(sT))
        A('v_lshrrev_b32 %s, 2, v1', v(lP))
        A('v_min_u32 %s, 2, %s', v(lP), v(lP))
        A('v_add_u32 %s, 1, %s', v(lP), v(lP))
        A('%s %s, %s, %s', 'v_xor_b32' if OPT['xo'] else 'v_add_u32', v(lP), s(sHh), v(lP))
        A('v_and_b32 %s, 3, %s', v(lP), v(lP))
        if OPT['hx']:
            A('v_xor_b32 %s, %d, %s', v(lP), OPT['hx'], v(lP))
        A('v_lshlrev_b32 %s, 6, %s', v(lP), v(lP))
        A('v_add_u32 %s, %s, %s', v(lP), s(sT + 1), v(lP))
        A('v_lshlrev_b32 %s, 8, %s', v(lP), v(lP))
        A('v_and_b32 %s, 3, v1', v(lP + 1))
        A('v_min_u32 %s, 2, %s', v(lP + 1), v(lP + 1))
        A('v_lshl_add_u32 %s, %s, 2, %s', v(lP), v(lP + 1), v(lP))
        A('v_mov_b64 %s, 0', v(lP + 2, 2))
        A('v_mov_b64 %s, 0', v(lZ, 2))
        A('v_mov_b64 %s, 0', v(lZ + 2, 2))
        A('s_lshl_b32 %s, s2, 8', s(sT))
        A('s_mov_b64 exec, 0xffff')
        A('buffer_store_dwordx4 %s, %s, %s, %s offen sc1', v(lZ, 4), v(vBl), s(sF, 4), s(sT))
        A('s_mov_b64 exec, -1')

    steps, groups = plan()
    st = dict(m0=None, key=None, so=None)
    sXo, sWq, sG, sOo, sGk, sGv, sRg = sT + 3, sT + 4, sT + 5, sT + 6, sT + 7, sT + 7, sT + 8

    def issue(gi):
        kind, j, g, lds, _ = groups[gi]
        if OPT['cap'] and 56 + OPT['cap0'] <= gi < len(groups) - OPT['cap1']:
            A('s_waitcnt vmcnt(%d)', 4 * (OPT['cap'] - 1))
        if st['m0'] is not None and 0 < lds - st['m0'] < 32768:
            A('s_addk_i32 m0, 0x%x', lds - st['m0'])
        else:
            A('s_mov_b32 m0, 0x%x', lds)
        st['m0'] = lds
        if kind == 'x':
            if g == 0:
                A('s_add_u32 %s, %s, %d', s(sT), s(sRot), j)
                A('s_and_b32 %s, %s, 7', s(sT), s(sT))
                A('s_lshl_b32 %s, %s, 7', s(sXo), s(sT))
                A('s_lshl_b32 %s, %s, 19', s(sWq), s(sT))
            else:
                A('s_add_u32 %s, %s, 0x8000', s(sXo), s(sXo))
            dma(A, [lX, lX + 1, lX + 2, lX + 3], sX, sXo, OPT['x_pol'])
        elif kind == 'w':
            if g:
                A('s_add_u32 %s, %s, 0x20000', s(sWq), s(sWq))
            dma(A, [lW, lW + 1, lW + 2, lW + 3], sW, sWq, OPT['w_pol'])
        elif kind == 'o':
            if g == 0:
                A('%s %s, %s, %d', 's_xor_b32' if OPT['xo'] else 's_add_u32', s(sT), s(sHh), j)
                A('s_and_b32 %s, %s, 3', s(sT), s(sT))
                A('s_lshl_b32 %s, %s, 17', s(sOo), s(sT))
            else:
                A('s_addk_i32 %s, 0x4000', s(sOo))
            dma(A, [lWo, lWo + 1, lWo + 2, lWo + 3], sWo, sOo, OPT['wo_pol'])
        else:
            sR = sGk if kind == 'k' else sGv
            if st.get(kind) == (j, g - 1):
                A('s_addk_i32 %s, 0x1000', s(sR))
            else:
                A('s_add_u32 %s, %s, 0x%x', s(sR), s(sRg), 4096 * g)
            st[kind] = (j, g)
            A('s_and_b32 %s, %s, 0x7000', s(sG), s(sR))
            if j:
                A('s_or_b32 %s, %s, 0x%x', s(sG), s(sG), j * 32768)
            if kind == 'k':
                dma(A, [lK, lK + 1, lK + 2, lK + 3], sK, sG, OPT['kv_pol'])
            else:
                dma(A, [lV] * 4, sV, sG, OPT['kv_pol'])

    def free(gi, cert):
        lds = groups[gi][3]
        return all(not (p[3] < lds + 4096 and lds < p[3] + 4096) or p[4] < cert for p in groups[:gi])

    nxt = 0
    cert = 0
    did2 = False
    pend = False
    for i, (name, e, c) in enumerate(steps):
        la = int(OPT['law'].split(',')[i]) if i < 8 else OPT['la1'] if (OPT['la1'] and i >= 13) else OPT['la']
        while nxt < len(groups) and nxt <= e + la and free(nxt, cert):
            if nxt == 11 and not did2:
                stamp(A, 31)
                setup2()
                did2 = True
            issue(nxt)
            nxt += 1
        assert nxt > e, (name, nxt, e)
        A('s_waitcnt vmcnt(%d)%s', min(60, 4 * (nxt - 1 - e)), ' lgkmcnt(0)' if pend else '')
        pend = False
        if not 2 <= i <= 5:
            stamp(A, 2 + i)
        A('s_barrier')
        cert = max(cert, c)
        if 8 <= i <= 15:
            t = i - 8
            A('v_add_u32 %s, 0x%x, %s', v(lA + 1), KVS[t % 3], v(lA))
            wo_reads(A, t >> 1, t & 1, lA + 1)
            pend = True
        if name == 'W1':
            assert e > 11
            A('s_getreg_b32 %s, hwreg(HW_REG_XCC_ID, 0, 4)', s(sT))
            A('s_add_u32 %s, %s, 1', s(sT), s(sT))
            A('s_and_b32 %s, s2, 3', s(sT + 1))
            A('s_lshl_b32 %s, %s, 3', s(sT + 1), s(sT + 1))
            A('s_lshl_b32 %s, %s, %s', s(sAt), s(sT), s(sT + 1))
            A('s_and_b32 %s, s2, 0xfc', s(sT + 1))
            A('s_atomic_or %s, s[16:17], %s', s(sAt), s(sT + 1))
        if name == 'K0':
            A('ds_write_b64 %s, %s', v(vSt), v(lP + 2, 2))
            A('ds_write_b32 %s, %s offset:12', v(vSt), v(lP + 2))
        if name == 'K2':
            A('s_and_b32 %s, s2, 0xf8', s(sT))
            A('s_load_dwordx2 %s, s[16:17], %s', s(sFl + 4, 2), s(sT))
            A('s_and_b32 %s, s2, 0x3c', s(sT))
            for k in range(4):
                A('s_load_dword %s, s[16:17], %s', s(sFl + k), s(sT))
                if k < 3:
                    A('s_add_u32 %s, %s, 64', s(sT), s(sT))
        if name == 'V1':
            A('s_mov_b32 %s, 0', s(sT + 2))
            A.label('L_chk')
            A('s_and_b32 %s, s2, 3', s(sT))
            A('s_lshl_b32 %s, %s, 3', s(sT), s(sT))
            A('s_or_b32 %s, %s, 0x80000', s(sT), s(sT))
            for k in range(4):
                A('s_bfe_u32 %s, %s, %s', s(sFl + k), s(sFl + k), s(sT))
            A('s_min_u32 %s, %s, %s', s(sT), s(sFl), s(sFl + 1))
            A('s_min_u32 %s, %s, %s', s(sT + 1), s(sFl + 2), s(sFl + 3))
            A('s_min_u32 %s, %s, %s', s(sT), s(sT), s(sT + 1))
            A('s_add_u32 %s, %s, 0x7f7f7f7f', s(sFl + 4), s(sFl + 4))
            A('s_add_u32 %s, %s, 0x7f7f7f7f', s(sFl + 5), s(sFl + 5))
            A('s_and_b32 %s, %s, %s', s(sFl + 4), s(sFl + 4), s(sFl + 5))
            A('s_or_b32 %s, %s, 0x7f7f7f7f', s(sFl + 4), s(sFl + 4))
            A('s_cmp_eq_u32 %s, -1', s(sFl + 4))
            A('s_cselect_b32 %s, %s, 0', s(sT), s(sT))
            A('s_cmp_lg_u32 %s, 0', s(sT))
            A('s_cbranch_scc1 L_chk_ok')
            A('v_lshlrev_b32 %s, 2, v1', v(lZ))
            A('buffer_load_dword %s, %s, %s, 0 offen sc1', v(lZ + 1), v(lZ), s(sDbg, 4))
            A('s_bfe_u32 %s, s2, 0x40002', s(sT))
            A('s_waitcnt vmcnt(0)')
            for k in range(4):
                A('v_readlane_b32 %s, %s, %s', s(sFl + k), v(lZ + 1), s(sT))
                A('s_add_u32 %s, %s, 16', s(sT), s(sT))
            A('s_lshr_b32 %s, s2, 3', s(sT))
            A('s_lshl_b32 %s, %s, 1', s(sT), s(sT))
            A('v_readlane_b32 %s, %s, %s', s(sFl + 4), v(lZ + 1), s(sT))
            A('s_add_u32 %s, %s, 1', s(sT), s(sT))
            A('v_readlane_b32 %s, %s, %s', s(sFl + 5), v(lZ + 1), s(sT))
            A('s_add_u32 %s, %s, 1', s(sT + 2), s(sT + 2))
            A('s_cmp_lt_u32 %s, 0x%x', s(sT + 2), SPIN_MAX)
            A('s_cbranch_scc1 L_chk')
            A.label('L_chk_ok')
            if OPT['prof']:
                A('v_writelane_b32 v255, %s, 59', s(sT + 2))
            for k in range(1, 4):
                A('s_xor_b32 %s, %s, %s', s(sFl + k), s(sFl + k), s(sFl))
            A('s_or_b32 %s, %s, %s', s(sT), s(sFl + 1), s(sFl + 2))
            A('s_or_b32 %s, %s, %s', s(sLocal), s(sT), s(sFl + 3))
            if OPT['force_remote']:
                A('s_mov_b32 %s, 1', s(sLocal))
            A('v_mov_b32 %s, %s', v(lZ), s(sLocal))
            A('ds_write_b32 %s, %s offset:8', v(vSt), v(lZ))
    assert nxt == len(groups)

    for r in (sIss, sLand, sMa, sMb):
        A('s_mov_b32 %s, 0', s(r))
    A('s_mov_b32 %s, %d', s(sDone), 1 if OPT['off3'] else 0)
    if OPT['prof'] == 4:
        A('s_mov_b32 s42, 0')
        A('s_mov_b32 s93, 0')
    A('s_branch L_tail')


def qproj(A, vacc, vWa, vBa, vWb, vBb):
    L = Lds(A)
    FA = [[0 + 16 * p + 4 * mt for mt in range(4)] for p in range(2)]
    FB = [32, 36]

    def reads(ks):
        p = ks & 1
        out = [('ds_read_b128 %s, %s offset:%d' % (a(FB[p], 4), v(vBa + ks), 16384), ('B', ks))]
        for mt in range(4):
            for aa in range(2):
                out.append(('ds_read_b64_tr_b16 %s, %s offset:%d' % (a(FA[p][mt] + 2 * aa, 2), v(vWa + mt), (16 * ks + 4 * aa) * 256), ('A', ks, mt)))
        return out

    def addr_w():
        return ['v_add_u32 %s, %s, %s' % (v(vWa + mt), s(sSlot), v(vWb + mt)) for mt in range(4)]

    def addr_b():
        return ['v_add_u32 %s, %s, %s' % (v(vBa), s(sSlot), v(vBb))] + ['v_xor_b32 %s, %d, %s' % (v(vBa + k), 32 * k, v(vBa)) for k in range(1, 4)]

    def mfma(ks, mt):
        p = ks & 1
        L.need(('B', ks), ('A', ks, mt))
        A('%s %s, %s, %s, %s', MFMA, v(vacc + 16 * mt, 16), a(FA[p][mt], 4), a(FB[p], 4), v(vacc + 16 * mt, 16))

    A('s_mov_b32 %s, 0', s(sCnt))
    for o in addr_w() + addr_b():
        A(o)
    A('s_barrier')
    for t, tag in reads(0):
        L.read(t, tag)
    q0 = list(L.q)
    A.label('L_qp')
    for ks in range(3):
        nxt = reads(ks + 1)
        for mt in range(4):
            mfma(ks, mt)
            for t, tag in nxt[3 * mt:3 * mt + 3]:
                L.read(t, tag)
            if ks == 2 and mt == 3:
                A('s_add_u32 %s, %s, 0x%x', s(sSlot), s(sSlot), WSTR)
                A('s_cmp_eq_u32 %s, 0x%x', s(sSlot), WSTR * 5)
                A('s_cselect_b32 %s, 0, %s', s(sSlot), s(sSlot))
                for o in addr_w()[:2] + addr_b()[:1]:
                    A(o)
    qs = list(L.q)
    A('s_add_u32 %s, %s, 1', s(sCnt), s(sCnt))
    A('s_cmp_eq_u32 %s, 8', s(sCnt))
    A('s_cbranch_scc1 L_qp_last')
    nxt = reads(0)
    extra = [addr_w()[2:], addr_b()[1:], [], []]
    for mt in range(4):
        mfma(3, mt)
        if mt == 0:
            if OPT['strict']:
                L.drain()
            stampd(A, 32, 2)
            A('s_barrier')
            stampd(A, 33, 2)
        for t, tag in nxt[3 * mt:3 * mt + 3]:
            L.read(t, tag)
        for o in extra[mt]:
            A(o)
    assert L.q == q0, (L.q, q0)
    A('s_branch L_qp')
    A.label('L_qp_last')
    L.q = qs
    for mt in range(4):
        mfma(3, mt)


def compute(A):
    vQ, vO, vS, vP = 4, 36, 100, 164
    vWb, vXb, vWa, vXa = 196, 200, 201, 205
    vKb, vKa, vVb, vVa = 209, 210, 218, 222
    vM, vL, vT, vOb, vOa, vD, vO3 = 226, 228, 230, 238, 239, 244, 246
    if OPT['pfcode']:
        A('s_cmp_lg_u32 %s, 1', s(sWave))
        A('s_cbranch_scc1 L_nopf')
        A('s_getpc_b64 %s', s(sT + 2, 2))
        A.label('L_pc')
        A('s_sub_u32 %s, %s, L_pc-%s_kernel', s(sT + 2), s(sT + 2), NAME)
        A('s_subb_u32 %s, %s, 0', s(sT + 3), s(sT + 3))
        A('s_lshr_b32 %s, s2, 3', s(sT))
        A('s_lshl_b32 %s, %s, 10', s(sT), s(sT))
        A('v_lshl_add_u32 %s, v1, 7, %s', v(vT), s(sT))
        A('v_min_u32 %s, L_end-%s_kernel, %s', v(vT), NAME, v(vT))
        A('s_mov_b64 exec, 0xff')
        A('global_load_dword v250, %s, %s', v(vT), s(sT + 2, 2))
        A('s_mov_b64 exec, -1')
        A.label('L_nopf')
    A('s_waitcnt lgkmcnt(0)')
    tail_srds(A)
    tr_lane_bases(A, vWb, 8, True, vT)
    A('v_and_b32 %s, 31, v1', v(vT))
    A('s_lshl_b32 %s, %s, 5', s(sT), s(sWave))
    A('v_add_u32 %s, %s, %s', v(vT), s(sT), v(vT))
    A('v_bfe_u32 %s, %s, 1, 3', v(vT + 1), v(vT))
    A('v_lshrrev_b32 %s, 5, v1', v(vT + 2))
    A('v_xor_b32 %s, %s, %s', v(vT + 1), v(vT + 1), v(vT + 2))
    A('v_lshlrev_b32 %s, 4, %s', v(vT + 1), v(vT + 1))
    A('v_lshl_add_u32 %s, %s, 7, %s', v(vXb), v(vT), v(vT + 1))
    A('v_and_b32 %s, 31, v1', v(vT))
    A('v_and_b32 %s, 15, v1', v(vT + 1))
    A('v_xor_b32 %s, %s, %s', v(vT + 1), v(vT + 1), v(vT + 2))
    A('v_lshlrev_b32 %s, 4, %s', v(vT + 1), v(vT + 1))
    A('v_lshl_add_u32 %s, %s, 8, %s', v(vKb), v(vT), v(vT + 1))
    A('v_add_u32 %s, 0x4000, %s', v(vKb), v(vKb))
    tr_lane_bases(A, vVb, 4, False, vT)
    for mt in range(4):
        A('v_add_u32 %s, 0x4000, %s', v(vVb + mt), v(vVb + mt))
    wo_lane_base(A, vOb, vT)
    A('v_xor_b32 %s, 3, %s', v(vT + 2), v(vT + 1))
    A('v_lshl_add_u32 %s, %s, 6, %s', v(vO3), v(vT + 2), v(vT))
    for i in range(0, 64, 2):
        A('v_mov_b64 %s, 0', v(vS + i, 2))
    for i in range(0, 64, 2):
        A('v_mov_b64 %s, 0', v(vO + i, 2))
    A('v_mov_b32 %s, 0xff800000', v(vM))
    A('v_mov_b64 %s, 0', v(vL, 2))
    A('s_mov_b32 %s, 0x%x', s(sC), C_SCALE)
    A('s_mov_b32 %s, 0x%x', s(sC + 1), C_SCALE)
    A('s_mov_b32 %s, 0', s(sSlot))
    for i in range(3):
        A('s_mov_b32 %s, 0x%x', s(sS0 + i), KVS[i])
    stamp(A, 1)
    stamp(A, 60, 's_memtime')
    qproj(A, vS, vWa, vXa, vWb, vXb)
    burn(A, 'q', OPT['probe_q'])
    stamp(A, 2)
    stamp(A, 61, 's_memtime')
    for i in range(32):
        A('v_cvt_pk_bf16_f32 %s, %s, %s', v(vQ + i), v(vS + 2 * i), v(vS + 2 * i + 1))

    L = Lds(A)
    vAl = vT + 4
    A('s_mov_b32 %s, 0', s(sCnt))
    A.label('L_att')
    A('v_add_u32 %s, %s, %s', v(vKa), s(sS0), v(vKb))
    for k in range(1, 8):
        A('v_xor_b32 %s, %d, %s', v(vKa + k), 32 * k, v(vKa))
    A('v_add_u32 %s, %s, %s', v(vOa), s(sS0), v(vOb))
    A('v_add_u32 %s, %s, %s', v(vO3 + 1), s(sS0), v(vO3))
    stampd(A, 6, 4)
    A('s_barrier')
    stampd(A, 7, 4)
    KF = [[32 * p + 4 * k for k in range(8)] for p in range(2)]

    def kread(t, k):
        return ('ds_read_b128 %s, %s offset:%d' % (a(KF[t & 1][k], 4), v(vKa + k), 8192 * t), ('K', t, k))

    for k in range(8):
        L.read(*kread(0, k))
    vMx = vT

    def max_ops(t):
        r = vS + 16 * t
        ops = []
        if t == 0:
            ops.append('v_max3_f32 %s, %s, %s, %s' % (v(vMx), v(r), v(r + 1), v(vM)))
            rest = range(2, 16, 2)
        else:
            rest = range(0, 16, 2)
        for i in rest:
            ops.append('v_max3_f32 %s, %s, %s, %s' % (v(vMx), v(r + i), v(r + i + 1), v(vMx)))
        return ops

    for t in range(4):
        mo = max_ops(t - 1) if t > 0 else []
        for k in range(8):
            L.need(('K', t, k))
            A('%s %s, %s, %s, %s', MFMA, v(vS + 16 * t, 16), a(KF[t & 1][k], 4), v(vQ + 4 * k, 4), '0' if k == 0 else v(vS + 16 * t, 16))
            if t < 3:
                L.read(*kread(t + 1, k))
            if k >= 4 and mo:
                for o in mo[:2]:
                    A(o)
                mo = mo[2:]
        assert not mo

    def wo_switch(tag, cases):
        for n, (c, t) in enumerate(cases):
            last = n == len(cases) - 1
            if not last:
                A('s_cmp_lg_u32 %s, %d', s(sCnt), c)
                A('s_cbranch_scc1 L_wo%s%d', tag, n + 1)
            wo_reads(A, t >> 1, t & 1, vOa)
            if OPT['off3'] and t < 2:
                for f in range(4):
                    for aa in range(2):
                        A('ds_read_b64_tr_b16 %s, %s offset:%d', a(96 + 16 * t + 4 * f + 2 * aa, 2), v(vO3 + 1), (16 * f + 8 * aa) * 256)
            if not last:
                A('s_branch L_wo%sdone', tag)
                A.label('L_wo%s%d' % (tag, n + 1))
        A.label('L_wo%sdone' % tag)

    wo_switch('a', [(c, STEPS.index('K%d' % c)) for c in range(4)])
    for o in max_ops(3):
        A(o)
    A('v_mov_b32 %s, %s', v(vT + 1), v(vMx))
    A('v_permlane32_swap_b32 %s, %s', v(vT + 1), v(vMx))
    A('v_max_f32 %s, %s, %s', v(vMx), v(vMx), v(vT + 1))
    A('v_mul_f32 %s, %s, %s', v(vT + 2), s(sC), v(vMx))
    A('v_fma_f32 %s, %s, %s, -%s', v(vT + 3), v(vM), s(sC), v(vT + 2))
    A('v_exp_f32 %s, %s', v(vAl), v(vT + 3))
    A('v_mov_b32 %s, %s', v(vM), v(vMx))
    burn(A, 'k', OPT['probe_k'])
    fma = lambda i: A('v_pk_fma_f32 %s, %s, %s, %s op_sel_hi:[1,1,0] neg_lo:[0,0,1] neg_hi:[0,0,1]', v(vS + i, 2), v(vS + i, 2), s(sC, 2), v(vT + 2, 2))
    fma(0)
    A('v_pk_mul_f32 %s, %s, %s op_sel_hi:[1,0]', v(vL, 2), v(vL, 2), v(vAl, 2))
    for i in range(0, 64, 2):
        if i + 2 < 64:
            fma(i + 2)
        A('v_exp_f32 %s, %s', v(vS + i), v(vS + i))
        A('v_exp_f32 %s, %s', v(vS + i + 1), v(vS + i + 1))
        if i >= 2:
            A('v_pk_add_f32 %s, %s, %s', v(vL, 2), v(vL, 2), v(vS + i - 2, 2))
            A('v_cvt_pk_bf16_f32 %s, %s, %s', v(vS + i // 2 - 1), v(vS + i - 2), v(vS + i - 1))
    for mt in range(4):
        A('v_add_u32 %s, %s, %s', v(vVa + mt), s(sS1), v(vVb + mt))
    A('v_pk_add_f32 %s, %s, %s', v(vL, 2), v(vL, 2), v(vS + 62, 2))
    A('v_cvt_pk_bf16_f32 %s, %s, %s', v(vS + 31), v(vS + 62), v(vS + 63))
    A('v_add_u32 %s, %s, %s', v(vOa), s(sS1), v(vOb))
    A('s_waitcnt lgkmcnt(0)')
    A('s_cmp_eq_u32 %s, 0', s(sCnt))
    A('s_cbranch_scc1 L_first')
    stampd(A, 8, 4)
    A('s_barrier')
    stampd(A, 9, 4)
    VF = [[64 + 16 * p + 4 * mt for mt in range(4)] for p in range(2)]

    def vread(p, mt, buf=None):
        b = VF[p & 1][mt] if buf is None else buf
        return [('ds_read_b64_tr_b16 %s, %s offset:%d' % (a(b + 2 * aa, 2), v(vVa + mt), (16 * p + 8 * aa) * 256), ('V', p, mt)) for aa in range(2)]

    def pv(p, mt, buf=None):
        b = VF[p & 1][mt] if buf is None else buf
        L.need(('V', p, mt))
        A('%s %s, %s, %s, %s', MFMA, v(vO + 16 * mt, 16), a(b, 4), v(vP + 4 * p, 4), v(vO + 16 * mt, 16))

    def pv_range(p0, p1):
        for mt in range(4):
            for x in vread(p0, mt):
                L.read(*x)
        for p in range(p0, p1):
            for mt in range(4):
                pv(p, mt)
                if p + 1 < p1:
                    for x in vread(p + 1, mt):
                        L.read(*x)

    pv_range(0, 8)
    assert not L.q
    wo_switch('b', [(c, STEPS.index('V%d' % (c - 1))) for c in (1, 2, 3)])
    A('s_mov_b32 %s, %s', s(sT), s(sS0))
    A('s_mov_b32 %s, %s', s(sS0), s(sS2))
    A('s_mov_b32 %s, %s', s(sS2), s(sS1))
    A('s_mov_b32 %s, %s', s(sS1), s(sT))
    A('s_branch L_join')
    A.label('L_first')
    A('s_mov_b32 %s, %s', s(sT), s(sS0))
    A('s_mov_b32 %s, %s', s(sS0), s(sS1))
    A('s_mov_b32 %s, %s', s(sS1), s(sS2))
    A('s_mov_b32 %s, %s', s(sS2), s(sT))
    A.label('L_join')
    for i in range(0, 32, 2):
        A('v_mov_b64 %s, %s', v(vP + i, 2), v(vS + i, 2))
    for i in range(0, 64, 2):
        A('v_pk_mul_f32 %s, %s, %s op_sel_hi:[1,0]', v(vO + i, 2), v(vO + i, 2), v(vAl, 2))
    A('s_add_u32 %s, %s, 1', s(sCnt), s(sCnt))
    A('s_cmp_lt_u32 %s, 4', s(sCnt))
    A('s_waitcnt lgkmcnt(0)')
    A('s_cbranch_scc1 L_att')

    for mt in range(4):
        A('v_add_u32 %s, %s, %s', v(vVa + mt), s(sS0), v(vVb + mt))
    A('v_add_u32 %s, %s, %s', v(vOa), s(sS0), v(vOb))
    stamp(A, 20)
    A('s_barrier')
    stamp(A, 21)
    if OPT['touch'] == 1:
        A('s_lshl_b32 %s, %s, 13', s(sT + 1), s(sWave))
        A('s_mul_i32 %s, s2, 24576', s(sT + 6))
        A('s_add_u32 %s, %s, %s', s(sT + 6), s(sT + 6), s(sT + 1))
        A('v_lshlrev_b32 v251, 7, v1')
        A('buffer_load_dword v250, v251, %s, %s offen', s(sO, 4), s(sT + 6))
    pv_range(0, 2)
    wo_reads(A, 3, 1, vOa)
    A('v_add_f32 %s, %s, %s', v(vL), v(vL), v(vL + 1))
    A('v_mov_b32 %s, %s', v(vT), v(vL))
    A('v_permlane32_swap_b32 %s, %s', v(vT), v(vL))
    A('v_add_f32 %s, %s, %s', v(vL), v(vL), v(vT))
    A('v_rcp_f32 %s, %s', v(vT), v(vL))
    A('ds_read_b32 %s, %s offset:8', v(vD), v(vSt))
    A('s_waitcnt lgkmcnt(0)')
    A('s_barrier')
    if OPT['touch'] == 2:
        A('s_lshl_b32 %s, %s, 13', s(sT + 1), s(sWave))
        A('s_mul_i32 %s, s2, 24576', s(sT + 6))
        A('s_add_u32 %s, %s, %s', s(sT + 6), s(sT + 6), s(sT + 1))
        A('v_lshlrev_b32 v251, 7, v1')
        A('buffer_load_dword v250, v251, %s, %s offen', s(sO, 4), s(sT + 6))
    pv_range(2, 4)
    A('v_readfirstlane_b32 %s, %s', s(sLocal), v(vD))
    A('s_barrier')
    if OPT['touch'] == 3:
        A('s_lshl_b32 %s, %s, 13', s(sT + 1), s(sWave))
        A('s_mul_i32 %s, s2, 24576', s(sT + 6))
        A('s_add_u32 %s, %s, %s', s(sT + 6), s(sT + 6), s(sT + 1))
        A('v_lshlrev_b32 v251, 7, v1')
        A('buffer_load_dword v250, v251, %s, %s offen', s(sO, 4), s(sT + 6))
    pv_range(4, 6)
    A('s_lshl_b32 %s, %s, 13', s(sT + 1), s(sWave))
    A('s_mul_i32 %s, s2, 24576', s(sT + 6))
    A('s_add_u32 %s, %s, %s', s(sT + 6), s(sT + 6), s(sT + 1))
    A('s_add_u32 %s, %s, 0x1000', s(sT + 7), s(sT + 6))
    A('s_add_u32 %s, %s, 0x%x', s(sT + 1), s(sT + 1), ROWN)
    A('v_add_u32 %s, %s, %s', v(vT + 2), s(sT + 1), v(vBl))
    A('s_lshl_b32 %s, s2, 8', s(sT + 8))
    A('s_lshl_b32 %s, %s, 2', s(sT + 1), s(sWave))
    A('s_add_u32 %s, %s, %s', s(sT + 8), s(sT + 8), s(sT + 1))
    A('v_mov_b32 %s, 1', v(vT + 4))
    A('v_mov_b32 %s, 0', v(vT + 5))
    A('s_mov_b32 %s, 14', s(sLand))
    A('s_mov_b32 %s, 14', s(sIss))
    variants = ['sc1', OPT['plp']] if OPT['pl'] else ['sc1']
    if OPT['pl']:
        A('s_cmp_eq_u32 %s, 0', s(sLocal))
        A('s_cbranch_scc1 L_pub_local')
    for vi, pol in enumerate(variants):
        if vi == 1:
            A('s_branch L_pub_done')
            A.label('L_pub_local')
        A('s_barrier')
        stamp(A, 3)
        seq = [(mt, p) for mt in range(4) for p in (6, 7)]
        buf = lambda i: 64 + 4 * i
        for i in range(6):
            for x in vread(seq[i][1], seq[i][0], buf(i)):
                L.read(*x)

        def fin(f):
            for i in range(4):
                r = vO + 8 * f + 2 * i
                if f >= 4 or OPT['pkpub']:
                    A('v_pk_mul_f32 %s, %s, %s op_sel_hi:[1,0]', v(r, 2), v(r, 2), v(vT, 2))
                else:
                    A('v_mul_f32 %s, %s, %s', v(r), v(vT), v(r))
                    A('v_mul_f32 %s, %s, %s', v(r + 1), v(vT), v(r + 1))
            for i in range(4):
                r = vO + 8 * f + 2 * i
                A('v_cvt_pk_bf16_f32 %s, %s, %s', v(vS + 4 * f + i), v(r), v(r + 1))
            A('buffer_store_dwordx4 %s, %s, %s, %s offen offset:%d %s', v(vS + 4 * f, 4), v(vBl), s(sO, 4), s(sT + 6 + (f >> 2)), 1024 * (f & 3), pol)

        for i, (mt, p) in enumerate(seq):
            pv(p, mt, buf(i))
            if i < 2:
                for x in vread(seq[6 + i][1], seq[6 + i][0], buf(6 + i)):
                    L.read(*x)
            if i >= 4:
                fin(i - 4)
        for f in range(4, 8):
            fin(f)
    A.label('L_pub_done')
    stamp(A, 4)
    for f in range(8):
        A('ds_write_b128 %s, %s offset:%d', v(vT + 2), v(vS + 4 * f, 4), 1024 * f)
    A('s_mov_b64 exec, 1')
    A('s_waitcnt lgkmcnt(0)')
    A('ds_add_u32 %s, %s', v(vSt), v(vT + 4))
    A('s_mov_b64 exec, -1')
    if OPT['off3']:
        for f in range(8):
            A('%s %s, %s, %s, %s', MFMA, a(AX, 16), a(96 + 4 * f, 4), v(vS + 4 * f, 4), '0' if f == 0 else a(AX, 16))
        A('s_lshl_b32 %s, %s, 12', s(sT + 1), s(sWave))
        A('v_add_u32 %s, %s, %s', v(vT + 2), s(sT + 1), v(vBl))
        for i in range(4):
            A('ds_write_b128 %s, %s offset:%d', v(vT + 2), a(AX + 4 * i, 4), XFER + 1024 * i)
    A('s_cmp_eq_u32 %s, 0', s(sLocal))
    A('s_mov_b64 exec, 1')
    A('s_waitcnt vmcnt(0) lgkmcnt(0)')
    A('s_cbranch_scc1 L_flag_local')
    A('buffer_store_dword %s, %s, %s, %s offen sc1', v(vT + 4), v(vT + 5), s(sF, 4), s(sT + 8))
    A('s_branch L_flag_done')
    A.label('L_flag_local')
    A('buffer_store_dword %s, %s, %s, %s offen', v(vT + 4), v(vT + 5), s(sF, 4), s(sT + 8))
    A.label('L_flag_done')
    A('ds_add_u32 %s, %s offset:12', v(vSt), v(vT + 4))
    A('s_mov_b64 exec, -1')
    if OPT['touch'] == 4:
        A('v_lshlrev_b32 v251, 7, v1')
        A('buffer_load_dword v250, v251, %s, %s offen', s(sO, 4), s(sT + 6))
    A('s_mov_b32 %s, 0', s(sDone))
    stamp(A, 5)


def tail(A):
    vU = 230
    vB0 = 243
    vTm = 196
    vPk = 212
    NB = 6
    order = [(qt, f) for qt in range(3) for f in range(8)]
    OOB = 0x7f000000

    def fin_ops(qt, pk=True):
        ops = []
        for t in range(2):
            o = 2 * qt + t
            r = vAcc + 8 * o
            if pk:
                for i in range(0, 8, 2):
                    ops.append('v_pk_add_f32 %s, %s, %s' % (v(vTm + i, 2), v(r + i, 2), v(r + 48 + i, 2)))
                    ops.append('v_pk_add_f32 %s, %s, %s' % (v(vTm + 8 + i, 2), v(r + 96 + i, 2), v(r + 144 + i, 2)))
                for i in range(0, 8, 2):
                    ops.append('v_pk_add_f32 %s, %s, %s' % (v(vTm + i, 2), v(vTm + i, 2), v(vTm + 8 + i, 2)))
            else:
                for i in range(8):
                    ops.append('v_add_f32 %s, %s, %s' % (v(vTm + i), v(r + i), v(r + 48 + i)))
                    ops.append('v_add_f32 %s, %s, %s' % (v(vTm + 8 + i), v(r + 96 + i), v(r + 144 + i)))
                for i in range(8):
                    ops.append('v_add_f32 %s, %s, %s' % (v(vTm + i), v(vTm + i), v(vTm + 8 + i)))
            for i in range(4):
                ops.append('v_cvt_pk_bf16_f32 %s, %s, %s' % (v(vPk + 4 * t + i), v(vTm + 2 * i), v(vTm + 2 * i + 1)))
            ops.append('buffer_store_dwordx4 %s, %s, %s, %s offen offset:%d %s' % (v(vPk + 4 * t, 4), v(vBl), s(sPo, 4), s(sPst + o // 3), 1024 * (o % 3), OPT['p_pol']))
        return ops

    def block(j):
        L = Lds(A)
        stampd(A, 48, 2)
        A('v_add_u32 %s, 0x%x, %s', v(vB0), ROWN if j == 0 else RB[j - 1], v(vBl))

        def rd(i):
            qt, f = order[i]
            L.read('ds_read_b128 %s, %s offset:%d' % (a(4 * (i % NB), 4), v(vB0), qt * 8192 + f * 1024), i)

        for i in range(NB - 1):
            rd(i)
        A('s_or_b32 %s, %s, %d', s(sDone), s(sDone), 1 << j)
        A('s_cmp_eq_u32 %s, 15', s(sDone))
        A('s_cselect_b32 %s, %s, 0x%x', s(sPst), s(sT + 8), OOB)
        A('s_cselect_b32 %s, %s, 0x%x', s(sPst + 1), s(sT + 9), OOB)
        pend = []
        for i, (qt, f) in enumerate(order):
            L.need(i)
            acc = v(vAcc + 48 * j + 16 * qt, 16)
            A('%s %s, %s, %s, %s', MFMA, acc, a(AWO + 32 * j + 4 * f, 4), a(4 * (i % NB), 4), '0' if f == 0 else acc)
            if i + NB - 1 < len(order):
                rd(i + NB - 1)
            if OPT['ovl'] and qt > 0 and f == 3:
                pend += fin_ops(qt - 1, OPT['pkfin'])
            n = OPT['nfin']
            for o in pend[:n]:
                A(o)
            pend = pend[n:]
            if i in (7, 15):
                check_land(A, 'b%d_%d' % (j, i))
            if i == 20:
                L.read('ds_read_b64 %s, %s' % (v(vU, 2), v(vSt)), 'st')
        L.drain()
        if OPT['prof'] == 2:
            stampd(A, 49, 2)
            A('s_add_u32 %s, %s, 1', s(sCnt), s(sCnt))
        A('s_cmp_eq_u32 %s, 15', s(sDone))
        A('s_cbranch_scc0 L_post')
        for o in pend:
            A(o)
        A('s_branch L_sum')

    A.label('L_tail')
    stamp(A, 23)
    A('s_and_b32 %s, s2, 0xf8', s(sT))
    A('s_lshl_b32 %s, %s, 1', s(sT + 1), s(sWave))
    A('s_add_u32 %s, %s, %s', s(sT + 10), s(sT), s(sT + 1))
    A('s_mul_i32 %s, %s, 24576', s(sT), s(sT + 10))
    A('s_mul_i32 %s, %s, 3072', s(sT + 1), s(sHg))
    A('s_add_u32 %s, %s, %s', s(sT + 8), s(sT), s(sT + 1))
    A('s_add_u32 %s, %s, 24576', s(sT + 9), s(sT + 8))
    A('s_mov_b32 %s, 0', s(sCnt))
    A('s_mov_b32 %s, 0', s(sT + 7))
    A('s_mov_b32 %s, 0', s(sT + 6))
    if OPT['lim'] == 2:
        A('s_branch L_status')
    A.label('L_loop')
    A('s_cmp_eq_u32 %s, 14', s(sIss))
    A('s_cbranch_scc1 L_nodisc')
    if not OPT['vpoll']:
        A('s_cmp_lg_u32 %s, 0', s(sLocal))
        A('s_cbranch_scc1 L_disc_v')
        for j in range(1, 4):
            A('s_load_dwordx4 %s, %s, %s glc', s(sFl + 4 * (j - 1), 4), s(sFb, 2), s(sFo + j - 1))
        A('s_waitcnt lgkmcnt(0)')
        A('s_mov_b32 %s, 0', s(sT))
        for j in range(1, 4):
            q = sFl + 4 * (j - 1)
            A('s_and_b32 %s, %s, %s', s(q), s(q), s(q + 1))
            A('s_and_b32 %s, %s, %s', s(q), s(q), s(q + 2))
            A('s_cmp_eq_u32 %s, 1', s(q))
            A('s_cselect_b32 %s, %d, 0', s(q), 1 << j)
            A('s_or_b32 %s, %s, %s', s(sT), s(sT), s(q))

    def issue_new(tag, pol):
        A('s_andn2_b32 %s, %s, %s', s(sT), s(sT), s(sIss))
        for j in range(1, 4):
            A('s_bitcmp1_b32 %s, %d', s(sT), j)
            A('s_cbranch_scc0 L_p%s_n%d', tag, j)
            if OPT['lim']:
                A('s_cmp_%s_u32 %s, %s', 'ge' if OPT['lim'] == 2 else 'gt', s(sIss), s(sT + 6))
                A('s_cbranch_scc1 L_nodisc')
            stampd(A, 40, 2, 42, 4)
            A('s_mov_b32 m0, 0x%x', RB[j - 1])
            A('s_mov_b32 %s, %s', s(sMb), s(sMa))
            A('s_mov_b32 %s, %s', s(sMa), s(sIss))
            A('s_or_b32 %s, %s, %d', s(sIss), s(sIss), 1 << j)
            for g in range(6):
                if g:
                    A('s_addk_i32 m0, 0x1000')
                    A('s_addk_i32 %s, 0x1000', s(sT + 10 + j))
                dma(A, [vBl] * 4, sO, sT + 10 + j, pol)
            stampd(A, 41, 2, 42, 4)
            if OPT['prof'] == 4:
                A('s_add_u32 s42, s42, 1')
            A.label('L_p%s_n%d' % (tag, j))

    if not OPT['vpoll']:
        issue_new('l', OPT['ldma'])
        A('s_branch L_nodisc')
    A.label('L_disc_v')
    A('buffer_load_dword %s, %s, %s, 0 offen sc1', v(lP + 1), v(lP), s(sF, 4))
    A('s_waitcnt vmcnt(0)')
    A('v_cmp_eq_u32 vcc, 1, %s', v(lP + 1))
    A('s_mov_b32 %s, 0', s(sT))
    for j in range(1, 4):
        A('s_bfe_u32 %s, vcc_lo, 0x%x', s(sT + 1), (4 << 16) | (4 * (j - 1)))
        A('s_cmp_eq_u32 %s, 15', s(sT + 1))
        A('s_cselect_b32 %s, %d, 0', s(sT + 1), 1 << j)
        A('s_or_b32 %s, %s, %s', s(sT), s(sT), s(sT + 1))
    issue_new('v', 'sc1')
    A.label('L_nodisc')
    check_land(A, 'l')
    A.label('L_status')
    A('ds_read_b128 %s, %s', v(vU, 4), v(vSt))
    A('s_waitcnt lgkmcnt(0)')
    A('v_readfirstlane_b32 %s, %s', s(sT + 6), v(vU + 3))
    A('s_cmp_eq_u32 %s, 3', s(sT + 6))
    A('s_cselect_b32 %s, 15, %d', s(sT + 6), 0)
    A.label('L_disp')
    A('v_readfirstlane_b32 %s, %s', s(sT), v(vU))
    A('v_readfirstlane_b32 %s, %s', s(sT + 1), v(vU + 1))
    A('s_cmp_eq_u32 %s, 3', s(sT))
    A('s_addc_u32 %s, %s, 0', s(sT + 1), s(sT + 1))
    A('s_andn2_b32 %s, %s, %s', s(sT + 1), s(sT + 1), s(sDone))
    if OPT['mgr1']:
        A('s_cmp_eq_u32 %s, 14', s(sIss))
        A('s_cselect_b32 %s, %s, 0', s(sT + 1), s(sT + 1))
    for j in (1, 2, 3, 0):
        A('s_bitcmp1_b32 %s, %d', s(sT + 1), j)
        A('s_cbranch_scc1 L_blk%d', j)
    if OPT['slp1']:
        A('s_sleep %d', OPT['slp1'])
    A('s_add_u32 %s, %s, 1', s(sT + 7), s(sT + 7))
    A('s_cmp_lt_u32 %s, 0x%x', s(sT + 7), SPIN_MAX)
    A('s_cbranch_scc1 L_loop')
    A('s_branch L_sum')
    A.label('L_post')
    A('s_cmp_eq_u32 %s, 14', s(sLand))
    A('s_cbranch_scc1 L_disp')
    A('s_branch L_loop')
    for j in (1, 2, 3, 0):
        A.label('L_blk%d' % j)
        block(j)

    A.label('L_sum')
    if OPT['off3']:
        A('s_cmp_lg_u32 %s, 3', s(sWave))
        A('s_cbranch_scc1 L_sum2')
        A.label('L_xf')
        A('ds_read_b32 %s, %s offset:12', v(vU), v(vSt))
        for i in range(12):
            A('ds_read_b128 %s, %s offset:%d', v(vAcc + 4 * i, 4), v(vBl), XFER + 1024 * i)
        A('s_add_u32 %s, %s, 1', s(sT + 7), s(sT + 7))
        A('s_waitcnt lgkmcnt(0)')
        A('v_readfirstlane_b32 %s, %s', s(sT), v(vU))
        A('s_cmp_ge_u32 %s, 0x%x', s(sT + 7), SPIN_MAX)
        A('s_cbranch_scc1 L_sum2')
        A('s_cmp_lg_u32 %s, 3', s(sT))
        A('s_cbranch_scc1 L_xf')
        A.label('L_sum2')
    stamp(A, 25)
    A('s_lshl_b32 %s, %s, 8', s(sT + 2), s(sT + 10))
    A('s_lshl_b32 %s, %s, 2', s(sT + 1), s(sHg))
    A('s_add_u32 %s, %s, %s', s(sT + 2), s(sT + 2), s(sT + 1))
    A('v_lshlrev_b32 %s, 8, v1', v(vU + 1))
    A('v_mov_b32 %s, 1', v(vU))
    for qt in range(0 if not OPT['ovl'] else 2, 3):
        for o in fin_ops(qt):
            A(o)
    stamp(A, 26)
    A('s_waitcnt vmcnt(0)')
    A('s_mov_b64 exec, 3')
    A('buffer_store_dword %s, %s, %s, %s offen offset:128 sc1', v(vU), v(vU + 1), s(sF, 4), s(sT + 2))
    A('s_mov_b64 exec, -1')
    stamp(A, 27)
    A('s_cmp_lg_u32 %s, 3', s(sWave))
    A('s_cbranch_scc1 L_red')
    if OPT['clean']:
        A('s_cmp_lg_u32 %s, 0', s(sLocal))
        A('s_cbranch_scc1 L_noclean')
        A('v_add_u32 %s, 0x%x, %s', v(vB0), ROWN, v(vBl))
        A('s_mul_i32 %s, s2, 24576', s(sT))
        for h in range(2):
            for i in range(12):
                A('ds_read_b128 %s, %s offset:%d', v(4 + 48 * h + 4 * i, 4), v(vB0), 1024 * (12 * h + i))
            A('s_waitcnt lgkmcnt(0)')
            for i in range(12):
                A('buffer_store_dwordx4 %s, %s, %s, %s offen offset:%d sc1', v(4 + 48 * h + 4 * i, 4), v(vBl), s(sO, 4), s(sT), 1024 * (i & 3))
                if i & 3 == 3:
                    A('s_addk_i32 %s, 0x1000', s(sT))
        A.label('L_noclean')
    stamp_flush(A)
    A('s_endpgm')

    A.label('L_red')
    vR, vF = 4, 40
    sGot, sLd2, sNew, sSp = sT + 6, sT + 7, sT + 8, sT + 9
    A('s_mul_i32 %s, s2, 24576', s(sT))
    A('s_lshl_b32 %s, %s, 10', s(sT + 1), s(sWave))
    A('s_add_u32 %s, %s, %s', s(sT), s(sT), s(sT + 1))
    A('s_lshl_b32 %s, s2, 8', s(sT + 3))
    A('v_and_b32 %s, 7, v1', v(vU))
    A('v_lshlrev_b32 %s, 2, %s', v(vU), v(vU))
    A('s_mov_b32 %s, 0', s(sGot))
    A('s_mov_b32 %s, 0', s(sLd2))
    A('s_mov_b32 %s, 0', s(sSp))
    A('buffer_load_dword %s, %s, %s, %s offen offset:128 sc1', v(vU + 1), v(vU), s(sF, 4), s(sT + 3))
    A('s_and_b32 %s, %s, 1', s(sT + 1), s(sHg))
    A('s_mul_i32 %s, %s, 3', s(sT + 1), s(sT + 1))
    A('s_add_u32 %s, %s, %s', s(sT + 1), s(sT + 1), s(sWave))
    A('s_lshr_b32 %s, %s, 1', s(sT + 2), s(sT + 1))
    A('s_lshl_b32 %s, %s, 15', s(sT + 2), s(sT + 2))
    A('s_and_b32 %s, %s, 1', s(sT + 1), s(sT + 1))
    A('s_lshl_b32 %s, %s, 5', s(sT + 1), s(sT + 1))
    A('s_add_u32 %s, %s, %s', s(sT + 2), s(sT + 2), s(sT + 1))
    A('s_lshr_b32 %s, %s, 1', s(sT + 1), s(sHg))
    A('s_lshl_b32 %s, %s, 6', s(sT + 1), s(sT + 1))
    A('s_add_u32 %s, %s, %s', s(sT + 2), s(sT + 2), s(sT + 1))
    A('s_lshl_b32 %s, %s, 8', s(sT + 1), s(sHh))
    A('s_add_u32 %s, %s, %s', s(sT + 2), s(sT + 2), s(sT + 1))
    A('v_and_b32 %s, 31, v1', v(vU + 2))
    A('v_lshlrev_b32 %s, 10, %s', v(vU + 2), v(vU + 2))
    A('v_lshrrev_b32 %s, 5, v1', v(vU + 3))
    A('v_lshl_add_u32 %s, %s, 4, %s', v(vU + 2), v(vU + 3), v(vU + 2))
    A.label('L_p2')
    A('s_waitcnt vmcnt(0)')
    A('v_cmp_eq_u32 vcc, 1, %s', v(vU + 1))
    A('s_andn2_b32 %s, %s, %s', s(sT + 4), s(sGot), s(sLd2))
    A('s_mov_b32 %s, %s', s(sLd2), s(sGot))
    A('s_and_b32 %s, vcc_lo, 0xff', s(sNew))
    if not OPT['early2']:
        A('s_cmp_eq_u32 %s, 0xff', s(sNew))
        A('s_cselect_b32 %s, 0xff, 0', s(sNew))
    A('s_andn2_b32 %s, %s, %s', s(sNew), s(sNew), s(sGot))
    A('s_cbranch_scc0 L_p2_noload')
    A('s_or_b32 %s, %s, %s', s(sGot), s(sGot), s(sNew))
    for k in range(8):
        A('s_bitcmp1_b32 %s, %d', s(sNew), k)
        A('s_cbranch_scc0 L_p2_l%d', k)
        if k < 2:
            A('buffer_load_dwordx4 %s, %s, %s, %s offen offset:%d sc1', v(vR + 4 * k, 4), v(vBl), s(sPo, 4), s(sT), 3072 * k)
        else:
            A('s_add_u32 %s, %s, 0x%x', s(sT + 1), s(sT), 3072 * k)
            A('buffer_load_dwordx4 %s, %s, %s, %s offen sc1', v(vR + 4 * k, 4), v(vBl), s(sPo, 4), s(sT + 1))
        A.label('L_p2_l%d' % k)
    A.label('L_p2_noload')
    A('s_cmp_eq_u32 %s, 0xff', s(sGot))
    A('s_cbranch_scc1 L_p2_nopoll')
    if OPT['slp2']:
        A('s_sleep %d', OPT['slp2'])
    A('buffer_load_dword %s, %s, %s, %s offen offset:128 sc1', v(vU + 1), v(vU), s(sF, 4), s(sT + 3))
    A.label('L_p2_nopoll')
    A('s_cmp_eq_u32 %s, 0', s(sT + 4))
    A('s_cbranch_scc1 L_p2_nounp')
    for k in range(8):
        A('s_bitcmp1_b32 %s, %d', s(sT + 4), k)
        A('s_cbranch_scc0 L_p2_u%d', k)
        for i in range(4):
            A('v_lshlrev_b32 %s, 16, %s', v(vF + 8 * k + 2 * i), v(vR + 4 * k + i))
            A('v_and_b32 %s, 0xffff0000, %s', v(vF + 8 * k + 2 * i + 1), v(vR + 4 * k + i))
        A.label('L_p2_u%d' % k)
    A.label('L_p2_nounp')
    A('s_cmp_eq_u32 %s, 0xff', s(sLd2))
    A('s_cbranch_scc1 L_p2_done')
    A('s_add_u32 %s, %s, 1', s(sSp), s(sSp))
    A('s_cmp_lt_u32 %s, 0x%x', s(sSp), SPIN_MAX)
    A('s_cbranch_scc1 L_p2')
    A('s_waitcnt vmcnt(0)')
    A.label('L_p2_done')
    burn(A, 't', OPT['probe_t'])
    stamp(A, 28)
    for step in (8, 16, 32):
        for k in range(0, 64, 2 * step):
            for i in range(0, 8, 2):
                A('v_pk_add_f32 %s, %s, %s', v(vF + k + i, 2), v(vF + k + i, 2), v(vF + k + step + i, 2))
    for i in range(4):
        A('v_cvt_pk_bf16_f32 %s, %s, %s', v(vR + i), v(vF + 2 * i), v(vF + 2 * i + 1))
    if not OPT['noout']:
        A('buffer_store_dwordx4 %s, %s, %s, %s offen %s', v(vR, 4), v(vU + 2), s(sOut, 4), s(sT + 2), OPT['out_pol'])
    if OPT['prof']:
        A('s_waitcnt vmcnt(0)')
        stamp(A, 29)
        stamp_flush(A)


def kernel():
    A = Asm()
    A('s_cmp_ge_u32 s2, 256')
    A('s_cbranch_scc1 L_end')
    if OPT['prof']:
        A('s_memrealtime s[92:93]')
    A('s_load_dwordx4 s[4:7], s[0:1], 0')
    A('s_load_dwordx4 s[8:11], s[0:1], 16')
    A('s_load_dwordx4 s[12:15], s[0:1], 32')
    A('s_load_dwordx4 s[16:19], s[0:1], 48')
    A('v_lshrrev_b32 v2, 6, v0')
    A('v_and_b32 v1, 63, v0')
    A('v_readfirstlane_b32 %s, v2', s(sWave))
    if OPT['prof']:
        A('v_mov_b32 v255, 0')
        A('s_waitcnt lgkmcnt(0)')
        A('v_writelane_b32 v255, s92, 0')
        stamp(A, 58)
    if OPT['badmap']:
        A('s_and_b32 s3, s2, 31')
        A('s_lshl_b32 s3, s3, 3')
        A('s_lshr_b32 s2, s2, 5')
        A('s_or_b32 s2, s2, s3')
    A('s_and_b32 %s, s2, 7', s(sHg))
    A('s_bfe_u32 %s, s2, 0x30003', s(sB))
    A('s_lshr_b32 %s, s2, 6', s(sHh))
    if OPT['hx']:
        A('s_xor_b32 %s, %s, %d', s(sHh), s(sHh), OPT['hx'])
    A('s_lshl_b32 %s, %s, 2', s(sH), s(sHg))
    A('s_add_u32 %s, %s, %s', s(sH), s(sH), s(sHh))
    A('s_lshl_b32 %s, %s, 1', s(sRot), s(sHh))
    A('s_add_u32 %s, %s, %s', s(sRot), s(sRot), s(sB))
    A('s_cmp_lg_u32 %s, 3', s(sWave))
    A('s_cbranch_scc1 L_compute')
    loader(A)
    A.label('L_compute')
    compute(A)
    tail(A)
    A.label('L_end')
    A('s_endpgm')
    return A.lines


def main():
    k, n = pad_hazards(kernel())
    out = ['; %s : fused Q-proj + attention + output projection' % NAME,
           '; @launch grid=(256,1,1) block=(256,1,1) lds=163840',
           '.amdgcn_target "amdgcn-amd-amdhsa--gfx950"', '.text',
           '.globl %s_kernel\n.p2align 8\n.type %s_kernel,@function\n%s_kernel:' % (NAME, NAME, NAME)]
    out += k
    out.append('''.section .rodata,"a"
.p2align 6
.amdhsa_kernel %s_kernel
  .amdhsa_next_free_vgpr 512
  .amdhsa_next_free_sgpr 102
  .amdhsa_accum_offset 256
  .amdhsa_group_segment_fixed_size 0
  .amdhsa_kernarg_size 64
  .amdhsa_user_sgpr_count 2
  .amdhsa_user_sgpr_kernarg_segment_ptr 1
  .amdhsa_system_sgpr_workgroup_id_x 1
.end_amdhsa_kernel''' % NAME)
    open(sys.argv[1], 'w').write('\n'.join(out) + '\n')
    print('wrote', sys.argv[1], 'pads', n)


main()
```

```python
import sys
from asmlib import Asm, pad_hazards, v, a, s

OPT = dict(kv_pol='nt', w_pol='', x_pol='', wo_pol='', prof=0, la=8, law='8,11,14,18,21,21,21,21', pfcode=2, force_remote=0, early2=1, ovl=0, cap1=24, la1=10, slp1=0, slp2=0, noout=0, wb=0, badmap=0, probe_t=0, probe_k=0, probe_q=0, pl=0, touch=0, mgr1=0, off3=0, nochain=1, plm=0xff, kpos=7, kn=5, tpos=3, upos=4, tk=0, tko=0, tkp='', capL=0, capLn=60, clsm=1, lk=6, wskip=0, o_pol='sc1', clean=0, vpoll=1, plp='', lim=0, ldma='', st='0',  xo=0, cap=9, cap0=0, hx=0, nowo=0, rg=1, pkpub=0, strict=0, pkfin=1, nfin=6, dsw=4, ws_off=0, out_pol='', p_pol='sc1')
for arg in sys.argv[2:]:
    k, val = arg.split('=')
    OPT[k] = int(val, 0) if isinstance(OPT[k], int) else val

NAME = 'standalone__mha_block_cached__near_ridge'
C_SCALE = 0x3e0293ee
MFMA = 'v_mfma_f32_32x32x16_bf16'
WS_O, WS_P, WS_F = OPT['ws_off'], OPT['ws_off'] + (6 << 20), OPT['ws_off'] + (12 << 20)
SPIN_MAX = 1 << 20
WSTR = 28672
KVS = [114688, 0, 65536]
RB = [65536, 90112, 114688]
ROWN = 139264
XFER = 53248
AX = 32
STAT = 49152

sX, sK, sV, sW, sWo, sO, sPo, sF, sOut, sDbg = 20, 24, 28, 32, 36, 56, 60, 64, 68, 72
sWave, sHg, sB, sHh, sH, sRot = 40, 41, 43, 44, 45, 46
sSlot, sCnt, sC = 47, 48, 50
sS0, sS1, sS2, sLocal, sSel = 52, 53, 54, 55, 42
sIss, sLand, sDone, sPst = 52, 53, 54, 94
sFo = 99
sT = 76
AWO = 128
vBl = 240
vSt = 241
lP = 234
vAcc = 4


class Lds:
    def __init__(self, A):
        self.A = A
        self.q = []

    def read(self, text, tag):
        self.A(text)
        self.q.append(tag)

    def need(self, *tags):
        idx = max([i for i, t in enumerate(self.q) if t in tags], default=-1)
        if idx < 0:
            return
        n = len(self.q) - 1 - idx
        self.A('s_waitcnt lgkmcnt(%d)', min(n, 15))
        self.q = self.q[idx + 1:]

    def drain(self):
        if self.q:
            self.A('s_waitcnt lgkmcnt(0)')
        self.q = []


def srd(A, d, base, off, size):
    if off is None:
        A('s_mov_b32 %s, %s', s(d), s(base))
        A('s_mov_b32 %s, %s', s(d + 1), s(base + 1))
    else:
        A('s_add_u32 %s, %s, %s', s(d), s(base), off)
        A('s_addc_u32 %s, %s, 0', s(d + 1), s(base + 1))
    A('s_mov_b32 %s, %s', s(d + 2), size if isinstance(size, str) else '0x%x' % size)
    A('s_mov_b32 %s, 0x20000', s(d + 3))


def stamp(A, idx, op='s_memrealtime'):
    if not OPT['prof'] or (OPT['prof'] == 9 and idx not in (0, 3, 25, 29, 58)):
        return
    if OPT['prof'] in (3, 4) and idx not in map(int, OPT['st'].split(',')):
        return
    A('%s s[90:91]', op)
    A('s_waitcnt lgkmcnt(0)')
    A('v_writelane_b32 v255, s90, %d', idx)


def stampd(A, base, mul, cnt=None, lvl=2):
    if OPT['prof'] != lvl:
        return
    A('s_memrealtime s[90:91]')
    A('s_mul_i32 m0, %s, %d', s(sCnt if cnt is None else cnt), mul)
    A('s_add_u32 m0, m0, %d', base)
    A('s_waitcnt lgkmcnt(0)')
    A('v_writelane_b32 v255, s90, m0')


def stamp_flush(A):
    if not OPT['prof']:
        return
    A('s_lshl_b32 s92, s2, 2')
    A('s_add_u32 s92, s92, %s', s(sWave))
    A('s_lshl_b32 s92, s92, 8')
    A('s_add_u32 s92, s92, 0x%x', 128 << 20)
    srd(A, 24, 18, 's92', 256)
    A('v_lshlrev_b32 v254, 2, v1')
    A('buffer_store_dword v255, v254, s[24:27], 0 offen')


def dma(A, voffs, srdreg, soff, pol):
    for j in range(4):
        A('buffer_load_dwordx4 %s, %s, %s offen offset:%d %s lds', v(voffs[j]), s(srdreg, 4), s(soff), 1024 * j, pol)


def tr_lane_base(A, vt, hrow, sigma):
    A('v_lshrrev_b32 %s, 5, v1', v(vt))
    A('v_mul_u32_u24 %s, %d, %s', v(vt), hrow, v(vt))
    A('v_bfe_u32 %s, v1, 2, 2', v(vt + 1))
    A('v_add_u32 %s, %s, %s', v(vt), v(vt), v(vt + 1))
    A('v_lshlrev_b32 %s, 8, %s', v(vt), v(vt))
    A('v_bfe_u32 %s, v1, 4, 1', v(vt + 2))
    A('v_lshl_add_u32 %s, %s, 5, %s', v(vt), v(vt + 2), v(vt))
    if sigma:
        A('v_and_b32 %s, 1, v1', v(vt + 2))
        A('v_lshl_add_u32 %s, %s, 4, %s', v(vt), v(vt + 2), v(vt))
        A('v_bfe_u32 %s, v1, 1, 1', v(vt + 2))
        A('v_lshl_add_u32 %s, %s, 3, %s', v(vt), v(vt + 2), v(vt))
    else:
        A('v_and_b32 %s, 3, v1', v(vt + 2))
        A('v_lshl_add_u32 %s, %s, 3, %s', v(vt), v(vt + 2), v(vt))


def tr_lane_bases(A, vdst, hrow, sigma, vt):
    tr_lane_base(A, vt, hrow, sigma)
    for mt in range(4):
        A('v_xor_b32 %s, %d, %s', v(vt + 2), mt, v(vt + 1))
        A('v_lshl_add_u32 %s, %s, 6, %s', v(vdst + mt), v(vt + 2), v(vt))


def wo_lane_base(A, vdst, vt):
    tr_lane_base(A, vt, 4, True)
    A('v_xor_b32 %s, %s, %s', v(vt + 2), s(sWave), v(vt + 1))
    A('v_lshl_add_u32 %s, %s, 6, %s', v(vdst), v(vt + 2), v(vt))


def wo_reads(A, j, half, vaddr):
    for f in range(4):
        for aa in range(2):
            A('ds_read_b64_tr_b16 %s, %s offset:%d', a(AWO + 32 * j + 16 * half + 4 * f + 2 * aa, 2), v(vaddr), (16 * f + 8 * aa) * 256)


sFl, sFb = 4, sF
sAt = 98
sMa, sMb = 96, 97


def check_land(A, tag):
    A('s_cmp_eq_u32 %s, 14', s(sLand))
    A('s_cbranch_scc1 L_cl_%s', tag)
    A('s_getreg_b32 %s, hwreg(HW_REG_IB_STS)', s(sT))
    A('s_and_b32 %s, %s, 15', s(sT + 1), s(sT))
    A('s_bfe_u32 %s, %s, 0x20016', s(sT), s(sT))
    A('s_lshl4_add_u32 %s, %s, %s', s(sT), s(sT), s(sT + 1))
    A('s_cmp_le_u32 %s, 48', s(sT))
    A('s_cselect_b32 %s, %s, 0', s(sT + 1), s(sMb))
    A('s_cmp_le_u32 %s, 24', s(sT))
    A('s_cselect_b32 %s, %s, %s', s(sT + 1), s(sMa), s(sT + 1))
    A('s_cmp_eq_u32 %s, 0', s(sT))
    A('s_cselect_b32 %s, %s, %s', s(sT + 1), s(sIss), s(sT + 1))
    A('s_andn2_b32 %s, %s, %s', s(sT), s(sT + 1), s(sLand))
    A('s_cbranch_scc0 L_cl_%s', tag)
    A('s_or_b32 %s, %s, %s', s(sLand), s(sLand), s(sT + 1))
    A('v_mov_b32 %s, %s', v(lP + 1), s(sLand))
    A('ds_write_b32 %s, %s offset:4', v(vSt), v(lP + 1))
    stampd(A, 50, 1, 93, 4)
    if OPT['prof'] == 4:
        A('s_add_u32 s93, s93, 1')
    A.label('L_cl_%s' % tag)


def burn(A, tag, n):
    if not n:
        return
    A('s_mov_b32 s98, %d', n)
    A.label('L_burn_' + tag)
    for i in range(14):
        A('v_mov_b32 v252, v253')
    A('s_sub_u32 s98, s98, 1')
    A('s_cmp_lg_u32 s98, 0')
    A('s_cbranch_scc1 L_burn_%s', tag)


def tail_srds(A):
    srd(A, sO, 18, '0x%x' % WS_O if WS_O else None, 256 * 24576)
    srd(A, sPo, 18, '0x%x' % WS_P, 256 * 24576)
    srd(A, sF, 18, '0x%x' % WS_F, 256 * 256)
    srd(A, sDbg, 16, None, 256)
    A('s_mul_i32 %s, %s, 98304', s(sT), s(sB))
    srd(A, sOut, 14, s(sT), 98304)
    A('v_lshlrev_b32 %s, 4, v1', v(vBl))
    A('v_mov_b32 %s, 0x%x', v(vSt), STAT)


STEPS = ['K0', 'K1', 'V0', 'K2', 'V1', 'K3', 'V2', 'V3']


def plan():
    groups = []
    steps = []
    k0 = [('k', 0, g, KVS[0] + 16384 + 4096 * g, 8) for g in range(3, 8)]
    for i in range(8):
        base = WSTR * (i % 5)
        if i == OPT['tpos']:
            groups.append(('t', 0, 0, -1 << 20, 0))
        if i == OPT['upos']:
            groups += [('u', 0, g, -1 << 20, 0) for g in range(OPT['tk'])]
        if i == OPT['kpos']:
            groups += k0[:OPT['kn']]
        if i < 8 - OPT['wskip']:
            for g in range(3):
                groups.append(('x', i, g, base + 16384 + 4096 * g, i))
            for g in range(4):
                groups.append(('w', i, g, base + 4096 * g, i))
        steps.append(['W%d' % i, len(groups) - 1, i if OPT['strict'] else i - 1])
    for t, nm in enumerate(STEPS):
        base = KVS[t % 3]
        kv = lambda g: (nm[0].lower(), int(nm[1]), g, base + 16384 + 4096 * g, 8 + t)
        wo = lambda g: ('o', t >> 1, 4 * (t & 1) + g, base + 4096 * g, 8 + t)
        if t == 0:
            seq = k0[OPT['kn'] if OPT['kpos'] < 8 else 0:] + [kv(0), wo(0), kv(1), wo(1), kv(2), wo(2), wo(3)]
        elif t == 7:
            seq = [wo(g) for g in range(4)] + [kv(g) for g in range(8)]
        else:
            seq = []
            for q in range(4):
                seq += [wo(q), kv(2 * q), kv(2 * q + 1)]
        if OPT['nowo']:
            seq = [x for x in seq if x[0] != 'o']
        groups += seq
        if t < 7:
            steps.append([nm, len(groups) - 1, 8 + t])
        else:
            e = len(groups) - 1
            for q in range(4):
                steps.append(['V3' + 'abcd'[q], e - 6 + 2 * q, 15])
    return steps, groups


def loader(A):
    lX, lW, lK, lV, lWo, lT, lA, lZ = 200, 204, 208, 212, 216, 220, 228, 196
    A('v_lshrrev_b32 %s, 4, v1', v(lT))
    A('v_and_b32 %s, 15, v1', v(lT + 1))
    A('v_lshrrev_b32 %s, 3, v1', v(lT + 3))
    A('v_and_b32 %s, 7, v1', v(lT + 4))
    A('v_xor_b32 %s, %s, %s', v(lT + 4), v(lT + 4), v(lT))
    A('v_lshlrev_b32 %s, 4, %s', v(lT + 4), v(lT + 4))
    A('v_lshl_add_u32 %s, %s, 10, %s', v(lX), v(lT + 3), v(lT + 4))
    A('v_xor_b32 %s, 64, %s', v(lX + 1), v(lX))
    A('v_add_u32 %s, 0x%x, %s', v(lX + 2), 2 * 7168, v(lX))
    A('v_add_u32 %s, 0x%x, %s', v(lX + 3), 3 * 7168, v(lX + 1))
    A('v_add_u32 %s, 0x%x, %s', v(lX + 1), 7168, v(lX + 1))
    A('v_lshlrev_b32 %s, 2, %s', v(lT + 2), v(lT))
    A('v_xor_b32 %s, %s, %s', v(lT + 2), v(lT + 2), v(lT + 1))
    A('v_lshlrev_b32 %s, 4, %s', v(lT + 2), v(lT + 2))
    A('v_lshl_add_u32 %s, %s, 13, %s', v(lW), v(lT), v(lT + 2))
    for j in range(1, 4):
        A('v_add_u32 %s, 0x%x, %s', v(lW + j), j * (32768 - 1024), v(lW))
    A('s_mul_i32 %s, %s, 98304', s(sT), s(sB))
    A('s_lshl_b32 %s, %s, 8', s(sT + 1), s(sH))
    A('s_sub_u32 %s, 0x400000, %s', s(sT + 2), s(sT + 1))
    A('s_waitcnt lgkmcnt(0)')
    srd(A, sX, 4, s(sT), 98304)
    srd(A, sW, 10, s(sT + 1), s(sT + 2))
    stamp(A, 30)

    def setup2():
        A('s_lshl_b32 %s, %s, 5', s(sT), s(sB))
        A('s_add_u32 %s, %s, %s', s(sT), s(sT), s(sH))
        A('s_lshl_b32 %s, %s, 17', s(sT), s(sT))
        srd(A, sK, 6, s(sT), 131072)
        srd(A, sV, 8, s(sT), 131072)
        A('s_lshl_b32 %s, %s, 19', s(sT), s(sHg))
        A('s_lshl_b32 %s, %s, 8', s(sT + 1), s(sHh))
        A('s_add_u32 %s, %s, %s', s(sT), s(sT), s(sT + 1))
        A('s_sub_u32 %s, 0x80000, %s', s(sT + 2), s(sT + 1))
        srd(A, sWo, 12, s(sT), s(sT + 2))
        A('v_lshl_add_u32 %s, %s, 8, %s', v(lV), v(lT), v(lT + 2))
        A('v_lshl_add_u32 %s, %s, 10, %s', v(lWo), v(lT), v(lT + 2))
        for j in range(1, 4):
            A('v_add_u32 %s, 0x%x, %s', v(lWo + j), j * (4096 - 1024), v(lWo))
        for j in range(4):
            A('v_add_u32 %s, %d, %s', v(lT + 3), 4 * j, v(lT))
            A('v_xor_b32 %s, %s, %s', v(lT + 3), v(lT + 3), v(lT + 1))
            A('v_lshlrev_b32 %s, 4, %s', v(lT + 3), v(lT + 3))
            A('v_lshl_add_u32 %s, %s, 8, %s', v(lK + j), v(lT), v(lT + 3))
        wo_lane_base(A, lA, lT)
        tail_srds(A)
        if OPT['capL']:
            A('s_and_b32 vcc_lo, %s, %d', s(sB), OPT['clsm'])
            A('s_mov_b32 vcc_hi, 0')
        if OPT['rg']:
            A('s_lshl_b32 %s, %s, 12', s(sT + 8), s(sB))
        else:
            A('s_mov_b32 %s, 0', s(sT + 8))
        A('s_and_b32 %s, s2, 63', s(sT + 1))
        for j in range(1, 4):
            A('%s %s, %s, %d', 's_xor_b32' if OPT['xo'] else 's_add_u32', s(sT), s(sHh), j)
            A('s_and_b32 %s, %s, 3', s(sT), s(sT))
            if OPT['hx']:
                A('s_xor_b32 %s, %s, %d', s(sT), s(sT), OPT['hx'])
            A('s_lshl_b32 %s, %s, 6', s(sT), s(sT))
            A('s_add_u32 %s, %s, %s', s(sT), s(sT), s(sT + 1))
            A('s_mul_i32 %s, %s, 24576', s(sT + 10 + j), s(sT))
            A('s_lshl_b32 %s, %s, 8', s(sFo + j - 1), s(sT))
        A('v_lshrrev_b32 %s, 2, v1', v(lP))
        A('v_min_u32 %s, 2, %s', v(lP), v(lP))
        A('v_add_u32 %s, 1, %s', v(lP), v(lP))
        A('%s %s, %s, %s', 'v_xor_b32' if OPT['xo'] else 'v_add_u32', v(lP), s(sHh), v(lP))
        A('v_and_b32 %s, 3, %s', v(lP), v(lP))
        if OPT['hx']:
            A('v_xor_b32 %s, %d, %s', v(lP), OPT['hx'], v(lP))
        A('v_lshlrev_b32 %s, 6, %s', v(lP), v(lP))
        A('v_add_u32 %s, %s, %s', v(lP), s(sT + 1), v(lP))
        A('v_lshlrev_b32 %s, 8, %s', v(lP), v(lP))
        A('v_and_b32 %s, 3, v1', v(lP + 1))
        A('v_min_u32 %s, 2, %s', v(lP + 1), v(lP + 1))
        A('v_lshl_add_u32 %s, %s, 2, %s', v(lP), v(lP + 1), v(lP))
        A('v_mov_b64 %s, 0', v(lP + 2, 2))
        A('v_mov_b64 %s, 0', v(lZ, 2))
        A('v_mov_b64 %s, 0', v(lZ + 2, 2))
        A('s_lshl_b32 %s, s2, 8', s(sT))
        A('s_mov_b64 exec, 0xffff')
        A('buffer_store_dwordx4 %s, %s, %s, %s offen sc1', v(lZ, 4), v(vBl), s(sF, 4), s(sT))
        A('s_mov_b64 exec, -1')

    steps, groups = plan()
    st = dict(m0=None, key=None, so=None)
    sXo, sWq, sG, sOo, sGk, sGv, sRg = sT + 3, sT + 4, sT + 5, sT + 6, sT + 7, sT + 7, sT + 8

    def issue(gi):
        kind, j, g, lds, _ = groups[gi]
        if kind == 't':
            A('s_lshl_b32 %s, %s, 19', s(sT), s(sHg))
            A('s_lshr_b32 %s, s2, 3', s(sT + 1))
            A('s_lshl_b32 %s, %s, 14', s(sT + 1), s(sT + 1))
            A('s_add_u32 %s, %s, %s', s(sT), s(sT), s(sT + 1))
            A('v_lshl_add_u32 v251, v1, 7, %s', s(sT))
            A('v_add_u32 v252, 0x2000, v251')
            A('global_load_dword v250, v251, s[12:13]')
            A('global_load_dword v250, v252, s[12:13]')
            return
        if kind == 'u':
            if g == 0:
                A('v_lshlrev_b32 v253, 7, v1')
            A('s_mov_b32 %s, 0x%x', s(sT), OPT['tko'] + 8192 * g)
            A('buffer_load_dword v250, v253, %s, %s offen %s', s(sK, 4), s(sT), OPT['tkp'])
            return
        if OPT['cap'] and steps[7][1] + OPT['cap0'] < gi < len(groups) - OPT['cap1']:
            A('s_waitcnt vmcnt(%d)', 4 * (OPT['cap'] - 1))
        if OPT['capL'] and 56 <= gi < 56 + OPT['capLn']:
            A('s_cbranch_vccz L_cl%d', gi)
            A('s_waitcnt vmcnt(%d)', 4 * (OPT['capL'] - 1))
            A.label('L_cl%d' % gi)
        if st['m0'] is not None and 0 < lds - st['m0'] < 32768:
            A('s_addk_i32 m0, 0x%x', lds - st['m0'])
        else:
            A('s_mov_b32 m0, 0x%x', lds)
        st['m0'] = lds
        if kind == 'x':
            if g == 0:
                A('s_add_u32 %s, %s, %d', s(sT), s(sRot), j)
                A('s_and_b32 %s, %s, 7', s(sT), s(sT))
                A('s_lshl_b32 %s, %s, 7', s(sXo), s(sT))
                A('s_lshl_b32 %s, %s, 19', s(sWq), s(sT))
            else:
                A('s_add_u32 %s, %s, 0x8000', s(sXo), s(sXo))
            dma(A, [lX, lX + 1, lX + 2, lX + 3], sX, sXo, OPT['x_pol'])
        elif kind == 'w':
            if g:
                A('s_add_u32 %s, %s, 0x20000', s(sWq), s(sWq))
            dma(A, [lW, lW + 1, lW + 2, lW + 3], sW, sWq, OPT['w_pol'])
        elif kind == 'o':
            if g == 0:
                A('%s %s, %s, %d', 's_xor_b32' if OPT['xo'] else 's_add_u32', s(sT), s(sHh), j)
                A('s_and_b32 %s, %s, 3', s(sT), s(sT))
                A('s_lshl_b32 %s, %s, 17', s(sOo), s(sT))
            else:
                A('s_addk_i32 %s, 0x4000', s(sOo))
            dma(A, [lWo, lWo + 1, lWo + 2, lWo + 3], sWo, sOo, OPT['wo_pol'])
        else:
            sR = sGk if kind == 'k' else sGv
            if st.get(kind) == (j, g - 1):
                A('s_addk_i32 %s, 0x1000', s(sR))
            else:
                A('s_add_u32 %s, %s, 0x%x', s(sR), s(sRg), 4096 * g)
            st[kind] = (j, g)
            A('s_and_b32 %s, %s, 0x7000', s(sG), s(sR))
            if j:
                A('s_or_b32 %s, %s, 0x%x', s(sG), s(sG), j * 32768)
            if kind == 'k':
                dma(A, [lK, lK + 1, lK + 2, lK + 3], sK, sG, OPT['kv_pol'])
            else:
                dma(A, [lV] * 4, sV, sG, OPT['kv_pol'])

    def free(gi, cert):
        lds = groups[gi][3]
        return all(not (p[3] < lds + 4096 and lds < p[3] + 4096) or p[4] < cert for p in groups[:gi])

    nxt = 0
    cert = 0
    did2 = False
    pend = False
    for i, (name, e, c) in enumerate(steps):
        la = int(OPT['law'].split(',')[i]) if i < 8 else OPT['la1'] if (OPT['la1'] and i >= 13) else OPT['la']
        while nxt < len(groups) and nxt <= e + la and free(nxt, cert):
            if nxt == 11 and not did2:
                stamp(A, 31)
                setup2()
                did2 = True
            issue(nxt)
            nxt += 1
        assert nxt > e, (name, nxt, e)
        A('s_waitcnt vmcnt(%d)%s', min(60, sum({'t': 2, 'u': 1}.get(x[0], 4) for x in groups[e + 1:nxt])), ' lgkmcnt(0)' if pend else '')
        pend = False
        if not 2 <= i <= 5:
            stamp(A, 2 + i)
        A('s_barrier')
        cert = max(cert, c)
        if 8 <= i <= 15:
            t = i - 8
            A('v_add_u32 %s, 0x%x, %s', v(lA + 1), KVS[t % 3], v(lA))
            wo_reads(A, t >> 1, t & 1, lA + 1)
            pend = True
        if name == 'W1':
            assert e > 11
            A('s_getreg_b32 %s, hwreg(HW_REG_XCC_ID, 0, 4)', s(sT))
            A('s_add_u32 %s, %s, 1', s(sT), s(sT))
            A('s_and_b32 %s, s2, 3', s(sT + 1))
            A('s_lshl_b32 %s, %s, 3', s(sT + 1), s(sT + 1))
            A('s_lshl_b32 %s, %s, %s', s(sAt), s(sT), s(sT + 1))
            A('s_and_b32 %s, s2, 0xfc', s(sT + 1))
            A('s_atomic_or %s, s[16:17], %s', s(sAt), s(sT + 1))
        if name == 'K0':
            A('ds_write_b64 %s, %s', v(vSt), v(lP + 2, 2))
            A('ds_write_b32 %s, %s offset:12', v(vSt), v(lP + 2))
        if name == 'K2':
            A('s_and_b32 %s, s2, 0xf8', s(sT))
            A('s_load_dwordx2 %s, s[16:17], %s', s(sFl + 4, 2), s(sT))
            A('s_and_b32 %s, s2, 0x3c', s(sT))
            for k in range(4):
                A('s_load_dword %s, s[16:17], %s', s(sFl + k), s(sT))
                if k < 3:
                    A('s_add_u32 %s, %s, 64', s(sT), s(sT))
        if name == 'V1':
            A('s_mov_b32 %s, 0', s(sT + 2))
            A.label('L_chk')
            A('s_and_b32 %s, s2, 3', s(sT))
            A('s_lshl_b32 %s, %s, 3', s(sT), s(sT))
            A('s_or_b32 %s, %s, 0x80000', s(sT), s(sT))
            for k in range(4):
                A('s_bfe_u32 %s, %s, %s', s(sFl + k), s(sFl + k), s(sT))
            A('s_min_u32 %s, %s, %s', s(sT), s(sFl), s(sFl + 1))
            A('s_min_u32 %s, %s, %s', s(sT + 1), s(sFl + 2), s(sFl + 3))
            A('s_min_u32 %s, %s, %s', s(sT), s(sT), s(sT + 1))
            A('s_add_u32 %s, %s, 0x7f7f7f7f', s(sFl + 4), s(sFl + 4))
            A('s_add_u32 %s, %s, 0x7f7f7f7f', s(sFl + 5), s(sFl + 5))
            A('s_and_b32 %s, %s, %s', s(sFl + 4), s(sFl + 4), s(sFl + 5))
            A('s_or_b32 %s, %s, 0x7f7f7f7f', s(sFl + 4), s(sFl + 4))
            A('s_cmp_eq_u32 %s, -1', s(sFl + 4))
            A('s_cselect_b32 %s, %s, 0', s(sT), s(sT))
            A('s_cmp_lg_u32 %s, 0', s(sT))
            A('s_cbranch_scc1 L_chk_ok')
            A('v_lshlrev_b32 %s, 2, v1', v(lZ))
            A('buffer_load_dword %s, %s, %s, 0 offen sc1', v(lZ + 1), v(lZ), s(sDbg, 4))
            A('s_bfe_u32 %s, s2, 0x40002', s(sT))
            A('s_waitcnt vmcnt(0)')
            for k in range(4):
                A('v_readlane_b32 %s, %s, %s', s(sFl + k), v(lZ + 1), s(sT))
                A('s_add_u32 %s, %s, 16', s(sT), s(sT))
            A('s_lshr_b32 %s, s2, 3', s(sT))
            A('s_lshl_b32 %s, %s, 1', s(sT), s(sT))
            A('v_readlane_b32 %s, %s, %s', s(sFl + 4), v(lZ + 1), s(sT))
            A('s_add_u32 %s, %s, 1', s(sT), s(sT))
            A('v_readlane_b32 %s, %s, %s', s(sFl + 5), v(lZ + 1), s(sT))
            A('s_add_u32 %s, %s, 1', s(sT + 2), s(sT + 2))
            A('s_cmp_lt_u32 %s, 0x%x', s(sT + 2), SPIN_MAX)
            A('s_cbranch_scc1 L_chk')
            A.label('L_chk_ok')
            if OPT['prof']:
                A('v_writelane_b32 v255, %s, 59', s(sT + 2))
            for k in range(1, 4):
                A('s_xor_b32 %s, %s, %s', s(sFl + k), s(sFl + k), s(sFl))
            A('s_or_b32 %s, %s, %s', s(sT), s(sFl + 1), s(sFl + 2))
            A('s_or_b32 %s, %s, %s', s(sLocal), s(sT), s(sFl + 3))
            if OPT['force_remote']:
                A('s_mov_b32 %s, 1', s(sLocal))
            A('v_mov_b32 %s, %s', v(lZ), s(sLocal))
            A('ds_write_b32 %s, %s offset:8', v(vSt), v(lZ))
    assert nxt == len(groups)

    for r in (sIss, sLand, sMa, sMb):
        A('s_mov_b32 %s, 0', s(r))
    A('s_mov_b32 %s, %d', s(sDone), 1 if OPT['off3'] else 0)
    if OPT['prof'] == 4:
        A('s_mov_b32 s42, 0')
        A('s_mov_b32 s93, 0')
    A('s_branch L_tail')


def qproj(A, vacc, vWa, vBa, vWb, vBb):
    L = Lds(A)
    FA = [[0 + 16 * p + 4 * mt for mt in range(4)] for p in range(2)]
    FB = [32, 36]

    def reads(ks):
        p = ks & 1
        out = [('ds_read_b128 %s, %s offset:%d' % (a(FB[p], 4), v(vBa + ks), 16384), ('B', ks))]
        for mt in range(4):
            for aa in range(2):
                out.append(('ds_read_b64_tr_b16 %s, %s offset:%d' % (a(FA[p][mt] + 2 * aa, 2), v(vWa + mt), (16 * ks + 4 * aa) * 256), ('A', ks, mt)))
        return out

    def addr_w():
        return ['v_add_u32 %s, %s, %s' % (v(vWa + mt), s(sSlot), v(vWb + mt)) for mt in range(4)]

    def addr_b():
        return ['v_add_u32 %s, %s, %s' % (v(vBa), s(sSlot), v(vBb))] + ['v_xor_b32 %s, %d, %s' % (v(vBa + k), 32 * k, v(vBa)) for k in range(1, 4)]

    def mfma(ks, mt):
        p = ks & 1
        L.need(('B', ks), ('A', ks, mt))
        A('%s %s, %s, %s, %s', MFMA, v(vacc + 16 * mt, 16), a(FA[p][mt], 4), a(FB[p], 4), v(vacc + 16 * mt, 16))

    A('s_mov_b32 %s, 0', s(sCnt))
    for o in addr_w() + addr_b():
        A(o)
    A('s_barrier')
    for t, tag in reads(0):
        L.read(t, tag)
    q0 = list(L.q)
    A.label('L_qp')
    for ks in range(3):
        nxt = reads(ks + 1)
        for mt in range(4):
            mfma(ks, mt)
            for t, tag in nxt[3 * mt:3 * mt + 3]:
                L.read(t, tag)
            if ks == 2 and mt == 3:
                A('s_add_u32 %s, %s, 0x%x', s(sSlot), s(sSlot), WSTR)
                A('s_cmp_eq_u32 %s, 0x%x', s(sSlot), WSTR * 5)
                A('s_cselect_b32 %s, 0, %s', s(sSlot), s(sSlot))
                for o in addr_w()[:2] + addr_b()[:1]:
                    A(o)
    qs = list(L.q)
    A('s_add_u32 %s, %s, 1', s(sCnt), s(sCnt))
    A('s_cmp_eq_u32 %s, 8', s(sCnt))
    A('s_cbranch_scc1 L_qp_last')
    nxt = reads(0)
    extra = [addr_w()[2:], addr_b()[1:], [], []]
    for mt in range(4):
        mfma(3, mt)
        if mt == 0:
            if OPT['strict']:
                L.drain()
            stampd(A, 32, 2)
            A('s_barrier')
            stampd(A, 33, 2)
        for t, tag in nxt[3 * mt:3 * mt + 3]:
            L.read(t, tag)
        for o in extra[mt]:
            A(o)
    assert L.q == q0, (L.q, q0)
    A('s_branch L_qp')
    A.label('L_qp_last')
    L.q = qs
    for mt in range(4):
        mfma(3, mt)


def compute(A):
    vQ, vO, vS, vP = 4, 36, 100, 164
    vWb, vXb, vWa, vXa = 196, 200, 201, 205
    vKb, vKa, vVb, vVa = 209, 210, 218, 222
    vM, vL, vT, vOb, vOa, vD, vO3 = 226, 228, 230, 238, 239, 244, 246
    if OPT['pfcode'] == 1:
        A('s_cmp_lg_u32 %s, 1', s(sWave))
        A('s_cbranch_scc1 L_nopf')
        A('s_getpc_b64 %s', s(sT + 2, 2))
        A.label('L_pc')
        A('s_sub_u32 %s, %s, L_pc-%s_kernel', s(sT + 2), s(sT + 2), NAME)
        A('s_subb_u32 %s, %s, 0', s(sT + 3), s(sT + 3))
        A('s_lshr_b32 %s, s2, 3', s(sT))
        A('s_lshl_b32 %s, %s, 10', s(sT), s(sT))
        A('v_lshl_add_u32 %s, v1, 7, %s', v(vT), s(sT))
        A('v_min_u32 %s, L_end-%s_kernel, %s', v(vT), NAME, v(vT))
        A('s_mov_b64 exec, 0xff')
        A('global_load_dword v250, %s, %s', v(vT), s(sT + 2, 2))
        A('s_mov_b64 exec, -1')
        A.label('L_nopf')
    A('s_waitcnt lgkmcnt(0)')
    tail_srds(A)
    tr_lane_bases(A, vWb, 8, True, vT)
    A('v_and_b32 %s, 31, v1', v(vT))
    A('s_lshl_b32 %s, %s, 5', s(sT), s(sWave))
    A('v_add_u32 %s, %s, %s', v(vT), s(sT), v(vT))
    A('v_bfe_u32 %s, %s, 1, 3', v(vT + 1), v(vT))
    A('v_lshrrev_b32 %s, 5, v1', v(vT + 2))
    A('v_xor_b32 %s, %s, %s', v(vT + 1), v(vT + 1), v(vT + 2))
    A('v_lshlrev_b32 %s, 4, %s', v(vT + 1), v(vT + 1))
    A('v_lshl_add_u32 %s, %s, 7, %s', v(vXb), v(vT), v(vT + 1))
    A('v_and_b32 %s, 31, v1', v(vT))
    A('v_and_b32 %s, 15, v1', v(vT + 1))
    A('v_xor_b32 %s, %s, %s', v(vT + 1), v(vT + 1), v(vT + 2))
    A('v_lshlrev_b32 %s, 4, %s', v(vT + 1), v(vT + 1))
    A('v_lshl_add_u32 %s, %s, 8, %s', v(vKb), v(vT), v(vT + 1))
    A('v_add_u32 %s, 0x4000, %s', v(vKb), v(vKb))
    tr_lane_bases(A, vVb, 4, False, vT)
    for mt in range(4):
        A('v_add_u32 %s, 0x4000, %s', v(vVb + mt), v(vVb + mt))
    wo_lane_base(A, vOb, vT)
    A('v_xor_b32 %s, 3, %s', v(vT + 2), v(vT + 1))
    A('v_lshl_add_u32 %s, %s, 6, %s', v(vO3), v(vT + 2), v(vT))
    for i in range(0, 64, 2):
        A('v_mov_b64 %s, 0', v(vS + i, 2))
    for i in range(0, 64, 2):
        A('v_mov_b64 %s, 0', v(vO + i, 2))
    A('v_mov_b32 %s, 0xff800000', v(vM))
    A('v_mov_b64 %s, 0', v(vL, 2))
    A('v_mov_b32 %s, 0', v(vT + 4))
    A('s_mov_b32 %s, 0x%x', s(sC), C_SCALE)
    A('s_mov_b32 %s, 0x%x', s(sC + 1), C_SCALE)
    A('s_mov_b32 %s, 0', s(sSlot))
    for i in range(3):
        A('s_mov_b32 %s, 0x%x', s(sS0 + i), KVS[i])
    stamp(A, 1)
    stamp(A, 60, 's_memtime')
    qproj(A, vS, vWa, vXa, vWb, vXb)
    burn(A, 'q', OPT['probe_q'])
    stamp(A, 2)
    stamp(A, 61, 's_memtime')
    for i in range(32):
        A('v_cvt_pk_bf16_f32 %s, %s, %s', v(vQ + i), v(vS + 2 * i), v(vS + 2 * i + 1))

    L = Lds(A)
    vAl = vT + 4
    A('s_mov_b32 %s, 0', s(sCnt))
    A.label('L_att')
    A('v_add_u32 %s, %s, %s', v(vKa), s(sS0), v(vKb))
    for k in range(1, 8):
        A('v_xor_b32 %s, %d, %s', v(vKa + k), 32 * k, v(vKa))
    A('v_add_u32 %s, %s, %s', v(vOa), s(sS0), v(vOb))
    A('v_add_u32 %s, %s, %s', v(vO3 + 1), s(sS0), v(vO3))
    stampd(A, 6, 4)
    A('s_barrier')
    stampd(A, 7, 4)
    KF = [[32 * p + 4 * k for k in range(8)] for p in range(2)]

    def kread(t, k):
        return ('ds_read_b128 %s, %s offset:%d' % (a(KF[t & 1][k], 4), v(vKa + k), 8192 * t), ('K', t, k))

    for k in range(8):
        L.read(*kread(0, k))
    vMx = vT

    def max_ops(t):
        r = vS + 16 * t
        ops = []
        if t == 0:
            ops.append('v_max3_f32 %s, %s, %s, %s' % (v(vMx), v(r), v(r + 1), v(vM)))
            rest = range(2, 16, 2)
        else:
            rest = range(0, 16, 2)
        for i in rest:
            ops.append('v_max3_f32 %s, %s, %s, %s' % (v(vMx), v(r + i), v(r + i + 1), v(vMx)))
        return ops

    resc = ['v_mul_f32 %s, %s, %s' % (v(vO + i), v(vAl), v(vO + i)) for i in range(64)]
    for t in range(4):
        mo = max_ops(t - 1) if t > 0 else []
        for k in range(8):
            L.need(('K', t, k))
            A('%s %s, %s, %s, %s', MFMA, v(vS + 16 * t, 16), a(KF[t & 1][k], 4), v(vQ + 4 * k, 4), '0' if k == 0 else v(vS + 16 * t, 16))
            if t < 3:
                L.read(*kread(t + 1, k))
            if k >= 4 and mo:
                for o in mo[:2]:
                    A(o)
                mo = mo[2:]
                n = 1 if t == 1 else 0
            else:
                n = 3
            for o in resc[:n]:
                A(o)
            resc = resc[n:]
        assert not mo
    assert not resc

    def wo_switch(tag, cases):
        for n, (c, t) in enumerate(cases):
            last = n == len(cases) - 1
            if not last:
                A('s_cmp_lg_u32 %s, %d', s(sCnt), c)
                A('s_cbranch_scc1 L_wo%s%d', tag, n + 1)
            wo_reads(A, t >> 1, t & 1, vOa)
            if OPT['off3'] and t < 2:
                for f in range(4):
                    for aa in range(2):
                        A('ds_read_b64_tr_b16 %s, %s offset:%d', a(96 + 16 * t + 4 * f + 2 * aa, 2), v(vO3 + 1), (16 * f + 8 * aa) * 256)
            if not last:
                A('s_branch L_wo%sdone', tag)
                A.label('L_wo%s%d' % (tag, n + 1))
        A.label('L_wo%sdone' % tag)

    wo_switch('a', [(c, STEPS.index('K%d' % c)) for c in range(4)])
    for o in max_ops(3):
        A(o)
    A('v_mov_b32 %s, %s', v(vT + 1), v(vMx))
    A('v_permlane32_swap_b32 %s, %s', v(vT + 1), v(vMx))
    A('v_max_f32 %s, %s, %s', v(vMx), v(vMx), v(vT + 1))
    A('v_mul_f32 %s, %s, %s', v(vT + 2), s(sC), v(vMx))
    A('v_fma_f32 %s, %s, %s, -%s', v(vT + 3), v(vM), s(sC), v(vT + 2))
    A('v_exp_f32 %s, %s', v(vAl), v(vT + 3))
    A('v_mov_b32 %s, %s', v(vM), v(vMx))
    burn(A, 'k', OPT['probe_k'])
    fma = lambda i: A('v_pk_fma_f32 %s, %s, %s, %s op_sel_hi:[1,1,0] neg_lo:[0,0,1] neg_hi:[0,0,1]', v(vS + i, 2), v(vS + i, 2), s(sC, 2), v(vT + 2, 2))

    def half(lo, dst, filler=()):
        filler = list(filler)
        fma(lo)
        for o in filler[:1]:
            A(o)
        for i in range(lo, lo + 32, 2):
            if i + 2 < lo + 32:
                fma(i + 2)
            A('v_exp_f32 %s, %s', v(vS + i), v(vS + i))
            A('v_exp_f32 %s, %s', v(vS + i + 1), v(vS + i + 1))
            if i > lo:
                A('v_pk_add_f32 %s, %s, %s', v(vL, 2), v(vL, 2), v(vS + i - 2, 2))
                A('v_cvt_pk_bf16_f32 %s, %s, %s', v(dst + (i - lo) // 2 - 1), v(vS + i - 2), v(vS + i - 1))
        for o in filler[1:]:
            A(o)
        A('v_pk_add_f32 %s, %s, %s', v(vL, 2), v(vL, 2), v(vS + lo + 30, 2))
        A('v_cvt_pk_bf16_f32 %s, %s, %s', v(dst + 15), v(vS + lo + 30), v(vS + lo + 31))

    half(32, vS + 32, ['v_pk_mul_f32 %s, %s, %s op_sel_hi:[1,0]' % (v(vL, 2), v(vL, 2), v(vAl, 2))] +
         ['v_add_u32 %s, %s, %s' % (v(vVa + mt), s(sS1), v(vVb + mt)) for mt in range(4)])
    A('v_add_u32 %s, %s, %s', v(vOa), s(sS1), v(vOb))
    A('s_waitcnt lgkmcnt(0)')
    A('s_cmp_eq_u32 %s, 0', s(sCnt))
    A('s_cbranch_scc1 L_first')
    fma1 = lambda i: A('v_fma_f32 %s, %s, %s, -%s', v(vS + i), v(vS + i), s(sC), v(vT + 2))
    fma1(0)
    stampd(A, 8, 4)
    A('s_barrier')
    stampd(A, 9, 4)
    VF = [[64 + 16 * p + 4 * mt for mt in range(4)] for p in range(2)]

    def vread(p, mt, buf=None):
        b = VF[p & 1][mt] if buf is None else buf
        return [('ds_read_b64_tr_b16 %s, %s offset:%d' % (a(b + 2 * aa, 2), v(vVa + mt), (16 * p + 8 * aa) * 256), ('V', p, mt)) for aa in range(2)]

    def pv(p, mt, buf=None):
        b = VF[p & 1][mt] if buf is None else buf
        L.need(('V', p, mt))
        A('%s %s, %s, %s, %s', MFMA, v(vO + 16 * mt, 16), a(b, 4), v(vP + 4 * p, 4), v(vO + 16 * mt, 16))

    def pv_range(p0, p1, beside=None):
        n0, n1, LK = 4 * p0, 4 * p1, OPT['lk']
        for n in range(n0, min(n0 + LK, n1)):
            for x in vread(n >> 2, n & 3):
                L.read(*x)
        for n in range(n0, n1):
            pv(n >> 2, n & 3)
            if n + LK < n1:
                for x in vread((n + LK) >> 2, (n + LK) & 3):
                    L.read(*x)
            if beside:
                beside(n)

    def late(g):
        if g < 32:
            A('v_exp_f32 %s, %s', v(vS + g), v(vS + g))
        if g + 1 < 32:
            fma1(g + 1)
        if 1 <= g <= 32:
            A('v_add_f32 %s, %s, %s', v(vL + ((g - 1) & 1)), v(vS + g - 1), v(vL + ((g - 1) & 1)))
        if g >= 3 and g & 1:
            q = (g - 3) // 2
            A('v_cvt_pk_bf16_f32 %s, %s, %s', v(vP + q), v(vS + 2 * q), v(vS + 2 * q + 1))

    pv_range(0, 8, late)
    assert not L.q
    wo_switch('b', [(c, STEPS.index('V%d' % (c - 1))) for c in (1, 2, 3)])
    late(32)
    late(33)
    A('s_mov_b32 %s, %s', s(sT), s(sS0))
    A('s_mov_b32 %s, %s', s(sS0), s(sS2))
    A('s_mov_b32 %s, %s', s(sS2), s(sS1))
    A('s_mov_b32 %s, %s', s(sS1), s(sT))
    A('s_branch L_join')
    A.label('L_first')
    half(0, vP, ['s_nop 0', 's_nop 0'])
    A('s_mov_b32 %s, %s', s(sT), s(sS0))
    A('s_mov_b32 %s, %s', s(sS0), s(sS1))
    A('s_mov_b32 %s, %s', s(sS1), s(sS2))
    A('s_mov_b32 %s, %s', s(sS2), s(sT))
    A.label('L_join')
    for i in range(0, 16, 2):
        A('v_mov_b64 %s, %s', v(vP + 16 + i, 2), v(vS + 32 + i, 2))
    A('s_add_u32 %s, %s, 1', s(sCnt), s(sCnt))
    A('s_cmp_lt_u32 %s, 4', s(sCnt))
    A('s_waitcnt lgkmcnt(0)')
    A('s_cbranch_scc1 L_att')

    for i in range(0, 64, 2):
        A('v_pk_mul_f32 %s, %s, %s op_sel_hi:[1,0]', v(vO + i, 2), v(vO + i, 2), v(vAl, 2))
    for mt in range(4):
        A('v_add_u32 %s, %s, %s', v(vVa + mt), s(sS0), v(vVb + mt))
    A('v_add_u32 %s, %s, %s', v(vOa), s(sS0), v(vOb))
    stamp(A, 20)
    A('s_barrier')
    stamp(A, 21)
    if OPT['touch'] == 1:
        A('s_lshl_b32 %s, %s, 13', s(sT + 1), s(sWave))
        A('s_mul_i32 %s, s2, 24576', s(sT + 6))
        A('s_add_u32 %s, %s, %s', s(sT + 6), s(sT + 6), s(sT + 1))
        A('v_lshlrev_b32 v251, 7, v1')
        A('buffer_load_dword v250, v251, %s, %s offen', s(sO, 4), s(sT + 6))
    pv_range(0, 2)
    wo_reads(A, 3, 1, vOa)
    A('v_add_f32 %s, %s, %s', v(vL), v(vL), v(vL + 1))
    A('v_mov_b32 %s, %s', v(vT), v(vL))
    A('v_permlane32_swap_b32 %s, %s', v(vT), v(vL))
    A('v_add_f32 %s, %s, %s', v(vL), v(vL), v(vT))
    A('v_rcp_f32 %s, %s', v(vT), v(vL))
    A('ds_read_b32 %s, %s offset:8', v(vD), v(vSt))
    A('s_waitcnt lgkmcnt(0)')
    A('s_barrier')
    if OPT['touch'] == 2:
        A('s_lshl_b32 %s, %s, 13', s(sT + 1), s(sWave))
        A('s_mul_i32 %s, s2, 24576', s(sT + 6))
        A('s_add_u32 %s, %s, %s', s(sT + 6), s(sT + 6), s(sT + 1))
        A('v_lshlrev_b32 v251, 7, v1')
        m = sum(0xff << (8 * f) for f in range(8) if OPT['plm'] >> f & 1)
        A('s_mov_b32 exec_lo, 0x%x', m & 0xffffffff)
        A('s_mov_b32 exec_hi, 0x%x', m >> 32)
        A('buffer_load_dword v250, v251, %s, %s offen', s(sO, 4), s(sT + 6))
        A('s_mov_b64 exec, -1')
    pv_range(2, 4)
    A('v_readfirstlane_b32 %s, %s', s(sLocal), v(vD))
    A('s_barrier')
    if OPT['touch'] == 3:
        A('s_lshl_b32 %s, %s, 13', s(sT + 1), s(sWave))
        A('s_mul_i32 %s, s2, 24576', s(sT + 6))
        A('s_add_u32 %s, %s, %s', s(sT + 6), s(sT + 6), s(sT + 1))
        A('v_lshlrev_b32 v251, 7, v1')
        A('buffer_load_dword v250, v251, %s, %s offen', s(sO, 4), s(sT + 6))
    pv_range(4, 6)
    A('s_lshl_b32 %s, %s, 13', s(sT + 1), s(sWave))
    A('s_mul_i32 %s, s2, 24576', s(sT + 6))
    A('s_add_u32 %s, %s, %s', s(sT + 6), s(sT + 6), s(sT + 1))
    A('s_add_u32 %s, %s, 0x1000', s(sT + 7), s(sT + 6))
    A('s_add_u32 %s, %s, 0x%x', s(sT + 1), s(sT + 1), ROWN)
    A('v_add_u32 %s, %s, %s', v(vT + 2), s(sT + 1), v(vBl))
    A('s_lshl_b32 %s, s2, 8', s(sT + 8))
    A('s_lshl_b32 %s, %s, 2', s(sT + 1), s(sWave))
    A('s_add_u32 %s, %s, %s', s(sT + 8), s(sT + 8), s(sT + 1))
    A('v_mov_b32 %s, 1', v(vT + 4))
    A('v_mov_b32 %s, 0', v(vT + 5))
    A('s_mov_b32 %s, 14', s(sLand))
    A('s_mov_b32 %s, 14', s(sIss))
    variants = ['sc1', OPT['plp']] if OPT['pl'] else [OPT['o_pol'].replace('+', ' ')]
    if OPT['pl']:
        A('s_cmp_eq_u32 %s, 0', s(sLocal))
        A('s_cbranch_scc1 L_pub_local')
    for vi, pol in enumerate(variants):
        if vi == 1:
            A('s_branch L_pub_done')
            A.label('L_pub_local')
        A('s_barrier')
        stamp(A, 3)
        seq = [(mt, p) for mt in range(4) for p in (6, 7)]
        buf = lambda i: 64 + 4 * i
        for i in range(6):
            for x in vread(seq[i][1], seq[i][0], buf(i)):
                L.read(*x)

        def fin(f):
            for i in range(4):
                r = vO + 8 * f + 2 * i
                if f >= 4 or OPT['pkpub']:
                    A('v_pk_mul_f32 %s, %s, %s op_sel_hi:[1,0]', v(r, 2), v(r, 2), v(vT, 2))
                else:
                    A('v_mul_f32 %s, %s, %s', v(r), v(vT), v(r))
                    A('v_mul_f32 %s, %s, %s', v(r + 1), v(vT), v(r + 1))
            for i in range(4):
                r = vO + 8 * f + 2 * i
                A('v_cvt_pk_bf16_f32 %s, %s, %s', v(vS + 4 * f + i), v(r), v(r + 1))
            A('buffer_store_dwordx4 %s, %s, %s, %s offen offset:%d %s', v(vS + 4 * f, 4), v(vBl), s(sO, 4), s(sT + 6 + (f >> 2)), 1024 * (f & 3), pol if OPT['plm'] >> f & 1 else 'sc1')

        for i, (mt, p) in enumerate(seq):
            pv(p, mt, buf(i))
            if i < 2:
                for x in vread(seq[6 + i][1], seq[6 + i][0], buf(6 + i)):
                    L.read(*x)
            if i >= 4:
                fin(i - 4)
        for f in range(4, 8):
            fin(f)
    A.label('L_pub_done')
    stamp(A, 4)
    for f in range(8):
        A('ds_write_b128 %s, %s offset:%d', v(vT + 2), v(vS + 4 * f, 4), 1024 * f)
    A('s_mov_b64 exec, 1')
    A('s_waitcnt lgkmcnt(0)')
    A('ds_add_u32 %s, %s', v(vSt), v(vT + 4))
    A('s_mov_b64 exec, -1')
    if OPT['off3']:
        for f in range(8):
            A('%s %s, %s, %s, %s', MFMA, a(AX, 16), a(96 + 4 * f, 4), v(vS + 4 * f, 4), '0' if f == 0 else a(AX, 16))
        A('s_lshl_b32 %s, %s, 12', s(sT + 1), s(sWave))
        A('v_add_u32 %s, %s, %s', v(vT + 2), s(sT + 1), v(vBl))
        for i in range(4):
            A('ds_write_b128 %s, %s offset:%d', v(vT + 2), a(AX + 4 * i, 4), XFER + 1024 * i)
    A('s_cmp_eq_u32 %s, 0', s(sLocal))
    A('s_mov_b64 exec, 1')
    A('s_waitcnt vmcnt(0) lgkmcnt(0)')
    A('s_cbranch_scc1 L_flag_local')
    A('buffer_store_dword %s, %s, %s, %s offen sc1', v(vT + 4), v(vT + 5), s(sF, 4), s(sT + 8))
    A('s_branch L_flag_done')
    A.label('L_flag_local')
    A('buffer_store_dword %s, %s, %s, %s offen', v(vT + 4), v(vT + 5), s(sF, 4), s(sT + 8))
    A.label('L_flag_done')
    A('ds_add_u32 %s, %s offset:12', v(vSt), v(vT + 4))
    A('s_mov_b64 exec, -1')
    if OPT['touch'] == 4:
        A('v_lshlrev_b32 v251, 7, v1')
        A('buffer_load_dword v250, v251, %s, %s offen', s(sO, 4), s(sT + 6))
    A('s_mov_b32 %s, 0', s(sDone))
    stamp(A, 5)


def tail(A):
    vU = 230
    vB0 = 243
    vTm = 196
    vPk = 212
    NB = 6
    order = [(qt, f) for qt in range(3) for f in range(8)]
    OOB = 0x7f000000

    def fin_ops(qt, pk=True):
        ops = []
        for t in range(2):
            o = 2 * qt + t
            r = vAcc + 8 * o
            if pk:
                for i in range(0, 8, 2):
                    ops.append('v_pk_add_f32 %s, %s, %s' % (v(vTm + i, 2), v(r + i, 2), v(r + 48 + i, 2)))
                    ops.append('v_pk_add_f32 %s, %s, %s' % (v(vTm + 8 + i, 2), v(r + 96 + i, 2), v(r + 144 + i, 2)))
                for i in range(0, 8, 2):
                    ops.append('v_pk_add_f32 %s, %s, %s' % (v(vTm + i, 2), v(vTm + i, 2), v(vTm + 8 + i, 2)))
            else:
                for i in range(8):
                    ops.append('v_add_f32 %s, %s, %s' % (v(vTm + i), v(r + i), v(r + 48 + i)))
                    ops.append('v_add_f32 %s, %s, %s' % (v(vTm + 8 + i), v(r + 96 + i), v(r + 144 + i)))
                for i in range(8):
                    ops.append('v_add_f32 %s, %s, %s' % (v(vTm + i), v(vTm + i), v(vTm + 8 + i)))
            for i in range(4):
                ops.append('v_cvt_pk_bf16_f32 %s, %s, %s' % (v(vPk + 4 * t + i), v(vTm + 2 * i), v(vTm + 2 * i + 1)))
            ops.append('buffer_store_dwordx4 %s, %s, %s, %s offen offset:%d %s' % (v(vPk + 4 * t, 4), v(vBl), s(sPo, 4), s(sPst + o // 3), 1024 * (o % 3), OPT['p_pol'].replace('+', ' ')))
        return ops

    vBn = 242
    sNx, sNb = sT + 2, sT + 3
    REG = [ROWN] + RB

    def pick():
        A('v_readfirstlane_b32 %s, %s', s(sT), v(vU))
        A('v_readfirstlane_b32 %s, %s', s(sT + 1), v(vU + 1))
        A('s_cmp_eq_u32 %s, 3', s(sT))
        A('s_addc_u32 %s, %s, 0', s(sT + 1), s(sT + 1))
        A('s_andn2_b32 %s, %s, %s', s(sT + 1), s(sT + 1), s(sDone))

    def block(j, last):
        L = Lds(A)
        sfx = '%s%d' % ('L' if last else '', j)
        A.label('L_blk' + sfx)
        A('v_add_u32 %s, 0x%x, %s', v(vBn), REG[j], v(vBl))

        def rd(i, base=vB0):
            qt, f = order[i % 24]
            L.read('ds_read_b128 %s, %s offset:%d' % (a(4 * (i % NB), 4), v(base), qt * 8192 + f * 1024), i)

        for i in range(NB - 1):
            rd(i, vBn)
        A.label('L_pre' + sfx)
        A('v_mov_b32 %s, %s', v(vB0), v(vBn))
        if OPT['prof'] == 4:
            A('s_memrealtime s[90:91]')
            A('s_add_u32 m0, %s, 54', s(sCnt))
            A('s_add_u32 %s, %s, 1', s(sCnt), s(sCnt))
            A('s_waitcnt lgkmcnt(0)')
            A('v_writelane_b32 v255, s90, m0')
        A('s_or_b32 %s, %s, %d', s(sDone), s(sDone), 1 << j)
        others = [k for k in (1, 2, 3, 0) if k != j]
        pend = []
        if last and OPT['off3']:
            xfer(sfx)
        for i, (qt, f) in enumerate(order):
            L.need(i)
            acc = v(vAcc + 48 * j + 16 * qt, 16)
            A('%s %s, %s, %s, %s', MFMA, acc, a(AWO + 32 * j + 4 * f, 4), a(4 * (i % NB), 4), '0' if f == 0 else acc)
            if i + NB - 1 < 24 or not last:
                rd(i + NB - 1, vB0 if i + NB - 1 < 24 else vBn)
            if last:
                if qt > 0 and f == 3:
                    pend += fin_ops(qt - 1, False)
                for o in pend[:OPT['nfin']]:
                    A(o)
                pend = pend[OPT['nfin']:]
                continue
            if i in (5, 11):
                check_land(A, 'b%d_%d' % (j, i))
            if i == 12:
                L.read('ds_read_b64 %s, %s' % (v(vU, 2), v(vSt)), 'st')
            if i == 16:
                L.need('st')
                pick()
            if i == 17:
                A('s_mov_b32 %s, 4', s(sNx))
                A('s_mov_b32 %s, 0x%x', s(sNb), REG[j])
                for k in reversed(others):
                    A('s_bitcmp1_b32 %s, %d', s(sT + 1), k)
                    A('s_cselect_b32 %s, %d, %s', s(sNx), k, s(sNx))
                    A('s_cselect_b32 %s, 0x%x, %s', s(sNb), REG[k], s(sNb))
            if i == 18:
                A('v_add_u32 %s, %s, %s', v(vBn), s(sNb), v(vBl))
                A('s_bcnt1_i32_b32 %s, %s', s(sT), s(sDone))
                A('s_cmp_eq_u32 %s, 3', s(sT))
                A('s_cselect_b32 %s, 8, 0', s(sT))
                A('s_add_u32 %s, %s, %s', s(sNx), s(sNx), s(sT))
                if OPT['nochain']:
                    A('s_cmp_eq_u32 %s, 14', s(sIss))
                    A('s_cselect_b32 %s, %s, 4', s(sNx), s(sNx))
        if OPT['prof'] == 2:
            stampd(A, 49, 2)
            A('s_add_u32 %s, %s, 1', s(sCnt), s(sCnt))
        if last:
            stamp(A, 25)
            for o in pend:
                A(o)
            A('s_branch L_sum')
            return
        for k in others:
            A('s_cmp_eq_u32 %s, %d', s(sNx), k)
            A('s_cbranch_scc1 L_pre%d', k)
        for k in others:
            A('s_cmp_eq_u32 %s, %d', s(sNx), 8 + k)
            A('s_cbranch_scc1 L_preL%d', k)
        A('s_waitcnt lgkmcnt(0)')
        A('s_branch L_loop')

    def xfer(tag):
        A('s_cmp_lg_u32 %s, 3', s(sWave))
        A('s_cbranch_scc1 L_xd%s', tag)
        A.label('L_xf' + tag)
        A('ds_read_b32 %s, %s offset:12', v(vU), v(vSt))
        for i in range(12):
            A('ds_read_b128 %s, %s offset:%d', v(vAcc + 4 * i, 4), v(vBl), XFER + 1024 * i)
        A('s_add_u32 %s, %s, 1', s(sT + 7), s(sT + 7))
        A('s_waitcnt lgkmcnt(0)')
        A('v_readfirstlane_b32 %s, %s', s(sT), v(vU))
        A('s_cmp_ge_u32 %s, 0x%x', s(sT + 7), SPIN_MAX)
        A('s_cbranch_scc1 L_xd%s', tag)
        A('s_cmp_lg_u32 %s, 3', s(sT))
        A('s_cbranch_scc1 L_xf%s', tag)
        A.label('L_xd' + tag)

    A.label('L_tail')
    stamp(A, 23)
    A('s_and_b32 %s, s2, 0xf8', s(sT))
    A('s_lshl_b32 %s, %s, 1', s(sT + 1), s(sWave))
    A('s_add_u32 %s, %s, %s', s(sT + 10), s(sT), s(sT + 1))
    A('s_mul_i32 %s, %s, 24576', s(sT), s(sT + 10))
    A('s_mul_i32 %s, %s, 3072', s(sT + 1), s(sHg))
    A('s_add_u32 %s, %s, %s', s(sPst), s(sT), s(sT + 1))
    A('s_add_u32 %s, %s, 24576', s(sPst + 1), s(sPst))
    A('s_mov_b32 %s, 0', s(sCnt))
    A('s_mov_b32 %s, 0', s(sT + 7))
    A('s_mov_b32 %s, 0', s(sT + 6))
    if OPT['lim'] == 2:
        A('s_branch L_status')
    A.label('L_loop')
    A('s_cmp_eq_u32 %s, 14', s(sIss))
    A('s_cbranch_scc1 L_nodisc')
    if not OPT['vpoll']:
        A('s_cmp_lg_u32 %s, 0', s(sLocal))
        A('s_cbranch_scc1 L_disc_v')
        for j in range(1, 4):
            A('s_load_dwordx4 %s, %s, %s glc', s(sFl + 4 * (j - 1), 4), s(sFb, 2), s(sFo + j - 1))
        A('s_waitcnt lgkmcnt(0)')
        A('s_mov_b32 %s, 0', s(sT))
        for j in range(1, 4):
            q = sFl + 4 * (j - 1)
            A('s_and_b32 %s, %s, %s', s(q), s(q), s(q + 1))
            A('s_and_b32 %s, %s, %s', s(q), s(q), s(q + 2))
            A('s_cmp_eq_u32 %s, 1', s(q))
            A('s_cselect_b32 %s, %d, 0', s(q), 1 << j)
            A('s_or_b32 %s, %s, %s', s(sT), s(sT), s(q))

    def issue_new(tag, pol):
        A('s_andn2_b32 %s, %s, %s', s(sT), s(sT), s(sIss))
        for j in range(1, 4):
            A('s_bitcmp1_b32 %s, %d', s(sT), j)
            A('s_cbranch_scc0 L_p%s_n%d', tag, j)
            if OPT['lim']:
                A('s_cmp_%s_u32 %s, %s', 'ge' if OPT['lim'] == 2 else 'gt', s(sIss), s(sT + 6))
                A('s_cbranch_scc1 L_nodisc')
            stampd(A, 40, 2, 42, 4)
            A('s_mov_b32 m0, 0x%x', RB[j - 1])
            A('s_mov_b32 %s, %s', s(sMb), s(sMa))
            A('s_mov_b32 %s, %s', s(sMa), s(sIss))
            A('s_or_b32 %s, %s, %d', s(sIss), s(sIss), 1 << j)
            for g in range(6):
                if g:
                    A('s_addk_i32 m0, 0x1000')
                    A('s_addk_i32 %s, 0x1000', s(sT + 10 + j))
                dma(A, [vBl] * 4, sO, sT + 10 + j, pol)
            stampd(A, 41, 2, 42, 4)
            if OPT['prof'] == 4:
                A('s_add_u32 s42, s42, 1')
            A.label('L_p%s_n%d' % (tag, j))

    if not OPT['vpoll']:
        issue_new('l', OPT['ldma'])
        A('s_branch L_nodisc')
    A.label('L_disc_v')
    A('buffer_load_dword %s, %s, %s, 0 offen sc1', v(lP + 1), v(lP), s(sF, 4))
    A('s_waitcnt vmcnt(0)')
    A('v_cmp_eq_u32 vcc, 1, %s', v(lP + 1))
    A('s_mov_b32 %s, 0', s(sT))
    for j in range(1, 4):
        A('s_bfe_u32 %s, vcc_lo, 0x%x', s(sT + 1), (4 << 16) | (4 * (j - 1)))
        A('s_cmp_eq_u32 %s, 15', s(sT + 1))
        A('s_cselect_b32 %s, %d, 0', s(sT + 1), 1 << j)
        A('s_or_b32 %s, %s, %s', s(sT), s(sT), s(sT + 1))
    issue_new('v', 'sc1')
    A.label('L_nodisc')
    check_land(A, 'l')
    A.label('L_status')
    A('ds_read_b128 %s, %s', v(vU, 4), v(vSt))
    A('s_waitcnt lgkmcnt(0)')
    A('v_readfirstlane_b32 %s, %s', s(sT + 6), v(vU + 3))
    A('s_cmp_eq_u32 %s, 3', s(sT + 6))
    A('s_cselect_b32 %s, 15, %d', s(sT + 6), 0)
    pick()
    if OPT['mgr1']:
        A('s_cmp_eq_u32 %s, 14', s(sIss))
        A('s_cselect_b32 %s, %s, 0', s(sT + 1), s(sT + 1))
    A('s_bcnt1_i32_b32 %s, %s', s(sT), s(sDone))
    A('s_cmp_eq_u32 %s, 3', s(sT))
    A('s_cbranch_scc1 L_dispL')
    for j in (1, 2, 3, 0):
        A('s_bitcmp1_b32 %s, %d', s(sT + 1), j)
        A('s_cbranch_scc1 L_blk%d', j)
    A('s_branch L_none')
    A.label('L_dispL')
    for j in (1, 2, 3, 0):
        A('s_bitcmp1_b32 %s, %d', s(sT + 1), j)
        A('s_cbranch_scc1 L_blkL%d', j)
    A.label('L_none')
    if OPT['slp1']:
        A('s_sleep %d', OPT['slp1'])
    A('s_add_u32 %s, %s, 1', s(sT + 7), s(sT + 7))
    A('s_cmp_lt_u32 %s, 0x%x', s(sT + 7), SPIN_MAX)
    A('s_cbranch_scc1 L_loop')
    A('s_branch L_sum')
    for j in (0, 1, 2, 3):
        block(j, False)
    for j in (0, 1, 2, 3):
        block(j, True)

    A.label('L_sum')
    A('s_lshl_b32 %s, %s, 8', s(sT + 2), s(sT + 10))
    A('s_lshl_b32 %s, %s, 2', s(sT + 1), s(sHg))
    A('s_add_u32 %s, %s, %s', s(sT + 2), s(sT + 2), s(sT + 1))
    A('v_lshlrev_b32 %s, 8, v1', v(vU + 1))
    A('v_mov_b32 %s, 1', v(vU))
    for o in fin_ops(2):
        A(o)
    stamp(A, 26)
    A('s_waitcnt vmcnt(0)')
    A('s_mov_b64 exec, 3')
    A('buffer_store_dword %s, %s, %s, %s offen offset:128 sc1', v(vU), v(vU + 1), s(sF, 4), s(sT + 2))
    A('s_mov_b64 exec, -1')
    stamp(A, 27)
    A('s_cmp_lg_u32 %s, 3', s(sWave))
    A('s_cbranch_scc1 L_red')
    if OPT['clean']:
        A('s_cmp_lg_u32 %s, 0', s(sLocal))
        A('s_cbranch_scc1 L_noclean')
        A('v_add_u32 %s, 0x%x, %s', v(vB0), ROWN, v(vBl))
        A('s_mul_i32 %s, s2, 24576', s(sT))
        for h in range(2):
            for i in range(12):
                A('ds_read_b128 %s, %s offset:%d', v(4 + 48 * h + 4 * i, 4), v(vB0), 1024 * (12 * h + i))
            A('s_waitcnt lgkmcnt(0)')
            for i in range(12):
                A('buffer_store_dwordx4 %s, %s, %s, %s offen offset:%d sc1', v(4 + 48 * h + 4 * i, 4), v(vBl), s(sO, 4), s(sT), 1024 * (i & 3))
                if i & 3 == 3:
                    A('s_addk_i32 %s, 0x1000', s(sT))
        A.label('L_noclean')
    stamp_flush(A)
    A('s_endpgm')

    A.label('L_red')
    vR, vF = 4, 40
    sGot, sLd2, sNew, sSp = sT + 6, sT + 7, sT + 8, sT + 9
    A('s_mul_i32 %s, s2, 24576', s(sT))
    A('s_lshl_b32 %s, %s, 10', s(sT + 1), s(sWave))
    A('s_add_u32 %s, %s, %s', s(sT), s(sT), s(sT + 1))
    A('s_lshl_b32 %s, s2, 8', s(sT + 3))
    A('v_and_b32 %s, 7, v1', v(vU))
    A('v_lshlrev_b32 %s, 2, %s', v(vU), v(vU))
    A('s_mov_b32 %s, 0', s(sGot))
    A('s_mov_b32 %s, 0', s(sLd2))
    A('s_mov_b32 %s, 0', s(sSp))
    A('buffer_load_dword %s, %s, %s, %s offen offset:128 sc1', v(vU + 1), v(vU), s(sF, 4), s(sT + 3))
    A('s_and_b32 %s, %s, 1', s(sT + 1), s(sHg))
    A('s_mul_i32 %s, %s, 3', s(sT + 1), s(sT + 1))
    A('s_add_u32 %s, %s, %s', s(sT + 1), s(sT + 1), s(sWave))
    A('s_lshr_b32 %s, %s, 1', s(sT + 2), s(sT + 1))
    A('s_lshl_b32 %s, %s, 15', s(sT + 2), s(sT + 2))
    A('s_and_b32 %s, %s, 1', s(sT + 1), s(sT + 1))
    A('s_lshl_b32 %s, %s, 5', s(sT + 1), s(sT + 1))
    A('s_add_u32 %s, %s, %s', s(sT + 2), s(sT + 2), s(sT + 1))
    A('s_lshr_b32 %s, %s, 1', s(sT + 1), s(sHg))
    A('s_lshl_b32 %s, %s, 6', s(sT + 1), s(sT + 1))
    A('s_add_u32 %s, %s, %s', s(sT + 2), s(sT + 2), s(sT + 1))
    A('s_lshl_b32 %s, %s, 8', s(sT + 1), s(sHh))
    A('s_add_u32 %s, %s, %s', s(sT + 2), s(sT + 2), s(sT + 1))
    A('v_and_b32 %s, 31, v1', v(vU + 2))
    A('v_lshlrev_b32 %s, 10, %s', v(vU + 2), v(vU + 2))
    A('v_lshrrev_b32 %s, 5, v1', v(vU + 3))
    A('v_lshl_add_u32 %s, %s, 4, %s', v(vU + 2), v(vU + 3), v(vU + 2))
    A.label('L_p2')
    A('s_waitcnt vmcnt(0)')
    A('v_cmp_eq_u32 vcc, 1, %s', v(vU + 1))
    A('s_andn2_b32 %s, %s, %s', s(sT + 4), s(sGot), s(sLd2))
    A('s_mov_b32 %s, %s', s(sLd2), s(sGot))
    A('s_and_b32 %s, vcc_lo, 0xff', s(sNew))
    if not OPT['early2']:
        A('s_cmp_eq_u32 %s, 0xff', s(sNew))
        A('s_cselect_b32 %s, 0xff, 0', s(sNew))
    A('s_andn2_b32 %s, %s, %s', s(sNew), s(sNew), s(sGot))
    A('s_cbranch_scc0 L_p2_noload')
    A('s_or_b32 %s, %s, %s', s(sGot), s(sGot), s(sNew))
    for k in range(8):
        A('s_bitcmp1_b32 %s, %d', s(sNew), k)
        A('s_cbranch_scc0 L_p2_l%d', k)
        if k < 2:
            A('buffer_load_dwordx4 %s, %s, %s, %s offen offset:%d sc1', v(vR + 4 * k, 4), v(vBl), s(sPo, 4), s(sT), 3072 * k)
        else:
            A('s_add_u32 %s, %s, 0x%x', s(sT + 1), s(sT), 3072 * k)
            A('buffer_load_dwordx4 %s, %s, %s, %s offen sc1', v(vR + 4 * k, 4), v(vBl), s(sPo, 4), s(sT + 1))
        A.label('L_p2_l%d' % k)
    A.label('L_p2_noload')
    A('s_cmp_eq_u32 %s, 0xff', s(sGot))
    A('s_cbranch_scc1 L_p2_nopoll')
    if OPT['slp2']:
        A('s_sleep %d', OPT['slp2'])
    A('buffer_load_dword %s, %s, %s, %s offen offset:128 sc1', v(vU + 1), v(vU), s(sF, 4), s(sT + 3))
    A.label('L_p2_nopoll')
    A('s_cmp_eq_u32 %s, 0', s(sT + 4))
    A('s_cbranch_scc1 L_p2_nounp')
    for k in range(8):
        A('s_bitcmp1_b32 %s, %d', s(sT + 4), k)
        A('s_cbranch_scc0 L_p2_u%d', k)
        for i in range(4):
            A('v_lshlrev_b32 %s, 16, %s', v(vF + 8 * k + 2 * i), v(vR + 4 * k + i))
            A('v_and_b32 %s, 0xffff0000, %s', v(vF + 8 * k + 2 * i + 1), v(vR + 4 * k + i))
        A.label('L_p2_u%d' % k)
    A.label('L_p2_nounp')
    A('s_cmp_eq_u32 %s, 0xff', s(sLd2))
    A('s_cbranch_scc1 L_p2_done')
    A('s_add_u32 %s, %s, 1', s(sSp), s(sSp))
    A('s_cmp_lt_u32 %s, 0x%x', s(sSp), SPIN_MAX)
    A('s_cbranch_scc1 L_p2')
    A('s_waitcnt vmcnt(0)')
    A.label('L_p2_done')
    burn(A, 't', OPT['probe_t'])
    stamp(A, 28)
    for step in (8, 16, 32):
        for k in range(0, 64, 2 * step):
            for i in range(0, 8, 2):
                A('v_pk_add_f32 %s, %s, %s', v(vF + k + i, 2), v(vF + k + i, 2), v(vF + k + step + i, 2))
    for i in range(4):
        A('v_cvt_pk_bf16_f32 %s, %s, %s', v(vR + i), v(vF + 2 * i), v(vF + 2 * i + 1))
    if not OPT['noout']:
        A('buffer_store_dwordx4 %s, %s, %s, %s offen %s', v(vR, 4), v(vU + 2), s(sOut, 4), s(sT + 2), OPT['out_pol'])
    if OPT['prof']:
        A('s_waitcnt vmcnt(0)')
        stamp(A, 29)
        stamp_flush(A)


def kernel():
    A = Asm()
    A('s_cmp_ge_u32 s2, 256')
    A('s_cbranch_scc1 L_end')
    if OPT['prof']:
        A('s_memrealtime s[92:93]')
    A('s_load_dwordx4 s[4:7], s[0:1], 0')
    A('s_load_dwordx4 s[8:11], s[0:1], 16')
    A('s_load_dwordx4 s[12:15], s[0:1], 32')
    A('s_load_dwordx4 s[16:19], s[0:1], 48')
    A('v_and_b32 v1, 63, v0')
    if OPT['pfcode'] == 2:
        A('s_getpc_b64 %s', s(sT + 2, 2))
        A.label('L_pc')
        A('s_lshr_b32 %s, s2, 3', s(sT))
        A('s_lshl_b32 %s, %s, 10', s(sT), s(sT))
        A('v_lshl_add_u32 v2, v1, 7, %s', s(sT))
        A('v_min_u32 v2, L_end-L_pc, v2')
        A('s_mov_b64 exec, 0xff')
        A('global_load_dword v250, v2, %s', s(sT + 2, 2))
        A('s_mov_b64 exec, -1')
    A('v_lshrrev_b32 v2, 6, v0')
    A('v_readfirstlane_b32 %s, v2', s(sWave))
    if OPT['prof']:
        A('v_mov_b32 v255, 0')
        A('s_waitcnt lgkmcnt(0)')
        A('v_writelane_b32 v255, s92, 0')
        stamp(A, 58)
    if OPT['badmap']:
        A('s_and_b32 s3, s2, 31')
        A('s_lshl_b32 s3, s3, 3')
        A('s_lshr_b32 s2, s2, 5')
        A('s_or_b32 s2, s2, s3')
    A('s_and_b32 %s, s2, 7', s(sHg))
    A('s_bfe_u32 %s, s2, 0x30003', s(sB))
    A('s_lshr_b32 %s, s2, 6', s(sHh))
    if OPT['hx']:
        A('s_xor_b32 %s, %s, %d', s(sHh), s(sHh), OPT['hx'])
    A('s_lshl_b32 %s, %s, 2', s(sH), s(sHg))
    A('s_add_u32 %s, %s, %s', s(sH), s(sH), s(sHh))
    A('s_lshl_b32 %s, %s, 1', s(sRot), s(sHh))
    A('s_add_u32 %s, %s, %s', s(sRot), s(sRot), s(sB))
    A('s_cmp_lg_u32 %s, 3', s(sWave))
    A('s_cbranch_scc1 L_compute')
    loader(A)
    A.label('L_compute')
    compute(A)
    tail(A)
    A.label('L_end')
    A('s_endpgm')
    return A.lines


def main():
    k, n = pad_hazards(kernel())
    out = ['; %s : fused Q-proj + attention + output projection' % NAME,
           '; @launch grid=(256,1,1) block=(256,1,1) lds=163840',
           '.amdgcn_target "amdgcn-amd-amdhsa--gfx950"', '.text',
           '.globl %s_kernel\n.p2align 8\n.type %s_kernel,@function\n%s_kernel:' % (NAME, NAME, NAME)]
    out += k
    out.append('''.section .rodata,"a"
.p2align 6
.amdhsa_kernel %s_kernel
  .amdhsa_next_free_vgpr 512
  .amdhsa_next_free_sgpr 102
  .amdhsa_accum_offset 256
  .amdhsa_group_segment_fixed_size 0
  .amdhsa_kernarg_size 64
  .amdhsa_user_sgpr_count 2
  .amdhsa_user_sgpr_kernarg_segment_ptr 1
  .amdhsa_system_sgpr_workgroup_id_x 1
.end_amdhsa_kernel''' % NAME)
    open(sys.argv[1], 'w').write('\n'.join(out) + '\n')
    print('wrote', sys.argv[1], 'pads', n)


main()
```

```python
import sys
from asmlib import Asm, pad_hazards, v, a, s

OPT = dict(kv_pol='nt', w_pol='', x_pol='', wo_pol='', prof=0, la=8, law='8,11,14,18,21,21,21,21', pfcode=2, force_remote=0, early2=1, ovl=0, cap1=24, la1=10, slp1=0, slp2=0, noout=0, wb=0, badmap=0, probe_t=0, probe_k=0, probe_q=0, pl=0, touch=0, mgr1=0, off3=0, cx=2, sp=0, nl=32, rsl=1, nochain=1, plm=0xff, kpos=7, kn=5, tpos=3, upos=4, tk=0, tko=0, tkp='', capL=0, capLn=60, clsm=1, lk=6, wskip=0, o_pol='sc1', clean=0, vpoll=1, plp='', lim=0, ldma='', st='0',  xo=0, cap=9, cap0=0, hx=0, nowo=0, rg=1, pkpub=0, strict=0, pkfin=1, nfin=6, dsw=4, ws_off=0, out_pol='', p_pol='sc1')
for arg in sys.argv[2:]:
    k, val = arg.split('=')
    OPT[k] = int(val, 0) if isinstance(OPT[k], int) else val

NAME = 'standalone__mha_block_cached__near_ridge'
C_SCALE = 0x3e0293ee
MFMA = 'v_mfma_f32_32x32x16_bf16'
WS_O, WS_P, WS_F = OPT['ws_off'], OPT['ws_off'] + (6 << 20), OPT['ws_off'] + (12 << 20)
SPIN_MAX = 1 << 20
WSTR = 28672
KVS = [114688, 0, 65536]
RB = [65536, 90112, 114688]
ROWN = 139264
XFER = 53248
AX = 32
STAT = 49152

sX, sK, sV, sW, sWo, sO, sPo, sF, sOut, sDbg = 20, 24, 28, 32, 36, 56, 60, 64, 68, 72
sWave, sHg, sB, sHh, sH, sRot = 40, 41, 43, 44, 45, 46
sSlot, sCnt, sC = 47, 48, 50
sS0, sS1, sS2, sLocal, sSel = 52, 53, 54, 55, 42
sIss, sLand, sDone, sPst = 52, 53, 54, 94
sFo = 99
sT = 76
AWO = 128
vBl = 240
vSt = 241
lP = 234
vAcc = 4


class Lds:
    def __init__(self, A):
        self.A = A
        self.q = []

    def read(self, text, tag):
        self.A(text)
        self.q.append(tag)

    def need(self, *tags):
        idx = max([i for i, t in enumerate(self.q) if t in tags], default=-1)
        if idx < 0:
            return
        n = len(self.q) - 1 - idx
        self.A('s_waitcnt lgkmcnt(%d)', min(n, 15))
        self.q = self.q[idx + 1:]

    def drain(self):
        if self.q:
            self.A('s_waitcnt lgkmcnt(0)')
        self.q = []


def srd(A, d, base, off, size):
    if off is None:
        A('s_mov_b32 %s, %s', s(d), s(base))
        A('s_mov_b32 %s, %s', s(d + 1), s(base + 1))
    else:
        A('s_add_u32 %s, %s, %s', s(d), s(base), off)
        A('s_addc_u32 %s, %s, 0', s(d + 1), s(base + 1))
    A('s_mov_b32 %s, %s', s(d + 2), size if isinstance(size, str) else '0x%x' % size)
    A('s_mov_b32 %s, 0x20000', s(d + 3))


def stamp(A, idx, op='s_memrealtime'):
    if not OPT['prof'] or (OPT['prof'] == 9 and idx not in (0, 3, 25, 29, 58)):
        return
    if OPT['prof'] in (3, 4) and idx not in map(int, OPT['st'].split(',')):
        return
    A('%s s[90:91]', op)
    A('s_waitcnt lgkmcnt(0)')
    A('v_writelane_b32 v255, s90, %d', idx)


def stampd(A, base, mul, cnt=None, lvl=2):
    if OPT['prof'] != lvl:
        return
    A('s_memrealtime s[90:91]')
    A('s_mul_i32 m0, %s, %d', s(sCnt if cnt is None else cnt), mul)
    A('s_add_u32 m0, m0, %d', base)
    A('s_waitcnt lgkmcnt(0)')
    A('v_writelane_b32 v255, s90, m0')


def stamp_flush(A):
    if not OPT['prof']:
        return
    A('s_lshl_b32 s92, s2, 2')
    A('s_add_u32 s92, s92, %s', s(sWave))
    A('s_lshl_b32 s92, s92, 8')
    A('s_add_u32 s92, s92, 0x%x', 128 << 20)
    srd(A, 24, 18, 's92', 256)
    A('v_lshlrev_b32 v254, 2, v1')
    A('buffer_store_dword v255, v254, s[24:27], 0 offen')


def dma(A, voffs, srdreg, soff, pol):
    for j in range(4):
        A('buffer_load_dwordx4 %s, %s, %s offen offset:%d %s lds', v(voffs[j]), s(srdreg, 4), s(soff), 1024 * j, pol)


def tr_lane_base(A, vt, hrow, sigma):
    A('v_lshrrev_b32 %s, 5, v1', v(vt))
    A('v_mul_u32_u24 %s, %d, %s', v(vt), hrow, v(vt))
    A('v_bfe_u32 %s, v1, 2, 2', v(vt + 1))
    A('v_add_u32 %s, %s, %s', v(vt), v(vt), v(vt + 1))
    A('v_lshlrev_b32 %s, 8, %s', v(vt), v(vt))
    A('v_bfe_u32 %s, v1, 4, 1', v(vt + 2))
    A('v_lshl_add_u32 %s, %s, 5, %s', v(vt), v(vt + 2), v(vt))
    if sigma:
        A('v_and_b32 %s, 1, v1', v(vt + 2))
        A('v_lshl_add_u32 %s, %s, 4, %s', v(vt), v(vt + 2), v(vt))
        A('v_bfe_u32 %s, v1, 1, 1', v(vt + 2))
        A('v_lshl_add_u32 %s, %s, 3, %s', v(vt), v(vt + 2), v(vt))
    else:
        A('v_and_b32 %s, 3, v1', v(vt + 2))
        A('v_lshl_add_u32 %s, %s, 3, %s', v(vt), v(vt + 2), v(vt))


def tr_lane_bases(A, vdst, hrow, sigma, vt):
    tr_lane_base(A, vt, hrow, sigma)
    for mt in range(4):
        A('v_xor_b32 %s, %d, %s', v(vt + 2), mt, v(vt + 1))
        A('v_lshl_add_u32 %s, %s, 6, %s', v(vdst + mt), v(vt + 2), v(vt))


def wo_lane_base(A, vdst, vt):
    tr_lane_base(A, vt, 4, True)
    A('v_xor_b32 %s, %s, %s', v(vt + 2), s(sWave), v(vt + 1))
    A('v_lshl_add_u32 %s, %s, 6, %s', v(vdst), v(vt + 2), v(vt))


def wo_reads(A, j, half, vaddr):
    for f in range(4):
        for aa in range(2):
            A('ds_read_b64_tr_b16 %s, %s offset:%d', a(AWO + 32 * j + 16 * half + 4 * f + 2 * aa, 2), v(vaddr), (16 * f + 8 * aa) * 256)


sFl, sFb = 4, sF
sAt = 98
sMa, sMb = 96, 97


def check_land(A, tag):
    A('s_cmp_eq_u32 %s, 14', s(sLand))
    A('s_cbranch_scc1 L_cl_%s', tag)
    A('s_getreg_b32 %s, hwreg(HW_REG_IB_STS)', s(sT))
    A('s_and_b32 %s, %s, 15', s(sT + 1), s(sT))
    A('s_bfe_u32 %s, %s, 0x20016', s(sT), s(sT))
    A('s_lshl4_add_u32 %s, %s, %s', s(sT), s(sT), s(sT + 1))
    A('s_cmp_le_u32 %s, 48', s(sT))
    A('s_cselect_b32 %s, %s, 0', s(sT + 1), s(sMb))
    A('s_cmp_le_u32 %s, 24', s(sT))
    A('s_cselect_b32 %s, %s, %s', s(sT + 1), s(sMa), s(sT + 1))
    A('s_cmp_eq_u32 %s, 0', s(sT))
    A('s_cselect_b32 %s, %s, %s', s(sT + 1), s(sIss), s(sT + 1))
    A('s_andn2_b32 %s, %s, %s', s(sT), s(sT + 1), s(sLand))
    A('s_cbranch_scc0 L_cl_%s', tag)
    A('s_or_b32 %s, %s, %s', s(sLand), s(sLand), s(sT + 1))
    A('v_mov_b32 %s, %s', v(lP + 1), s(sLand))
    A('ds_write_b32 %s, %s offset:4', v(vSt), v(lP + 1))
    stampd(A, 50, 1, 93, 4)
    if OPT['prof'] == 4:
        A('s_add_u32 s93, s93, 1')
    A.label('L_cl_%s' % tag)


def burn(A, tag, n):
    if not n:
        return
    A('s_mov_b32 s98, %d', n)
    A.label('L_burn_' + tag)
    for i in range(14):
        A('v_mov_b32 v252, v253')
    A('s_sub_u32 s98, s98, 1')
    A('s_cmp_lg_u32 s98, 0')
    A('s_cbranch_scc1 L_burn_%s', tag)


def tail_srds(A):
    srd(A, sO, 18, '0x%x' % WS_O if WS_O else None, 256 * 24576)
    srd(A, sPo, 18, '0x%x' % WS_P, 256 * 24576)
    srd(A, sF, 18, '0x%x' % WS_F, 256 * 256)
    srd(A, sDbg, 16, None, 256)
    A('s_mul_i32 %s, %s, 98304', s(sT), s(sB))
    srd(A, sOut, 14, s(sT), 98304)
    A('v_lshlrev_b32 %s, 4, v1', v(vBl))
    A('v_mov_b32 %s, 0x%x', v(vSt), STAT)


STEPS = ['K0', 'K1', 'V0', 'K2', 'V1', 'K3', 'V2', 'V3']


def plan():
    groups = []
    steps = []
    k0 = [('k', 0, g, KVS[0] + 16384 + 4096 * g, 8) for g in range(3, 8)]
    for i in range(8):
        base = WSTR * (i % 5)
        if i == OPT['tpos']:
            groups.append(('t', 0, 0, -1 << 20, 0))
        if i == OPT['upos']:
            groups += [('u', 0, g, -1 << 20, 0) for g in range(OPT['tk'])]
        if i == OPT['kpos']:
            groups += k0[:OPT['kn']]
        if i < 8 - OPT['wskip']:
            for g in range(3):
                groups.append(('x', i, g, base + 16384 + 4096 * g, i))
            for g in range(4):
                groups.append(('w', i, g, base + 4096 * g, i))
        steps.append(['W%d' % i, len(groups) - 1, i if OPT['strict'] else i - 1])
    for t, nm in enumerate(STEPS):
        base = KVS[t % 3]
        kv = lambda g: (nm[0].lower(), int(nm[1]), g, base + 16384 + 4096 * g, 8 + t)
        wo = lambda g: ('o', t >> 1, 4 * (t & 1) + g, base + 4096 * g, 8 + t)
        if t == 0:
            seq = k0[OPT['kn'] if OPT['kpos'] < 8 else 0:] + [kv(0), wo(0), kv(1), wo(1), kv(2), wo(2), wo(3)]
        elif t == 7:
            seq = [wo(g) for g in range(4)] + [kv(g) for g in range(8)]
        else:
            seq = []
            for q in range(4):
                seq += [wo(q), kv(2 * q), kv(2 * q + 1)]
        if OPT['nowo']:
            seq = [x for x in seq if x[0] != 'o']
        groups += seq
        if t < 7:
            steps.append([nm, len(groups) - 1, 8 + t])
        else:
            e = len(groups) - 1
            for q in range(4):
                steps.append(['V3' + 'abcd'[q], e - 6 + 2 * q, 15])
    return steps, groups


def loader(A):
    lX, lW, lK, lV, lWo, lT, lA, lZ = 200, 204, 208, 212, 216, 220, 228, 196
    A('v_lshrrev_b32 %s, 4, v1', v(lT))
    A('v_and_b32 %s, 15, v1', v(lT + 1))
    A('v_lshrrev_b32 %s, 3, v1', v(lT + 3))
    A('v_and_b32 %s, 7, v1', v(lT + 4))
    A('v_xor_b32 %s, %s, %s', v(lT + 4), v(lT + 4), v(lT))
    A('v_lshlrev_b32 %s, 4, %s', v(lT + 4), v(lT + 4))
    A('v_lshl_add_u32 %s, %s, 10, %s', v(lX), v(lT + 3), v(lT + 4))
    A('v_xor_b32 %s, 64, %s', v(lX + 1), v(lX))
    A('v_add_u32 %s, 0x%x, %s', v(lX + 2), 2 * 7168, v(lX))
    A('v_add_u32 %s, 0x%x, %s', v(lX + 3), 3 * 7168, v(lX + 1))
    A('v_add_u32 %s, 0x%x, %s', v(lX + 1), 7168, v(lX + 1))
    A('v_lshlrev_b32 %s, 2, %s', v(lT + 2), v(lT))
    A('v_xor_b32 %s, %s, %s', v(lT + 2), v(lT + 2), v(lT + 1))
    A('v_lshlrev_b32 %s, 4, %s', v(lT + 2), v(lT + 2))
    A('v_lshl_add_u32 %s, %s, 13, %s', v(lW), v(lT), v(lT + 2))
    for j in range(1, 4):
        A('v_add_u32 %s, 0x%x, %s', v(lW + j), j * (32768 - 1024), v(lW))
    A('s_mul_i32 %s, %s, 98304', s(sT), s(sB))
    A('s_lshl_b32 %s, %s, 8', s(sT + 1), s(sH))
    A('s_sub_u32 %s, 0x400000, %s', s(sT + 2), s(sT + 1))
    A('s_waitcnt lgkmcnt(0)')
    srd(A, sX, 4, s(sT), 98304)
    srd(A, sW, 10, s(sT + 1), s(sT + 2))
    stamp(A, 30)

    def setup2():
        A('s_lshl_b32 %s, %s, 5', s(sT), s(sB))
        A('s_add_u32 %s, %s, %s', s(sT), s(sT), s(sH))
        A('s_lshl_b32 %s, %s, 17', s(sT), s(sT))
        srd(A, sK, 6, s(sT), 131072)
        srd(A, sV, 8, s(sT), 131072)
        A('s_lshl_b32 %s, %s, 19', s(sT), s(sHg))
        A('s_xor_b32 %s, %s, %d', s(sT + 1), s(sHh), OPT['cx'])
        A('s_lshl_b32 %s, %s, %d', s(sT + 1), s(sT + 1), 8 - OPT['sp'])
        A('s_add_u32 %s, %s, %s', s(sT), s(sT), s(sT + 1))
        A('s_sub_u32 %s, 0x80000, %s', s(sT + 2), s(sT + 1))
        srd(A, sWo, 12, s(sT), s(sT + 2))
        A('v_lshl_add_u32 %s, %s, 8, %s', v(lV), v(lT), v(lT + 2))
        if OPT['sp'] == 0:
            A('v_lshl_add_u32 %s, %s, 10, %s', v(lWo), v(lT), v(lT + 2))
        else:
            if OPT['sp'] == 1:
                A('v_and_b32 %s, 0x7f, %s', v(lT + 3), v(lT + 2))
                A('v_lshrrev_b32 %s, 7, %s', v(lT + 4), v(lT + 2))
                A('v_lshl_add_u32 %s, %s, 9, %s', v(lT + 3), v(lT + 4), v(lT + 3))
            else:
                A('v_and_b32 %s, 0x3f, %s', v(lT + 3), v(lT + 2))
                A('v_lshrrev_b32 %s, 6, %s', v(lT + 4), v(lT + 2))
                A('v_lshl_add_u32 %s, %s, 8, %s', v(lT + 3), v(lT + 4), v(lT + 3))
            A('v_lshl_add_u32 %s, %s, 10, %s', v(lWo), v(lT), v(lT + 3))
        for j in range(1, 4):
            A('v_add_u32 %s, 0x%x, %s', v(lWo + j), j * (4096 - 1024), v(lWo))
        for j in range(4):
            A('v_add_u32 %s, %d, %s', v(lT + 3), 4 * j, v(lT))
            A('v_xor_b32 %s, %s, %s', v(lT + 3), v(lT + 3), v(lT + 1))
            A('v_lshlrev_b32 %s, 4, %s', v(lT + 3), v(lT + 3))
            A('v_lshl_add_u32 %s, %s, 8, %s', v(lK + j), v(lT), v(lT + 3))
        wo_lane_base(A, lA, lT)
        tail_srds(A)
        if OPT['capL']:
            A('s_and_b32 vcc_lo, %s, %d', s(sB), OPT['clsm'])
            A('s_mov_b32 vcc_hi, 0')
        if OPT['rg']:
            A('s_lshl_b32 %s, %s, 12', s(sT + 8), s(sB))
        else:
            A('s_mov_b32 %s, 0', s(sT + 8))
        A('s_and_b32 %s, s2, 63', s(sT + 1))
        for j in range(1, 4):
            A('%s %s, %s, %d', 's_xor_b32' if OPT['xo'] else 's_add_u32', s(sT), s(sHh), j)
            A('s_and_b32 %s, %s, 3', s(sT), s(sT))
            if OPT['hx']:
                A('s_xor_b32 %s, %s, %d', s(sT), s(sT), OPT['hx'])
            A('s_lshl_b32 %s, %s, 6', s(sT), s(sT))
            A('s_add_u32 %s, %s, %s', s(sT), s(sT), s(sT + 1))
            A('s_mul_i32 %s, %s, 24576', s(sT + 10 + j), s(sT))
            A('s_lshl_b32 %s, %s, 8', s(sFo + j - 1), s(sT))
        A('v_lshrrev_b32 %s, 2, v1', v(lP))
        A('v_min_u32 %s, 2, %s', v(lP), v(lP))
        A('v_add_u32 %s, 1, %s', v(lP), v(lP))
        A('%s %s, %s, %s', 'v_xor_b32' if OPT['xo'] else 'v_add_u32', v(lP), s(sHh), v(lP))
        A('v_and_b32 %s, 3, %s', v(lP), v(lP))
        if OPT['hx']:
            A('v_xor_b32 %s, %d, %s', v(lP), OPT['hx'], v(lP))
        A('v_lshlrev_b32 %s, 6, %s', v(lP), v(lP))
        A('v_add_u32 %s, %s, %s', v(lP), s(sT + 1), v(lP))
        A('v_lshlrev_b32 %s, 8, %s', v(lP), v(lP))
        A('v_and_b32 %s, 3, v1', v(lP + 1))
        A('v_min_u32 %s, 2, %s', v(lP + 1), v(lP + 1))
        A('v_lshl_add_u32 %s, %s, 2, %s', v(lP), v(lP + 1), v(lP))
        A('v_mov_b64 %s, 0', v(lP + 2, 2))
        A('v_mov_b64 %s, 0', v(lZ, 2))
        A('v_mov_b64 %s, 0', v(lZ + 2, 2))
        A('s_lshl_b32 %s, s2, 8', s(sT))
        A('s_mov_b64 exec, 0xffff')
        A('buffer_store_dwordx4 %s, %s, %s, %s offen sc1', v(lZ, 4), v(vBl), s(sF, 4), s(sT))
        A('s_mov_b64 exec, -1')

    steps, groups = plan()
    st = dict(m0=None, key=None, so=None)
    sXo, sWq, sG, sOo, sGk, sGv, sRg = sT + 3, sT + 4, sT + 5, sT + 6, sT + 7, sT + 7, sT + 8

    def issue(gi):
        kind, j, g, lds, _ = groups[gi]
        if kind == 't':
            A('s_lshl_b32 %s, %s, 19', s(sT), s(sHg))
            A('s_lshr_b32 %s, s2, 3', s(sT + 1))
            A('s_lshl_b32 %s, %s, 14', s(sT + 1), s(sT + 1))
            A('s_add_u32 %s, %s, %s', s(sT), s(sT), s(sT + 1))
            A('v_lshl_add_u32 v251, v1, 7, %s', s(sT))
            A('v_add_u32 v252, 0x2000, v251')
            A('global_load_dword v250, v251, s[12:13]')
            A('global_load_dword v250, v252, s[12:13]')
            return
        if kind == 'u':
            if g == 0:
                A('v_lshlrev_b32 v253, 7, v1')
            A('s_mov_b32 %s, 0x%x', s(sT), OPT['tko'] + 8192 * g)
            A('buffer_load_dword v250, v253, %s, %s offen %s', s(sK, 4), s(sT), OPT['tkp'])
            return
        if OPT['cap'] and steps[7][1] + OPT['cap0'] < gi < len(groups) - OPT['cap1']:
            A('s_waitcnt vmcnt(%d)', 4 * (OPT['cap'] - 1))
        if OPT['capL'] and 56 <= gi < 56 + OPT['capLn']:
            A('s_cbranch_vccz L_cl%d', gi)
            A('s_waitcnt vmcnt(%d)', 4 * (OPT['capL'] - 1))
            A.label('L_cl%d' % gi)
        if st['m0'] is not None and 0 < lds - st['m0'] < 32768:
            A('s_addk_i32 m0, 0x%x', lds - st['m0'])
        else:
            A('s_mov_b32 m0, 0x%x', lds)
        st['m0'] = lds
        if kind == 'x':
            if g == 0:
                A('s_add_u32 %s, %s, %d', s(sT), s(sRot), j)
                A('s_and_b32 %s, %s, 7', s(sT), s(sT))
                A('s_lshl_b32 %s, %s, 7', s(sXo), s(sT))
                A('s_lshl_b32 %s, %s, 19', s(sWq), s(sT))
            else:
                A('s_add_u32 %s, %s, 0x8000', s(sXo), s(sXo))
            dma(A, [lX, lX + 1, lX + 2, lX + 3], sX, sXo, OPT['x_pol'])
        elif kind == 'w':
            if g:
                A('s_add_u32 %s, %s, 0x20000', s(sWq), s(sWq))
            dma(A, [lW, lW + 1, lW + 2, lW + 3], sW, sWq, OPT['w_pol'])
        elif kind == 'o':
            if g == 0:
                A('%s %s, %s, %d', 's_xor_b32' if OPT['xo'] else 's_add_u32', s(sT), s(sHh), j)
                A('s_and_b32 %s, %s, 3', s(sT), s(sT))
                A('s_lshl_b32 %s, %s, 17', s(sOo), s(sT))
            else:
                A('s_addk_i32 %s, 0x4000', s(sOo))
            dma(A, [lWo, lWo + 1, lWo + 2, lWo + 3], sWo, sOo, OPT['wo_pol'])
        else:
            sR = sGk if kind == 'k' else sGv
            if st.get(kind) == (j, g - 1):
                A('s_addk_i32 %s, 0x1000', s(sR))
            else:
                A('s_add_u32 %s, %s, 0x%x', s(sR), s(sRg), 4096 * g)
            st[kind] = (j, g)
            A('s_and_b32 %s, %s, 0x7000', s(sG), s(sR))
            if j:
                A('s_or_b32 %s, %s, 0x%x', s(sG), s(sG), j * 32768)
            if kind == 'k':
                dma(A, [lK, lK + 1, lK + 2, lK + 3], sK, sG, OPT['kv_pol'])
            else:
                dma(A, [lV] * 4, sV, sG, OPT['kv_pol'])

    def free(gi, cert):
        lds = groups[gi][3]
        return all(not (p[3] < lds + 4096 and lds < p[3] + 4096) or p[4] < cert for p in groups[:gi])

    nxt = 0
    cert = 0
    did2 = False
    pend = False
    for i, (name, e, c) in enumerate(steps):
        la = int(OPT['law'].split(',')[i]) if i < 8 else OPT['la1'] if (OPT['la1'] and i >= 13) else OPT['la']
        while nxt < len(groups) and nxt <= e + la and free(nxt, cert):
            if nxt == 11 and not did2:
                stamp(A, 31)
                setup2()
                did2 = True
            issue(nxt)
            nxt += 1
        assert nxt > e, (name, nxt, e)
        A('s_waitcnt vmcnt(%d)%s', min(60, sum({'t': 2, 'u': 1}.get(x[0], 4) for x in groups[e + 1:nxt])), ' lgkmcnt(0)' if pend else '')
        pend = False
        if not 2 <= i <= 5:
            stamp(A, 2 + i)
        A('s_barrier')
        cert = max(cert, c)
        if 8 <= i <= 15:
            t = i - 8
            A('v_add_u32 %s, 0x%x, %s', v(lA + 1), KVS[t % 3], v(lA))
            wo_reads(A, t >> 1, t & 1, lA + 1)
            pend = True
        if name == 'W1':
            assert e > 11
            A('s_getreg_b32 %s, hwreg(HW_REG_XCC_ID, 0, 4)', s(sT))
            A('s_add_u32 %s, %s, 1', s(sT), s(sT))
            A('s_and_b32 %s, s2, 3', s(sT + 1))
            A('s_lshl_b32 %s, %s, 3', s(sT + 1), s(sT + 1))
            A('s_lshl_b32 %s, %s, %s', s(sAt), s(sT), s(sT + 1))
            A('s_and_b32 %s, s2, 0xfc', s(sT + 1))
            A('s_atomic_or %s, s[16:17], %s', s(sAt), s(sT + 1))
        if name == 'K0':
            A('ds_write_b64 %s, %s', v(vSt), v(lP + 2, 2))
            A('ds_write_b32 %s, %s offset:12', v(vSt), v(lP + 2))
        if name == 'K2':
            A('s_and_b32 %s, s2, 0xf8', s(sT))
            A('s_load_dwordx2 %s, s[16:17], %s', s(sFl + 4, 2), s(sT))
            A('s_and_b32 %s, s2, 0x3c', s(sT))
            for k in range(4):
                A('s_load_dword %s, s[16:17], %s', s(sFl + k), s(sT))
                if k < 3:
                    A('s_add_u32 %s, %s, 64', s(sT), s(sT))
        if name == 'V1':
            A('s_mov_b32 %s, 0', s(sT + 2))
            A.label('L_chk')
            A('s_and_b32 %s, s2, 3', s(sT))
            A('s_lshl_b32 %s, %s, 3', s(sT), s(sT))
            A('s_or_b32 %s, %s, 0x80000', s(sT), s(sT))
            for k in range(4):
                A('s_bfe_u32 %s, %s, %s', s(sFl + k), s(sFl + k), s(sT))
            A('s_min_u32 %s, %s, %s', s(sT), s(sFl), s(sFl + 1))
            A('s_min_u32 %s, %s, %s', s(sT + 1), s(sFl + 2), s(sFl + 3))
            A('s_min_u32 %s, %s, %s', s(sT), s(sT), s(sT + 1))
            A('s_add_u32 %s, %s, 0x7f7f7f7f', s(sFl + 4), s(sFl + 4))
            A('s_add_u32 %s, %s, 0x7f7f7f7f', s(sFl + 5), s(sFl + 5))
            A('s_and_b32 %s, %s, %s', s(sFl + 4), s(sFl + 4), s(sFl + 5))
            A('s_or_b32 %s, %s, 0x7f7f7f7f', s(sFl + 4), s(sFl + 4))
            A('s_cmp_eq_u32 %s, -1', s(sFl + 4))
            A('s_cselect_b32 %s, %s, 0', s(sT), s(sT))
            A('s_cmp_lg_u32 %s, 0', s(sT))
            A('s_cbranch_scc1 L_chk_ok')
            A('v_lshlrev_b32 %s, 2, v1', v(lZ))
            A('buffer_load_dword %s, %s, %s, 0 offen sc1', v(lZ + 1), v(lZ), s(sDbg, 4))
            A('s_bfe_u32 %s, s2, 0x40002', s(sT))
            A('s_waitcnt vmcnt(0)')
            for k in range(4):
                A('v_readlane_b32 %s, %s, %s', s(sFl + k), v(lZ + 1), s(sT))
                A('s_add_u32 %s, %s, 16', s(sT), s(sT))
            A('s_lshr_b32 %s, s2, 3', s(sT))
            A('s_lshl_b32 %s, %s, 1', s(sT), s(sT))
            A('v_readlane_b32 %s, %s, %s', s(sFl + 4), v(lZ + 1), s(sT))
            A('s_add_u32 %s, %s, 1', s(sT), s(sT))
            A('v_readlane_b32 %s, %s, %s', s(sFl + 5), v(lZ + 1), s(sT))
            A('s_add_u32 %s, %s, 1', s(sT + 2), s(sT + 2))
            A('s_cmp_lt_u32 %s, 0x%x', s(sT + 2), SPIN_MAX)
            A('s_cbranch_scc1 L_chk')
            A.label('L_chk_ok')
            if OPT['prof']:
                A('v_writelane_b32 v255, %s, 59', s(sT + 2))
            for k in range(1, 4):
                A('s_xor_b32 %s, %s, %s', s(sFl + k), s(sFl + k), s(sFl))
            A('s_or_b32 %s, %s, %s', s(sT), s(sFl + 1), s(sFl + 2))
            A('s_or_b32 %s, %s, %s', s(sLocal), s(sT), s(sFl + 3))
            if OPT['force_remote']:
                A('s_mov_b32 %s, 1', s(sLocal))
            A('v_mov_b32 %s, %s', v(lZ), s(sLocal))
            A('ds_write_b32 %s, %s offset:8', v(vSt), v(lZ))
    assert nxt == len(groups)

    for r in (sIss, sLand, sMa, sMb):
        A('s_mov_b32 %s, 0', s(r))
    A('s_mov_b32 %s, %d', s(sDone), 1 if OPT['off3'] else 0)
    if OPT['prof'] == 4:
        A('s_mov_b32 s42, 0')
        A('s_mov_b32 s93, 0')
    A('s_branch L_tail')


def qproj(A, vacc, vWa, vBa, vWb, vBb):
    L = Lds(A)
    FA = [[0 + 16 * p + 4 * mt for mt in range(4)] for p in range(2)]
    FB = [32, 36]

    def reads(ks):
        p = ks & 1
        out = [('ds_read_b128 %s, %s offset:%d' % (a(FB[p], 4), v(vBa + ks), 16384), ('B', ks))]
        for mt in range(4):
            for aa in range(2):
                out.append(('ds_read_b64_tr_b16 %s, %s offset:%d' % (a(FA[p][mt] + 2 * aa, 2), v(vWa + mt), (16 * ks + 4 * aa) * 256), ('A', ks, mt)))
        return out

    def addr_w():
        return ['v_add_u32 %s, %s, %s' % (v(vWa + mt), s(sSlot), v(vWb + mt)) for mt in range(4)]

    def addr_b():
        return ['v_add_u32 %s, %s, %s' % (v(vBa), s(sSlot), v(vBb))] + ['v_xor_b32 %s, %d, %s' % (v(vBa + k), 32 * k, v(vBa)) for k in range(1, 4)]

    def mfma(ks, mt):
        p = ks & 1
        L.need(('B', ks), ('A', ks, mt))
        A('%s %s, %s, %s, %s', MFMA, v(vacc + 16 * mt, 16), a(FA[p][mt], 4), a(FB[p], 4), v(vacc + 16 * mt, 16))

    A('s_mov_b32 %s, 0', s(sCnt))
    for o in addr_w() + addr_b():
        A(o)
    A('s_barrier')
    for t, tag in reads(0):
        L.read(t, tag)
    q0 = list(L.q)
    A.label('L_qp')
    for ks in range(3):
        nxt = reads(ks + 1)
        for mt in range(4):
            mfma(ks, mt)
            for t, tag in nxt[3 * mt:3 * mt + 3]:
                L.read(t, tag)
            if ks == 2 and mt == 3:
                A('s_add_u32 %s, %s, 0x%x', s(sSlot), s(sSlot), WSTR)
                A('s_cmp_eq_u32 %s, 0x%x', s(sSlot), WSTR * 5)
                A('s_cselect_b32 %s, 0, %s', s(sSlot), s(sSlot))
                for o in addr_w()[:2] + addr_b()[:1]:
                    A(o)
    qs = list(L.q)
    A('s_add_u32 %s, %s, 1', s(sCnt), s(sCnt))
    A('s_cmp_eq_u32 %s, 8', s(sCnt))
    A('s_cbranch_scc1 L_qp_last')
    nxt = reads(0)
    extra = [addr_w()[2:], addr_b()[1:], [], []]
    for mt in range(4):
        mfma(3, mt)
        if mt == 0:
            if OPT['strict']:
                L.drain()
            stampd(A, 32, 2)
            A('s_barrier')
            stampd(A, 33, 2)
        for t, tag in nxt[3 * mt:3 * mt + 3]:
            L.read(t, tag)
        for o in extra[mt]:
            A(o)
    assert L.q == q0, (L.q, q0)
    A('s_branch L_qp')
    A.label('L_qp_last')
    L.q = qs
    for mt in range(4):
        mfma(3, mt)


def compute(A):
    vQ, vO, vS, vP = 4, 36, 100, 164
    vWb, vXb, vWa, vXa = 196, 200, 201, 205
    vKb, vKa, vVb, vVa = 209, 210, 218, 222
    vM, vL, vT, vOb, vOa, vD, vO3 = 226, 228, 230, 238, 239, 244, 246
    if OPT['pfcode'] == 1:
        A('s_cmp_lg_u32 %s, 1', s(sWave))
        A('s_cbranch_scc1 L_nopf')
        A('s_getpc_b64 %s', s(sT + 2, 2))
        A.label('L_pc')
        A('s_sub_u32 %s, %s, L_pc-%s_kernel', s(sT + 2), s(sT + 2), NAME)
        A('s_subb_u32 %s, %s, 0', s(sT + 3), s(sT + 3))
        A('s_lshr_b32 %s, s2, 3', s(sT))
        A('s_lshl_b32 %s, %s, 10', s(sT), s(sT))
        A('v_lshl_add_u32 %s, v1, 7, %s', v(vT), s(sT))
        A('v_min_u32 %s, L_end-%s_kernel, %s', v(vT), NAME, v(vT))
        A('s_mov_b64 exec, 0xff')
        A('global_load_dword v250, %s, %s', v(vT), s(sT + 2, 2))
        A('s_mov_b64 exec, -1')
        A.label('L_nopf')
    A('s_waitcnt lgkmcnt(0)')
    tail_srds(A)
    tr_lane_bases(A, vWb, 8, True, vT)
    A('v_and_b32 %s, 31, v1', v(vT))
    A('s_lshl_b32 %s, %s, 5', s(sT), s(sWave))
    A('v_add_u32 %s, %s, %s', v(vT), s(sT), v(vT))
    A('v_bfe_u32 %s, %s, 1, 3', v(vT + 1), v(vT))
    A('v_lshrrev_b32 %s, 5, v1', v(vT + 2))
    A('v_xor_b32 %s, %s, %s', v(vT + 1), v(vT + 1), v(vT + 2))
    A('v_lshlrev_b32 %s, 4, %s', v(vT + 1), v(vT + 1))
    A('v_lshl_add_u32 %s, %s, 7, %s', v(vXb), v(vT), v(vT + 1))
    A('v_and_b32 %s, 31, v1', v(vT))
    A('v_and_b32 %s, 15, v1', v(vT + 1))
    A('v_xor_b32 %s, %s, %s', v(vT + 1), v(vT + 1), v(vT + 2))
    A('v_lshlrev_b32 %s, 4, %s', v(vT + 1), v(vT + 1))
    A('v_lshl_add_u32 %s, %s, 8, %s', v(vKb), v(vT), v(vT + 1))
    A('v_add_u32 %s, 0x4000, %s', v(vKb), v(vKb))
    tr_lane_bases(A, vVb, 4, False, vT)
    for mt in range(4):
        A('v_add_u32 %s, 0x4000, %s', v(vVb + mt), v(vVb + mt))
    wo_lane_base(A, vOb, vT)
    A('v_xor_b32 %s, 3, %s', v(vT + 2), v(vT + 1))
    A('v_lshl_add_u32 %s, %s, 6, %s', v(vO3), v(vT + 2), v(vT))
    for i in range(0, 64, 2):
        A('v_mov_b64 %s, 0', v(vS + i, 2))
    for i in range(0, 64, 2):
        A('v_mov_b64 %s, 0', v(vO + i, 2))
    A('v_mov_b32 %s, 0xff800000', v(vM))
    A('v_mov_b64 %s, 0', v(vL, 2))
    A('v_mov_b32 %s, 0', v(vT + 4))
    A('s_mov_b32 %s, 0x%x', s(sC), C_SCALE)
    A('s_mov_b32 %s, 0x%x', s(sC + 1), C_SCALE)
    A('s_mov_b32 %s, 0', s(sSlot))
    for i in range(3):
        A('s_mov_b32 %s, 0x%x', s(sS0 + i), KVS[i])
    stamp(A, 1)
    stamp(A, 60, 's_memtime')
    qproj(A, vS, vWa, vXa, vWb, vXb)
    burn(A, 'q', OPT['probe_q'])
    stamp(A, 2)
    stamp(A, 61, 's_memtime')
    for i in range(32):
        A('v_cvt_pk_bf16_f32 %s, %s, %s', v(vQ + i), v(vS + 2 * i), v(vS + 2 * i + 1))

    L = Lds(A)
    vAl = vT + 4
    A('s_mov_b32 %s, 0', s(sCnt))
    A.label('L_att')
    A('v_add_u32 %s, %s, %s', v(vKa), s(sS0), v(vKb))
    for k in range(1, 8):
        A('v_xor_b32 %s, %d, %s', v(vKa + k), 32 * k, v(vKa))
    A('v_add_u32 %s, %s, %s', v(vOa), s(sS0), v(vOb))
    A('v_add_u32 %s, %s, %s', v(vO3 + 1), s(sS0), v(vO3))
    stampd(A, 6, 4)
    A('s_barrier')
    stampd(A, 7, 4)
    KF = [[32 * p + 4 * k for k in range(8)] for p in range(2)]

    def kread(t, k):
        return ('ds_read_b128 %s, %s offset:%d' % (a(KF[t & 1][k], 4), v(vKa + k), 8192 * t), ('K', t, k))

    for k in range(8):
        L.read(*kread(0, k))
    vMx = vT

    def max_ops(t):
        r = vS + 16 * t
        ops = []
        if t == 0:
            ops.append('v_max3_f32 %s, %s, %s, %s' % (v(vMx), v(r), v(r + 1), v(vM)))
            rest = range(2, 16, 2)
        else:
            rest = range(0, 16, 2)
        for i in rest:
            ops.append('v_max3_f32 %s, %s, %s, %s' % (v(vMx), v(r + i), v(r + i + 1), v(vMx)))
        return ops

    resc = ['v_mul_f32 %s, %s, %s' % (v(vO + i), v(vAl), v(vO + i)) for i in range(64)]
    for t in range(4):
        mo = max_ops(t - 1) if t > 0 else []
        for k in range(8):
            L.need(('K', t, k))
            A('%s %s, %s, %s, %s', MFMA, v(vS + 16 * t, 16), a(KF[t & 1][k], 4), v(vQ + 4 * k, 4), '0' if k == 0 else v(vS + 16 * t, 16))
            if t < 3:
                L.read(*kread(t + 1, k))
            if k >= 4 and mo:
                for o in mo[:2]:
                    A(o)
                mo = mo[2:]
                n = 1 if t == 1 else 0
            else:
                n = 3
            for o in resc[:n]:
                A(o)
            resc = resc[n:]
        assert not mo
    assert not resc

    def wo_switch(tag, cases):
        for n, (c, t) in enumerate(cases):
            last = n == len(cases) - 1
            if not last:
                A('s_cmp_lg_u32 %s, %d', s(sCnt), c)
                A('s_cbranch_scc1 L_wo%s%d', tag, n + 1)
            wo_reads(A, t >> 1, t & 1, vOa)
            if OPT['off3'] and t < 2:
                for f in range(4):
                    for aa in range(2):
                        A('ds_read_b64_tr_b16 %s, %s offset:%d', a(96 + 16 * t + 4 * f + 2 * aa, 2), v(vO3 + 1), (16 * f + 8 * aa) * 256)
            if not last:
                A('s_branch L_wo%sdone', tag)
                A.label('L_wo%s%d' % (tag, n + 1))
        A.label('L_wo%sdone' % tag)

    wo_switch('a', [(c, STEPS.index('K%d' % c)) for c in range(4)])
    for o in max_ops(3):
        A(o)
    A('v_mov_b32 %s, %s', v(vT + 1), v(vMx))
    A('v_permlane32_swap_b32 %s, %s', v(vT + 1), v(vMx))
    A('v_max_f32 %s, %s, %s', v(vMx), v(vMx), v(vT + 1))
    A('v_mul_f32 %s, %s, %s', v(vT + 2), s(sC), v(vMx))
    A('v_fma_f32 %s, %s, %s, -%s', v(vT + 3), v(vM), s(sC), v(vT + 2))
    A('v_exp_f32 %s, %s', v(vAl), v(vT + 3))
    A('v_mov_b32 %s, %s', v(vM), v(vMx))
    burn(A, 'k', OPT['probe_k'])
    fma = lambda i: A('v_pk_fma_f32 %s, %s, %s, %s op_sel_hi:[1,1,0] neg_lo:[0,0,1] neg_hi:[0,0,1]', v(vS + i, 2), v(vS + i, 2), s(sC, 2), v(vT + 2, 2))

    NL = OPT['nl']

    def half(lo, hi, dst, filler=()):
        filler = list(filler)
        fma(lo)
        for o in filler[:1]:
            A(o)
        for i in range(lo, hi, 2):
            if i + 2 < hi:
                fma(i + 2)
            A('v_exp_f32 %s, %s', v(vS + i), v(vS + i))
            A('v_exp_f32 %s, %s', v(vS + i + 1), v(vS + i + 1))
            if i > lo:
                A('v_pk_add_f32 %s, %s, %s', v(vL, 2), v(vL, 2), v(vS + i - 2, 2))
                A('v_cvt_pk_bf16_f32 %s, %s, %s', v(dst + (i - lo) // 2 - 1), v(vS + i - 2), v(vS + i - 1))
        for o in filler[1:]:
            A(o)
        A('v_pk_add_f32 %s, %s, %s', v(vL, 2), v(vL, 2), v(vS + hi - 2, 2))
        A('v_cvt_pk_bf16_f32 %s, %s, %s', v(dst + (hi - lo) // 2 - 1), v(vS + hi - 2), v(vS + hi - 1))

    half(NL, 64, vS + NL, ['v_pk_mul_f32 %s, %s, %s op_sel_hi:[1,0]' % (v(vL, 2), v(vL, 2), v(vAl, 2))] +
         ['v_add_u32 %s, %s, %s' % (v(vVa + mt), s(sS1), v(vVb + mt)) for mt in range(4)])
    A('v_add_u32 %s, %s, %s', v(vOa), s(sS1), v(vOb))
    A('s_waitcnt lgkmcnt(0)')
    A('s_cmp_eq_u32 %s, 0', s(sCnt))
    A('s_cbranch_scc1 L_first')
    fma1 = lambda i: A('v_fma_f32 %s, %s, %s, -%s', v(vS + i), v(vS + i), s(sC), v(vT + 2))
    fma1(0)
    stampd(A, 8, 4)
    A('s_barrier')
    stampd(A, 9, 4)
    VF = [[64 + 16 * p + 4 * mt for mt in range(4)] for p in range(2)]

    def vread(p, mt, buf=None):
        b = VF[p & 1][mt] if buf is None else buf
        return [('ds_read_b64_tr_b16 %s, %s offset:%d' % (a(b + 2 * aa, 2), v(vVa + mt), (16 * p + 8 * aa) * 256), ('V', p, mt)) for aa in range(2)]

    def pv(p, mt, buf=None):
        b = VF[p & 1][mt] if buf is None else buf
        L.need(('V', p, mt))
        A('%s %s, %s, %s, %s', MFMA, v(vO + 16 * mt, 16), a(b, 4), v(vP + 4 * p, 4), v(vO + 16 * mt, 16))

    def pv_range(p0, p1, beside=None, first=None):
        n0, n1, LK = 4 * p0, 4 * p1, OPT['lk']
        for n in range(n0, min(n0 + LK, n1)):
            for x in vread(n >> 2, n & 3):
                L.read(*x)
        if first:
            first()
        for n in range(n0, n1):
            pv(n >> 2, n & 3)
            if n + LK < n1:
                for x in vread((n + LK) >> 2, (n + LK) & 3):
                    L.read(*x)
            if beside:
                beside(n)

    def late1(g):
        if g < NL:
            A('v_exp_f32 %s, %s', v(vS + g), v(vS + g))
        if g + 1 < NL:
            fma1(g + 1)
        if 1 <= g <= NL:
            A('v_add_f32 %s, %s, %s', v(vL + ((g - 1) & 1)), v(vS + g - 1), v(vL + ((g - 1) & 1)))
        if 3 <= g <= NL + 1 and g & 1:
            q = (g - 3) // 2
            A('v_cvt_pk_bf16_f32 %s, %s, %s', v(vP + q), v(vS + 2 * q), v(vS + 2 * q + 1))

    def late(n):
        for g in range(NL + 2):
            if min(33, g * 32 // NL) == n:
                late1(g)

    pv_range(0, 8, late)
    assert not L.q
    wo_switch('b', [(c, STEPS.index('V%d' % (c - 1))) for c in (1, 2, 3)])
    late(32)
    late(33)
    A('s_mov_b32 %s, %s', s(sT), s(sS0))
    A('s_mov_b32 %s, %s', s(sS0), s(sS2))
    A('s_mov_b32 %s, %s', s(sS2), s(sS1))
    A('s_mov_b32 %s, %s', s(sS1), s(sT))
    A('s_branch L_join')
    A.label('L_first')
    half(0, NL, vP, ['s_nop 0', 's_nop 0'])
    A('s_mov_b32 %s, %s', s(sT), s(sS0))
    A('s_mov_b32 %s, %s', s(sS0), s(sS1))
    A('s_mov_b32 %s, %s', s(sS1), s(sS2))
    A('s_mov_b32 %s, %s', s(sS2), s(sT))
    A.label('L_join')
    for i in range(0, (64 - NL) // 2, 2):
        A('v_mov_b64 %s, %s', v(vP + NL // 2 + i, 2), v(vS + NL + i, 2))
    A('s_add_u32 %s, %s, 1', s(sCnt), s(sCnt))
    A('s_cmp_lt_u32 %s, 4', s(sCnt))
    A('s_waitcnt lgkmcnt(0)')
    A('s_cbranch_scc1 L_att')

    def final_rescale():
        for i in range(0, 64, 2):
            A('v_pk_mul_f32 %s, %s, %s op_sel_hi:[1,0]', v(vO + i, 2), v(vO + i, 2), v(vAl, 2))

    if not OPT['rsl']:
        final_rescale()
    for mt in range(4):
        A('v_add_u32 %s, %s, %s', v(vVa + mt), s(sS0), v(vVb + mt))
    A('v_add_u32 %s, %s, %s', v(vOa), s(sS0), v(vOb))
    stamp(A, 20)
    A('s_barrier')
    stamp(A, 21)
    if OPT['touch'] == 1:
        A('s_lshl_b32 %s, %s, 13', s(sT + 1), s(sWave))
        A('s_mul_i32 %s, s2, 24576', s(sT + 6))
        A('s_add_u32 %s, %s, %s', s(sT + 6), s(sT + 6), s(sT + 1))
        A('v_lshlrev_b32 v251, 7, v1')
        A('buffer_load_dword v250, v251, %s, %s offen', s(sO, 4), s(sT + 6))
    pv_range(0, 2, None, final_rescale if OPT['rsl'] else None)
    wo_reads(A, 3, 1, vOa)
    A('v_add_f32 %s, %s, %s', v(vL), v(vL), v(vL + 1))
    A('v_mov_b32 %s, %s', v(vT), v(vL))
    A('v_permlane32_swap_b32 %s, %s', v(vT), v(vL))
    A('v_add_f32 %s, %s, %s', v(vL), v(vL), v(vT))
    A('v_rcp_f32 %s, %s', v(vT), v(vL))
    A('ds_read_b32 %s, %s offset:8', v(vD), v(vSt))
    A('s_waitcnt lgkmcnt(0)')
    A('s_barrier')
    if OPT['touch'] == 2:
        A('s_lshl_b32 %s, %s, 13', s(sT + 1), s(sWave))
        A('s_mul_i32 %s, s2, 24576', s(sT + 6))
        A('s_add_u32 %s, %s, %s', s(sT + 6), s(sT + 6), s(sT + 1))
        A('v_lshlrev_b32 v251, 7, v1')
        m = sum(0xff << (8 * f) for f in range(8) if OPT['plm'] >> f & 1)
        A('s_mov_b32 exec_lo, 0x%x', m & 0xffffffff)
        A('s_mov_b32 exec_hi, 0x%x', m >> 32)
        A('buffer_load_dword v250, v251, %s, %s offen', s(sO, 4), s(sT + 6))
        A('s_mov_b64 exec, -1')
    pv_range(2, 4)
    A('v_readfirstlane_b32 %s, %s', s(sLocal), v(vD))
    A('s_barrier')
    if OPT['touch'] == 3:
        A('s_lshl_b32 %s, %s, 13', s(sT + 1), s(sWave))
        A('s_mul_i32 %s, s2, 24576', s(sT + 6))
        A('s_add_u32 %s, %s, %s', s(sT + 6), s(sT + 6), s(sT + 1))
        A('v_lshlrev_b32 v251, 7, v1')
        A('buffer_load_dword v250, v251, %s, %s offen', s(sO, 4), s(sT + 6))
    pv_range(4, 6)
    A('s_lshl_b32 %s, %s, 13', s(sT + 1), s(sWave))
    A('s_mul_i32 %s, s2, 24576', s(sT + 6))
    A('s_add_u32 %s, %s, %s', s(sT + 6), s(sT + 6), s(sT + 1))
    A('s_add_u32 %s, %s, 0x1000', s(sT + 7), s(sT + 6))
    A('s_add_u32 %s, %s, 0x%x', s(sT + 1), s(sT + 1), ROWN)
    A('v_add_u32 %s, %s, %s', v(vT + 2), s(sT + 1), v(vBl))
    A('s_lshl_b32 %s, s2, 8', s(sT + 8))
    A('s_lshl_b32 %s, %s, 2', s(sT + 1), s(sWave))
    A('s_add_u32 %s, %s, %s', s(sT + 8), s(sT + 8), s(sT + 1))
    A('v_mov_b32 %s, 1', v(vT + 4))
    A('v_mov_b32 %s, 0', v(vT + 5))
    A('s_mov_b32 %s, 14', s(sLand))
    A('s_mov_b32 %s, 14', s(sIss))
    variants = ['sc1', OPT['plp']] if OPT['pl'] else [OPT['o_pol'].replace('+', ' ')]
    if OPT['pl']:
        A('s_cmp_eq_u32 %s, 0', s(sLocal))
        A('s_cbranch_scc1 L_pub_local')
    for vi, pol in enumerate(variants):
        if vi == 1:
            A('s_branch L_pub_done')
            A.label('L_pub_local')
        A('s_barrier')
        stamp(A, 3)
        seq = [(mt, p) for mt in range(4) for p in (6, 7)]
        buf = lambda i: 64 + 4 * i
        for i in range(6):
            for x in vread(seq[i][1], seq[i][0], buf(i)):
                L.read(*x)

        def fin(f):
            for i in range(4):
                r = vO + 8 * f + 2 * i
                if f >= 4 or OPT['pkpub']:
                    A('v_pk_mul_f32 %s, %s, %s op_sel_hi:[1,0]', v(r, 2), v(r, 2), v(vT, 2))
                else:
                    A('v_mul_f32 %s, %s, %s', v(r), v(vT), v(r))
                    A('v_mul_f32 %s, %s, %s', v(r + 1), v(vT), v(r + 1))
            for i in range(4):
                r = vO + 8 * f + 2 * i
                A('v_cvt_pk_bf16_f32 %s, %s, %s', v(vS + 4 * f + i), v(r), v(r + 1))
            A('buffer_store_dwordx4 %s, %s, %s, %s offen offset:%d %s', v(vS + 4 * f, 4), v(vBl), s(sO, 4), s(sT + 6 + (f >> 2)), 1024 * (f & 3), pol if OPT['plm'] >> f & 1 else 'sc1')

        for i, (mt, p) in enumerate(seq):
            pv(p, mt, buf(i))
            if i < 2:
                for x in vread(seq[6 + i][1], seq[6 + i][0], buf(6 + i)):
                    L.read(*x)
            if i >= 4:
                fin(i - 4)
        for f in range(4, 8):
            fin(f)
    A.label('L_pub_done')
    stamp(A, 4)
    for f in range(8):
        A('ds_write_b128 %s, %s offset:%d', v(vT + 2), v(vS + 4 * f, 4), 1024 * f)
    A('s_mov_b64 exec, 1')
    A('s_waitcnt lgkmcnt(0)')
    A('ds_add_u32 %s, %s', v(vSt), v(vT + 4))
    A('s_mov_b64 exec, -1')
    if OPT['off3']:
        for f in range(8):
            A('%s %s, %s, %s, %s', MFMA, a(AX, 16), a(96 + 4 * f, 4), v(vS + 4 * f, 4), '0' if f == 0 else a(AX, 16))
        A('s_lshl_b32 %s, %s, 12', s(sT + 1), s(sWave))
        A('v_add_u32 %s, %s, %s', v(vT + 2), s(sT + 1), v(vBl))
        for i in range(4):
            A('ds_write_b128 %s, %s offset:%d', v(vT + 2), a(AX + 4 * i, 4), XFER + 1024 * i)
    A('s_cmp_eq_u32 %s, 0', s(sLocal))
    A('s_mov_b64 exec, 1')
    A('s_waitcnt vmcnt(0) lgkmcnt(0)')
    A('s_cbranch_scc1 L_flag_local')
    A('buffer_store_dword %s, %s, %s, %s offen sc1', v(vT + 4), v(vT + 5), s(sF, 4), s(sT + 8))
    A('s_branch L_flag_done')
    A.label('L_flag_local')
    A('buffer_store_dword %s, %s, %s, %s offen', v(vT + 4), v(vT + 5), s(sF, 4), s(sT + 8))
    A.label('L_flag_done')
    A('ds_add_u32 %s, %s offset:12', v(vSt), v(vT + 4))
    A('s_mov_b64 exec, -1')
    if OPT['touch'] == 4:
        A('v_lshlrev_b32 v251, 7, v1')
        A('buffer_load_dword v250, v251, %s, %s offen', s(sO, 4), s(sT + 6))
    A('s_mov_b32 %s, 0', s(sDone))
    stamp(A, 5)


def tail(A):
    vU = 230
    vB0 = 243
    vTm = 196
    vPk = 212
    NB = 6
    order = [(qt, f) for qt in range(3) for f in range(8)]
    OOB = 0x7f000000

    def fin_ops(qt, pk=True):
        ops = []
        for t in range(2):
            o = 2 * qt + t
            r = vAcc + 8 * o
            if pk:
                for i in range(0, 8, 2):
                    ops.append('v_pk_add_f32 %s, %s, %s' % (v(vTm + i, 2), v(r + i, 2), v(r + 48 + i, 2)))
                    ops.append('v_pk_add_f32 %s, %s, %s' % (v(vTm + 8 + i, 2), v(r + 96 + i, 2), v(r + 144 + i, 2)))
                for i in range(0, 8, 2):
                    ops.append('v_pk_add_f32 %s, %s, %s' % (v(vTm + i, 2), v(vTm + i, 2), v(vTm + 8 + i, 2)))
            else:
                for i in range(8):
                    ops.append('v_add_f32 %s, %s, %s' % (v(vTm + i), v(r + i), v(r + 48 + i)))
                    ops.append('v_add_f32 %s, %s, %s' % (v(vTm + 8 + i), v(r + 96 + i), v(r + 144 + i)))
                for i in range(8):
                    ops.append('v_add_f32 %s, %s, %s' % (v(vTm + i), v(vTm + i), v(vTm + 8 + i)))
            for i in range(4):
                ops.append('v_cvt_pk_bf16_f32 %s, %s, %s' % (v(vPk + 4 * t + i), v(vTm + 2 * i), v(vTm + 2 * i + 1)))
            ops.append('buffer_store_dwordx4 %s, %s, %s, %s offen offset:%d %s' % (v(vPk + 4 * t, 4), v(vBl), s(sPo, 4), s(sPst + o // 3), 1024 * (o % 3), OPT['p_pol'].replace('+', ' ')))
        return ops

    vBn = 242
    sNx, sNb = sT + 2, sT + 3
    REG = [ROWN] + RB

    def pick():
        A('v_readfirstlane_b32 %s, %s', s(sT), v(vU))
        A('v_readfirstlane_b32 %s, %s', s(sT + 1), v(vU + 1))
        A('s_cmp_eq_u32 %s, 3', s(sT))
        A('s_addc_u32 %s, %s, 0', s(sT + 1), s(sT + 1))
        A('s_andn2_b32 %s, %s, %s', s(sT + 1), s(sT + 1), s(sDone))

    def block(j, last):
        L = Lds(A)
        sfx = '%s%d' % ('L' if last else '', j)
        A.label('L_blk' + sfx)
        A('v_add_u32 %s, 0x%x, %s', v(vBn), REG[j], v(vBl))

        def rd(i, base=vB0):
            qt, f = order[i % 24]
            L.read('ds_read_b128 %s, %s offset:%d' % (a(4 * (i % NB), 4), v(base), qt * 8192 + f * 1024), i)

        for i in range(NB - 1):
            rd(i, vBn)
        A.label('L_pre' + sfx)
        A('v_mov_b32 %s, %s', v(vB0), v(vBn))
        if OPT['prof'] == 4:
            A('s_memrealtime s[90:91]')
            A('s_add_u32 m0, %s, 54', s(sCnt))
            A('s_add_u32 %s, %s, 1', s(sCnt), s(sCnt))
            A('s_waitcnt lgkmcnt(0)')
            A('v_writelane_b32 v255, s90, m0')
        A('s_or_b32 %s, %s, %d', s(sDone), s(sDone), 1 << j)
        others = [k for k in (1, 2, 3, 0) if k != j]
        pend = []
        if last and OPT['off3']:
            xfer(sfx)
        for i, (qt, f) in enumerate(order):
            L.need(i)
            acc = v(vAcc + 48 * j + 16 * qt, 16)
            A('%s %s, %s, %s, %s', MFMA, acc, a(AWO + 32 * j + 4 * f, 4), a(4 * (i % NB), 4), '0' if f == 0 else acc)
            if i + NB - 1 < 24 or not last:
                rd(i + NB - 1, vB0 if i + NB - 1 < 24 else vBn)
            if last:
                if qt > 0 and f == 3:
                    pend += fin_ops(qt - 1, False)
                for o in pend[:OPT['nfin']]:
                    A(o)
                pend = pend[OPT['nfin']:]
                continue
            if i in (5, 11):
                check_land(A, 'b%d_%d' % (j, i))
            if i == 12:
                L.read('ds_read_b64 %s, %s' % (v(vU, 2), v(vSt)), 'st')
            if i == 16:
                L.need('st')
                pick()
            if i == 17:
                A('s_mov_b32 %s, 4', s(sNx))
                A('s_mov_b32 %s, 0x%x', s(sNb), REG[j])
                for k in reversed(others):
                    A('s_bitcmp1_b32 %s, %d', s(sT + 1), k)
                    A('s_cselect_b32 %s, %d, %s', s(sNx), k, s(sNx))
                    A('s_cselect_b32 %s, 0x%x, %s', s(sNb), REG[k], s(sNb))
            if i == 18:
                A('v_add_u32 %s, %s, %s', v(vBn), s(sNb), v(vBl))
                A('s_bcnt1_i32_b32 %s, %s', s(sT), s(sDone))
                A('s_cmp_eq_u32 %s, 3', s(sT))
                A('s_cselect_b32 %s, 8, 0', s(sT))
                A('s_add_u32 %s, %s, %s', s(sNx), s(sNx), s(sT))
                if OPT['nochain']:
                    A('s_cmp_eq_u32 %s, 14', s(sIss))
                    A('s_cselect_b32 %s, %s, 4', s(sNx), s(sNx))
        if OPT['prof'] == 2:
            stampd(A, 49, 2)
            A('s_add_u32 %s, %s, 1', s(sCnt), s(sCnt))
        if last:
            stamp(A, 25)
            for o in pend:
                A(o)
            A('s_branch L_sum')
            return
        for k in others:
            A('s_cmp_eq_u32 %s, %d', s(sNx), k)
            A('s_cbranch_scc1 L_pre%d', k)
        for k in others:
            A('s_cmp_eq_u32 %s, %d', s(sNx), 8 + k)
            A('s_cbranch_scc1 L_preL%d', k)
        A('s_waitcnt lgkmcnt(0)')
        A('s_branch L_loop')

    def xfer(tag):
        A('s_cmp_lg_u32 %s, 3', s(sWave))
        A('s_cbranch_scc1 L_xd%s', tag)
        A.label('L_xf' + tag)
        A('ds_read_b32 %s, %s offset:12', v(vU), v(vSt))
        for i in range(12):
            A('ds_read_b128 %s, %s offset:%d', v(vAcc + 4 * i, 4), v(vBl), XFER + 1024 * i)
        A('s_add_u32 %s, %s, 1', s(sT + 7), s(sT + 7))
        A('s_waitcnt lgkmcnt(0)')
        A('v_readfirstlane_b32 %s, %s', s(sT), v(vU))
        A('s_cmp_ge_u32 %s, 0x%x', s(sT + 7), SPIN_MAX)
        A('s_cbranch_scc1 L_xd%s', tag)
        A('s_cmp_lg_u32 %s, 3', s(sT))
        A('s_cbranch_scc1 L_xf%s', tag)
        A.label('L_xd' + tag)

    A.label('L_tail')
    stamp(A, 23)
    A('s_and_b32 %s, s2, 0xf8', s(sT))
    A('s_lshl_b32 %s, %s, 1', s(sT + 1), s(sWave))
    A('s_add_u32 %s, %s, %s', s(sT + 10), s(sT), s(sT + 1))
    A('s_mul_i32 %s, %s, 24576', s(sT), s(sT + 10))
    A('s_mul_i32 %s, %s, 3072', s(sT + 1), s(sHg))
    A('s_add_u32 %s, %s, %s', s(sPst), s(sT), s(sT + 1))
    A('s_add_u32 %s, %s, 24576', s(sPst + 1), s(sPst))
    A('s_mov_b32 %s, 0', s(sCnt))
    A('s_mov_b32 %s, 0', s(sT + 7))
    A('s_mov_b32 %s, 0', s(sT + 6))
    if OPT['lim'] == 2:
        A('s_branch L_status')
    A.label('L_loop')
    A('s_cmp_eq_u32 %s, 14', s(sIss))
    A('s_cbranch_scc1 L_nodisc')
    if not OPT['vpoll']:
        A('s_cmp_lg_u32 %s, 0', s(sLocal))
        A('s_cbranch_scc1 L_disc_v')
        for j in range(1, 4):
            A('s_load_dwordx4 %s, %s, %s glc', s(sFl + 4 * (j - 1), 4), s(sFb, 2), s(sFo + j - 1))
        A('s_waitcnt lgkmcnt(0)')
        A('s_mov_b32 %s, 0', s(sT))
        for j in range(1, 4):
            q = sFl + 4 * (j - 1)
            A('s_and_b32 %s, %s, %s', s(q), s(q), s(q + 1))
            A('s_and_b32 %s, %s, %s', s(q), s(q), s(q + 2))
            A('s_cmp_eq_u32 %s, 1', s(q))
            A('s_cselect_b32 %s, %d, 0', s(q), 1 << j)
            A('s_or_b32 %s, %s, %s', s(sT), s(sT), s(q))

    def issue_new(tag, pol):
        A('s_andn2_b32 %s, %s, %s', s(sT), s(sT), s(sIss))
        for j in range(1, 4):
            A('s_bitcmp1_b32 %s, %d', s(sT), j)
            A('s_cbranch_scc0 L_p%s_n%d', tag, j)
            if OPT['lim']:
                A('s_cmp_%s_u32 %s, %s', 'ge' if OPT['lim'] == 2 else 'gt', s(sIss), s(sT + 6))
                A('s_cbranch_scc1 L_nodisc')
            stampd(A, 40, 2, 42, 4)
            A('s_mov_b32 m0, 0x%x', RB[j - 1])
            A('s_mov_b32 %s, %s', s(sMb), s(sMa))
            A('s_mov_b32 %s, %s', s(sMa), s(sIss))
            A('s_or_b32 %s, %s, %d', s(sIss), s(sIss), 1 << j)
            for g in range(6):
                if g:
                    A('s_addk_i32 m0, 0x1000')
                    A('s_addk_i32 %s, 0x1000', s(sT + 10 + j))
                dma(A, [vBl] * 4, sO, sT + 10 + j, pol)
            stampd(A, 41, 2, 42, 4)
            if OPT['prof'] == 4:
                A('s_add_u32 s42, s42, 1')
            A.label('L_p%s_n%d' % (tag, j))

    if not OPT['vpoll']:
        issue_new('l', OPT['ldma'])
        A('s_branch L_nodisc')
    A.label('L_disc_v')
    A('buffer_load_dword %s, %s, %s, 0 offen sc1', v(lP + 1), v(lP), s(sF, 4))
    A('s_waitcnt vmcnt(0)')
    A('v_cmp_eq_u32 vcc, 1, %s', v(lP + 1))
    A('s_mov_b32 %s, 0', s(sT))
    for j in range(1, 4):
        A('s_bfe_u32 %s, vcc_lo, 0x%x', s(sT + 1), (4 << 16) | (4 * (j - 1)))
        A('s_cmp_eq_u32 %s, 15', s(sT + 1))
        A('s_cselect_b32 %s, %d, 0', s(sT + 1), 1 << j)
        A('s_or_b32 %s, %s, %s', s(sT), s(sT), s(sT + 1))
    issue_new('v', 'sc1')
    A.label('L_nodisc')
    check_land(A, 'l')
    A.label('L_status')
    A('ds_read_b128 %s, %s', v(vU, 4), v(vSt))
    A('s_waitcnt lgkmcnt(0)')
    A('v_readfirstlane_b32 %s, %s', s(sT + 6), v(vU + 3))
    A('s_cmp_eq_u32 %s, 3', s(sT + 6))
    A('s_cselect_b32 %s, 15, %d', s(sT + 6), 0)
    pick()
    if OPT['mgr1']:
        A('s_cmp_eq_u32 %s, 14', s(sIss))
        A('s_cselect_b32 %s, %s, 0', s(sT + 1), s(sT + 1))
    A('s_bcnt1_i32_b32 %s, %s', s(sT), s(sDone))
    A('s_cmp_eq_u32 %s, 3', s(sT))
    A('s_cbranch_scc1 L_dispL')
    for j in (1, 2, 3, 0):
        A('s_bitcmp1_b32 %s, %d', s(sT + 1), j)
        A('s_cbranch_scc1 L_blk%d', j)
    A('s_branch L_none')
    A.label('L_dispL')
    for j in (1, 2, 3, 0):
        A('s_bitcmp1_b32 %s, %d', s(sT + 1), j)
        A('s_cbranch_scc1 L_blkL%d', j)
    A.label('L_none')
    if OPT['slp1']:
        A('s_sleep %d', OPT['slp1'])
    A('s_add_u32 %s, %s, 1', s(sT + 7), s(sT + 7))
    A('s_cmp_lt_u32 %s, 0x%x', s(sT + 7), SPIN_MAX)
    A('s_cbranch_scc1 L_loop')
    A('s_branch L_sum')
    for j in (0, 1, 2, 3):
        block(j, False)
    for j in (0, 1, 2, 3):
        block(j, True)

    A.label('L_sum')
    A('s_lshl_b32 %s, %s, 8', s(sT + 2), s(sT + 10))
    A('s_lshl_b32 %s, %s, 2', s(sT + 1), s(sHg))
    A('s_add_u32 %s, %s, %s', s(sT + 2), s(sT + 2), s(sT + 1))
    A('v_lshlrev_b32 %s, 8, v1', v(vU + 1))
    A('v_mov_b32 %s, 1', v(vU))
    for o in fin_ops(2):
        A(o)
    stamp(A, 26)
    A('s_waitcnt vmcnt(0)')
    A('s_mov_b64 exec, 3')
    A('buffer_store_dword %s, %s, %s, %s offen offset:128 sc1', v(vU), v(vU + 1), s(sF, 4), s(sT + 2))
    A('s_mov_b64 exec, -1')
    stamp(A, 27)
    A('s_cmp_lg_u32 %s, 3', s(sWave))
    A('s_cbranch_scc1 L_red')
    if OPT['clean']:
        A('s_cmp_lg_u32 %s, 0', s(sLocal))
        A('s_cbranch_scc1 L_noclean')
        A('v_add_u32 %s, 0x%x, %s', v(vB0), ROWN, v(vBl))
        A('s_mul_i32 %s, s2, 24576', s(sT))
        for h in range(2):
            for i in range(12):
                A('ds_read_b128 %s, %s offset:%d', v(4 + 48 * h + 4 * i, 4), v(vB0), 1024 * (12 * h + i))
            A('s_waitcnt lgkmcnt(0)')
            for i in range(12):
                A('buffer_store_dwordx4 %s, %s, %s, %s offen offset:%d sc1', v(4 + 48 * h + 4 * i, 4), v(vBl), s(sO, 4), s(sT), 1024 * (i & 3))
                if i & 3 == 3:
                    A('s_addk_i32 %s, 0x1000', s(sT))
        A.label('L_noclean')
    stamp_flush(A)
    A('s_endpgm')

    A.label('L_red')
    vR, vF = 4, 40
    sGot, sLd2, sNew, sSp = sT + 6, sT + 7, sT + 8, sT + 9
    A('s_mul_i32 %s, s2, 24576', s(sT))
    A('s_lshl_b32 %s, %s, 10', s(sT + 1), s(sWave))
    A('s_add_u32 %s, %s, %s', s(sT), s(sT), s(sT + 1))
    A('s_lshl_b32 %s, s2, 8', s(sT + 3))
    A('v_and_b32 %s, 7, v1', v(vU))
    A('v_lshlrev_b32 %s, 2, %s', v(vU), v(vU))
    A('s_mov_b32 %s, 0', s(sGot))
    A('s_mov_b32 %s, 0', s(sLd2))
    A('s_mov_b32 %s, 0', s(sSp))
    A('buffer_load_dword %s, %s, %s, %s offen offset:128 sc1', v(vU + 1), v(vU), s(sF, 4), s(sT + 3))
    A('s_and_b32 %s, %s, 1', s(sT + 1), s(sHg))
    A('s_mul_i32 %s, %s, 3', s(sT + 1), s(sT + 1))
    A('s_add_u32 %s, %s, %s', s(sT + 1), s(sT + 1), s(sWave))
    A('s_lshr_b32 %s, %s, 1', s(sT + 2), s(sT + 1))
    A('s_lshl_b32 %s, %s, 15', s(sT + 2), s(sT + 2))
    A('s_and_b32 %s, %s, 1', s(sT + 1), s(sT + 1))
    A('s_lshl_b32 %s, %s, 5', s(sT + 1), s(sT + 1))
    A('s_add_u32 %s, %s, %s', s(sT + 2), s(sT + 2), s(sT + 1))
    A('s_lshr_b32 %s, %s, 1', s(sT + 1), s(sHg))
    if OPT['sp'] == 1:
        A('s_lshr_b32 %s, %s, 1', s(sT + 4), s(sT + 1))
        A('s_lshl_b32 %s, %s, 9', s(sT + 4), s(sT + 4))
        A('s_add_u32 %s, %s, %s', s(sT + 2), s(sT + 2), s(sT + 4))
        A('s_and_b32 %s, %s, 1', s(sT + 1), s(sT + 1))
    A('s_lshl_b32 %s, %s, %d', s(sT + 1), s(sT + 1), 8 if OPT['sp'] == 2 else 6)
    A('s_add_u32 %s, %s, %s', s(sT + 2), s(sT + 2), s(sT + 1))
    A('s_xor_b32 %s, %s, %d', s(sT + 1), s(sHh), OPT['cx'])
    A('s_lshl_b32 %s, %s, %d', s(sT + 1), s(sT + 1), 8 - OPT['sp'])
    A('s_add_u32 %s, %s, %s', s(sT + 2), s(sT + 2), s(sT + 1))
    A('v_and_b32 %s, 31, v1', v(vU + 2))
    A('v_lshlrev_b32 %s, 10, %s', v(vU + 2), v(vU + 2))
    A('v_lshrrev_b32 %s, 5, v1', v(vU + 3))
    A('v_lshl_add_u32 %s, %s, 4, %s', v(vU + 2), v(vU + 3), v(vU + 2))
    A.label('L_p2')
    A('s_waitcnt vmcnt(0)')
    A('v_cmp_eq_u32 vcc, 1, %s', v(vU + 1))
    A('s_andn2_b32 %s, %s, %s', s(sT + 4), s(sGot), s(sLd2))
    A('s_mov_b32 %s, %s', s(sLd2), s(sGot))
    A('s_and_b32 %s, vcc_lo, 0xff', s(sNew))
    if not OPT['early2']:
        A('s_cmp_eq_u32 %s, 0xff', s(sNew))
        A('s_cselect_b32 %s, 0xff, 0', s(sNew))
    A('s_andn2_b32 %s, %s, %s', s(sNew), s(sNew), s(sGot))
    A('s_cbranch_scc0 L_p2_noload')
    A('s_or_b32 %s, %s, %s', s(sGot), s(sGot), s(sNew))
    for k in range(8):
        A('s_bitcmp1_b32 %s, %d', s(sNew), k)
        A('s_cbranch_scc0 L_p2_l%d', k)
        if k < 2:
            A('buffer_load_dwordx4 %s, %s, %s, %s offen offset:%d sc1', v(vR + 4 * k, 4), v(vBl), s(sPo, 4), s(sT), 3072 * k)
        else:
            A('s_add_u32 %s, %s, 0x%x', s(sT + 1), s(sT), 3072 * k)
            A('buffer_load_dwordx4 %s, %s, %s, %s offen sc1', v(vR + 4 * k, 4), v(vBl), s(sPo, 4), s(sT + 1))
        A.label('L_p2_l%d' % k)
    A.label('L_p2_noload')
    A('s_cmp_eq_u32 %s, 0xff', s(sGot))
    A('s_cbranch_scc1 L_p2_nopoll')
    if OPT['slp2']:
        A('s_sleep %d', OPT['slp2'])
    A('buffer_load_dword %s, %s, %s, %s offen offset:128 sc1', v(vU + 1), v(vU), s(sF, 4), s(sT + 3))
    A.label('L_p2_nopoll')
    A('s_cmp_eq_u32 %s, 0', s(sT + 4))
    A('s_cbranch_scc1 L_p2_nounp')
    for k in range(8):
        A('s_bitcmp1_b32 %s, %d', s(sT + 4), k)
        A('s_cbranch_scc0 L_p2_u%d', k)
        for i in range(4):
            A('v_lshlrev_b32 %s, 16, %s', v(vF + 8 * k + 2 * i), v(vR + 4 * k + i))
            A('v_and_b32 %s, 0xffff0000, %s', v(vF + 8 * k + 2 * i + 1), v(vR + 4 * k + i))
        A.label('L_p2_u%d' % k)
    A.label('L_p2_nounp')
    A('s_cmp_eq_u32 %s, 0xff', s(sLd2))
    A('s_cbranch_scc1 L_p2_done')
    A('s_add_u32 %s, %s, 1', s(sSp), s(sSp))
    A('s_cmp_lt_u32 %s, 0x%x', s(sSp), SPIN_MAX)
    A('s_cbranch_scc1 L_p2')
    A('s_waitcnt vmcnt(0)')
    A.label('L_p2_done')
    burn(A, 't', OPT['probe_t'])
    stamp(A, 28)
    for step in (8, 16, 32):
        for k in range(0, 64, 2 * step):
            for i in range(0, 8, 2):
                A('v_pk_add_f32 %s, %s, %s', v(vF + k + i, 2), v(vF + k + i, 2), v(vF + k + step + i, 2))
    for i in range(4):
        A('v_cvt_pk_bf16_f32 %s, %s, %s', v(vR + i), v(vF + 2 * i), v(vF + 2 * i + 1))
    if not OPT['noout']:
        A('buffer_store_dwordx4 %s, %s, %s, %s offen %s', v(vR, 4), v(vU + 2), s(sOut, 4), s(sT + 2), OPT['out_pol'])
    if OPT['prof']:
        A('s_waitcnt vmcnt(0)')
        stamp(A, 29)
        stamp_flush(A)


def kernel():
    A = Asm()
    A('s_cmp_ge_u32 s2, 256')
    A('s_cbranch_scc1 L_end')
    if OPT['prof']:
        A('s_memrealtime s[92:93]')
    A('s_load_dwordx4 s[4:7], s[0:1], 0')
    A('s_load_dwordx4 s[8:11], s[0:1], 16')
    A('s_load_dwordx4 s[12:15], s[0:1], 32')
    A('s_load_dwordx4 s[16:19], s[0:1], 48')
    A('v_and_b32 v1, 63, v0')
    if OPT['pfcode'] == 2:
        A('s_getpc_b64 %s', s(sT + 2, 2))
        A.label('L_pc')
        A('s_lshr_b32 %s, s2, 3', s(sT))
        A('s_lshl_b32 %s, %s, 10', s(sT), s(sT))
        A('v_lshl_add_u32 v2, v1, 7, %s', s(sT))
        A('v_min_u32 v2, L_end-L_pc, v2')
        A('s_mov_b64 exec, 0xff')
        A('global_load_dword v250, v2, %s', s(sT + 2, 2))
        A('s_mov_b64 exec, -1')
    A('v_lshrrev_b32 v2, 6, v0')
    A('v_readfirstlane_b32 %s, v2', s(sWave))
    if OPT['prof']:
        A('v_mov_b32 v255, 0')
        A('s_waitcnt lgkmcnt(0)')
        A('v_writelane_b32 v255, s92, 0')
        stamp(A, 58)
    if OPT['badmap']:
        A('s_and_b32 s3, s2, 31')
        A('s_lshl_b32 s3, s3, 3')
        A('s_lshr_b32 s2, s2, 5')
        A('s_or_b32 s2, s2, s3')
    A('s_and_b32 %s, s2, 7', s(sHg))
    A('s_bfe_u32 %s, s2, 0x30003', s(sB))
    A('s_lshr_b32 %s, s2, 6', s(sHh))
    if OPT['hx']:
        A('s_xor_b32 %s, %s, %d', s(sHh), s(sHh), OPT['hx'])
    A('s_lshl_b32 %s, %s, 2', s(sH), s(sHg))
    A('s_add_u32 %s, %s, %s', s(sH), s(sH), s(sHh))
    A('s_lshl_b32 %s, %s, 1', s(sRot), s(sHh))
    A('s_add_u32 %s, %s, %s', s(sRot), s(sRot), s(sB))
    A('s_cmp_lg_u32 %s, 3', s(sWave))
    A('s_cbranch_scc1 L_compute')
    loader(A)
    A.label('L_compute')
    compute(A)
    tail(A)
    A.label('L_end')
    A('s_endpgm')
    return A.lines


def main():
    k, n = pad_hazards(kernel())
    out = ['; %s : fused Q-proj + attention + output projection' % NAME,
           '; @launch grid=(256,1,1) block=(256,1,1) lds=163840',
           '.amdgcn_target "amdgcn-amd-amdhsa--gfx950"', '.text',
           '.globl %s_kernel\n.p2align 8\n.type %s_kernel,@function\n%s_kernel:' % (NAME, NAME, NAME)]
    out += k
    out.append('''.section .rodata,"a"
.p2align 6
.amdhsa_kernel %s_kernel
  .amdhsa_next_free_vgpr 512
  .amdhsa_next_free_sgpr 102
  .amdhsa_accum_offset 256
  .amdhsa_group_segment_fixed_size 0
  .amdhsa_kernarg_size 64
  .amdhsa_user_sgpr_count 2
  .amdhsa_user_sgpr_kernarg_segment_ptr 1
  .amdhsa_system_sgpr_workgroup_id_x 1
.end_amdhsa_kernel''' % NAME)
    open(sys.argv[1], 'w').write('\n'.join(out) + '\n')
    print('wrote', sys.argv[1], 'pads', n)


main()
```

```python
import sys
from asmlib import Asm, pad_hazards, v, a, s

OPT = dict(kv_pol='nt', w_pol='', x_pol='', wo_pol='', prof=0, la=8, law='8,11,14,18,21,21,21,21', pfcode=2, force_remote=0, early2=1, ovl=0, cap1=24, la1=10, slp1=0, slp2=0, noout=0, wb=0, badmap=0, probe_t=0, probe_k=0, probe_q=0, pl=0, touch=0, mgr1=0, off3=0, tpos2=6, tbit=3, f2=1, ne=8, pw=1, v3='4,2,2', olast=1, cx=2, sp=0, nl=24, rsl=1, nochain=1, plm=0xff, kpos=8, kn=5, tpos=2, upos=4, tk=0, tko=0, tkp='', capL=0, capLn=60, clsm=1, lk=6, wskip=0, o_pol='sc1', clean=0, vpoll=1, plp='', lim=0, ldma='', st='0',  xo=0, cap=9, cap0=0, hx=0, nowo=0, rg=1, pkpub=0, strict=0, pkfin=1, nfin=6, dsw=4, ws_off=0, out_pol='', p_pol='sc1')
for arg in sys.argv[2:]:
    k, val = arg.split('=')
    OPT[k] = int(val, 0) if isinstance(OPT[k], int) else val

NAME = 'standalone__mha_block_cached__near_ridge'
C_SCALE = 0x3e0293ee
MFMA = 'v_mfma_f32_32x32x16_bf16'
WS_O, WS_P, WS_F = OPT['ws_off'], OPT['ws_off'] + (6 << 20), OPT['ws_off'] + (12 << 20)
SPIN_MAX = 1 << 20
WSTR = 28672
KVS = [114688, 0, 65536]
RB = [65536, 90112, 114688]
ROWN = 139264
XFER = 53248
AX = 32
STAT = 49152

sX, sK, sV, sW, sWo, sO, sPo, sF, sOut, sDbg = 20, 24, 28, 32, 36, 56, 60, 64, 68, 72
sWave, sHg, sB, sHh, sH, sRot = 40, 41, 43, 44, 45, 46
sSlot, sCnt, sC = 47, 48, 50
sS0, sS1, sS2, sLocal, sSel = 52, 53, 54, 55, 42
sIss, sLand, sDone, sPst = 52, 53, 54, 94
sFo = 99
sT = 76
AWO = 128
vBl = 240
vW3 = 238
vSt = 241
lP = 234
vAcc = 4


class Lds:
    def __init__(self, A):
        self.A = A
        self.q = []

    def read(self, text, tag):
        self.A(text)
        self.q.append(tag)

    def need(self, *tags):
        idx = max([i for i, t in enumerate(self.q) if t in tags], default=-1)
        if idx < 0:
            return
        n = len(self.q) - 1 - idx
        self.A('s_waitcnt lgkmcnt(%d)', min(n, 15))
        self.q = self.q[idx + 1:]

    def drain(self):
        if self.q:
            self.A('s_waitcnt lgkmcnt(0)')
        self.q = []


def srd(A, d, base, off, size):
    if off is None:
        A('s_mov_b32 %s, %s', s(d), s(base))
        A('s_mov_b32 %s, %s', s(d + 1), s(base + 1))
    else:
        A('s_add_u32 %s, %s, %s', s(d), s(base), off)
        A('s_addc_u32 %s, %s, 0', s(d + 1), s(base + 1))
    A('s_mov_b32 %s, %s', s(d + 2), size if isinstance(size, str) else '0x%x' % size)
    A('s_mov_b32 %s, 0x20000', s(d + 3))


def stamp(A, idx, op='s_memrealtime'):
    if not OPT['prof'] or (OPT['prof'] == 9 and idx not in (0, 3, 25, 29, 58)):
        return
    if OPT['prof'] in (3, 4) and idx not in map(int, OPT['st'].split(',')):
        return
    A('%s s[90:91]', op)
    A('s_waitcnt lgkmcnt(0)')
    A('v_writelane_b32 v255, s90, %d', idx)


def stampd(A, base, mul, cnt=None, lvl=2):
    if OPT['prof'] != lvl:
        return
    A('s_memrealtime s[90:91]')
    A('s_mul_i32 m0, %s, %d', s(sCnt if cnt is None else cnt), mul)
    A('s_add_u32 m0, m0, %d', base)
    A('s_waitcnt lgkmcnt(0)')
    A('v_writelane_b32 v255, s90, m0')


def stamp_flush(A):
    if not OPT['prof']:
        return
    A('s_lshl_b32 s92, s2, 2')
    A('s_add_u32 s92, s92, %s', s(sWave))
    A('s_lshl_b32 s92, s92, 8')
    A('s_add_u32 s92, s92, 0x%x', 128 << 20)
    srd(A, 24, 18, 's92', 256)
    A('v_lshlrev_b32 v254, 2, v1')
    A('buffer_store_dword v255, v254, s[24:27], 0 offen')


def dma(A, voffs, srdreg, soff, pol):
    for j in range(4):
        A('buffer_load_dwordx4 %s, %s, %s offen offset:%d %s lds', v(voffs[j]), s(srdreg, 4), s(soff), 1024 * j, pol)


def tr_lane_base(A, vt, hrow, sigma):
    A('v_lshrrev_b32 %s, 5, v1', v(vt))
    A('v_mul_u32_u24 %s, %d, %s', v(vt), hrow, v(vt))
    A('v_bfe_u32 %s, v1, 2, 2', v(vt + 1))
    A('v_add_u32 %s, %s, %s', v(vt), v(vt), v(vt + 1))
    A('v_lshlrev_b32 %s, 8, %s', v(vt), v(vt))
    A('v_bfe_u32 %s, v1, 4, 1', v(vt + 2))
    A('v_lshl_add_u32 %s, %s, 5, %s', v(vt), v(vt + 2), v(vt))
    if sigma:
        A('v_and_b32 %s, 1, v1', v(vt + 2))
        A('v_lshl_add_u32 %s, %s, 4, %s', v(vt), v(vt + 2), v(vt))
        A('v_bfe_u32 %s, v1, 1, 1', v(vt + 2))
        A('v_lshl_add_u32 %s, %s, 3, %s', v(vt), v(vt + 2), v(vt))
    else:
        A('v_and_b32 %s, 3, v1', v(vt + 2))
        A('v_lshl_add_u32 %s, %s, 3, %s', v(vt), v(vt + 2), v(vt))


def tr_lane_bases(A, vdst, hrow, sigma, vt):
    tr_lane_base(A, vt, hrow, sigma)
    for mt in range(4):
        A('v_xor_b32 %s, %d, %s', v(vt + 2), mt, v(vt + 1))
        A('v_lshl_add_u32 %s, %s, 6, %s', v(vdst + mt), v(vt + 2), v(vt))


def wo_lane_base(A, vdst, vt):
    tr_lane_base(A, vt, 4, True)
    A('v_xor_b32 %s, %s, %s', v(vt + 2), s(sWave), v(vt + 1))
    A('v_lshl_add_u32 %s, %s, 6, %s', v(vdst), v(vt + 2), v(vt))


def wo_reads(A, j, half, vaddr):
    for f in range(4):
        for aa in range(2):
            A('ds_read_b64_tr_b16 %s, %s offset:%d', a(AWO + 32 * j + 16 * half + 4 * f + 2 * aa, 2), v(vaddr), (16 * f + 8 * aa) * 256)


sFl, sFb = 4, sF
sAt = 98
sMa, sMb = 96, 97


def check_land(A, tag):
    A('s_cmp_eq_u32 %s, 14', s(sLand))
    A('s_cbranch_scc1 L_cl_%s', tag)
    A('s_getreg_b32 %s, hwreg(HW_REG_IB_STS)', s(sT))
    A('s_and_b32 %s, %s, 15', s(sT + 1), s(sT))
    A('s_bfe_u32 %s, %s, 0x20016', s(sT), s(sT))
    A('s_lshl4_add_u32 %s, %s, %s', s(sT), s(sT), s(sT + 1))
    A('s_cmp_le_u32 %s, 48', s(sT))
    A('s_cselect_b32 %s, %s, 0', s(sT + 1), s(sMb))
    A('s_cmp_le_u32 %s, 24', s(sT))
    A('s_cselect_b32 %s, %s, %s', s(sT + 1), s(sMa), s(sT + 1))
    A('s_cmp_eq_u32 %s, 0', s(sT))
    A('s_cselect_b32 %s, %s, %s', s(sT + 1), s(sIss), s(sT + 1))
    A('s_andn2_b32 %s, %s, %s', s(sT), s(sT + 1), s(sLand))
    A('s_cbranch_scc0 L_cl_%s', tag)
    A('s_or_b32 %s, %s, %s', s(sLand), s(sLand), s(sT + 1))
    A('v_mov_b32 %s, %s', v(lP + 1), s(sLand))
    A('ds_write_b32 %s, %s offset:4', v(vSt), v(lP + 1))
    stampd(A, 50, 1, 93, 4)
    if OPT['prof'] == 4:
        A('s_add_u32 s93, s93, 1')
    A.label('L_cl_%s' % tag)


def burn(A, tag, n):
    if not n:
        return
    A('s_mov_b32 s98, %d', n)
    A.label('L_burn_' + tag)
    for i in range(14):
        A('v_mov_b32 v252, v253')
    A('s_sub_u32 s98, s98, 1')
    A('s_cmp_lg_u32 s98, 0')
    A('s_cbranch_scc1 L_burn_%s', tag)


def tail_srds(A):
    srd(A, sO, 18, '0x%x' % WS_O if WS_O else None, 256 * 24576)
    srd(A, sPo, 18, '0x%x' % WS_P, 256 * 24576)
    srd(A, sF, 18, '0x%x' % WS_F, 256 * 256)
    srd(A, sDbg, 16, None, 256)
    A('s_mul_i32 %s, %s, 98304', s(sT), s(sB))
    srd(A, sOut, 14, s(sT), 98304)
    A('v_lshlrev_b32 %s, 4, v1', v(vBl))
    A('v_mov_b32 %s, 0x%x', v(vSt), STAT)


V3 = list(map(int, OPT['v3'].split(',')))
assert sum(V3) == 8 and V3[-1] == 2
STEPS = ['K0', 'K1', 'V0', 'K2', 'V1', 'K3', 'V2', 'V3']


def plan():
    groups = []
    steps = []
    k0 = [('k', 0, g, KVS[0] + 16384 + 4096 * g, 8) for g in range(3, 8)]
    for i in range(8):
        base = WSTR * (i % 5)
        if i == OPT['tpos']:
            groups.append(('t', 0, 0, -1 << 20, 0))
        if i == OPT['tpos2']:
            groups.append(('t', 1, 0, -1 << 20, 0))
        if i == OPT['kpos']:
            groups += k0[:OPT['kn']]
        if i < 8 - OPT['wskip']:
            for g in range(3):
                groups.append(('x', i, g, base + 16384 + 4096 * g, i))
            for g in range(4):
                groups.append(('w', i, g, base + 4096 * g, i))
        steps.append(['W%d' % i, len(groups) - 1, i if OPT['strict'] else i - 1])
    for t, nm in enumerate(STEPS):
        base = KVS[t % 3]
        kv = lambda g: (nm[0].lower(), int(nm[1]), g, base + 16384 + 4096 * g, 8 + t)
        wo = lambda g: ('o', t >> 1, 4 * (t & 1) + g, base + 4096 * g, 8 + t)
        if t == 0:
            seq = k0[OPT['kn'] if OPT['kpos'] < 8 else 0:] + [kv(0), wo(0), kv(1), wo(1), kv(2), wo(2), wo(3)]
        elif t == 7:
            seq = [kv(g) for g in range(8)] + [wo(g) for g in range(4)] if OPT['olast'] else [wo(g) for g in range(4)] + [kv(g) for g in range(8)]
        else:
            seq = []
            for q in range(4):
                seq += [wo(q), kv(2 * q), kv(2 * q + 1)]
        if OPT['nowo']:
            seq = [x for x in seq if x[0] != 'o']
        groups += seq
        if t < 7:
            steps.append([nm, len(groups) - 1, 8 + t])
        else:
            e = len(groups) - 1 - (4 if OPT['olast'] and not OPT['nowo'] else 0)
            pos = 0
            for q, n in enumerate(V3):
                pos += n
                steps.append(['V3' + 'abcd'[q], e - 8 + pos, 15])
    return steps, groups


def loader(A):
    lX, lW, lK, lV, lWo, lT, lA, lZ = 200, 204, 208, 212, 216, 220, 228, 196
    A('v_lshrrev_b32 %s, 4, v1', v(lT))
    A('v_and_b32 %s, 15, v1', v(lT + 1))
    A('v_lshrrev_b32 %s, 3, v1', v(lT + 3))
    A('v_and_b32 %s, 7, v1', v(lT + 4))
    A('v_xor_b32 %s, %s, %s', v(lT + 4), v(lT + 4), v(lT))
    A('v_lshlrev_b32 %s, 4, %s', v(lT + 4), v(lT + 4))
    A('v_lshl_add_u32 %s, %s, 10, %s', v(lX), v(lT + 3), v(lT + 4))
    A('v_xor_b32 %s, 64, %s', v(lX + 1), v(lX))
    A('v_add_u32 %s, 0x%x, %s', v(lX + 2), 2 * 7168, v(lX))
    A('v_add_u32 %s, 0x%x, %s', v(lX + 3), 3 * 7168, v(lX + 1))
    A('v_add_u32 %s, 0x%x, %s', v(lX + 1), 7168, v(lX + 1))
    A('v_lshlrev_b32 %s, 2, %s', v(lT + 2), v(lT))
    A('v_xor_b32 %s, %s, %s', v(lT + 2), v(lT + 2), v(lT + 1))
    A('v_lshlrev_b32 %s, 4, %s', v(lT + 2), v(lT + 2))
    A('v_lshl_add_u32 %s, %s, 13, %s', v(lW), v(lT), v(lT + 2))
    for j in range(1, 4):
        A('v_add_u32 %s, 0x%x, %s', v(lW + j), j * (32768 - 1024), v(lW))
    A('s_mul_i32 %s, %s, 98304', s(sT), s(sB))
    A('s_lshl_b32 %s, %s, 8', s(sT + 1), s(sH))
    A('s_sub_u32 %s, 0x400000, %s', s(sT + 2), s(sT + 1))
    A('s_waitcnt lgkmcnt(0)')
    srd(A, sX, 4, s(sT), 98304)
    srd(A, sW, 10, s(sT + 1), s(sT + 2))
    stamp(A, 30)

    def setup2():
        A('s_lshl_b32 %s, %s, 5', s(sT), s(sB))
        A('s_add_u32 %s, %s, %s', s(sT), s(sT), s(sH))
        A('s_lshl_b32 %s, %s, 17', s(sT), s(sT))
        srd(A, sK, 6, s(sT), 131072)
        srd(A, sV, 8, s(sT), 131072)
        A('s_lshl_b32 %s, %s, 19', s(sT), s(sHg))
        A('s_xor_b32 %s, %s, %d', s(sT + 1), s(sHh), OPT['cx'])
        A('s_lshl_b32 %s, %s, %d', s(sT + 1), s(sT + 1), 8 - OPT['sp'])
        A('s_add_u32 %s, %s, %s', s(sT), s(sT), s(sT + 1))
        A('s_sub_u32 %s, 0x80000, %s', s(sT + 2), s(sT + 1))
        srd(A, sWo, 12, s(sT), s(sT + 2))
        A('v_lshl_add_u32 %s, %s, 8, %s', v(lV), v(lT), v(lT + 2))
        if OPT['sp'] == 0:
            A('v_lshl_add_u32 %s, %s, 10, %s', v(lWo), v(lT), v(lT + 2))
        else:
            if OPT['sp'] == 1:
                A('v_and_b32 %s, 0x7f, %s', v(lT + 3), v(lT + 2))
                A('v_lshrrev_b32 %s, 7, %s', v(lT + 4), v(lT + 2))
                A('v_lshl_add_u32 %s, %s, 9, %s', v(lT + 3), v(lT + 4), v(lT + 3))
            else:
                A('v_and_b32 %s, 0x3f, %s', v(lT + 3), v(lT + 2))
                A('v_lshrrev_b32 %s, 6, %s', v(lT + 4), v(lT + 2))
                A('v_lshl_add_u32 %s, %s, 8, %s', v(lT + 3), v(lT + 4), v(lT + 3))
            A('v_lshl_add_u32 %s, %s, 10, %s', v(lWo), v(lT), v(lT + 3))
        for j in range(1, 4):
            A('v_add_u32 %s, 0x%x, %s', v(lWo + j), j * (4096 - 1024), v(lWo))
        for j in range(4):
            A('v_add_u32 %s, %d, %s', v(lT + 3), 4 * j, v(lT))
            A('v_xor_b32 %s, %s, %s', v(lT + 3), v(lT + 3), v(lT + 1))
            A('v_lshlrev_b32 %s, 4, %s', v(lT + 3), v(lT + 3))
            A('v_lshl_add_u32 %s, %s, 8, %s', v(lK + j), v(lT), v(lT + 3))
        wo_lane_base(A, lA, lT)
        A('v_mov_b32 %s, %s', v(vW3), v(lA))
        tail_srds(A)
        if OPT['capL']:
            A('s_and_b32 vcc_lo, %s, %d', s(sB), OPT['clsm'])
            A('s_mov_b32 vcc_hi, 0')
        if OPT['rg']:
            A('s_lshl_b32 %s, %s, 12', s(sT + 8), s(sB))
        else:
            A('s_mov_b32 %s, 0', s(sT + 8))
        A('s_and_b32 %s, s2, 63', s(sT + 1))
        for j in range(1, 4):
            A('%s %s, %s, %d', 's_xor_b32' if OPT['xo'] else 's_add_u32', s(sT), s(sHh), j)
            A('s_and_b32 %s, %s, 3', s(sT), s(sT))
            if OPT['hx']:
                A('s_xor_b32 %s, %s, %d', s(sT), s(sT), OPT['hx'])
            A('s_lshl_b32 %s, %s, 6', s(sT), s(sT))
            A('s_add_u32 %s, %s, %s', s(sT), s(sT), s(sT + 1))
            A('s_mul_i32 %s, %s, 24576', s(sT + 10 + j), s(sT))
            A('s_lshl_b32 %s, %s, 8', s(sFo + j - 1), s(sT))
        A('v_lshrrev_b32 %s, 2, v1', v(lP))
        A('v_min_u32 %s, 2, %s', v(lP), v(lP))
        A('v_add_u32 %s, 1, %s', v(lP), v(lP))
        A('%s %s, %s, %s', 'v_xor_b32' if OPT['xo'] else 'v_add_u32', v(lP), s(sHh), v(lP))
        A('v_and_b32 %s, 3, %s', v(lP), v(lP))
        if OPT['hx']:
            A('v_xor_b32 %s, %d, %s', v(lP), OPT['hx'], v(lP))
        A('v_lshlrev_b32 %s, 6, %s', v(lP), v(lP))
        A('v_add_u32 %s, %s, %s', v(lP), s(sT + 1), v(lP))
        A('v_lshlrev_b32 %s, 8, %s', v(lP), v(lP))
        A('v_and_b32 %s, 3, v1', v(lP + 1))
        A('v_min_u32 %s, 2, %s', v(lP + 1), v(lP + 1))
        A('v_lshl_add_u32 %s, %s, 2, %s', v(lP), v(lP + 1), v(lP))
        A('v_mov_b64 %s, 0', v(lP + 2, 2))
        A('v_mov_b64 %s, 0', v(lZ, 2))
        A('v_mov_b64 %s, 0', v(lZ + 2, 2))
        A('s_lshl_b32 %s, s2, 8', s(sT))
        A('s_mov_b64 exec, 0xffff')
        A('buffer_store_dwordx4 %s, %s, %s, %s offen sc1', v(lZ, 4), v(vBl), s(sF, 4), s(sT))
        A('s_mov_b64 exec, -1')

    steps, groups = plan()
    st = dict(m0=None, key=None, so=None)
    sXo, sWq, sG, sOo, sGk, sGv, sRg = sT + 3, sT + 4, sT + 5, sT + 6, sT + 7, sT + 7, sT + 8

    def issue(gi):
        kind, j, g, lds, _ = groups[gi]
        if kind == 't':
            if OPT['tpos2'] < 9:
                A('s_bitcmp1_b32 s2, %d', OPT['tbit'])
                A('s_cbranch_scc%d L_nt%d', 1 - j, j)
            A('s_lshl_b32 %s, %s, 19', s(sT), s(sHg))
            A('s_lshr_b32 %s, s2, 3', s(sT + 1))
            A('s_lshl_b32 %s, %s, 14', s(sT + 1), s(sT + 1))
            A('s_add_u32 %s, %s, %s', s(sT), s(sT), s(sT + 1))
            A('v_lshl_add_u32 v251, v1, 7, %s', s(sT))
            A('v_add_u32 v252, 0x2000, v251')
            A('global_load_dword v250, v251, s[12:13]')
            A('global_load_dword v250, v252, s[12:13]')
            if OPT['tk']:
                A('v_lshlrev_b32 v253, 7, v1')
            for g in range(OPT['tk']):
                A('s_mov_b32 %s, 0x%x', s(sT), OPT['tko'] + 8192 * g)
                A('buffer_load_dword v250, v253, %s, %s offen %s', s(sK, 4), s(sT), OPT['tkp'])
            if OPT['tpos2'] < 9:
                A.label('L_nt%d' % j)
            return
        if kind == 'u':
            if g == 0:
                A('v_lshlrev_b32 v253, 7, v1')
            A('s_mov_b32 %s, 0x%x', s(sT), OPT['tko'] + 8192 * g)
            A('buffer_load_dword v250, v253, %s, %s offen %s', s(sK, 4), s(sT), OPT['tkp'])
            return
        if OPT['cap'] and steps[7][1] + OPT['cap0'] < gi < len(groups) - OPT['cap1']:
            A('s_waitcnt vmcnt(%d)', 4 * (OPT['cap'] - 1))
        if OPT['capL'] and 56 <= gi < 56 + OPT['capLn']:
            A('s_cbranch_vccz L_cl%d', gi)
            A('s_waitcnt vmcnt(%d)', 4 * (OPT['capL'] - 1))
            A.label('L_cl%d' % gi)
        if st['m0'] is not None and 0 < lds - st['m0'] < 32768:
            A('s_addk_i32 m0, 0x%x', lds - st['m0'])
        else:
            A('s_mov_b32 m0, 0x%x', lds)
        st['m0'] = lds
        if kind == 'x':
            if g == 0:
                A('s_add_u32 %s, %s, %d', s(sT), s(sRot), j)
                A('s_and_b32 %s, %s, 7', s(sT), s(sT))
                A('s_lshl_b32 %s, %s, 7', s(sXo), s(sT))
                A('s_lshl_b32 %s, %s, 19', s(sWq), s(sT))
            else:
                A('s_add_u32 %s, %s, 0x8000', s(sXo), s(sXo))
            dma(A, [lX, lX + 1, lX + 2, lX + 3], sX, sXo, OPT['x_pol'])
        elif kind == 'w':
            if g:
                A('s_add_u32 %s, %s, 0x20000', s(sWq), s(sWq))
            dma(A, [lW, lW + 1, lW + 2, lW + 3], sW, sWq, OPT['w_pol'])
        elif kind == 'o':
            if g == 0:
                A('%s %s, %s, %d', 's_xor_b32' if OPT['xo'] else 's_add_u32', s(sT), s(sHh), j)
                A('s_and_b32 %s, %s, 3', s(sT), s(sT))
                A('s_lshl_b32 %s, %s, 17', s(sOo), s(sT))
            else:
                A('s_addk_i32 %s, 0x4000', s(sOo))
            dma(A, [lWo, lWo + 1, lWo + 2, lWo + 3], sWo, sOo, OPT['wo_pol'])
        else:
            sR = sGk if kind == 'k' else sGv
            if st.get(kind) == (j, g - 1):
                A('s_addk_i32 %s, 0x1000', s(sR))
            else:
                A('s_add_u32 %s, %s, 0x%x', s(sR), s(sRg), 4096 * g)
            st[kind] = (j, g)
            A('s_and_b32 %s, %s, 0x7000', s(sG), s(sR))
            if j:
                A('s_or_b32 %s, %s, 0x%x', s(sG), s(sG), j * 32768)
            if kind == 'k':
                dma(A, [lK, lK + 1, lK + 2, lK + 3], sK, sG, OPT['kv_pol'])
            else:
                dma(A, [lV] * 4, sV, sG, OPT['kv_pol'])

    def free(gi, cert):
        lds = groups[gi][3]
        return all(not (p[3] < lds + 4096 and lds < p[3] + 4096) or p[4] < cert for p in groups[:gi])

    nxt = 0
    cert = 0
    did2 = False
    pend = False
    for i, (name, e, c) in enumerate(steps):
        la = int(OPT['law'].split(',')[i]) if i < 8 else OPT['la1'] if (OPT['la1'] and i >= 13) else OPT['la']
        while nxt < len(groups) and nxt <= e + la and free(nxt, cert):
            if nxt == 11 and not did2:
                stamp(A, 31)
                setup2()
                did2 = True
            issue(nxt)
            nxt += 1
        assert nxt > e, (name, nxt, e)
        A('s_waitcnt vmcnt(%d)%s', min(60, sum({'t': 0 if OPT['tpos2'] < 9 else 2 + OPT['tk']}.get(x[0], 4) for x in groups[e + 1:nxt])), ' lgkmcnt(0)' if pend else '')
        pend = False
        if not 2 <= i <= 5:
            stamp(A, 2 + i)
        A('s_barrier')
        cert = max(cert, c)
        if 8 <= i <= (14 if OPT['olast'] else 15):
            t = i - 8
            A('v_add_u32 %s, 0x%x, %s', v(lA + 1), KVS[t % 3], v(lA))
            wo_reads(A, t >> 1, t & 1, lA + 1)
            pend = True
        if name == 'W1':
            assert e > 11
            A('s_getreg_b32 %s, hwreg(HW_REG_XCC_ID, 0, 4)', s(sT))
            A('s_add_u32 %s, %s, 1', s(sT), s(sT))
            A('s_and_b32 %s, s2, 3', s(sT + 1))
            A('s_lshl_b32 %s, %s, 3', s(sT + 1), s(sT + 1))
            A('s_lshl_b32 %s, %s, %s', s(sAt), s(sT), s(sT + 1))
            A('s_and_b32 %s, s2, 0xfc', s(sT + 1))
            A('s_atomic_or %s, s[16:17], %s', s(sAt), s(sT + 1))
        if name == 'K0':
            A('ds_write_b64 %s, %s', v(vSt), v(lP + 2, 2))
            A('ds_write_b32 %s, %s offset:12', v(vSt), v(lP + 2))
        if name == 'K2':
            A('s_and_b32 %s, s2, 0xf8', s(sT))
            A('s_load_dwordx2 %s, s[16:17], %s', s(sFl + 4, 2), s(sT))
            A('s_and_b32 %s, s2, 0x3c', s(sT))
            for k in range(4):
                A('s_load_dword %s, s[16:17], %s', s(sFl + k), s(sT))
                if k < 3:
                    A('s_add_u32 %s, %s, 64', s(sT), s(sT))
        if name == 'V1':
            A('s_mov_b32 %s, 0', s(sT + 2))
            A.label('L_chk')
            A('s_and_b32 %s, s2, 3', s(sT))
            A('s_lshl_b32 %s, %s, 3', s(sT), s(sT))
            A('s_or_b32 %s, %s, 0x80000', s(sT), s(sT))
            for k in range(4):
                A('s_bfe_u32 %s, %s, %s', s(sFl + k), s(sFl + k), s(sT))
            A('s_min_u32 %s, %s, %s', s(sT), s(sFl), s(sFl + 1))
            A('s_min_u32 %s, %s, %s', s(sT + 1), s(sFl + 2), s(sFl + 3))
            A('s_min_u32 %s, %s, %s', s(sT), s(sT), s(sT + 1))
            A('s_add_u32 %s, %s, 0x7f7f7f7f', s(sFl + 4), s(sFl + 4))
            A('s_add_u32 %s, %s, 0x7f7f7f7f', s(sFl + 5), s(sFl + 5))
            A('s_and_b32 %s, %s, %s', s(sFl + 4), s(sFl + 4), s(sFl + 5))
            A('s_or_b32 %s, %s, 0x7f7f7f7f', s(sFl + 4), s(sFl + 4))
            A('s_cmp_eq_u32 %s, -1', s(sFl + 4))
            A('s_cselect_b32 %s, %s, 0', s(sT), s(sT))
            A('s_cmp_lg_u32 %s, 0', s(sT))
            A('s_cbranch_scc1 L_chk_ok')
            A('v_lshlrev_b32 %s, 2, v1', v(lZ))
            A('buffer_load_dword %s, %s, %s, 0 offen sc1', v(lZ + 1), v(lZ), s(sDbg, 4))
            A('s_bfe_u32 %s, s2, 0x40002', s(sT))
            A('s_waitcnt vmcnt(0)')
            for k in range(4):
                A('v_readlane_b32 %s, %s, %s', s(sFl + k), v(lZ + 1), s(sT))
                A('s_add_u32 %s, %s, 16', s(sT), s(sT))
            A('s_lshr_b32 %s, s2, 3', s(sT))
            A('s_lshl_b32 %s, %s, 1', s(sT), s(sT))
            A('v_readlane_b32 %s, %s, %s', s(sFl + 4), v(lZ + 1), s(sT))
            A('s_add_u32 %s, %s, 1', s(sT), s(sT))
            A('v_readlane_b32 %s, %s, %s', s(sFl + 5), v(lZ + 1), s(sT))
            A('s_add_u32 %s, %s, 1', s(sT + 2), s(sT + 2))
            A('s_cmp_lt_u32 %s, 0x%x', s(sT + 2), SPIN_MAX)
            A('s_cbranch_scc1 L_chk')
            A.label('L_chk_ok')
            if OPT['prof']:
                A('v_writelane_b32 v255, %s, 59', s(sT + 2))
            for k in range(1, 4):
                A('s_xor_b32 %s, %s, %s', s(sFl + k), s(sFl + k), s(sFl))
            A('s_or_b32 %s, %s, %s', s(sT), s(sFl + 1), s(sFl + 2))
            A('s_or_b32 %s, %s, %s', s(sLocal), s(sT), s(sFl + 3))
            if OPT['force_remote']:
                A('s_mov_b32 %s, 1', s(sLocal))
            A('v_mov_b32 %s, %s', v(lZ), s(sLocal))
            A('ds_write_b32 %s, %s offset:8', v(vSt), v(lZ))
    assert nxt == len(groups)

    for r in (sIss, sLand, sMa, sMb):
        A('s_mov_b32 %s, 0', s(r))
    A('s_mov_b32 %s, %d', s(sDone), 1 if OPT['off3'] else 0)
    if OPT['prof'] == 4:
        A('s_mov_b32 s42, 0')
        A('s_mov_b32 s93, 0')
    A('s_branch L_tail')


def qproj(A, vacc, vWa, vBa, vWb, vBb):
    L = Lds(A)
    FA = [[0 + 16 * p + 4 * mt for mt in range(4)] for p in range(2)]
    FB = [32, 36]

    def reads(ks):
        p = ks & 1
        out = [('ds_read_b128 %s, %s offset:%d' % (a(FB[p], 4), v(vBa + ks), 16384), ('B', ks))]
        for mt in range(4):
            for aa in range(2):
                out.append(('ds_read_b64_tr_b16 %s, %s offset:%d' % (a(FA[p][mt] + 2 * aa, 2), v(vWa + mt), (16 * ks + 4 * aa) * 256), ('A', ks, mt)))
        return out

    def addr_w():
        return ['v_add_u32 %s, %s, %s' % (v(vWa + mt), s(sSlot), v(vWb + mt)) for mt in range(4)]

    def addr_b():
        return ['v_add_u32 %s, %s, %s' % (v(vBa), s(sSlot), v(vBb))] + ['v_xor_b32 %s, %d, %s' % (v(vBa + k), 32 * k, v(vBa)) for k in range(1, 4)]

    def mfma(ks, mt):
        p = ks & 1
        L.need(('B', ks), ('A', ks, mt))
        A('%s %s, %s, %s, %s', MFMA, v(vacc + 16 * mt, 16), a(FA[p][mt], 4), a(FB[p], 4), v(vacc + 16 * mt, 16))

    A('s_mov_b32 %s, 0', s(sCnt))
    for o in addr_w() + addr_b():
        A(o)
    A('s_barrier')
    for t, tag in reads(0):
        L.read(t, tag)
    q0 = list(L.q)
    A.label('L_qp')
    for ks in range(3):
        nxt = reads(ks + 1)
        for mt in range(4):
            mfma(ks, mt)
            for t, tag in nxt[3 * mt:3 * mt + 3]:
                L.read(t, tag)
            if ks == 2 and mt == 3:
                A('s_add_u32 %s, %s, 0x%x', s(sSlot), s(sSlot), WSTR)
                A('s_cmp_eq_u32 %s, 0x%x', s(sSlot), WSTR * 5)
                A('s_cselect_b32 %s, 0, %s', s(sSlot), s(sSlot))
                for o in addr_w()[:2] + addr_b()[:1]:
                    A(o)
    qs = list(L.q)
    A('s_add_u32 %s, %s, 1', s(sCnt), s(sCnt))
    A('s_cmp_eq_u32 %s, 8', s(sCnt))
    A('s_cbranch_scc1 L_qp_last')
    nxt = reads(0)
    extra = [addr_w()[2:], addr_b()[1:], [], []]
    for mt in range(4):
        mfma(3, mt)
        if mt == 0:
            if OPT['strict']:
                L.drain()
            stampd(A, 32, 2)
            A('s_barrier')
            stampd(A, 33, 2)
        for t, tag in nxt[3 * mt:3 * mt + 3]:
            L.read(t, tag)
        for o in extra[mt]:
            A(o)
    assert L.q == q0, (L.q, q0)
    A('s_branch L_qp')
    A.label('L_qp_last')
    L.q = qs
    for mt in range(4):
        mfma(3, mt)


def compute(A):
    vQ, vO, vS, vP = 4, 36, 100, 164
    vWb, vXb, vWa, vXa = 196, 200, 201, 205
    vKb, vKa, vVb, vVa = 209, 210, 218, 222
    vM, vL, vT, vOb, vOa, vD, vO3 = 226, 228, 230, 238, 239, 244, 246
    if OPT['pfcode'] == 1:
        A('s_cmp_lg_u32 %s, 1', s(sWave))
        A('s_cbranch_scc1 L_nopf')
        A('s_getpc_b64 %s', s(sT + 2, 2))
        A.label('L_pc')
        A('s_sub_u32 %s, %s, L_pc-%s_kernel', s(sT + 2), s(sT + 2), NAME)
        A('s_subb_u32 %s, %s, 0', s(sT + 3), s(sT + 3))
        A('s_lshr_b32 %s, s2, 3', s(sT))
        A('s_lshl_b32 %s, %s, 10', s(sT), s(sT))
        A('v_lshl_add_u32 %s, v1, 7, %s', v(vT), s(sT))
        A('v_min_u32 %s, L_end-%s_kernel, %s', v(vT), NAME, v(vT))
        A('s_mov_b64 exec, 0xff')
        A('global_load_dword v250, %s, %s', v(vT), s(sT + 2, 2))
        A('s_mov_b64 exec, -1')
        A.label('L_nopf')
    A('s_waitcnt lgkmcnt(0)')
    tail_srds(A)
    tr_lane_bases(A, vWb, 8, True, vT)
    A('v_and_b32 %s, 31, v1', v(vT))
    A('s_lshl_b32 %s, %s, 5', s(sT), s(sWave))
    A('v_add_u32 %s, %s, %s', v(vT), s(sT), v(vT))
    A('v_bfe_u32 %s, %s, 1, 3', v(vT + 1), v(vT))
    A('v_lshrrev_b32 %s, 5, v1', v(vT + 2))
    A('v_xor_b32 %s, %s, %s', v(vT + 1), v(vT + 1), v(vT + 2))
    A('v_lshlrev_b32 %s, 4, %s', v(vT + 1), v(vT + 1))
    A('v_lshl_add_u32 %s, %s, 7, %s', v(vXb), v(vT), v(vT + 1))
    A('v_and_b32 %s, 31, v1', v(vT))
    A('v_and_b32 %s, 15, v1', v(vT + 1))
    A('v_xor_b32 %s, %s, %s', v(vT + 1), v(vT + 1), v(vT + 2))
    A('v_lshlrev_b32 %s, 4, %s', v(vT + 1), v(vT + 1))
    A('v_lshl_add_u32 %s, %s, 8, %s', v(vKb), v(vT), v(vT + 1))
    A('v_add_u32 %s, 0x4000, %s', v(vKb), v(vKb))
    tr_lane_bases(A, vVb, 4, False, vT)
    for mt in range(4):
        A('v_add_u32 %s, 0x4000, %s', v(vVb + mt), v(vVb + mt))
    wo_lane_base(A, vOb, vT)
    A('v_xor_b32 %s, 3, %s', v(vT + 2), v(vT + 1))
    A('v_lshl_add_u32 %s, %s, 6, %s', v(vO3), v(vT + 2), v(vT))
    for i in range(0, 64, 2):
        A('v_mov_b64 %s, 0', v(vS + i, 2))
    for i in range(0, 64, 2):
        A('v_mov_b64 %s, 0', v(vO + i, 2))
    A('v_mov_b32 %s, 0xff800000', v(vM))
    A('v_mov_b64 %s, 0', v(vL, 2))
    A('v_mov_b32 %s, 0', v(vT + 4))
    A('s_mov_b32 %s, 0x%x', s(sC), C_SCALE)
    A('s_mov_b32 %s, 0x%x', s(sC + 1), C_SCALE)
    A('s_mov_b32 %s, 0', s(sSlot))
    for i in range(3):
        A('s_mov_b32 %s, 0x%x', s(sS0 + i), KVS[(0, 2, 1)[i]])
    stamp(A, 1)
    stamp(A, 60, 's_memtime')
    qproj(A, vS, vWa, vXa, vWb, vXb)
    burn(A, 'q', OPT['probe_q'])
    stamp(A, 2)
    stamp(A, 61, 's_memtime')
    L = Lds(A)
    vAl = vT + 4
    vMx = vT
    NL, NE = OPT['nl'], OPT['ne']
    KF = [[32 * p + 4 * k for k in range(8)] for p in range(2)]
    VF = [[64 + 16 * p + 4 * mt for mt in range(4)] for p in range(2)]
    sKs, sVs, sNs = sS0, sS1, sS2

    def kread(t, k):
        return ('ds_read_b128 %s, %s offset:%d' % (a(KF[t & 1][k], 4), v(vKa + k), 8192 * t), ('K', t, k))

    def kaddr(slot):
        return ['v_add_u32 %s, %s, %s' % (v(vKa), s(slot), v(vKb))] + ['v_xor_b32 %s, %d, %s' % (v(vKa + k), 32 * k, v(vKa)) for k in range(1, 8)]

    def kstart():
        stampd(A, 6, 4)
        A('s_barrier')
        stampd(A, 7, 4)
        for k in range(8):
            L.read(*kread(0, k))

    A('s_mov_b32 %s, 0', s(sCnt))
    for o in kaddr(sKs):
        A(o)
    kstart()
    for i in range(32):
        A('v_cvt_pk_bf16_f32 %s, %s, %s', v(vQ + i), v(vS + 2 * i), v(vS + 2 * i + 1))
    q_att = list(L.q)
    A.label('L_att')

    def max_ops(t):
        r = vS + 16 * t
        ops = []
        if t == 0:
            ops.append('v_max3_f32 %s, %s, %s, %s' % (v(vMx), v(r), v(r + 1), v(vM)))
            rest = range(2, 16, 2)
        else:
            rest = range(0, 16, 2)
        for i in rest:
            ops.append('v_max3_f32 %s, %s, %s, %s' % (v(vMx), v(r + i), v(r + i + 1), v(vMx)))
        return ops

    fill = ['v_mul_f32 %s, %s, %s' % (v(vO + i), v(vAl), v(vO + i)) for i in range(64)]
    fill += ['v_add_u32 %s, %s, %s' % (v(vOa), s(sKs), v(vOb))]
    fill += ['v_add_u32 %s, %s, %s' % (v(vVa + mt), s(sVs), v(vVb + mt)) for mt in range(4)]
    fill3 = kaddr(sNs)
    for t in range(4):
        mo = max_ops(t - 1) if t > 0 else []
        if t == 3:
            fill += fill3
        for k in range(8):
            if k % 2 == 0 or not OPT['pw']:
                L.need(('K', t, k + 1 if OPT['pw'] else k))
            A('%s %s, %s, %s, %s', MFMA, v(vS + 16 * t, 16), a(KF[t & 1][k], 4), v(vQ + 4 * k, 4), '0' if k == 0 else v(vS + 16 * t, 16))
            if t < 3:
                L.read(*kread(t + 1, k))
            if k >= 4 and mo:
                for o in mo[:2]:
                    A(o)
                mo = mo[2:]
                n = 1 if t < 3 else 2
            else:
                n = 3 if t < 3 else 4
            for o in fill[:n]:
                A(o)
            fill = fill[n:]
        assert not mo
    assert not fill, fill

    def wo_switch(tag, cases):
        for n, (c, t) in enumerate(cases):
            last = n == len(cases) - 1
            if not last:
                A('s_cmp_lg_u32 %s, %d', s(sCnt), c)
                A('s_cbranch_scc1 L_wo%s%d', tag, n + 1)
            wo_reads(A, t >> 1, t & 1, vOa)
            if not last:
                A('s_branch L_wo%sdone', tag)
                A.label('L_wo%s%d' % (tag, n + 1))
        A.label('L_wo%sdone' % tag)

    wo_switch('a', [(c, STEPS.index('K%d' % c)) for c in range(4)])
    for o in max_ops(3):
        A(o)
    A('v_mov_b32 %s, %s', v(vT + 1), v(vMx))
    A('v_add_u32 %s, %s, %s', v(vOa), s(sVs), v(vOb))
    A('v_permlane32_swap_b32 %s, %s', v(vT + 1), v(vMx))
    A('v_max_f32 %s, %s, %s', v(vMx), v(vMx), v(vT + 1))
    A('v_mul_f32 %s, %s, %s', v(vT + 2), s(sC), v(vMx))
    A('v_fma_f32 %s, %s, %s, -%s', v(vT + 3), v(vM), s(sC), v(vT + 2))
    A('v_exp_f32 %s, %s', v(vAl), v(vT + 3))
    A('v_mov_b32 %s, %s', v(vM), v(vMx))
    burn(A, 'k', OPT['probe_k'])
    fma = lambda i: A('v_pk_fma_f32 %s, %s, %s, %s op_sel_hi:[1,1,0] neg_lo:[0,0,1] neg_hi:[0,0,1]', v(vS + i, 2), v(vS + i, 2), s(sC, 2), v(vT + 2, 2))
    fma1 = lambda i: A('v_fma_f32 %s, %s, %s, -%s', v(vS + i), v(vS + i), s(sC), v(vT + 2))

    def part(lo, hi, dst, pre=None):
        fma(lo)
        A(pre if pre else 's_nop 0')
        for i in range(lo, hi, 2):
            if i + 2 < hi:
                fma(i + 2)
            A('v_exp_f32 %s, %s', v(vS + i), v(vS + i))
            A('v_exp_f32 %s, %s', v(vS + i + 1), v(vS + i + 1))
            if i > lo:
                A('v_pk_add_f32 %s, %s, %s', v(vL, 2), v(vL, 2), v(vS + i - 2, 2))
                A('v_cvt_pk_bf16_f32 %s, %s, %s', v(dst + (i - lo) // 2 - 1), v(vS + i - 2), v(vS + i - 1))
        A('v_pk_add_f32 %s, %s, %s', v(vL, 2), v(vL, 2), v(vS + hi - 2, 2))
        A('v_cvt_pk_bf16_f32 %s, %s, %s', v(dst + (hi - lo) // 2 - 1), v(vS + hi - 2), v(vS + hi - 1))

    def copy_p():
        for i in range(0, (64 - NL) // 2, 2):
            A('v_mov_b64 %s, %s', v(vP + NL // 2 + i, 2), v(vS + NL + i, 2))

    part(NL, 64 - NE, vS + NL, 'v_pk_mul_f32 %s, %s, %s op_sel_hi:[1,0]' % (v(vL, 2), v(vL, 2), v(vAl, 2)))
    rest = lambda: part(64 - NE, 64, vS + NL + (64 - NE - NL) // 2)
    A('s_cmp_eq_u32 %s, 0', s(sCnt))
    A('s_waitcnt lgkmcnt(0)')
    A('s_cbranch_scc1 L_first')
    stampd(A, 8, 4)
    A('s_barrier')
    stampd(A, 9, 4)

    def vread(p, mt, buf=None):
        b = VF[p & 1][mt] if buf is None else buf
        return [('ds_read_b64_tr_b16 %s, %s offset:%d' % (a(b + 2 * aa, 2), v(vVa + mt), (16 * p + 8 * aa) * 256), ('V', p, mt)) for aa in range(2)]

    def pv(p, mt, buf=None, wait=None):
        b = VF[p & 1][mt] if buf is None else buf
        if wait is None:
            L.need(('V', p, mt))
        elif wait:
            L.need(wait)
        A('%s %s, %s, %s, %s', MFMA, v(vO + 16 * mt, 16), a(b, 4), v(vP + 4 * p, 4), v(vO + 16 * mt, 16))

    def pv_range(p0, p1, beside=None, first=None):
        n0, n1, LK = 4 * p0, 4 * p1, OPT['lk']
        for n in range(n0, min(n0 + LK, n1)):
            for x in vread(n >> 2, n & 3):
                L.read(*x)
        if first:
            first()
        for n in range(n0, n1):
            pv(n >> 2, n & 3, None, None if not OPT['pw'] else ('V', n >> 2, (n & 3) + 1) if n % 2 == 0 else False)
            if n + LK < n1:
                for x in vread((n + LK) >> 2, (n + LK) & 3):
                    L.read(*x)
            if beside:
                beside(n)

    def late1(g):
        if g < NL:
            A('v_exp_f32 %s, %s', v(vS + g), v(vS + g))
        if g + 1 < NL:
            fma1(g + 1)
        if 1 <= g <= NL:
            A('v_add_f32 %s, %s, %s', v(vL + ((g - 1) & 1)), v(vS + g - 1), v(vL + ((g - 1) & 1)))
        if 3 <= g <= NL + 1 and g & 1:
            q = (g - 3) // 2
            A('v_cvt_pk_bf16_f32 %s, %s, %s', v(vP + q), v(vS + 2 * q), v(vS + 2 * q + 1))

    def late(n):
        for g in range(NL + 2):
            if min(33, g * 32 // NL) == n:
                late1(g)

    def first_v():
        rest()
        fma1(0)
        wo_switch('b', [(c, STEPS.index('V%d' % (c - 1))) for c in (1, 2, 3)])

    pv_range(0, 8, late, first_v)
    assert not L.q
    A('s_cmp_eq_u32 %s, 3', s(sCnt))
    A('s_cbranch_scc1 L_last')
    A('s_add_u32 %s, %s, 1', s(sCnt), s(sCnt))
    kstart()
    late(32)
    late(33)
    copy_p()
    A('s_mov_b32 %s, %s', s(sT), s(sKs))
    A('s_mov_b32 %s, %s', s(sKs), s(sNs))
    A('s_mov_b32 %s, %s', s(sNs), s(sVs))
    A('s_mov_b32 %s, %s', s(sVs), s(sT))
    assert L.q == q_att
    A('s_branch L_att')

    A.label('L_first')
    L.q = []
    part(0, NL, vP)
    A('s_add_u32 %s, %s, 1', s(sCnt), s(sCnt))
    kstart()
    rest()
    copy_p()
    A('s_mov_b32 %s, %s', s(sT), s(sKs))
    A('s_mov_b32 %s, %s', s(sKs), s(sNs))
    A('s_mov_b32 %s, %s', s(sNs), s(sT))
    A('s_branch L_att')

    A.label('L_last')
    L.q = []
    for mt in range(4):
        A('v_add_u32 %s, %s, %s', v(vVa + mt), s(sNs), v(vVb + mt))
    A('v_add_u32 %s, %s, %s', v(vOa), s(sNs), v(vOb))
    stamp(A, 20)
    A('s_barrier')
    stamp(A, 21)

    def final_rescale():
        late(32)
        late(33)
        copy_p()
        for i in range(0, 64, 2):
            A('v_pk_mul_f32 %s, %s, %s op_sel_hi:[1,0]', v(vO + i, 2), v(vO + i, 2), v(vAl, 2))

    pos = 0
    for q, n in enumerate(V3[:-1]):
        if q:
            A('s_barrier')
        pv_range(pos, pos + n, None, final_rescale if q == 0 else None)
        pos += n
        if q == 0:
            if not OPT['olast']:
                wo_reads(A, 3, 1, vOa)
            A('ds_read_b32 %s, %s offset:8', v(vD), v(vSt))
            A('v_add_f32 %s, %s, %s', v(vL), v(vL), v(vL + 1))
            A('v_mov_b32 %s, %s', v(vT), v(vL))
            A('v_permlane32_swap_b32 %s, %s', v(vT), v(vL))
            A('v_add_f32 %s, %s, %s', v(vL), v(vL), v(vT))
            A('v_rcp_f32 %s, %s', v(vT), v(vL))
            A('s_waitcnt lgkmcnt(0)')
            A('v_readfirstlane_b32 %s, %s', s(sLocal), v(vD))
    A('s_lshl_b32 %s, %s, 13', s(sT + 1), s(sWave))
    A('s_mul_i32 %s, s2, 24576', s(sT + 6))
    A('s_add_u32 %s, %s, %s', s(sT + 6), s(sT + 6), s(sT + 1))
    A('s_add_u32 %s, %s, 0x1000', s(sT + 7), s(sT + 6))
    A('s_add_u32 %s, %s, 0x%x', s(sT + 1), s(sT + 1), ROWN)
    A('v_add_u32 %s, %s, %s', v(vT + 2), s(sT + 1), v(vBl))
    A('s_lshl_b32 %s, s2, 8', s(sT + 8))
    A('s_lshl_b32 %s, %s, 2', s(sT + 1), s(sWave))
    A('s_add_u32 %s, %s, %s', s(sT + 8), s(sT + 8), s(sT + 1))
    A('v_mov_b32 %s, 1', v(vT + 4))
    A('v_mov_b32 %s, 0', v(vT + 5))
    A('s_mov_b32 %s, 14', s(sLand))
    A('s_mov_b32 %s, 14', s(sIss))
    variants = ['sc1', OPT['plp']] if OPT['pl'] else [OPT['o_pol'].replace('+', ' ')]
    if OPT['pl']:
        A('s_cmp_eq_u32 %s, 0', s(sLocal))
        A('s_cbranch_scc1 L_pub_local')
    for vi, pol in enumerate(variants):
        if vi == 1:
            A('s_branch L_pub_done')
            A.label('L_pub_local')
        A('s_barrier')
        stamp(A, 3)
        seq = [(mt, p) for mt in range(4) for p in (6, 7)]
        buf = lambda i: 64 + 4 * i
        for i in range(6):
            for x in vread(seq[i][1], seq[i][0], buf(i)):
                L.read(*x)

        def fin(f):
            for i in range(4):
                r = vO + 8 * f + 2 * i
                if f >= 4 or OPT['pkpub']:
                    A('v_pk_mul_f32 %s, %s, %s op_sel_hi:[1,0]', v(r, 2), v(r, 2), v(vT, 2))
                else:
                    A('v_mul_f32 %s, %s, %s', v(r), v(vT), v(r))
                    A('v_mul_f32 %s, %s, %s', v(r + 1), v(vT), v(r + 1))
            for i in range(4):
                r = vO + 8 * f + 2 * i
                A('v_cvt_pk_bf16_f32 %s, %s, %s', v(vS + 4 * f + i), v(r), v(r + 1))
            A('buffer_store_dwordx4 %s, %s, %s, %s offen offset:%d %s', v(vS + 4 * f, 4), v(vBl), s(sO, 4), s(sT + 6 + (f >> 2)), 1024 * (f & 3), pol if OPT['plm'] >> f & 1 else 'sc1')

        for i, (mt, p) in enumerate(seq):
            pv(p, mt, buf(i))
            if i < 2:
                for x in vread(seq[6 + i][1], seq[6 + i][0], buf(6 + i)):
                    L.read(*x)
            if i >= 4:
                fin(i - 4)
        for f in range(4, 8):
            fin(f)
    A.label('L_pub_done')
    stamp(A, 4)
    for f in range(8):
        A('ds_write_b128 %s, %s offset:%d', v(vT + 2), v(vS + 4 * f, 4), 1024 * f)
    A('s_mov_b64 exec, 1')
    A('s_waitcnt lgkmcnt(0)')
    A('ds_add_u32 %s, %s', v(vSt), v(vT + 4))
    A('s_mov_b64 exec, -1')
    if OPT['off3']:
        for f in range(8):
            A('%s %s, %s, %s, %s', MFMA, a(AX, 16), a(96 + 4 * f, 4), v(vS + 4 * f, 4), '0' if f == 0 else a(AX, 16))
        A('s_lshl_b32 %s, %s, 12', s(sT + 1), s(sWave))
        A('v_add_u32 %s, %s, %s', v(vT + 2), s(sT + 1), v(vBl))
        for i in range(4):
            A('ds_write_b128 %s, %s offset:%d', v(vT + 2), a(AX + 4 * i, 4), XFER + 1024 * i)
    A('s_cmp_eq_u32 %s, 0', s(sLocal))
    A('s_mov_b64 exec, 1')
    A('s_waitcnt vmcnt(0) lgkmcnt(0)')
    A('s_cbranch_scc1 L_flag_local')
    A('buffer_store_dword %s, %s, %s, %s offen sc1', v(vT + 4), v(vT + 5), s(sF, 4), s(sT + 8))
    A('s_branch L_flag_done')
    A.label('L_flag_local')
    A('buffer_store_dword %s, %s, %s, %s offen', v(vT + 4), v(vT + 5), s(sF, 4), s(sT + 8))
    A.label('L_flag_done')
    A('ds_add_u32 %s, %s offset:12', v(vSt), v(vT + 4))
    A('s_mov_b64 exec, -1')
    if OPT['touch'] == 4:
        A('v_lshlrev_b32 v251, 7, v1')
        A('buffer_load_dword v250, v251, %s, %s offen', s(sO, 4), s(sT + 6))
    A('s_mov_b32 %s, 0', s(sDone))
    stamp(A, 5)


def tail(A):
    vU = 230
    vB0 = 243
    vTm = 196
    vPk = 212
    NB = 6
    order = [(qt, f) for qt in range(3) for f in range(8)]
    OOB = 0x7f000000

    def fin_ops(qt, pk=True):
        ops = []
        for t in range(2):
            o = 2 * qt + t
            r = vAcc + 8 * o
            if pk:
                for i in range(0, 8, 2):
                    ops.append('v_pk_add_f32 %s, %s, %s' % (v(vTm + i, 2), v(r + i, 2), v(r + 48 + i, 2)))
                    ops.append('v_pk_add_f32 %s, %s, %s' % (v(vTm + 8 + i, 2), v(r + 96 + i, 2), v(r + 144 + i, 2)))
                for i in range(0, 8, 2):
                    ops.append('v_pk_add_f32 %s, %s, %s' % (v(vTm + i, 2), v(vTm + i, 2), v(vTm + 8 + i, 2)))
            else:
                for i in range(8):
                    ops.append('v_add_f32 %s, %s, %s' % (v(vTm + i), v(r + i), v(r + 48 + i)))
                    ops.append('v_add_f32 %s, %s, %s' % (v(vTm + 8 + i), v(r + 96 + i), v(r + 144 + i)))
                for i in range(8):
                    ops.append('v_add_f32 %s, %s, %s' % (v(vTm + i), v(vTm + i), v(vTm + 8 + i)))
            for i in range(4):
                ops.append('v_cvt_pk_bf16_f32 %s, %s, %s' % (v(vPk + 4 * t + i), v(vTm + 2 * i), v(vTm + 2 * i + 1)))
            ops.append('buffer_store_dwordx4 %s, %s, %s, %s offen offset:%d %s' % (v(vPk + 4 * t, 4), v(vBl), s(sPo, 4), s(sPst + o // 3), 1024 * (o % 3), OPT['p_pol'].replace('+', ' ')))
        return ops

    vBn = 242
    sNx, sNb = sT + 2, sT + 3
    REG = [ROWN] + RB

    def pick():
        A('v_readfirstlane_b32 %s, %s', s(sT), v(vU))
        A('v_readfirstlane_b32 %s, %s', s(sT + 1), v(vU + 1))
        A('s_cmp_eq_u32 %s, 3', s(sT))
        A('s_addc_u32 %s, %s, 0', s(sT + 1), s(sT + 1))
        A('s_andn2_b32 %s, %s, %s', s(sT + 1), s(sT + 1), s(sDone))

    def block(j, last):
        L = Lds(A)
        sfx = '%s%d' % ('L' if last else '', j)
        A.label('L_blk' + sfx)
        A('v_add_u32 %s, 0x%x, %s', v(vBn), REG[j], v(vBl))

        def rd(i, base=vB0):
            qt, f = order[i % 24]
            L.read('ds_read_b128 %s, %s offset:%d' % (a(4 * (i % NB), 4), v(base), qt * 8192 + f * 1024), i)

        for i in range(NB - 1):
            rd(i, vBn)
        A.label('L_pre' + sfx)
        A('v_mov_b32 %s, %s', v(vB0), v(vBn))
        if OPT['prof'] == 4:
            A('s_memrealtime s[90:91]')
            A('s_add_u32 m0, %s, 54', s(sCnt))
            A('s_add_u32 %s, %s, 1', s(sCnt), s(sCnt))
            A('s_waitcnt lgkmcnt(0)')
            A('v_writelane_b32 v255, s90, m0')
        A('s_or_b32 %s, %s, %d', s(sDone), s(sDone), 1 << j)
        if j == 3 and OPT['olast']:
            for f in range(4):
                for aa in range(2):
                    L.read('ds_read_b64_tr_b16 %s, %s offset:%d' % (a(AWO + 112 + 4 * f + 2 * aa, 2), v(vW3), KVS[1] + (16 * f + 8 * aa) * 256), ('w', 4 + f))
        others = [k for k in (1, 2, 3, 0) if k != j]
        pend = []
        if last and OPT['off3']:
            xfer(sfx)
        for i, (qt, f) in enumerate(order):
            L.need(i, ('w', f))
            acc = v(vAcc + 48 * j + 16 * qt, 16)
            A('%s %s, %s, %s, %s', MFMA, acc, a(AWO + 32 * j + 4 * f, 4), a(4 * (i % NB), 4), '0' if f == 0 else acc)
            if i + NB - 1 < 24 or not last:
                rd(i + NB - 1, vB0 if i + NB - 1 < 24 else vBn)
            if last:
                if qt > 0 and f == 3:
                    pend += fin_ops(qt - 1, False)
                for o in pend[:OPT['nfin']]:
                    A(o)
                pend = pend[OPT['nfin']:]
                continue
            if i in (5, 11):
                check_land(A, 'b%d_%d' % (j, i))
            if i == 12:
                L.read('ds_read_b64 %s, %s' % (v(vU, 2), v(vSt)), 'st')
            if i == 16:
                L.need('st')
                pick()
            if i == 17:
                A('s_mov_b32 %s, 4', s(sNx))
                A('s_mov_b32 %s, 0x%x', s(sNb), REG[j])
                for k in reversed(others):
                    A('s_bitcmp1_b32 %s, %d', s(sT + 1), k)
                    A('s_cselect_b32 %s, %d, %s', s(sNx), k, s(sNx))
                    A('s_cselect_b32 %s, 0x%x, %s', s(sNb), REG[k], s(sNb))
            if i == 18:
                A('v_add_u32 %s, %s, %s', v(vBn), s(sNb), v(vBl))
                A('s_bcnt1_i32_b32 %s, %s', s(sT), s(sDone))
                A('s_cmp_eq_u32 %s, 3', s(sT))
                A('s_cselect_b32 %s, 8, 0', s(sT))
                A('s_add_u32 %s, %s, %s', s(sNx), s(sNx), s(sT))
                if OPT['nochain']:
                    A('s_cmp_eq_u32 %s, 14', s(sIss))
                    A('s_cselect_b32 %s, %s, 4', s(sNx), s(sNx))
        if OPT['prof'] == 2:
            stampd(A, 49, 2)
            A('s_add_u32 %s, %s, 1', s(sCnt), s(sCnt))
        if last:
            stamp(A, 25)
            for o in pend:
                A(o)
            A('s_branch L_sum')
            return
        for k in others:
            A('s_cmp_eq_u32 %s, %d', s(sNx), k)
            A('s_cbranch_scc1 L_pre%d', k)
        for k in others:
            A('s_cmp_eq_u32 %s, %d', s(sNx), 8 + k)
            A('s_cbranch_scc1 L_preL%d', k)
        A('s_waitcnt lgkmcnt(0)')
        A('s_branch L_loop')

    def xfer(tag):
        A('s_cmp_lg_u32 %s, 3', s(sWave))
        A('s_cbranch_scc1 L_xd%s', tag)
        A.label('L_xf' + tag)
        A('ds_read_b32 %s, %s offset:12', v(vU), v(vSt))
        for i in range(12):
            A('ds_read_b128 %s, %s offset:%d', v(vAcc + 4 * i, 4), v(vBl), XFER + 1024 * i)
        A('s_add_u32 %s, %s, 1', s(sT + 7), s(sT + 7))
        A('s_waitcnt lgkmcnt(0)')
        A('v_readfirstlane_b32 %s, %s', s(sT), v(vU))
        A('s_cmp_ge_u32 %s, 0x%x', s(sT + 7), SPIN_MAX)
        A('s_cbranch_scc1 L_xd%s', tag)
        A('s_cmp_lg_u32 %s, 3', s(sT))
        A('s_cbranch_scc1 L_xf%s', tag)
        A.label('L_xd' + tag)

    A.label('L_tail')
    stamp(A, 23)
    A('s_and_b32 %s, s2, 0xf8', s(sT))
    A('s_lshl_b32 %s, %s, 1', s(sT + 1), s(sWave))
    A('s_add_u32 %s, %s, %s', s(sT + 10), s(sT), s(sT + 1))
    A('s_mul_i32 %s, %s, 24576', s(sT), s(sT + 10))
    A('s_mul_i32 %s, %s, 3072', s(sT + 1), s(sHg))
    A('s_add_u32 %s, %s, %s', s(sPst), s(sT), s(sT + 1))
    A('s_add_u32 %s, %s, 24576', s(sPst + 1), s(sPst))
    A('s_mov_b32 %s, 0', s(sCnt))
    A('s_mov_b32 %s, 0', s(sT + 7))
    A('s_mov_b32 %s, 0', s(sT + 6))
    if OPT['lim'] == 2:
        A('s_branch L_status')
    A.label('L_loop')
    A('s_cmp_eq_u32 %s, 14', s(sIss))
    A('s_cbranch_scc1 L_nodisc')
    if not OPT['vpoll']:
        A('s_cmp_lg_u32 %s, 0', s(sLocal))
        A('s_cbranch_scc1 L_disc_v')
        for j in range(1, 4):
            A('s_load_dwordx4 %s, %s, %s glc', s(sFl + 4 * (j - 1), 4), s(sFb, 2), s(sFo + j - 1))
        A('s_waitcnt lgkmcnt(0)')
        A('s_mov_b32 %s, 0', s(sT))
        for j in range(1, 4):
            q = sFl + 4 * (j - 1)
            A('s_and_b32 %s, %s, %s', s(q), s(q), s(q + 1))
            A('s_and_b32 %s, %s, %s', s(q), s(q), s(q + 2))
            A('s_cmp_eq_u32 %s, 1', s(q))
            A('s_cselect_b32 %s, %d, 0', s(q), 1 << j)
            A('s_or_b32 %s, %s, %s', s(sT), s(sT), s(q))

    def issue_new(tag, pol):
        A('s_andn2_b32 %s, %s, %s', s(sT), s(sT), s(sIss))
        for j in range(1, 4):
            A('s_bitcmp1_b32 %s, %d', s(sT), j)
            A('s_cbranch_scc0 L_p%s_n%d', tag, j)
            if OPT['lim']:
                A('s_cmp_%s_u32 %s, %s', 'ge' if OPT['lim'] == 2 else 'gt', s(sIss), s(sT + 6))
                A('s_cbranch_scc1 L_nodisc')
            stampd(A, 40, 2, 42, 4)
            A('s_mov_b32 m0, 0x%x', RB[j - 1])
            A('s_mov_b32 %s, %s', s(sMb), s(sMa))
            A('s_mov_b32 %s, %s', s(sMa), s(sIss))
            A('s_or_b32 %s, %s, %d', s(sIss), s(sIss), 1 << j)
            for g in range(6):
                if g:
                    A('s_addk_i32 m0, 0x1000')
                    A('s_addk_i32 %s, 0x1000', s(sT + 10 + j))
                dma(A, [vBl] * 4, sO, sT + 10 + j, pol)
            stampd(A, 41, 2, 42, 4)
            if OPT['prof'] == 4:
                A('s_add_u32 s42, s42, 1')
            A.label('L_p%s_n%d' % (tag, j))

    if not OPT['vpoll']:
        issue_new('l', OPT['ldma'])
        A('s_branch L_nodisc')
    A.label('L_disc_v')
    A('buffer_load_dword %s, %s, %s, 0 offen sc1', v(lP + 1), v(lP), s(sF, 4))
    A('s_waitcnt vmcnt(0)')
    A('v_cmp_eq_u32 vcc, 1, %s', v(lP + 1))
    A('s_mov_b32 %s, 0', s(sT))
    for j in range(1, 4):
        A('s_bfe_u32 %s, vcc_lo, 0x%x', s(sT + 1), (4 << 16) | (4 * (j - 1)))
        A('s_cmp_eq_u32 %s, 15', s(sT + 1))
        A('s_cselect_b32 %s, %d, 0', s(sT + 1), 1 << j)
        A('s_or_b32 %s, %s, %s', s(sT), s(sT), s(sT + 1))
    issue_new('v', 'sc1')
    A.label('L_nodisc')
    check_land(A, 'l')
    A.label('L_status')
    A('ds_read_b128 %s, %s', v(vU, 4), v(vSt))
    A('s_waitcnt lgkmcnt(0)')
    A('v_readfirstlane_b32 %s, %s', s(sT + 6), v(vU + 3))
    A('s_cmp_eq_u32 %s, 3', s(sT + 6))
    A('s_cselect_b32 %s, 15, %d', s(sT + 6), 0)
    pick()
    if OPT['mgr1']:
        A('s_cmp_eq_u32 %s, 14', s(sIss))
        A('s_cselect_b32 %s, %s, 0', s(sT + 1), s(sT + 1))
    A('s_bcnt1_i32_b32 %s, %s', s(sT), s(sDone))
    A('s_cmp_eq_u32 %s, 3', s(sT))
    A('s_cbranch_scc1 L_dispL')
    for j in (1, 2, 3, 0):
        A('s_bitcmp1_b32 %s, %d', s(sT + 1), j)
        A('s_cbranch_scc1 L_blk%d', j)
    A('s_branch L_none')
    A.label('L_dispL')
    for j in (1, 2, 3, 0):
        A('s_bitcmp1_b32 %s, %d', s(sT + 1), j)
        A('s_cbranch_scc1 L_blkL%d', j)
    A.label('L_none')
    if OPT['slp1']:
        A('s_sleep %d', OPT['slp1'])
    A('s_add_u32 %s, %s, 1', s(sT + 7), s(sT + 7))
    A('s_cmp_lt_u32 %s, 0x%x', s(sT + 7), SPIN_MAX)
    A('s_cbranch_scc1 L_loop')
    A('s_branch L_sum')
    for j in (0, 1, 2, 3):
        block(j, False)
    for j in (0, 1, 2, 3):
        block(j, True)

    A.label('L_sum')
    A('s_lshl_b32 %s, %s, 8', s(sT + 2), s(sT + 10))
    A('s_lshl_b32 %s, %s, 2', s(sT + 1), s(sHg))
    A('s_add_u32 %s, %s, %s', s(sT + 2), s(sT + 2), s(sT + 1))
    A('v_lshlrev_b32 %s, 8, v1', v(vU + 1))
    A('v_mov_b32 %s, 1', v(vU))
    for o in fin_ops(2):
        A(o)
    stamp(A, 26)
    if OPT['f2']:
        A('s_mov_b64 exec, 1')
        A('s_waitcnt vmcnt(3)')
        A('buffer_store_dword %s, %s, %s, %s offen offset:128 sc1', v(vU), v(vU + 1), s(sF, 4), s(sT + 2))
        A('s_mov_b64 exec, 2')
        A('s_waitcnt vmcnt(1)')
    else:
        A('s_mov_b64 exec, 3')
        A('s_waitcnt vmcnt(0)')
    A('buffer_store_dword %s, %s, %s, %s offen offset:128 sc1', v(vU), v(vU + 1), s(sF, 4), s(sT + 2))
    A('s_mov_b64 exec, -1')
    stamp(A, 27)
    A('s_cmp_lg_u32 %s, 3', s(sWave))
    A('s_cbranch_scc1 L_red')
    if OPT['clean']:
        A('s_cmp_lg_u32 %s, 0', s(sLocal))
        A('s_cbranch_scc1 L_noclean')
        A('v_add_u32 %s, 0x%x, %s', v(vB0), ROWN, v(vBl))
        A('s_mul_i32 %s, s2, 24576', s(sT))
        for h in range(2):
            for i in range(12):
                A('ds_read_b128 %s, %s offset:%d', v(4 + 48 * h + 4 * i, 4), v(vB0), 1024 * (12 * h + i))
            A('s_waitcnt lgkmcnt(0)')
            for i in range(12):
                A('buffer_store_dwordx4 %s, %s, %s, %s offen offset:%d sc1', v(4 + 48 * h + 4 * i, 4), v(vBl), s(sO, 4), s(sT), 1024 * (i & 3))
                if i & 3 == 3:
                    A('s_addk_i32 %s, 0x1000', s(sT))
        A.label('L_noclean')
    stamp_flush(A)
    A('s_endpgm')

    A.label('L_red')
    vR, vF = 4, 40
    sGot, sLd2, sNew, sSp = sT + 6, sT + 7, sT + 8, sT + 9
    A('s_mul_i32 %s, s2, 24576', s(sT))
    A('s_lshl_b32 %s, %s, 10', s(sT + 1), s(sWave))
    A('s_add_u32 %s, %s, %s', s(sT), s(sT), s(sT + 1))
    A('s_lshl_b32 %s, s2, 8', s(sT + 3))
    A('v_and_b32 %s, 7, v1', v(vU))
    A('v_lshlrev_b32 %s, 2, %s', v(vU), v(vU))
    A('s_mov_b32 %s, 0', s(sGot))
    A('s_mov_b32 %s, 0', s(sLd2))
    A('s_mov_b32 %s, 0', s(sSp))
    A('buffer_load_dword %s, %s, %s, %s offen offset:128 sc1', v(vU + 1), v(vU), s(sF, 4), s(sT + 3))
    A('s_and_b32 %s, %s, 1', s(sT + 1), s(sHg))
    A('s_mul_i32 %s, %s, 3', s(sT + 1), s(sT + 1))
    A('s_add_u32 %s, %s, %s', s(sT + 1), s(sT + 1), s(sWave))
    A('s_lshr_b32 %s, %s, 1', s(sT + 2), s(sT + 1))
    A('s_lshl_b32 %s, %s, 15', s(sT + 2), s(sT + 2))
    A('s_and_b32 %s, %s, 1', s(sT + 1), s(sT + 1))
    A('s_lshl_b32 %s, %s, 5', s(sT + 1), s(sT + 1))
    A('s_add_u32 %s, %s, %s', s(sT + 2), s(sT + 2), s(sT + 1))
    A('s_lshr_b32 %s, %s, 1', s(sT + 1), s(sHg))
    if OPT['sp'] == 1:
        A('s_lshr_b32 %s, %s, 1', s(sT + 4), s(sT + 1))
        A('s_lshl_b32 %s, %s, 9', s(sT + 4), s(sT + 4))
        A('s_add_u32 %s, %s, %s', s(sT + 2), s(sT + 2), s(sT + 4))
        A('s_and_b32 %s, %s, 1', s(sT + 1), s(sT + 1))
    A('s_lshl_b32 %s, %s, %d', s(sT + 1), s(sT + 1), 8 if OPT['sp'] == 2 else 6)
    A('s_add_u32 %s, %s, %s', s(sT + 2), s(sT + 2), s(sT + 1))
    A('s_xor_b32 %s, %s, %d', s(sT + 1), s(sHh), OPT['cx'])
    A('s_lshl_b32 %s, %s, %d', s(sT + 1), s(sT + 1), 8 - OPT['sp'])
    A('s_add_u32 %s, %s, %s', s(sT + 2), s(sT + 2), s(sT + 1))
    A('v_and_b32 %s, 31, v1', v(vU + 2))
    A('v_lshlrev_b32 %s, 10, %s', v(vU + 2), v(vU + 2))
    A('v_lshrrev_b32 %s, 5, v1', v(vU + 3))
    A('v_lshl_add_u32 %s, %s, 4, %s', v(vU + 2), v(vU + 3), v(vU + 2))
    A.label('L_p2')
    A('s_waitcnt vmcnt(0)')
    A('v_cmp_eq_u32 vcc, 1, %s', v(vU + 1))
    A('s_andn2_b32 %s, %s, %s', s(sT + 4), s(sGot), s(sLd2))
    A('s_mov_b32 %s, %s', s(sLd2), s(sGot))
    A('s_and_b32 %s, vcc_lo, 0xff', s(sNew))
    if not OPT['early2']:
        A('s_cmp_eq_u32 %s, 0xff', s(sNew))
        A('s_cselect_b32 %s, 0xff, 0', s(sNew))
    A('s_andn2_b32 %s, %s, %s', s(sNew), s(sNew), s(sGot))
    A('s_cbranch_scc0 L_p2_noload')
    A('s_or_b32 %s, %s, %s', s(sGot), s(sGot), s(sNew))
    for k in range(8):
        A('s_bitcmp1_b32 %s, %d', s(sNew), k)
        A('s_cbranch_scc0 L_p2_l%d', k)
        if k < 2:
            A('buffer_load_dwordx4 %s, %s, %s, %s offen offset:%d sc1', v(vR + 4 * k, 4), v(vBl), s(sPo, 4), s(sT), 3072 * k)
        else:
            A('s_add_u32 %s, %s, 0x%x', s(sT + 1), s(sT), 3072 * k)
            A('buffer_load_dwordx4 %s, %s, %s, %s offen sc1', v(vR + 4 * k, 4), v(vBl), s(sPo, 4), s(sT + 1))
        A.label('L_p2_l%d' % k)
    A.label('L_p2_noload')
    A('s_cmp_eq_u32 %s, 0xff', s(sGot))
    A('s_cbranch_scc1 L_p2_nopoll')
    if OPT['slp2']:
        A('s_sleep %d', OPT['slp2'])
    A('buffer_load_dword %s, %s, %s, %s offen offset:128 sc1', v(vU + 1), v(vU), s(sF, 4), s(sT + 3))
    A.label('L_p2_nopoll')
    A('s_cmp_eq_u32 %s, 0', s(sT + 4))
    A('s_cbranch_scc1 L_p2_nounp')
    for k in range(8):
        A('s_bitcmp1_b32 %s, %d', s(sT + 4), k)
        A('s_cbranch_scc0 L_p2_u%d', k)
        for i in range(4):
            A('v_lshlrev_b32 %s, 16, %s', v(vF + 8 * k + 2 * i), v(vR + 4 * k + i))
            A('v_and_b32 %s, 0xffff0000, %s', v(vF + 8 * k + 2 * i + 1), v(vR + 4 * k + i))
        A.label('L_p2_u%d' % k)
    A.label('L_p2_nounp')
    A('s_cmp_eq_u32 %s, 0xff', s(sLd2))
    A('s_cbranch_scc1 L_p2_done')
    A('s_add_u32 %s, %s, 1', s(sSp), s(sSp))
    A('s_cmp_lt_u32 %s, 0x%x', s(sSp), SPIN_MAX)
    A('s_cbranch_scc1 L_p2')
    A('s_waitcnt vmcnt(0)')
    A.label('L_p2_done')
    burn(A, 't', OPT['probe_t'])
    stamp(A, 28)
    for step in (8, 16, 32):
        for k in range(0, 64, 2 * step):
            for i in range(0, 8, 2):
                A('v_pk_add_f32 %s, %s, %s', v(vF + k + i, 2), v(vF + k + i, 2), v(vF + k + step + i, 2))
    for i in range(4):
        A('v_cvt_pk_bf16_f32 %s, %s, %s', v(vR + i), v(vF + 2 * i), v(vF + 2 * i + 1))
    if not OPT['noout']:
        A('buffer_store_dwordx4 %s, %s, %s, %s offen %s', v(vR, 4), v(vU + 2), s(sOut, 4), s(sT + 2), OPT['out_pol'])
    if OPT['prof']:
        A('s_waitcnt vmcnt(0)')
        stamp(A, 29)
        stamp_flush(A)


def kernel():
    A = Asm()
    A('s_cmp_ge_u32 s2, 256')
    A('s_cbranch_scc1 L_end')
    if OPT['prof']:
        A('s_memrealtime s[92:93]')
    A('s_load_dwordx4 s[4:7], s[0:1], 0')
    A('s_load_dwordx4 s[8:11], s[0:1], 16')
    A('s_load_dwordx4 s[12:15], s[0:1], 32')
    A('s_load_dwordx4 s[16:19], s[0:1], 48')
    A('v_and_b32 v1, 63, v0')
    if OPT['pfcode'] == 2:
        A('s_getpc_b64 %s', s(sT + 2, 2))
        A.label('L_pc')
        A('s_lshr_b32 %s, s2, 3', s(sT))
        A('s_lshl_b32 %s, %s, 10', s(sT), s(sT))
        A('v_lshl_add_u32 v2, v1, 7, %s', s(sT))
        A('v_min_u32 v2, L_end-L_pc, v2')
        A('s_mov_b64 exec, 0xff')
        A('global_load_dword v250, v2, %s', s(sT + 2, 2))
        A('s_mov_b64 exec, -1')
    A('v_lshrrev_b32 v2, 6, v0')
    A('v_readfirstlane_b32 %s, v2', s(sWave))
    if OPT['prof']:
        A('v_mov_b32 v255, 0')
        A('s_waitcnt lgkmcnt(0)')
        A('v_writelane_b32 v255, s92, 0')
        stamp(A, 58)
    if OPT['badmap']:
        A('s_and_b32 s3, s2, 31')
        A('s_lshl_b32 s3, s3, 3')
        A('s_lshr_b32 s2, s2, 5')
        A('s_or_b32 s2, s2, s3')
    A('s_and_b32 %s, s2, 7', s(sHg))
    A('s_bfe_u32 %s, s2, 0x30003', s(sB))
    A('s_lshr_b32 %s, s2, 6', s(sHh))
    if OPT['hx']:
        A('s_xor_b32 %s, %s, %d', s(sHh), s(sHh), OPT['hx'])
    A('s_lshl_b32 %s, %s, 2', s(sH), s(sHg))
    A('s_add_u32 %s, %s, %s', s(sH), s(sH), s(sHh))
    A('s_lshl_b32 %s, %s, 1', s(sRot), s(sHh))
    A('s_add_u32 %s, %s, %s', s(sRot), s(sRot), s(sB))
    A('s_cmp_lg_u32 %s, 3', s(sWave))
    A('s_cbranch_scc1 L_compute')
    loader(A)
    A.label('L_compute')
    compute(A)
    tail(A)
    A.label('L_end')
    A('s_endpgm')
    return A.lines


HEADER = """
; standalone__mha_block_cached__near_ridge: out = softmax((x Wq) K^T / sqrt(128)) V Wo in one launch.
; One workgroup per (batch b, head h = 4*hg + hh): wg = hg | b<<3 | hh<<6.  Waves 0-2 own 32 queries each, wave 3 streams
; x / Wq / K / V / Wo into LDS (LDS-DMA, swizzled on the source side).  Everything is computed transposed (queries = MFMA
; Flags are reset by their workgroup and announced in d_debug (byte per workgroup = die id + 1) before anyone trusts them.
; @launch grid=(256,1,1) block=(256,1,1) lds=163840
"""


def main():
    k, n = pad_hazards(kernel())
    out = [HEADER.strip(),
           '.amdgcn_target "amdgcn-amd-amdhsa--gfx950"', '.text',
           '.globl %s_kernel\n.p2align 8\n.type %s_kernel,@function\n%s_kernel:' % (NAME, NAME, NAME)]
    out += k
    out.append('''.section .rodata,"a"
.p2align 6
.amdhsa_kernel %s_kernel
  .amdhsa_next_free_vgpr 512
  .amdhsa_next_free_sgpr 102
  .amdhsa_accum_offset 256
  .amdhsa_group_segment_fixed_size 0
  .amdhsa_kernarg_size 64
  .amdhsa_user_sgpr_count 2
  .amdhsa_user_sgpr_kernarg_segment_ptr 1
  .amdhsa_system_sgpr_workgroup_id_x 1
.end_amdhsa_kernel''' % NAME)
    open(sys.argv[1], 'w').write('\n'.join(out) + '\n')
    print('wrote', sys.argv[1], 'pads', n)


main()
```

```python
import sys
from asmlib import Asm, pad_hazards, v, a, s

OPT = dict(kv_pol='nt', w_pol='', x_pol='', wo_pol='', prof=0, la=8, law='8,11,14,18,21,21,21,21', pfcode=2, force_remote=0, early2=1, ovl=0, cap1=24, la1=10, slp1=0, slp2=0, noout=0, wb=0, badmap=0, probe_t=0, probe_k=0, probe_q=0, pl=0, touch=0, mgr1=0, off3=1, fa=0, fb=0, early_b=1, ckp='5,13,21,29', qpw=0, qs='3330', tpos2=6, tbit=3, f2=1, ne=8, pw=1, v3='4,2,2', olast=1, cx=2, sp=0, nl=24, rsl=1, nochain=1, plm=0xff, kpos=8, kn=5, tpos=2, upos=4, tk=0, tko=0, tkp='', capL=0, capLn=60, clsm=1, lk=6, wskip=0, o_pol='sc1', clean=0, vpoll=1, plp='', lim=0, ldma='', st='0',  xo=0, cap=9, cap0=0, hx=0, nowo=0, rg=1, pkpub=0, strict=0, pkfin=1, nfin=6, dsw=4, ws_off=0, out_pol='', p_pol='sc1')
for arg in sys.argv[2:]:
    k, val = arg.split('=')
    OPT[k] = int(val, 0) if isinstance(OPT[k], int) else val

NAME = 'standalone__mha_block_cached__near_ridge'
C_SCALE = 0x3e0293ee
MFMA = 'v_mfma_f32_32x32x16_bf16'
WS_O, WS_P, WS_F = OPT['ws_off'], OPT['ws_off'] + (6 << 20), OPT['ws_off'] + (12 << 20)
SPIN_MAX = 1 << 20
WSTR = 28672
KVS = [114688, 0, 65536]
RB = [65536, 90112, 114688]
ROWN = 139264
XFER = 53248
AX = 32
STAT = 49152

sX, sK, sV, sW, sWo, sO, sPo, sF, sOut, sDbg = 20, 24, 28, 32, 36, 56, 60, 64, 68, 72
sWave, sHg, sB, sHh, sH, sRot = 40, 41, 43, 44, 45, 46
sSlot, sCnt, sC = 47, 48, 50
sS0, sS1, sS2, sLocal, sSel = 52, 53, 54, 55, 42
sIss, sLand, sDone, sPst = 52, 53, 54, 94
sFo = 99
sT = 76
AWO = 128
vBl = 240
vW3 = 238
vB1, vB2, vOne, vL0 = 242, 243, 248, 249
sF2, sTodo, sRet = 96, 49, 22
vSt = 241
lP = 234
vAcc = 4


class Lds:
    def __init__(self, A):
        self.A = A
        self.q = []

    def read(self, text, tag):
        self.A(text)
        self.q.append(tag)

    def need(self, *tags):
        idx = max([i for i, t in enumerate(self.q) if t in tags], default=-1)
        if idx < 0:
            return
        n = len(self.q) - 1 - idx
        self.A('s_waitcnt lgkmcnt(%d)', min(n, 15))
        self.q = self.q[idx + 1:]

    def drain(self):
        if self.q:
            self.A('s_waitcnt lgkmcnt(0)')
        self.q = []


def srd(A, d, base, off, size):
    if off is None:
        A('s_mov_b32 %s, %s', s(d), s(base))
        A('s_mov_b32 %s, %s', s(d + 1), s(base + 1))
    else:
        A('s_add_u32 %s, %s, %s', s(d), s(base), off)
        A('s_addc_u32 %s, %s, 0', s(d + 1), s(base + 1))
    A('s_mov_b32 %s, %s', s(d + 2), size if isinstance(size, str) else '0x%x' % size)
    A('s_mov_b32 %s, 0x20000', s(d + 3))


def stamp(A, idx, op='s_memrealtime'):
    if not OPT['prof'] or (OPT['prof'] == 9 and idx not in (0, 2, 3, 25, 29, 58)):
        return
    if OPT['prof'] in (3, 4) and idx not in map(int, OPT['st'].split(',')):
        return
    A('%s s[90:91]', op)
    A('s_waitcnt lgkmcnt(0)')
    A('v_writelane_b32 v255, s90, %d', idx)


def stampd(A, base, mul, cnt=None, lvl=2):
    if OPT['prof'] != lvl:
        return
    A('s_memrealtime s[90:91]')
    A('s_mul_i32 m0, %s, %d', s(sCnt if cnt is None else cnt), mul)
    A('s_add_u32 m0, m0, %d', base)
    A('s_waitcnt lgkmcnt(0)')
    A('v_writelane_b32 v255, s90, m0')


def stamp_flush(A):
    if not OPT['prof']:
        return
    A('s_lshl_b32 s92, s2, 2')
    A('s_add_u32 s92, s92, %s', s(sWave))
    A('s_lshl_b32 s92, s92, 8')
    A('s_add_u32 s92, s92, 0x%x', 128 << 20)
    srd(A, 24, 18, 's92', 256)
    A('v_lshlrev_b32 v254, 2, v1')
    A('buffer_store_dword v255, v254, s[24:27], 0 offen')


def dma(A, voffs, srdreg, soff, pol):
    for j in range(4):
        A('buffer_load_dwordx4 %s, %s, %s offen offset:%d %s lds', v(voffs[j]), s(srdreg, 4), s(soff), 1024 * j, pol)


def tr_lane_base(A, vt, hrow, sigma):
    A('v_lshrrev_b32 %s, 5, v1', v(vt))
    A('v_mul_u32_u24 %s, %d, %s', v(vt), hrow, v(vt))
    A('v_bfe_u32 %s, v1, 2, 2', v(vt + 1))
    A('v_add_u32 %s, %s, %s', v(vt), v(vt), v(vt + 1))
    A('v_lshlrev_b32 %s, 8, %s', v(vt), v(vt))
    A('v_bfe_u32 %s, v1, 4, 1', v(vt + 2))
    A('v_lshl_add_u32 %s, %s, 5, %s', v(vt), v(vt + 2), v(vt))
    if sigma:
        A('v_and_b32 %s, 1, v1', v(vt + 2))
        A('v_lshl_add_u32 %s, %s, 4, %s', v(vt), v(vt + 2), v(vt))
        A('v_bfe_u32 %s, v1, 1, 1', v(vt + 2))
        A('v_lshl_add_u32 %s, %s, 3, %s', v(vt), v(vt + 2), v(vt))
    else:
        A('v_and_b32 %s, 3, v1', v(vt + 2))
        A('v_lshl_add_u32 %s, %s, 3, %s', v(vt), v(vt + 2), v(vt))


def tr_lane_bases(A, vdst, hrow, sigma, vt):
    tr_lane_base(A, vt, hrow, sigma)
    for mt in range(4):
        A('v_xor_b32 %s, %d, %s', v(vt + 2), mt, v(vt + 1))
        A('v_lshl_add_u32 %s, %s, 6, %s', v(vdst + mt), v(vt + 2), v(vt))


def wo_lane_base(A, vdst, vt):
    tr_lane_base(A, vt, 4, True)
    A('v_xor_b32 %s, %s, %s', v(vt + 2), s(sWave), v(vt + 1))
    A('v_lshl_add_u32 %s, %s, 6, %s', v(vdst), v(vt + 2), v(vt))


def wo_reads(A, j, half, vaddr):
    for f in range(4):
        for aa in range(2):
            A('ds_read_b64_tr_b16 %s, %s offset:%d', a(AWO + 32 * j + 16 * half + 4 * f + 2 * aa, 2), v(vaddr), (16 * f + 8 * aa) * 256)


sFl, sFb = 4, sF
sAt = 98
sMa, sMb = 96, 97


def check_land(A, tag):
    A('s_cmp_eq_u32 %s, 14', s(sLand))
    A('s_cbranch_scc1 L_cl_%s', tag)
    A('s_getreg_b32 %s, hwreg(HW_REG_IB_STS)', s(sT))
    A('s_and_b32 %s, %s, 15', s(sT + 1), s(sT))
    A('s_bfe_u32 %s, %s, 0x20016', s(sT), s(sT))
    A('s_lshl4_add_u32 %s, %s, %s', s(sT), s(sT), s(sT + 1))
    A('s_cmp_le_u32 %s, 48', s(sT))
    A('s_cselect_b32 %s, %s, 0', s(sT + 1), s(sMb))
    A('s_cmp_le_u32 %s, 24', s(sT))
    A('s_cselect_b32 %s, %s, %s', s(sT + 1), s(sMa), s(sT + 1))
    A('s_cmp_eq_u32 %s, 0', s(sT))
    A('s_cselect_b32 %s, %s, %s', s(sT + 1), s(sIss), s(sT + 1))
    A('s_andn2_b32 %s, %s, %s', s(sT), s(sT + 1), s(sLand))
    A('s_cbranch_scc0 L_cl_%s', tag)
    A('s_or_b32 %s, %s, %s', s(sLand), s(sLand), s(sT + 1))
    A('v_mov_b32 %s, %s', v(lP + 1), s(sLand))
    A('ds_write_b32 %s, %s offset:4', v(vSt), v(lP + 1))
    if OPT['wb']:
        A('s_lshr_b32 %s, s2, 3', s(sT))
        A('s_xor_b32 %s, %s, %d', s(sT), s(sT), OPT['wb'] - 1)
        A('s_lshl_b32 %s, %s, 4', s(sT), s(sT))
        A('s_or_b32 %s, %s, %s', s(sT), s(sT), s(sLand))
        A('s_cmp_eq_u32 %s, 14', s(sT))
        A('s_cbranch_scc0 L_cl_%s', tag)
        A('buffer_wbl2 sc1')
    stampd(A, 50, 1, 93, 4)
    if OPT['prof'] == 4:
        A('s_add_u32 s93, s93, 1')
    A.label('L_cl_%s' % tag)


def burn(A, tag, n):
    if not n:
        return
    A('s_mov_b32 s98, %d', n)
    A.label('L_burn_' + tag)
    for i in range(14):
        A('v_mov_b32 v252, v253')
    A('s_sub_u32 s98, s98, 1')
    A('s_cmp_lg_u32 s98, 0')
    A('s_cbranch_scc1 L_burn_%s', tag)


def flag(A, hf):
    A('s_cmp_eq_u32 %s, 0', s(sLocal))
    A('s_cbranch_scc1 L_fl%d', hf)
    A('buffer_store_dword %s, %s, %s, %s offen offset:%d sc1', v(vOne), v(vL0), s(sF, 4), s(sT + 8), 16 * hf)
    A('s_branch L_fd%d', hf)
    A.label('L_fl%d' % hf)
    A('buffer_store_dword %s, %s, %s, %s offen offset:%d', v(vOne), v(vL0), s(sF, 4), s(sT + 8), 16 * hf)
    A.label('L_fd%d' % hf)


def poll(A, hf):
    A('buffer_load_dword %s, %s, %s, 0 offen offset:%d sc1', v(lP + 1), v(lP), s(sF, 4), 16 * hf)


def copies(A, hf):
    for j in range(1, 4):
        for w in range(3):
            A('s_mov_b32 m0, 0x%x', RB[j - 1] + 8192 * w + 4096 * hf)
            A('s_add_u32 %s, %s, 0x%x', s(sT), s(sT + 10 + j), 8192 * w + 4096 * hf)
            dma(A, [vBl] * 4, sO, sT, 'sc1')


def tail_addr(A):
    A('s_and_b32 %s, s2, 0xf8', s(sT))
    A('s_lshl_b32 %s, %s, 1', s(sT + 1), s(sWave))
    A('s_add_u32 %s, %s, %s', s(sT + 2), s(sT), s(sT + 1))
    A('s_mul_i32 %s, %s, 24576', s(sT), s(sT + 2))
    A('s_mul_i32 %s, %s, 3072', s(sT + 1), s(sHg))
    A('s_add_u32 %s, %s, %s', s(sPst), s(sT), s(sT + 1))
    A('s_add_u32 %s, %s, 24576', s(sPst + 1), s(sPst))
    A('s_lshl_b32 %s, %s, 8', s(sT + 2), s(sT + 2))
    A('s_lshl_b32 %s, %s, 2', s(sT + 1), s(sHg))
    A('s_add_u32 %s, %s, %s', s(sF2), s(sT + 2), s(sT + 1))


def tail_srds(A):
    srd(A, sO, 18, '0x%x' % WS_O if WS_O else None, 256 * 24576)
    srd(A, sPo, 18, '0x%x' % WS_P, 256 * 24576)
    srd(A, sF, 18, '0x%x' % WS_F, 256 * 256)
    srd(A, sDbg, 16, None, 256)
    A('s_mul_i32 %s, %s, 98304', s(sT), s(sB))
    srd(A, sOut, 14, s(sT), 98304)
    A('v_lshlrev_b32 %s, 4, v1', v(vBl))
    A('v_mov_b32 %s, 0x%x', v(vSt), STAT)
    A('v_add_u32 %s, 0x%x, %s', v(vB1), RB[0], v(vBl))
    A('v_add_u32 %s, 0x%x, %s', v(vB2), RB[2], v(vBl))
    A('v_mov_b32 %s, 1', v(vOne))
    A('v_min_u32 %s, 1, v1', v(vL0))
    A('v_lshlrev_b32 %s, 30, %s', v(vL0), v(vL0))


V3 = list(map(int, OPT['v3'].split(',')))
assert sum(V3) == 8 and V3[-1] == 2
STEPS = ['K0', 'K1', 'V0', 'K2', 'V1', 'K3', 'V2', 'V3']


def plan():
    groups = []
    steps = []
    k0 = [('k', 0, g, KVS[0] + 16384 + 4096 * g, 8) for g in range(3, 8)]
    for i in range(8):
        base = WSTR * (i % 5)
        if i == OPT['tpos']:
            groups.append(('t', 0, 0, -1 << 20, 0))
        if i == OPT['tpos2']:
            groups.append(('t', 1, 0, -1 << 20, 0))
        if i == OPT['kpos']:
            groups += k0[:OPT['kn']]
        if i < 8 - OPT['wskip']:
            for g in range(3):
                groups.append(('x', i, g, base + 16384 + 4096 * g, i))
            for g in range(4):
                groups.append(('w', i, g, base + 4096 * g, i))
        steps.append(['W%d' % i, len(groups) - 1, i if OPT['strict'] else i - 1])
    for t, nm in enumerate(STEPS):
        base = KVS[t % 3]
        kv = lambda g: (nm[0].lower(), int(nm[1]), g, base + 16384 + 4096 * g, 8 + t)
        wo = lambda g: ('o', t >> 1, 4 * (t & 1) + g, base + 4096 * g, 8 + t)
        if t == 0:
            seq = k0[OPT['kn'] if OPT['kpos'] < 8 else 0:] + [kv(0), wo(0), kv(1), wo(1), kv(2), wo(2), wo(3)]
        elif t == 7:
            seq = [('h', hf, g, base + 16384 * (1 + hf) + 4096 * g, 15) for hf in range(2) for g in range(4)] + [wo(g) for g in range(4)]
        else:
            seq = []
            for q in range(4):
                seq += [wo(q), kv(2 * q), kv(2 * q + 1)]
        if OPT['nowo']:
            seq = [x for x in seq if x[0] != 'o']
        groups += seq
        if t < 7:
            steps.append([nm, len(groups) - 1, 8 + t])
        else:
            e = len(groups) - 1 - 4
            steps += [['V3a', e - 4, 15], ['V3b', e - 1, 15], ['V3c', e, 15]]
    return steps, groups


def loader(A):
    lX, lW, lK, lV, lWo, lT, lA, lZ, lH = 200, 204, 208, 212, 216, 220, 228, 196, 214
    A('v_lshrrev_b32 %s, 4, v1', v(lT))
    A('v_and_b32 %s, 15, v1', v(lT + 1))
    A('v_lshrrev_b32 %s, 3, v1', v(lT + 3))
    A('v_and_b32 %s, 7, v1', v(lT + 4))
    A('v_xor_b32 %s, %s, %s', v(lT + 4), v(lT + 4), v(lT))
    A('v_lshlrev_b32 %s, 4, %s', v(lT + 4), v(lT + 4))
    A('v_lshl_add_u32 %s, %s, 10, %s', v(lX), v(lT + 3), v(lT + 4))
    A('v_xor_b32 %s, 64, %s', v(lX + 1), v(lX))
    A('v_add_u32 %s, 0x%x, %s', v(lX + 2), 2 * 7168, v(lX))
    A('v_add_u32 %s, 0x%x, %s', v(lX + 3), 3 * 7168, v(lX + 1))
    A('v_add_u32 %s, 0x%x, %s', v(lX + 1), 7168, v(lX + 1))
    A('v_lshlrev_b32 %s, 2, %s', v(lT + 2), v(lT))
    A('v_xor_b32 %s, %s, %s', v(lT + 2), v(lT + 2), v(lT + 1))
    A('v_lshlrev_b32 %s, 4, %s', v(lT + 2), v(lT + 2))
    A('v_lshl_add_u32 %s, %s, 13, %s', v(lW), v(lT), v(lT + 2))
    for j in range(1, 4):
        A('v_add_u32 %s, 0x%x, %s', v(lW + j), j * (32768 - 1024), v(lW))
    A('s_mul_i32 %s, %s, 98304', s(sT), s(sB))
    A('s_lshl_b32 %s, %s, 8', s(sT + 1), s(sH))
    A('s_sub_u32 %s, 0x400000, %s', s(sT + 2), s(sT + 1))
    A('s_waitcnt lgkmcnt(0)')
    srd(A, sX, 4, s(sT), 98304)
    srd(A, sW, 10, s(sT + 1), s(sT + 2))
    stamp(A, 30)

    def setup2():
        A('s_lshl_b32 %s, %s, 5', s(sT), s(sB))
        A('s_add_u32 %s, %s, %s', s(sT), s(sT), s(sH))
        A('s_lshl_b32 %s, %s, 17', s(sT), s(sT))
        srd(A, sK, 6, s(sT), 131072)
        srd(A, sV, 8, s(sT), 131072)
        A('s_lshl_b32 %s, %s, 19', s(sT), s(sHg))
        A('s_xor_b32 %s, %s, %d', s(sT + 1), s(sHh), OPT['cx'])
        A('s_lshl_b32 %s, %s, %d', s(sT + 1), s(sT + 1), 8 - OPT['sp'])
        A('s_add_u32 %s, %s, %s', s(sT), s(sT), s(sT + 1))
        A('s_sub_u32 %s, 0x80000, %s', s(sT + 2), s(sT + 1))
        srd(A, sWo, 12, s(sT), s(sT + 2))
        A('v_lshl_add_u32 %s, %s, 8, %s', v(lV), v(lT), v(lT + 2))
        if OPT['sp'] == 0:
            A('v_lshl_add_u32 %s, %s, 10, %s', v(lWo), v(lT), v(lT + 2))
        else:
            if OPT['sp'] == 1:
                A('v_and_b32 %s, 0x7f, %s', v(lT + 3), v(lT + 2))
                A('v_lshrrev_b32 %s, 7, %s', v(lT + 4), v(lT + 2))
                A('v_lshl_add_u32 %s, %s, 9, %s', v(lT + 3), v(lT + 4), v(lT + 3))
            else:
                A('v_and_b32 %s, 0x3f, %s', v(lT + 3), v(lT + 2))
                A('v_lshrrev_b32 %s, 6, %s', v(lT + 4), v(lT + 2))
                A('v_lshl_add_u32 %s, %s, 8, %s', v(lT + 3), v(lT + 4), v(lT + 3))
            A('v_lshl_add_u32 %s, %s, 10, %s', v(lWo), v(lT), v(lT + 3))
        for j in range(1, 4):
            A('v_add_u32 %s, 0x%x, %s', v(lWo + j), j * (4096 - 1024), v(lWo))
        for j in range(4):
            A('v_add_u32 %s, %d, %s', v(lT + 3), 4 * j, v(lT))
            A('v_xor_b32 %s, %s, %s', v(lT + 3), v(lT + 3), v(lT + 1))
            A('v_lshlrev_b32 %s, 4, %s', v(lT + 3), v(lT + 3))
            A('v_lshl_add_u32 %s, %s, 8, %s', v(lK + j), v(lT), v(lT + 3))
        A('v_and_b32 %s, 1, %s', v(lT + 3), v(lT))
        A('v_lshlrev_b32 %s, 2, %s', v(lT + 3), v(lT + 3))
        A('v_and_b32 %s, 7, v1', v(lT + 4))
        A('v_xor_b32 %s, %s, %s', v(lT + 3), v(lT + 3), v(lT + 4))
        A('v_lshlrev_b32 %s, 4, %s', v(lT + 3), v(lT + 3))
        A('v_lshrrev_b32 %s, 3, v1', v(lT + 4))
        A('v_lshl_add_u32 %s, %s, 8, %s', v(lH), v(lT + 4), v(lT + 3))
        A('v_add_u32 %s, 0x400, %s', v(lH + 1), v(lH))
        wo_lane_base(A, lA, lT)
        A('v_mov_b32 %s, %s', v(vW3), v(lA))
        tail_srds(A)
        if OPT['capL']:
            A('s_and_b32 vcc_lo, %s, %d', s(sB), OPT['clsm'])
            A('s_mov_b32 vcc_hi, 0')
        if OPT['rg']:
            A('s_lshl_b32 %s, %s, 12', s(sT + 8), s(sB))
        else:
            A('s_mov_b32 %s, 0', s(sT + 8))
        A('s_and_b32 %s, s2, 63', s(sT + 1))
        for j in range(1, 4):
            A('%s %s, %s, %d', 's_xor_b32' if OPT['xo'] else 's_add_u32', s(sT), s(sHh), j)
            A('s_and_b32 %s, %s, 3', s(sT), s(sT))
            if OPT['hx']:
                A('s_xor_b32 %s, %s, %d', s(sT), s(sT), OPT['hx'])
            A('s_lshl_b32 %s, %s, 6', s(sT), s(sT))
            A('s_add_u32 %s, %s, %s', s(sT), s(sT), s(sT + 1))
            A('s_mul_i32 %s, %s, 24576', s(sT + 10 + j), s(sT))
            A('s_lshl_b32 %s, %s, 8', s(sFo + j - 1), s(sT))
        A('v_lshrrev_b32 %s, 2, v1', v(lP))
        A('v_min_u32 %s, 2, %s', v(lP), v(lP))
        A('v_add_u32 %s, 1, %s', v(lP), v(lP))
        A('%s %s, %s, %s', 'v_xor_b32' if OPT['xo'] else 'v_add_u32', v(lP), s(sHh), v(lP))
        A('v_and_b32 %s, 3, %s', v(lP), v(lP))
        if OPT['hx']:
            A('v_xor_b32 %s, %d, %s', v(lP), OPT['hx'], v(lP))
        A('v_lshlrev_b32 %s, 6, %s', v(lP), v(lP))
        A('v_add_u32 %s, %s, %s', v(lP), s(sT + 1), v(lP))
        A('v_lshlrev_b32 %s, 8, %s', v(lP), v(lP))
        A('v_and_b32 %s, 3, v1', v(lP + 1))
        A('v_min_u32 %s, 2, %s', v(lP + 1), v(lP + 1))
        A('v_lshl_add_u32 %s, %s, 2, %s', v(lP), v(lP + 1), v(lP))
        A('v_mov_b64 %s, 0', v(lP + 2, 2))
        A('v_mov_b64 %s, 0', v(lZ, 2))
        A('v_mov_b64 %s, 0', v(lZ + 2, 2))
        A('s_lshl_b32 %s, s2, 8', s(sT))
        A('s_mov_b64 exec, 0xffff')
        A('buffer_store_dwordx4 %s, %s, %s, %s offen sc1', v(lZ, 4), v(vBl), s(sF, 4), s(sT))
        A('s_mov_b64 exec, -1')

    steps, groups = plan()
    st = dict(m0=None, key=None, so=None)
    sXo, sWq, sG, sOo, sGk, sGv, sRg = sT + 3, sT + 4, sT + 5, sT + 6, sT + 7, sT + 7, sT + 8

    def issue(gi):
        kind, j, g, lds, _ = groups[gi]
        if kind == 't':
            if OPT['tpos2'] < 9:
                A('s_bitcmp1_b32 s2, %d', OPT['tbit'])
                A('s_cbranch_scc%d L_nt%d', 1 - j, j)
            A('s_lshl_b32 %s, %s, 19', s(sT), s(sHg))
            A('s_lshr_b32 %s, s2, 3', s(sT + 1))
            A('s_lshl_b32 %s, %s, 14', s(sT + 1), s(sT + 1))
            A('s_add_u32 %s, %s, %s', s(sT), s(sT), s(sT + 1))
            A('v_lshl_add_u32 v251, v1, 7, %s', s(sT))
            A('v_add_u32 v252, 0x2000, v251')
            A('global_load_dword v250, v251, s[12:13]')
            A('global_load_dword v250, v252, s[12:13]')
            if OPT['tk']:
                A('v_lshlrev_b32 v253, 7, v1')
            for g in range(OPT['tk']):
                A('s_mov_b32 %s, 0x%x', s(sT), OPT['tko'] + 8192 * g)
                A('buffer_load_dword v250, v253, %s, %s offen %s', s(sK, 4), s(sT), OPT['tkp'])
            if OPT['tpos2'] < 9:
                A.label('L_nt%d' % j)
            return
        if kind == 'h':
            for u in range(2):
                A('s_mov_b32 m0, 0x%x', lds + 2048 * u)
                A('s_add_u32 %s, %s, 0x%x', s(sG), s(sRg), 4096 * (2 * g + u))
                A('s_and_b32 %s, %s, 0x7000', s(sG), s(sG))
                A('s_or_b32 %s, %s, 0x%x', s(sG), s(sG), 3 * 32768 + 128 * j)
                for j2 in range(2):
                    A('buffer_load_dwordx4 %s, %s, %s offen offset:%d %s lds', v(lH + j2), s(sV, 4), s(sG), 1024 * j2, OPT['kv_pol'])
            st['m0'] = None
            return
        if kind == 'u':
            if g == 0:
                A('v_lshlrev_b32 v253, 7, v1')
            A('s_mov_b32 %s, 0x%x', s(sT), OPT['tko'] + 8192 * g)
            A('buffer_load_dword v250, v253, %s, %s offen %s', s(sK, 4), s(sT), OPT['tkp'])
            return
        if OPT['cap'] and steps[7][1] + OPT['cap0'] < gi < len(groups) - OPT['cap1']:
            A('s_waitcnt vmcnt(%d)', 4 * (OPT['cap'] - 1))
        if OPT['capL'] and 56 <= gi < 56 + OPT['capLn']:
            A('s_cbranch_vccz L_cl%d', gi)
            A('s_waitcnt vmcnt(%d)', 4 * (OPT['capL'] - 1))
            A.label('L_cl%d' % gi)
        if st['m0'] is not None and 0 < lds - st['m0'] < 32768:
            A('s_addk_i32 m0, 0x%x', lds - st['m0'])
        else:
            A('s_mov_b32 m0, 0x%x', lds)
        st['m0'] = lds
        if kind == 'x':
            if g == 0:
                A('s_add_u32 %s, %s, %d', s(sT), s(sRot), j)
                A('s_and_b32 %s, %s, 7', s(sT), s(sT))
                A('s_lshl_b32 %s, %s, 7', s(sXo), s(sT))
                A('s_lshl_b32 %s, %s, 19', s(sWq), s(sT))
            else:
                A('s_add_u32 %s, %s, 0x8000', s(sXo), s(sXo))
            dma(A, [lX, lX + 1, lX + 2, lX + 3], sX, sXo, OPT['x_pol'])
        elif kind == 'w':
            if g:
                A('s_add_u32 %s, %s, 0x20000', s(sWq), s(sWq))
            dma(A, [lW, lW + 1, lW + 2, lW + 3], sW, sWq, OPT['w_pol'])
        elif kind == 'o':
            if g == 0:
                A('%s %s, %s, %d', 's_xor_b32' if OPT['xo'] else 's_add_u32', s(sT), s(sHh), j)
                A('s_and_b32 %s, %s, 3', s(sT), s(sT))
                A('s_lshl_b32 %s, %s, 17', s(sOo), s(sT))
            else:
                A('s_addk_i32 %s, 0x4000', s(sOo))
            dma(A, [lWo, lWo + 1, lWo + 2, lWo + 3], sWo, sOo, OPT['wo_pol'])
        else:
            sR = sGk if kind == 'k' else sGv
            if st.get(kind) == (j, g - 1):
                A('s_addk_i32 %s, 0x1000', s(sR))
            else:
                A('s_add_u32 %s, %s, 0x%x', s(sR), s(sRg), 4096 * g)
            st[kind] = (j, g)
            A('s_and_b32 %s, %s, 0x7000', s(sG), s(sR))
            if j:
                A('s_or_b32 %s, %s, 0x%x', s(sG), s(sG), j * 32768)
            if kind == 'k':
                dma(A, [lK, lK + 1, lK + 2, lK + 3], sK, sG, OPT['kv_pol'])
            else:
                dma(A, [lV] * 4, sV, sG, OPT['kv_pol'])

    def free(gi, cert):
        lds = groups[gi][3]
        return all(not (p[3] < lds + 4096 and lds < p[3] + 4096) or p[4] < cert for p in groups[:gi])

    nxt = 0
    cert = 0
    did2 = False
    pend = False
    for i, (name, e, c) in enumerate(steps):
        la = int(OPT['law'].split(',')[i]) if i < 8 else OPT['la1'] if (OPT['la1'] and i >= 13) else OPT['la']
        while nxt < len(groups) and nxt <= e + la and free(nxt, cert):
            if nxt == 11 and not did2:
                stamp(A, 31)
                setup2()
                did2 = True
            issue(nxt)
            nxt += 1
        assert nxt > e, (name, nxt, e)
        A('s_waitcnt vmcnt(%d)%s', min(60, sum({'t': 0 if OPT['tpos2'] < 9 else 2 + OPT['tk']}.get(x[0], 4) for x in groups[e + 1:nxt])), ' lgkmcnt(0)' if pend else '')
        pend = False
        if not 2 <= i <= 5 and OPT['prof'] != 9:
            stamp(A, 2 + i)
        A('s_barrier')
        cert = max(cert, c)
        if 8 <= i <= (14 if OPT['olast'] else 15):
            t = i - 8
            A('v_add_u32 %s, 0x%x, %s', v(lA + 1), KVS[t % 3], v(lA))
            wo_reads(A, t >> 1, t & 1, lA + 1)
            pend = True
        if name == 'W1':
            assert e > 11
            A('s_getreg_b32 %s, hwreg(HW_REG_XCC_ID, 0, 4)', s(sT))
            A('s_add_u32 %s, %s, 1', s(sT), s(sT))
            A('s_and_b32 %s, s2, 3', s(sT + 1))
            A('s_lshl_b32 %s, %s, 3', s(sT + 1), s(sT + 1))
            A('s_lshl_b32 %s, %s, %s', s(sAt), s(sT), s(sT + 1))
            A('s_and_b32 %s, s2, 0xfc', s(sT + 1))
            A('s_atomic_or %s, s[16:17], %s', s(sAt), s(sT + 1))
        if name == 'K0':
            A('ds_write_b64 %s, %s', v(vSt), v(lP + 2, 2))
            A('ds_write_b32 %s, %s offset:12', v(vSt), v(lP + 2))
        if name == 'K2':
            A('s_and_b32 %s, s2, 0xf8', s(sT))
            A('s_load_dwordx2 %s, s[16:17], %s', s(sFl + 4, 2), s(sT))
            A('s_and_b32 %s, s2, 0x3c', s(sT))
            for k in range(4):
                A('s_load_dword %s, s[16:17], %s', s(sFl + k), s(sT))
                if k < 3:
                    A('s_add_u32 %s, %s, 64', s(sT), s(sT))
        if name == 'V1':
            A('s_mov_b32 %s, 0', s(sT + 2))
            A.label('L_chk')
            A('s_and_b32 %s, s2, 3', s(sT))
            A('s_lshl_b32 %s, %s, 3', s(sT), s(sT))
            A('s_or_b32 %s, %s, 0x80000', s(sT), s(sT))
            for k in range(4):
                A('s_bfe_u32 %s, %s, %s', s(sFl + k), s(sFl + k), s(sT))
            A('s_min_u32 %s, %s, %s', s(sT), s(sFl), s(sFl + 1))
            A('s_min_u32 %s, %s, %s', s(sT + 1), s(sFl + 2), s(sFl + 3))
            A('s_min_u32 %s, %s, %s', s(sT), s(sT), s(sT + 1))
            A('s_add_u32 %s, %s, 0x7f7f7f7f', s(sFl + 4), s(sFl + 4))
            A('s_add_u32 %s, %s, 0x7f7f7f7f', s(sFl + 5), s(sFl + 5))
            A('s_and_b32 %s, %s, %s', s(sFl + 4), s(sFl + 4), s(sFl + 5))
            A('s_or_b32 %s, %s, 0x7f7f7f7f', s(sFl + 4), s(sFl + 4))
            A('s_cmp_eq_u32 %s, -1', s(sFl + 4))
            A('s_cselect_b32 %s, %s, 0', s(sT), s(sT))
            A('s_cmp_lg_u32 %s, 0', s(sT))
            A('s_cbranch_scc1 L_chk_ok')
            A('v_lshlrev_b32 %s, 2, v1', v(lZ))
            A('buffer_load_dword %s, %s, %s, 0 offen sc1', v(lZ + 1), v(lZ), s(sDbg, 4))
            A('s_bfe_u32 %s, s2, 0x40002', s(sT))
            A('s_waitcnt vmcnt(0)')
            for k in range(4):
                A('v_readlane_b32 %s, %s, %s', s(sFl + k), v(lZ + 1), s(sT))
                A('s_add_u32 %s, %s, 16', s(sT), s(sT))
            A('s_lshr_b32 %s, s2, 3', s(sT))
            A('s_lshl_b32 %s, %s, 1', s(sT), s(sT))
            A('v_readlane_b32 %s, %s, %s', s(sFl + 4), v(lZ + 1), s(sT))
            A('s_add_u32 %s, %s, 1', s(sT), s(sT))
            A('v_readlane_b32 %s, %s, %s', s(sFl + 5), v(lZ + 1), s(sT))
            A('s_add_u32 %s, %s, 1', s(sT + 2), s(sT + 2))
            A('s_cmp_lt_u32 %s, 0x%x', s(sT + 2), SPIN_MAX)
            A('s_cbranch_scc1 L_chk')
            A.label('L_chk_ok')
            if OPT['prof']:
                A('v_writelane_b32 v255, %s, 59', s(sT + 2))
            for k in range(1, 4):
                A('s_xor_b32 %s, %s, %s', s(sFl + k), s(sFl + k), s(sFl))
            A('s_or_b32 %s, %s, %s', s(sT), s(sFl + 1), s(sFl + 2))
            A('s_or_b32 %s, %s, %s', s(sLocal), s(sT), s(sFl + 3))
            if OPT['force_remote']:
                A('s_mov_b32 %s, 1', s(sLocal))
            A('v_mov_b32 %s, %s', v(lZ), s(sLocal))
            A('ds_write_b32 %s, %s offset:8', v(vSt), v(lZ))
    assert nxt == len(groups)

    tail_addr(A)
    A('s_mov_b32 %s, 0', s(sT + 2))
    A.label('L_poll0')
    poll(A, 0)
    A('s_add_u32 %s, %s, 1', s(sT + 2), s(sT + 2))
    A('s_cmp_ge_u32 %s, 0x%x', s(sT + 2), SPIN_MAX)
    A('s_waitcnt vmcnt(0)')
    A('s_cbranch_scc1 L_got0')
    A('v_cmp_ne_u32 vcc, 1, %s', v(lP + 1))
    A('s_cmp_lg_u64 vcc, 0')
    A('s_cbranch_scc1 L_poll0')
    A.label('L_got0')
    stamp(A, 40)
    copies(A, 0)
    stamp(A, 41)
    poll(A, 1)
    A('s_mov_b32 %s, 1', s(sTodo))
    if OPT['early_b']:
        A('s_call_b64 %s, L_bg', s(sRet, 2))
    else:
        A('s_waitcnt vmcnt(1)')
    A('s_branch L_bara')
    A.label('L_bg')
    A('s_waitcnt vmcnt(0)')
    A('v_cmp_ne_u32 vcc, 1, %s', v(lP + 1))
    A('s_cmp_lg_u64 vcc, 0')
    A('s_cbranch_scc1 L_bg_again')
    A.label('L_bg_go')
    stamp(A, 42)
    copies(A, 1)
    stamp(A, 43)
    A('s_mov_b32 %s, 0', s(sTodo))
    A('s_setpc_b64 %s', s(sRet, 2))
    A.label('L_bg_again')
    poll(A, 1)
    A('s_setpc_b64 %s', s(sRet, 2))


def qproj(A, vacc, vWa, vBa, vWb, vBb):
    L = Lds(A)
    FA = [[0 + 16 * p + 4 * mt for mt in range(4)] for p in range(2)]
    FB = [32, 36]
    QS = [0] + [sum(map(int, OPT['qs'][:i + 1])) for i in range(4)]

    def reads(ks):
        p = ks & 1
        out = [('ds_read_b128 %s, %s offset:%d' % (a(FB[p], 4), v(vBa + ks), 16384), ('B', ks))]
        for mt in range(4):
            for aa in range(2):
                out.append(('ds_read_b64_tr_b16 %s, %s offset:%d' % (a(FA[p][mt] + 2 * aa, 2), v(vWa + mt), (16 * ks + 4 * aa) * 256), ('A', ks, mt)))
        return out

    def addr_w():
        return ['v_add_u32 %s, %s, %s' % (v(vWa + mt), s(sSlot), v(vWb + mt)) for mt in range(4)]

    def addr_b():
        return ['v_add_u32 %s, %s, %s' % (v(vBa), s(sSlot), v(vBb))] + ['v_xor_b32 %s, %d, %s' % (v(vBa + k), 32 * k, v(vBa)) for k in range(1, 4)]

    def mfma(ks, mt):
        p = ks & 1
        if not OPT['qpw']:
            L.need(('B', ks), ('A', ks, mt))
        elif mt % 2 == 0:
            L.need(('B', ks), ('A', ks, mt + 1))
        A('%s %s, %s, %s, %s', MFMA, v(vacc + 16 * mt, 16), a(FA[p][mt], 4), a(FB[p], 4), v(vacc + 16 * mt, 16))

    A('s_mov_b32 %s, 0', s(sCnt))
    for o in addr_w() + addr_b():
        A(o)
    A('s_barrier')
    for t, tag in reads(0):
        L.read(t, tag)
    q0 = list(L.q)
    A.label('L_qp')
    for ks in range(3):
        nxt = reads(ks + 1)
        for mt in range(4):
            mfma(ks, mt)
            for t, tag in nxt[QS[mt]:QS[mt + 1]]:
                L.read(t, tag)
            if ks == 2 and mt == 3:
                A('s_add_u32 %s, %s, 0x%x', s(sSlot), s(sSlot), WSTR)
                A('s_cmp_eq_u32 %s, 0x%x', s(sSlot), WSTR * 5)
                A('s_cselect_b32 %s, 0, %s', s(sSlot), s(sSlot))
                for o in addr_w()[:2] + addr_b()[:1]:
                    A(o)
    qs = list(L.q)
    A('s_add_u32 %s, %s, 1', s(sCnt), s(sCnt))
    A('s_cmp_eq_u32 %s, 8', s(sCnt))
    A('s_cbranch_scc1 L_qp_last')
    nxt = reads(0)
    extra = [addr_w()[2:], addr_b()[1:], [], []]
    for mt in range(4):
        mfma(3, mt)
        if mt == 0:
            if OPT['strict']:
                L.drain()
            stampd(A, 32, 2)
            A('s_barrier')
            stampd(A, 33, 2)
        if mt == 0:
            for o in extra[0]:
                A(o)
        for t, tag in nxt[QS[mt]:QS[mt + 1]]:
            L.read(t, tag)
        for o in extra[mt] if mt else []:
            A(o)
    assert L.q == q0, (L.q, q0)
    A('s_branch L_qp')
    A.label('L_qp_last')
    L.q = qs
    for mt in range(4):
        mfma(3, mt)


def compute(A):
    vQ, vO, vS, vP = 4, 36, 100, 164
    vWb, vXb, vWa, vXa = 196, 200, 201, 205
    vKb, vKa, vVb, vVa = 209, 210, 218, 222
    vM, vL, vT, vOb, vOa, vD, vO3, vHb = 226, 228, 230, 238, 239, 244, 246, 236
    if OPT['pfcode'] == 1:
        A('s_cmp_lg_u32 %s, 1', s(sWave))
        A('s_cbranch_scc1 L_nopf')
        A('s_getpc_b64 %s', s(sT + 2, 2))
        A.label('L_pc')
        A('s_sub_u32 %s, %s, L_pc-%s_kernel', s(sT + 2), s(sT + 2), NAME)
        A('s_subb_u32 %s, %s, 0', s(sT + 3), s(sT + 3))
        A('s_lshr_b32 %s, s2, 3', s(sT))
        A('s_lshl_b32 %s, %s, 10', s(sT), s(sT))
        A('v_lshl_add_u32 %s, v1, 7, %s', v(vT), s(sT))
        A('v_min_u32 %s, L_end-%s_kernel, %s', v(vT), NAME, v(vT))
        A('s_mov_b64 exec, 0xff')
        A('global_load_dword v250, %s, %s', v(vT), s(sT + 2, 2))
        A('s_mov_b64 exec, -1')
        A.label('L_nopf')
    A('s_waitcnt lgkmcnt(0)')
    tail_srds(A)
    tr_lane_bases(A, vWb, 8, True, vT)
    A('v_and_b32 %s, 31, v1', v(vT))
    A('s_lshl_b32 %s, %s, 5', s(sT), s(sWave))
    A('v_add_u32 %s, %s, %s', v(vT), s(sT), v(vT))
    A('v_bfe_u32 %s, %s, 1, 3', v(vT + 1), v(vT))
    A('v_lshrrev_b32 %s, 5, v1', v(vT + 2))
    A('v_xor_b32 %s, %s, %s', v(vT + 1), v(vT + 1), v(vT + 2))
    A('v_lshlrev_b32 %s, 4, %s', v(vT + 1), v(vT + 1))
    A('v_lshl_add_u32 %s, %s, 7, %s', v(vXb), v(vT), v(vT + 1))
    A('v_and_b32 %s, 31, v1', v(vT))
    A('v_and_b32 %s, 15, v1', v(vT + 1))
    A('v_xor_b32 %s, %s, %s', v(vT + 1), v(vT + 1), v(vT + 2))
    A('v_lshlrev_b32 %s, 4, %s', v(vT + 1), v(vT + 1))
    A('v_lshl_add_u32 %s, %s, 8, %s', v(vKb), v(vT), v(vT + 1))
    A('v_add_u32 %s, 0x4000, %s', v(vKb), v(vKb))
    tr_lane_bases(A, vVb, 4, False, vT)
    for mt in range(4):
        A('v_add_u32 %s, 0x4000, %s', v(vVb + mt), v(vVb + mt))
    A('v_lshrrev_b32 %s, 5, v1', v(vT))
    A('v_bfe_u32 %s, v1, 2, 2', v(vT + 1))
    A('v_lshl_add_u32 %s, %s, 2, %s', v(vT), v(vT), v(vT + 1))
    A('v_lshlrev_b32 %s, 7, %s', v(vT), v(vT))
    A('v_bfe_u32 %s, v1, 4, 1', v(vT + 2))
    A('v_lshl_add_u32 %s, %s, 5, %s', v(vT), v(vT + 2), v(vT))
    A('v_and_b32 %s, 3, v1', v(vT + 2))
    A('v_lshl_add_u32 %s, %s, 3, %s', v(vT), v(vT + 2), v(vT))
    A('v_bfe_u32 %s, v1, 3, 1', v(vT + 1))
    A('v_lshl_add_u32 %s, %s, 6, %s', v(vHb), v(vT + 1), v(vT))
    A('v_add_u32 %s, 0x%x, %s', v(vHb), KVS[1] + 16384, v(vHb))
    A('v_xor_b32 %s, 64, %s', v(vHb + 1), v(vHb))
    wo_lane_base(A, vOb, vT)
    A('v_xor_b32 %s, 3, %s', v(vT + 2), v(vT + 1))
    A('v_lshl_add_u32 %s, %s, 6, %s', v(vO3), v(vT + 2), v(vT))
    for i in range(0, 64, 2):
        A('v_mov_b64 %s, 0', v(vS + i, 2))
    for i in range(0, 64, 2):
        A('v_mov_b64 %s, 0', v(vO + i, 2))
    A('v_mov_b32 %s, 0xff800000', v(vM))
    A('v_mov_b64 %s, 0', v(vL, 2))
    A('v_mov_b32 %s, 0', v(vT + 4))
    A('s_mov_b32 %s, 0x%x', s(sC), C_SCALE)
    A('s_mov_b32 %s, 0x%x', s(sC + 1), C_SCALE)
    A('s_mov_b32 %s, 0', s(sSlot))
    for i in range(3):
        A('s_mov_b32 %s, 0x%x', s(sS0 + i), KVS[(0, 2, 1)[i]])
    stamp(A, 1)
    stamp(A, 60, 's_memtime')
    qproj(A, vS, vWa, vXa, vWb, vXb)
    burn(A, 'q', OPT['probe_q'])
    stamp(A, 2)
    stamp(A, 61, 's_memtime')
    L = Lds(A)
    vAl = vT + 4
    vMx = vT
    NL, NE = OPT['nl'], OPT['ne']
    KF = [[32 * p + 4 * k for k in range(8)] for p in range(2)]
    VF = [[64 + 16 * p + 4 * mt for mt in range(4)] for p in range(2)]
    sKs, sVs, sNs = sS0, sS1, sS2

    def kread(t, k):
        return ('ds_read_b128 %s, %s offset:%d' % (a(KF[t & 1][k], 4), v(vKa + k), 8192 * t), ('K', t, k))

    def kaddr(slot):
        return ['v_add_u32 %s, %s, %s' % (v(vKa), s(slot), v(vKb))] + ['v_xor_b32 %s, %d, %s' % (v(vKa + k), 32 * k, v(vKa)) for k in range(1, 8)]

    def kstart():
        stampd(A, 6, 4)
        A('s_barrier')
        stampd(A, 7, 4)
        for k in range(8):
            L.read(*kread(0, k))

    A('s_mov_b32 %s, 0', s(sCnt))
    for o in kaddr(sKs):
        A(o)
    kstart()
    for i in range(32):
        A('v_cvt_pk_bf16_f32 %s, %s, %s', v(vQ + i), v(vS + 2 * i), v(vS + 2 * i + 1))
    q_att = list(L.q)
    A.label('L_att')

    def max_ops(t):
        r = vS + 16 * t
        ops = []
        if t == 0:
            ops.append('v_max3_f32 %s, %s, %s, %s' % (v(vMx), v(r), v(r + 1), v(vM)))
            rest = range(2, 16, 2)
        else:
            rest = range(0, 16, 2)
        for i in rest:
            ops.append('v_max3_f32 %s, %s, %s, %s' % (v(vMx), v(r + i), v(r + i + 1), v(vMx)))
        return ops

    fill = ['v_mul_f32 %s, %s, %s' % (v(vO + i), v(vAl), v(vO + i)) for i in range(64)]
    fill += ['v_add_u32 %s, %s, %s' % (v(vOa), s(sKs), v(vOb)), 'v_add_u32 %s, %s, %s' % (v(vO3 + 1), s(sKs), v(vO3))]
    fill += ['v_add_u32 %s, %s, %s' % (v(vVa + mt), s(sVs), v(vVb + mt)) for mt in range(4)]
    fill3 = kaddr(sNs)
    for t in range(4):
        mo = max_ops(t - 1) if t > 0 else []
        if t == 3:
            fill += fill3
        for k in range(8):
            if k % 2 == 0 or not OPT['pw']:
                L.need(('K', t, k + 1 if OPT['pw'] else k))
            A('%s %s, %s, %s, %s', MFMA, v(vS + 16 * t, 16), a(KF[t & 1][k], 4), v(vQ + 4 * k, 4), '0' if k == 0 else v(vS + 16 * t, 16))
            if t < 3:
                L.read(*kread(t + 1, k))
            if k >= 4 and mo:
                for o in mo[:2]:
                    A(o)
                mo = mo[2:]
                n = 1 if t < 3 else 2
            else:
                n = 3 if t < 3 else 4
            for o in fill[:n]:
                A(o)
            fill = fill[n:]
        assert not mo
    assert not fill, fill

    def wo_switch(tag, cases):
        for n, (c, t) in enumerate(cases):
            last = n == len(cases) - 1
            if not last:
                A('s_cmp_lg_u32 %s, %d', s(sCnt), c)
                A('s_cbranch_scc1 L_wo%s%d', tag, n + 1)
            wo_reads(A, t >> 1, t & 1, vOa)
            if t < 2:
                for f in range(4):
                    for aa in range(2):
                        A('ds_read_b64_tr_b16 %s, %s offset:%d', a(96 + 16 * t + 4 * f + 2 * aa, 2), v(vO3 + 1), (16 * f + 8 * aa) * 256)
            if not last:
                A('s_branch L_wo%sdone', tag)
                A.label('L_wo%s%d' % (tag, n + 1))
        A.label('L_wo%sdone' % tag)

    wo_switch('a', [(c, STEPS.index('K%d' % c)) for c in range(4)])
    for o in max_ops(3):
        A(o)
    A('v_mov_b32 %s, %s', v(vT + 1), v(vMx))
    A('v_add_u32 %s, %s, %s', v(vOa), s(sVs), v(vOb))
    A('v_permlane32_swap_b32 %s, %s', v(vT + 1), v(vMx))
    A('v_max_f32 %s, %s, %s', v(vMx), v(vMx), v(vT + 1))
    A('v_mul_f32 %s, %s, %s', v(vT + 2), s(sC), v(vMx))
    A('v_fma_f32 %s, %s, %s, -%s', v(vT + 3), v(vM), s(sC), v(vT + 2))
    A('v_exp_f32 %s, %s', v(vAl), v(vT + 3))
    A('v_mov_b32 %s, %s', v(vM), v(vMx))
    burn(A, 'k', OPT['probe_k'])
    fma = lambda i: A('v_pk_fma_f32 %s, %s, %s, %s op_sel_hi:[1,1,0] neg_lo:[0,0,1] neg_hi:[0,0,1]', v(vS + i, 2), v(vS + i, 2), s(sC, 2), v(vT + 2, 2))
    fma1 = lambda i: A('v_fma_f32 %s, %s, %s, -%s', v(vS + i), v(vS + i), s(sC), v(vT + 2))

    def part(lo, hi, dst, pre=None):
        fma(lo)
        A(pre if pre else 's_nop 0')
        for i in range(lo, hi, 2):
            if i + 2 < hi:
                fma(i + 2)
            A('v_exp_f32 %s, %s', v(vS + i), v(vS + i))
            A('v_exp_f32 %s, %s', v(vS + i + 1), v(vS + i + 1))
            if i > lo:
                A('v_pk_add_f32 %s, %s, %s', v(vL, 2), v(vL, 2), v(vS + i - 2, 2))
                A('v_cvt_pk_bf16_f32 %s, %s, %s', v(dst + (i - lo) // 2 - 1), v(vS + i - 2), v(vS + i - 1))
        A('v_pk_add_f32 %s, %s, %s', v(vL, 2), v(vL, 2), v(vS + hi - 2, 2))
        A('v_cvt_pk_bf16_f32 %s, %s, %s', v(dst + (hi - lo) // 2 - 1), v(vS + hi - 2), v(vS + hi - 1))

    def copy_p():
        for i in range(0, (64 - NL) // 2, 2):
            A('v_mov_b64 %s, %s', v(vP + NL // 2 + i, 2), v(vS + NL + i, 2))

    part(NL, 64 - NE, vS + NL, 'v_pk_mul_f32 %s, %s, %s op_sel_hi:[1,0]' % (v(vL, 2), v(vL, 2), v(vAl, 2)))
    rest = lambda: part(64 - NE, 64, vS + NL + (64 - NE - NL) // 2)
    A('s_cmp_eq_u32 %s, 0', s(sCnt))
    A('s_waitcnt lgkmcnt(0)')
    A('s_cbranch_scc1 L_first')
    stampd(A, 8, 4)
    A('s_barrier')
    stampd(A, 9, 4)

    def vread(p, mt, buf=None):
        b = VF[p & 1][mt] if buf is None else buf
        return [('ds_read_b64_tr_b16 %s, %s offset:%d' % (a(b + 2 * aa, 2), v(vVa + mt), (16 * p + 8 * aa) * 256), ('V', p, mt)) for aa in range(2)]

    def pv(p, mt, buf=None, wait=None):
        b = VF[p & 1][mt] if buf is None else buf
        if wait is None:
            L.need(('V', p, mt))
        elif wait:
            L.need(wait)
        A('%s %s, %s, %s, %s', MFMA, v(vO + 16 * mt, 16), a(b, 4), v(vP + 4 * p, 4), v(vO + 16 * mt, 16))

    def pv_range(p0, p1, beside=None, first=None):
        n0, n1, LK = 4 * p0, 4 * p1, OPT['lk']
        for n in range(n0, min(n0 + LK, n1)):
            for x in vread(n >> 2, n & 3):
                L.read(*x)
        if first:
            first()
        for n in range(n0, n1):
            pv(n >> 2, n & 3, None, None if not OPT['pw'] else ('V', n >> 2, (n & 3) + 1) if n % 2 == 0 else False)
            if n + LK < n1:
                for x in vread((n + LK) >> 2, (n + LK) & 3):
                    L.read(*x)
            if beside:
                beside(n)

    def late1(g):
        if g < NL:
            A('v_exp_f32 %s, %s', v(vS + g), v(vS + g))
        if g + 1 < NL:
            fma1(g + 1)
        if 1 <= g <= NL:
            A('v_add_f32 %s, %s, %s', v(vL + ((g - 1) & 1)), v(vS + g - 1), v(vL + ((g - 1) & 1)))
        if 3 <= g <= NL + 1 and g & 1:
            q = (g - 3) // 2
            A('v_cvt_pk_bf16_f32 %s, %s, %s', v(vP + q), v(vS + 2 * q), v(vS + 2 * q + 1))

    def late(n):
        for g in range(NL + 2):
            if min(33, g * 32 // NL) == n:
                late1(g)

    def first_v():
        rest()
        fma1(0)
        wo_switch('b', [(c, STEPS.index('V%d' % (c - 1))) for c in (1, 2, 3)])

    pv_range(0, 8, late, first_v)
    assert not L.q
    A('s_cmp_eq_u32 %s, 3', s(sCnt))
    A('s_cbranch_scc1 L_last')
    A('s_add_u32 %s, %s, 1', s(sCnt), s(sCnt))
    kstart()
    late(32)
    late(33)
    copy_p()
    A('s_mov_b32 %s, %s', s(sT), s(sKs))
    A('s_mov_b32 %s, %s', s(sKs), s(sNs))
    A('s_mov_b32 %s, %s', s(sNs), s(sVs))
    A('s_mov_b32 %s, %s', s(sVs), s(sT))
    assert L.q == q_att
    A('s_branch L_att')

    A.label('L_first')
    L.q = []
    part(0, NL, vP)
    A('s_add_u32 %s, %s, 1', s(sCnt), s(sCnt))
    kstart()
    rest()
    copy_p()
    A('s_mov_b32 %s, %s', s(sT), s(sKs))
    A('s_mov_b32 %s, %s', s(sKs), s(sNs))
    A('s_mov_b32 %s, %s', s(sNs), s(sT))
    A('s_branch L_att')

    A.label('L_last')
    L.q = []

    def hread(hf, n, buf):
        p, m = n >> 1, n & 1
        for aa in range(2):
            L.read('ds_read_b64_tr_b16 %s, %s offset:%d' % (a(64 + 4 * buf + 2 * aa, 2), v(vHb + m), 16384 * hf + (16 * p + 8 * aa) * 128), ('H', hf, n))

    def hpv(hf, n, buf, wait):
        p, m = n >> 1, n & 1
        if wait is not None:
            L.need(('H', hf, wait))
        acc = v(vO + 16 * (2 * hf + m), 16)
        A('%s %s, %s, %s, %s', MFMA, acc, a(64 + 4 * buf, 4), v(vP + 4 * p, 4), acc)

    def fin(f):
        for i in range(4):
            r = vO + 8 * f + 2 * i
            A('v_pk_mul_f32 %s, %s, %s op_sel_hi:[1,0]', v(r, 2), v(r, 2), v(vT, 2))
        for i in range(4):
            r = vO + 8 * f + 2 * i
            A('v_cvt_pk_bf16_f32 %s, %s, %s', v(vS + 4 * f + i), v(r), v(r + 1))
        A('buffer_store_dwordx4 %s, %s, %s, %s offen offset:%d sc1', v(vS + 4 * f, 4), v(vBl), s(sO, 4), s(sT + 6 + (f >> 2)), 1024 * (f & 3))

    stamp(A, 20)
    A('s_barrier')
    stamp(A, 21)
    A('ds_read_b32 %s, %s offset:8', v(vD), v(vSt))
    for n in range(6):
        hread(0, n, n)
    late(32)
    late(33)
    copy_p()
    for i in range(0, 32, 2):
        A('v_pk_mul_f32 %s, %s, %s op_sel_hi:[1,0]', v(vO + i, 2), v(vO + i, 2), v(vAl, 2))
    A('v_add_f32 %s, %s, %s', v(vL), v(vL), v(vL + 1))
    A('v_mov_b32 %s, %s', v(vT), v(vL))
    fill = ['v_mul_f32 %s, %s, %s' % (v(vO + i), v(vAl), v(vO + i)) for i in range(32, 64)]
    fill[4:4] = ['v_permlane32_swap_b32 %s, %s' % (v(vT), v(vL)), 'v_add_f32 %s, %s, %s' % (v(vL), v(vL), v(vT)), 'v_rcp_f32 %s, %s' % (v(vT), v(vL)),
                 'v_readfirstlane_b32 %s, %s' % (s(sLocal), v(vD))]
    for n in range(16):
        hpv(0, n, n % 8, n + 1 if n % 2 == 0 else None)
        if n + 6 < 16:
            hread(0, n + 6, (n + 6) % 8)
        for o in fill[:3]:
            A(o)
        fill = fill[3:]
        if n == 13:
            A('s_lshl_b32 %s, %s, 13', s(sT + 1), s(sWave))
            A('s_mul_i32 %s, s2, 24576', s(sT + 6))
            A('s_add_u32 %s, %s, %s', s(sT + 6), s(sT + 6), s(sT + 1))
            A('s_add_u32 %s, %s, 0x1000', s(sT + 7), s(sT + 6))
            A('s_add_u32 %s, %s, 0x%x', s(sT + 1), s(sT + 1), ROWN)
            A('v_add_u32 %s, %s, %s', v(vT + 2), s(sT + 1), v(vBl))
        if n == 14:
            A('s_lshl_b32 %s, s2, 8', s(sT + 8))
            A('s_lshl_b32 %s, %s, 2', s(sT + 1), s(sWave))
            A('s_add_u32 %s, %s, %s', s(sT + 8), s(sT + 8), s(sT + 1))
            A('s_lshl_b32 %s, %s, 12', s(sT + 1), s(sWave))
            A('v_add_u32 %s, %s, %s', v(vT + 3), s(sT + 1), v(vBl))
    assert not fill and not L.q
    A('s_barrier')
    for n in range(6):
        hread(1, n, n)
    for f in range(4):
        fin(f)
    stamp(A, 22)
    for n in range(12):
        hpv(1, n, n % 8, n + 1 if n % 2 == 0 else None)
        if n + 6 < 12:
            hread(1, n + 6, (n + 6) % 8)
        if n >= 8:
            A('ds_write_b128 %s, %s offset:%d', v(vT + 2), v(vS + 4 * (n - 8), 4), 1024 * (n - 8))
    A('s_barrier')
    stamp(A, 3)
    for i, n in enumerate((12, 14, 13, 15)):
        hread(1, n, 4 + i)
    tail_addr(A)
    for i, n in enumerate((12, 14, 13, 15)):
        hpv(1, n, 4 + i, n)
    for f in range(4, 8):
        if f - 4 == OPT['fa']:
            A('s_waitcnt vmcnt(%d)', f - 4)
            flag(A, 0)
        fin(f)
    stamp(A, 4)
    if OPT['fa'] == 4:
        A('s_waitcnt vmcnt(4)')
        flag(A, 0)
    for f in range(4, 8):
        A('ds_write_b128 %s, %s offset:%d', v(vT + 2), v(vS + 4 * f, 4), 1024 * f)
    for f in range(8):
        A('%s %s, %s, %s, %s', MFMA, a(AX, 16), a(96 + 4 * f, 4), v(vS + 4 * f, 4), '0' if f == 0 else a(AX, 16))
        if f == 3:
            A('s_mov_b64 exec, 1')
            A('s_waitcnt lgkmcnt(0)')
            A('ds_add_u32 %s, %s', v(vSt), v(vOne))
            A('s_mov_b64 exec, -1')
            A('s_nop 1')
    if OPT['fb'] < 0:
        A('s_waitcnt vmcnt(%d)', 1 if OPT['fa'] == 4 else 0)
        flag(A, 1)
        stamp(A, 5)
    for i in range(4):
        A('ds_write_b128 %s, %s offset:%d', v(vT + 3), a(AX + 4 * i, 4), XFER + 1024 * i)


def tail(A):
    vU = 230
    vPk = 212
    NB = 6

    def run(units, pre=None, beside=None):
        L = Lds(A)

        def rd(i):
            j, qt, f = units[i]
            base, off = (vB2, ROWN - RB[2]) if j == 0 else (vB2, 0) if j == 3 else (vB1, RB[j - 1] - RB[0])
            L.read('ds_read_b128 %s, %s offset:%d' % (a(4 * (i % NB), 4), v(base), off + qt * 8192 + f * 1024), i)

        for i in range(NB - 1):
            rd(i)
        if pre:
            pre()
        for i, (j, qt, f) in enumerate(units):
            L.need(i)
            acc = v(vAcc + 16 * qt, 16)
            A('%s %s, %s, %s, %s', MFMA, acc, a(AWO + 32 * j + 4 * f, 4), a(4 * (i % NB), 4), '0' if (j == 0 and f == 0) else acc)
            if i + NB - 1 < len(units):
                rd(i + NB - 1)
            if beside:
                beside(i)

    A('s_mov_b32 %s, 0', s(sT + 2))
    A('s_mov_b32 %s, 0', s(sTodo))
    A.label('L_own')
    A('ds_read_b32 %s, %s', v(vU), v(vSt))
    A('s_add_u32 %s, %s, 1', s(sT + 2), s(sT + 2))
    A('s_waitcnt lgkmcnt(0)')
    A('v_readfirstlane_b32 %s, %s', s(sT), v(vU))
    A('s_cmp_ge_u32 %s, 0x%x', s(sT + 2), SPIN_MAX)
    A('s_cbranch_scc1 L_own_go')
    A('s_cmp_lg_u32 %s, 3', s(sT))
    A('s_cbranch_scc1 L_own')
    A.label('L_own_go')
    stamp(A, 23)

    def beside_own(i):
        if i == OPT['fb']:
            A('s_waitcnt vmcnt(%d)', 1 if OPT['fa'] == 4 else 0)
            flag(A, 1)
            stamp(A, 5)

    run([(0, qt, f) for qt in range(3) for f in range(8)], None, beside_own)
    stamp(A, 24)
    A.label('L_bara')
    A('s_barrier')
    stamp(A, 54)

    def pre_a():
        A('s_cmp_lg_u32 %s, 3', s(sWave))
        A('s_cbranch_scc1 L_nox')
        for i in range(12):
            A('ds_read_b128 %s, %s offset:%d', v(vAcc + 4 * i, 4), v(vBl), XFER + 1024 * i)
        A('s_waitcnt lgkmcnt(0)')
        A.label('L_nox')

    def check(tag):
        A('s_cmp_eq_u32 %s, 0', s(sTodo))
        A('s_cbranch_scc1 L_ck%s', tag)
        A('s_call_b64 %s, L_bg', s(sRet, 2))
        A.label('L_ck%s' % tag)

    def beside_a(i):
        if str(i) in OPT['ckp'].split(','):
            check(str(i))
        if 8 <= i < 16:
            f, aa = (i - 8) >> 1, i & 1
            A('ds_read_b64_tr_b16 %s, %s offset:%d', a(AWO + 112 + 4 * f + 2 * aa, 2), v(vW3), KVS[1] + (16 * f + 8 * aa) * 256)

    run([(j, qt, f) for j in (1, 2, 3) for qt in range(3) for f in range(4)], pre_a, beside_a)
    stamp(A, 55)
    A('s_mov_b32 %s, 0', s(sT + 2))
    A.label('L_spinb')
    A('s_cmp_eq_u32 %s, 0', s(sTodo))
    A('s_cbranch_scc1 L_haveb')
    A('s_call_b64 %s, L_bg', s(sRet, 2))
    A('s_add_u32 %s, %s, 1', s(sT + 2), s(sT + 2))
    A('s_cmp_lt_u32 %s, 0x%x', s(sT + 2), SPIN_MAX)
    A('s_cbranch_scc1 L_spinb')
    A.label('L_haveb')
    A('v_lshlrev_b32 %s, 8, v1', v(vU + 1))
    A('s_waitcnt vmcnt(0)')
    A('s_barrier')
    stamp(A, 56)

    def fin_ops(qt):
        ops = []
        for t in range(2):
            o = 2 * qt + t
            r = vAcc + 8 * o
            for i in range(4):
                ops.append('v_cvt_pk_bf16_f32 %s, %s, %s' % (v(vPk + 4 * t + i), v(r + 2 * i), v(r + 2 * i + 1)))
            ops.append('buffer_store_dwordx4 %s, %s, %s, %s offen offset:%d sc1' % (v(vPk + 4 * t, 4), v(vBl), s(sPo, 4), s(sPst + o // 3), 1024 * (o % 3)))
        return ops

    pend = []

    def beside_b(i):
        if i in (15, 27):
            pend.extend(fin_ops(i // 12 - 1))
        for o in pend[:3]:
            A(o)
        del pend[:3]

    run([(j, qt, f) for qt in range(3) for j in (1, 2, 3) for f in range(4, 8)], None, beside_b)
    assert not pend
    stamp(A, 25)
    for o in fin_ops(2):
        A(o)
    stamp(A, 26)
    if OPT['f2']:
        A('s_mov_b64 exec, 1')
        A('s_waitcnt vmcnt(3)')
        A('buffer_store_dword %s, %s, %s, %s offen offset:128 sc1', v(vOne), v(vU + 1), s(sF, 4), s(sF2))
        A('s_mov_b64 exec, 2')
        A('s_waitcnt vmcnt(1)')
    else:
        A('s_mov_b64 exec, 3')
        A('s_waitcnt vmcnt(0)')
    A('buffer_store_dword %s, %s, %s, %s offen offset:128 sc1', v(vOne), v(vU + 1), s(sF, 4), s(sF2))
    A('s_mov_b64 exec, -1')
    stamp(A, 27)
    A('s_cmp_lg_u32 %s, 3', s(sWave))
    A('s_cbranch_scc1 L_red')
    stamp_flush(A)
    A('s_endpgm')

    A.label('L_red')
    vR, vF = 4, 40
    sGot, sLd2, sNew, sSp = sT + 6, sT + 7, sT + 8, sT + 9
    A('s_mul_i32 %s, s2, 24576', s(sT))
    A('s_lshl_b32 %s, %s, 10', s(sT + 1), s(sWave))
    A('s_add_u32 %s, %s, %s', s(sT), s(sT), s(sT + 1))
    A('s_lshl_b32 %s, s2, 8', s(sT + 3))
    A('v_and_b32 %s, 7, v1', v(vU))
    A('v_lshlrev_b32 %s, 2, %s', v(vU), v(vU))
    A('s_mov_b32 %s, 0', s(sGot))
    A('s_mov_b32 %s, 0', s(sLd2))
    A('s_mov_b32 %s, 0', s(sSp))
    A('buffer_load_dword %s, %s, %s, %s offen offset:128 sc1', v(vU + 1), v(vU), s(sF, 4), s(sT + 3))
    A('s_and_b32 %s, %s, 1', s(sT + 1), s(sHg))
    A('s_mul_i32 %s, %s, 3', s(sT + 1), s(sT + 1))
    A('s_add_u32 %s, %s, %s', s(sT + 1), s(sT + 1), s(sWave))
    A('s_lshr_b32 %s, %s, 1', s(sT + 2), s(sT + 1))
    A('s_lshl_b32 %s, %s, 15', s(sT + 2), s(sT + 2))
    A('s_and_b32 %s, %s, 1', s(sT + 1), s(sT + 1))
    A('s_lshl_b32 %s, %s, 5', s(sT + 1), s(sT + 1))
    A('s_add_u32 %s, %s, %s', s(sT + 2), s(sT + 2), s(sT + 1))
    A('s_lshr_b32 %s, %s, 1', s(sT + 1), s(sHg))
    if OPT['sp'] == 1:
        A('s_lshr_b32 %s, %s, 1', s(sT + 4), s(sT + 1))
        A('s_lshl_b32 %s, %s, 9', s(sT + 4), s(sT + 4))
        A('s_add_u32 %s, %s, %s', s(sT + 2), s(sT + 2), s(sT + 4))
        A('s_and_b32 %s, %s, 1', s(sT + 1), s(sT + 1))
    A('s_lshl_b32 %s, %s, %d', s(sT + 1), s(sT + 1), 8 if OPT['sp'] == 2 else 6)
    A('s_add_u32 %s, %s, %s', s(sT + 2), s(sT + 2), s(sT + 1))
    A('s_xor_b32 %s, %s, %d', s(sT + 1), s(sHh), OPT['cx'])
    A('s_lshl_b32 %s, %s, %d', s(sT + 1), s(sT + 1), 8 - OPT['sp'])
    A('s_add_u32 %s, %s, %s', s(sT + 2), s(sT + 2), s(sT + 1))
    A('v_and_b32 %s, 31, v1', v(vU + 2))
    A('v_lshlrev_b32 %s, 10, %s', v(vU + 2), v(vU + 2))
    A('v_lshrrev_b32 %s, 5, v1', v(vU + 3))
    A('v_lshl_add_u32 %s, %s, 4, %s', v(vU + 2), v(vU + 3), v(vU + 2))
    A.label('L_p2')
    A('s_waitcnt vmcnt(0)')
    A('v_cmp_eq_u32 vcc, 1, %s', v(vU + 1))
    A('s_andn2_b32 %s, %s, %s', s(sT + 4), s(sGot), s(sLd2))
    A('s_mov_b32 %s, %s', s(sLd2), s(sGot))
    A('s_and_b32 %s, vcc_lo, 0xff', s(sNew))
    if not OPT['early2']:
        A('s_cmp_eq_u32 %s, 0xff', s(sNew))
        A('s_cselect_b32 %s, 0xff, 0', s(sNew))
    A('s_andn2_b32 %s, %s, %s', s(sNew), s(sNew), s(sGot))
    A('s_cbranch_scc0 L_p2_noload')
    A('s_or_b32 %s, %s, %s', s(sGot), s(sGot), s(sNew))
    for k in range(8):
        A('s_bitcmp1_b32 %s, %d', s(sNew), k)
        A('s_cbranch_scc0 L_p2_l%d', k)
        if k < 2:
            A('buffer_load_dwordx4 %s, %s, %s, %s offen offset:%d sc1', v(vR + 4 * k, 4), v(vBl), s(sPo, 4), s(sT), 3072 * k)
        else:
            A('s_add_u32 %s, %s, 0x%x', s(sT + 1), s(sT), 3072 * k)
            A('buffer_load_dwordx4 %s, %s, %s, %s offen sc1', v(vR + 4 * k, 4), v(vBl), s(sPo, 4), s(sT + 1))
        A.label('L_p2_l%d' % k)
    A.label('L_p2_noload')
    A('s_cmp_eq_u32 %s, 0xff', s(sGot))
    A('s_cbranch_scc1 L_p2_nopoll')
    if OPT['slp2']:
        A('s_sleep %d', OPT['slp2'])
    A('buffer_load_dword %s, %s, %s, %s offen offset:128 sc1', v(vU + 1), v(vU), s(sF, 4), s(sT + 3))
    A.label('L_p2_nopoll')
    A('s_cmp_eq_u32 %s, 0', s(sT + 4))
    A('s_cbranch_scc1 L_p2_nounp')
    for k in range(8):
        A('s_bitcmp1_b32 %s, %d', s(sT + 4), k)
        A('s_cbranch_scc0 L_p2_u%d', k)
        for i in range(4):
            A('v_lshlrev_b32 %s, 16, %s', v(vF + 8 * k + 2 * i), v(vR + 4 * k + i))
            A('v_and_b32 %s, 0xffff0000, %s', v(vF + 8 * k + 2 * i + 1), v(vR + 4 * k + i))
        A.label('L_p2_u%d' % k)
    A.label('L_p2_nounp')
    A('s_cmp_eq_u32 %s, 0xff', s(sLd2))
    A('s_cbranch_scc1 L_p2_done')
    A('s_add_u32 %s, %s, 1', s(sSp), s(sSp))
    A('s_cmp_lt_u32 %s, 0x%x', s(sSp), SPIN_MAX)
    A('s_cbranch_scc1 L_p2')
    A('s_waitcnt vmcnt(0)')
    A.label('L_p2_done')
    burn(A, 't', OPT['probe_t'])
    stamp(A, 28)
    for step in (8, 16, 32):
        for k in range(0, 64, 2 * step):
            for i in range(0, 8, 2):
                A('v_pk_add_f32 %s, %s, %s', v(vF + k + i, 2), v(vF + k + i, 2), v(vF + k + step + i, 2))
    for i in range(4):
        A('v_cvt_pk_bf16_f32 %s, %s, %s', v(vR + i), v(vF + 2 * i), v(vF + 2 * i + 1))
    if not OPT['noout']:
        A('buffer_store_dwordx4 %s, %s, %s, %s offen %s', v(vR, 4), v(vU + 2), s(sOut, 4), s(sT + 2), OPT['out_pol'])
    if OPT['prof']:
        A('s_waitcnt vmcnt(0)')
        stamp(A, 29)
        stamp_flush(A)


def kernel():
    A = Asm()
    A('s_cmp_ge_u32 s2, 256')
    A('s_cbranch_scc1 L_end')
    if OPT['prof']:
        A('s_memrealtime s[92:93]')
    A('s_load_dwordx4 s[4:7], s[0:1], 0')
    A('s_load_dwordx4 s[8:11], s[0:1], 16')
    A('s_load_dwordx4 s[12:15], s[0:1], 32')
    A('s_load_dwordx4 s[16:19], s[0:1], 48')
    A('v_and_b32 v1, 63, v0')
    if OPT['pfcode'] == 2:
        A('s_getpc_b64 %s', s(sT + 2, 2))
        A.label('L_pc')
        A('s_lshr_b32 %s, s2, 3', s(sT))
        A('s_lshl_b32 %s, %s, 10', s(sT), s(sT))
        A('v_lshl_add_u32 v2, v1, 7, %s', s(sT))
        A('v_min_u32 v2, L_end-L_pc, v2')
        A('s_mov_b64 exec, 0xff')
        A('global_load_dword v250, v2, %s', s(sT + 2, 2))
        A('s_mov_b64 exec, -1')
    A('v_lshrrev_b32 v2, 6, v0')
    A('v_readfirstlane_b32 %s, v2', s(sWave))
    if OPT['prof']:
        A('v_mov_b32 v255, 0')
        A('s_waitcnt lgkmcnt(0)')
        A('v_writelane_b32 v255, s92, 0')
        stamp(A, 58)
    if OPT['badmap']:
        A('s_and_b32 s3, s2, 31')
        A('s_lshl_b32 s3, s3, 3')
        A('s_lshr_b32 s2, s2, 5')
        A('s_or_b32 s2, s2, s3')
    A('s_and_b32 %s, s2, 7', s(sHg))
    A('s_bfe_u32 %s, s2, 0x30003', s(sB))
    A('s_lshr_b32 %s, s2, 6', s(sHh))
    if OPT['hx']:
        A('s_xor_b32 %s, %s, %d', s(sHh), s(sHh), OPT['hx'])
    A('s_lshl_b32 %s, %s, 2', s(sH), s(sHg))
    A('s_add_u32 %s, %s, %s', s(sH), s(sH), s(sHh))
    A('s_lshl_b32 %s, %s, 1', s(sRot), s(sHh))
    A('s_add_u32 %s, %s, %s', s(sRot), s(sRot), s(sB))
    A('s_cmp_lg_u32 %s, 3', s(sWave))
    A('s_cbranch_scc1 L_compute')
    loader(A)
    A.label('L_compute')
    compute(A)
    tail(A)
    A.label('L_end')
    A('s_endpgm')
    return A.lines


HEADER = """
; standalone__mha_block_cached__near_ridge: out = softmax((x Wq) K^T / sqrt(128)) V Wo in one launch.
; One workgroup per (batch b, head h = 4*hg + hh): wg = hg | b<<3 | hh<<6.  Waves 0-2 own 32 queries each, wave 3 streams
; x / Wq / K / V / Wo into LDS (LDS-DMA, swizzled on the source side).  Everything is computed transposed (queries = MFMA
; Flags are reset by their workgroup and announced in d_debug (byte per workgroup = die id + 1) before anyone trusts them.
; @launch grid=(256,1,1) block=(256,1,1) lds=163840
"""


def main():
    k, n = pad_hazards(kernel())
    out = [HEADER.strip(),
           '.amdgcn_target "amdgcn-amd-amdhsa--gfx950"', '.text',
           '.globl %s_kernel\n.p2align 8\n.type %s_kernel,@function\n%s_kernel:' % (NAME, NAME, NAME)]
    out += k
    out.append('''.section .rodata,"a"
.p2align 6
.amdhsa_kernel %s_kernel
  .amdhsa_next_free_vgpr 512
  .amdhsa_next_free_sgpr 102
  .amdhsa_accum_offset 256
  .amdhsa_group_segment_fixed_size 0
  .amdhsa_kernarg_size 64
  .amdhsa_user_sgpr_count 2
  .amdhsa_user_sgpr_kernarg_segment_ptr 1
  .amdhsa_system_sgpr_workgroup_id_x 1
.end_amdhsa_kernel''' % NAME)
    open(sys.argv[1], 'w').write('\n'.join(out) + '\n')
    print('wrote', sys.argv[1], 'pads', n)


main()
```

```python
import sys
from asmlib import Asm, pad_hazards, v, a, s

OPT = dict(kv_pol='nt', w_pol='', x_pol='', wo_pol='', prof=0, la=8, law='8,11,14,18,21,21,21,21', pfcode=2, force_remote=0, early2=1, ovl=0, cap1=24, la1=10, slp1=0, slp2=0, noout=0, wb=0, badmap=0, probe_t=0, probe_k=0, probe_q=0, pl=0, touch=0, mgr1=0, off3=1, fa=0, fb=0, kt=5, early_b=1, ckp='5,13,21,29', qpw=0, qs='3330', tpos2=7, tbit=6, f2=1, ne=8, pw=1, v3='4,2,2', olast=1, cx=2, sp=0, nl=24, rsl=1, nochain=1, plm=0xff, kpos=8, kn=5, tpos=2, upos=4, tk=0, tko=0, tkp='', capL=0, capLn=60, clsm=1, lk=6, wskip=0, o_pol='sc1', clean=0, vpoll=1, plp='', lim=0, ldma='', st='0',  xo=0, cap=9, cap0=0, hx=0, nowo=0, rg=1, pkpub=0, strict=0, pkfin=1, nfin=6, dsw=4, ws_off=0, out_pol='', p_pol='sc1')
for arg in sys.argv[2:]:
    k, val = arg.split('=')
    OPT[k] = int(val, 0) if isinstance(OPT[k], int) else val

NAME = 'standalone__mha_block_cached__near_ridge'
C_SCALE = 0x3e0293ee
MFMA = 'v_mfma_f32_32x32x16_bf16'
WS_O, WS_P, WS_F = OPT['ws_off'], OPT['ws_off'] + (6 << 20), OPT['ws_off'] + (12 << 20)
SPIN_MAX = 1 << 20
WSTR = 28672
KVS = [114688, 0, 65536]
RB = [65536, 90112, 114688]
ROWN = 139264
XFER = 53248
AX = 32
STAT = 49152

sX, sK, sV, sW, sWo, sO, sPo, sF, sOut, sDbg = 20, 24, 28, 32, 36, 56, 60, 64, 68, 72
sWave, sHg, sB, sHh, sH, sRot = 40, 41, 43, 44, 45, 46
sSlot, sCnt, sC = 47, 48, 50
sS0, sS1, sS2, sLocal, sSel = 52, 53, 54, 55, 42
sIss, sLand, sDone, sPst = 52, 53, 54, 94
sFo = 99
sT = 76
AWO = 128
vBl = 240
vW3 = 238
vB1, vB2, vOne, vL0 = 242, 243, 248, 249
sF2, sTodo, sRet = 96, 49, 22
vSt = 241
lP = 234
vAcc = 4


class Lds:
    def __init__(self, A):
        self.A = A
        self.q = []

    def read(self, text, tag):
        self.A(text)
        self.q.append(tag)

    def need(self, *tags):
        idx = max([i for i, t in enumerate(self.q) if t in tags], default=-1)
        if idx < 0:
            return
        n = len(self.q) - 1 - idx
        self.A('s_waitcnt lgkmcnt(%d)', min(n, 15))
        self.q = self.q[idx + 1:]

    def drain(self):
        if self.q:
            self.A('s_waitcnt lgkmcnt(0)')
        self.q = []


def srd(A, d, base, off, size):
    if off is None:
        A('s_mov_b32 %s, %s', s(d), s(base))
        A('s_mov_b32 %s, %s', s(d + 1), s(base + 1))
    else:
        A('s_add_u32 %s, %s, %s', s(d), s(base), off)
        A('s_addc_u32 %s, %s, 0', s(d + 1), s(base + 1))
    A('s_mov_b32 %s, %s', s(d + 2), size if isinstance(size, str) else '0x%x' % size)
    A('s_mov_b32 %s, 0x20000', s(d + 3))


def stamp(A, idx, op='s_memrealtime'):
    if not OPT['prof'] or (OPT['prof'] == 9 and idx not in (0, 2, 3, 25, 29, 58)):
        return
    if OPT['prof'] in (3, 4) and idx not in map(int, OPT['st'].split(',')):
        return
    A('%s s[90:91]', op)
    A('s_waitcnt lgkmcnt(0)')
    A('v_writelane_b32 v255, s90, %d', idx)


def stampd(A, base, mul, cnt=None, lvl=2):
    if OPT['prof'] != lvl:
        return
    A('s_memrealtime s[90:91]')
    A('s_mul_i32 m0, %s, %d', s(sCnt if cnt is None else cnt), mul)
    A('s_add_u32 m0, m0, %d', base)
    A('s_waitcnt lgkmcnt(0)')
    A('v_writelane_b32 v255, s90, m0')


def stamp_flush(A):
    if not OPT['prof']:
        return
    A('s_lshl_b32 s92, s2, 2')
    A('s_add_u32 s92, s92, %s', s(sWave))
    A('s_lshl_b32 s92, s92, 8')
    A('s_add_u32 s92, s92, 0x%x', 128 << 20)
    srd(A, 24, 18, 's92', 256)
    A('v_lshlrev_b32 v254, 2, v1')
    A('buffer_store_dword v255, v254, s[24:27], 0 offen')


def dma(A, voffs, srdreg, soff, pol):
    for j in range(4):
        A('buffer_load_dwordx4 %s, %s, %s offen offset:%d %s lds', v(voffs[j]), s(srdreg, 4), s(soff), 1024 * j, pol)


def tr_lane_base(A, vt, hrow, sigma):
    A('v_lshrrev_b32 %s, 5, v1', v(vt))
    A('v_mul_u32_u24 %s, %d, %s', v(vt), hrow, v(vt))
    A('v_bfe_u32 %s, v1, 2, 2', v(vt + 1))
    A('v_add_u32 %s, %s, %s', v(vt), v(vt), v(vt + 1))
    A('v_lshlrev_b32 %s, 8, %s', v(vt), v(vt))
    A('v_bfe_u32 %s, v1, 4, 1', v(vt + 2))
    A('v_lshl_add_u32 %s, %s, 5, %s', v(vt), v(vt + 2), v(vt))
    if sigma:
        A('v_and_b32 %s, 1, v1', v(vt + 2))
        A('v_lshl_add_u32 %s, %s, 4, %s', v(vt), v(vt + 2), v(vt))
        A('v_bfe_u32 %s, v1, 1, 1', v(vt + 2))
        A('v_lshl_add_u32 %s, %s, 3, %s', v(vt), v(vt + 2), v(vt))
    else:
        A('v_and_b32 %s, 3, v1', v(vt + 2))
        A('v_lshl_add_u32 %s, %s, 3, %s', v(vt), v(vt + 2), v(vt))


def tr_lane_bases(A, vdst, hrow, sigma, vt):
    tr_lane_base(A, vt, hrow, sigma)
    for mt in range(4):
        A('v_xor_b32 %s, %d, %s', v(vt + 2), mt, v(vt + 1))
        A('v_lshl_add_u32 %s, %s, 6, %s', v(vdst + mt), v(vt + 2), v(vt))


def wo_lane_base(A, vdst, vt):
    tr_lane_base(A, vt, 4, True)
    A('v_xor_b32 %s, %s, %s', v(vt + 2), s(sWave), v(vt + 1))
    A('v_lshl_add_u32 %s, %s, 6, %s', v(vdst), v(vt + 2), v(vt))


def wo_reads(A, j, half, vaddr):
    for f in range(4):
        for aa in range(2):
            A('ds_read_b64_tr_b16 %s, %s offset:%d', a(AWO + 32 * j + 16 * half + 4 * f + 2 * aa, 2), v(vaddr), (16 * f + 8 * aa) * 256)


sFl, sFb = 4, sF
sAt = 98
sMa, sMb = 96, 97


def check_land(A, tag):
    A('s_cmp_eq_u32 %s, 14', s(sLand))
    A('s_cbranch_scc1 L_cl_%s', tag)
    A('s_getreg_b32 %s, hwreg(HW_REG_IB_STS)', s(sT))
    A('s_and_b32 %s, %s, 15', s(sT + 1), s(sT))
    A('s_bfe_u32 %s, %s, 0x20016', s(sT), s(sT))
    A('s_lshl4_add_u32 %s, %s, %s', s(sT), s(sT), s(sT + 1))
    A('s_cmp_le_u32 %s, 48', s(sT))
    A('s_cselect_b32 %s, %s, 0', s(sT + 1), s(sMb))
    A('s_cmp_le_u32 %s, 24', s(sT))
    A('s_cselect_b32 %s, %s, %s', s(sT + 1), s(sMa), s(sT + 1))
    A('s_cmp_eq_u32 %s, 0', s(sT))
    A('s_cselect_b32 %s, %s, %s', s(sT + 1), s(sIss), s(sT + 1))
    A('s_andn2_b32 %s, %s, %s', s(sT), s(sT + 1), s(sLand))
    A('s_cbranch_scc0 L_cl_%s', tag)
    A('s_or_b32 %s, %s, %s', s(sLand), s(sLand), s(sT + 1))
    A('v_mov_b32 %s, %s', v(lP + 1), s(sLand))
    A('ds_write_b32 %s, %s offset:4', v(vSt), v(lP + 1))
    if OPT['wb']:
        A('s_lshr_b32 %s, s2, 3', s(sT))
        A('s_xor_b32 %s, %s, %d', s(sT), s(sT), OPT['wb'] - 1)
        A('s_lshl_b32 %s, %s, 4', s(sT), s(sT))
        A('s_or_b32 %s, %s, %s', s(sT), s(sT), s(sLand))
        A('s_cmp_eq_u32 %s, 14', s(sT))
        A('s_cbranch_scc0 L_cl_%s', tag)
        A('buffer_wbl2 sc1')
    stampd(A, 50, 1, 93, 4)
    if OPT['prof'] == 4:
        A('s_add_u32 s93, s93, 1')
    A.label('L_cl_%s' % tag)


def burn(A, tag, n):
    if not n:
        return
    A('s_mov_b32 s98, %d', n)
    A.label('L_burn_' + tag)
    for i in range(14):
        A('v_mov_b32 v252, v253')
    A('s_sub_u32 s98, s98, 1')
    A('s_cmp_lg_u32 s98, 0')
    A('s_cbranch_scc1 L_burn_%s', tag)


def flag(A, hf):
    A('s_cmp_eq_u32 %s, 0', s(sLocal))
    A('s_cbranch_scc1 L_fl%d', hf)
    A('buffer_store_dword %s, %s, %s, %s offen offset:%d sc1', v(vOne), v(vL0), s(sF, 4), s(sT + 8), 16 * hf)
    A('s_branch L_fd%d', hf)
    A.label('L_fl%d' % hf)
    A('buffer_store_dword %s, %s, %s, %s offen offset:%d', v(vOne), v(vL0), s(sF, 4), s(sT + 8), 16 * hf)
    A.label('L_fd%d' % hf)


def poll(A, hf):
    A('buffer_load_dword %s, %s, %s, 0 offen offset:%d sc1', v(lP + 1), v(lP), s(sF, 4), 16 * hf)


def copies(A, hf):
    for j in range(1, 4):
        for w in range(3):
            A('s_mov_b32 m0, 0x%x', RB[j - 1] + 8192 * w + 4096 * hf)
            A('s_add_u32 %s, %s, 0x%x', s(sT), s(sT + 10 + j), 8192 * w + 4096 * hf)
            dma(A, [vBl] * 4, sO, sT, 'sc1')


def tail_addr(A):
    A('s_and_b32 %s, s2, 0xf8', s(sT))
    A('s_lshl_b32 %s, %s, 1', s(sT + 1), s(sWave))
    A('s_add_u32 %s, %s, %s', s(sT + 2), s(sT), s(sT + 1))
    A('s_mul_i32 %s, %s, 24576', s(sT), s(sT + 2))
    A('s_mul_i32 %s, %s, 3072', s(sT + 1), s(sHg))
    A('s_add_u32 %s, %s, %s', s(sPst), s(sT), s(sT + 1))
    A('s_add_u32 %s, %s, 24576', s(sPst + 1), s(sPst))
    A('s_lshl_b32 %s, %s, 8', s(sT + 2), s(sT + 2))
    A('s_lshl_b32 %s, %s, 2', s(sT + 1), s(sHg))
    A('s_add_u32 %s, %s, %s', s(sF2), s(sT + 2), s(sT + 1))


def tail_srds(A):
    srd(A, sO, 18, '0x%x' % WS_O if WS_O else None, 256 * 24576)
    srd(A, sPo, 18, '0x%x' % WS_P, 256 * 24576)
    srd(A, sF, 18, '0x%x' % WS_F, 256 * 256)
    srd(A, sDbg, 16, None, 256)
    A('s_mul_i32 %s, %s, 98304', s(sT), s(sB))
    srd(A, sOut, 14, s(sT), 98304)
    A('v_lshlrev_b32 %s, 4, v1', v(vBl))
    A('v_mov_b32 %s, 0x%x', v(vSt), STAT)
    A('v_add_u32 %s, 0x%x, %s', v(vB1), RB[0], v(vBl))
    A('v_add_u32 %s, 0x%x, %s', v(vB2), RB[2], v(vBl))
    A('v_mov_b32 %s, 1', v(vOne))
    A('v_min_u32 %s, 1, v1', v(vL0))
    A('v_lshlrev_b32 %s, 30, %s', v(vL0), v(vL0))


V3 = list(map(int, OPT['v3'].split(',')))
assert sum(V3) == 8 and V3[-1] == 2
STEPS = ['K0', 'K1', 'V0', 'K2', 'V1', 'K3', 'V2', 'V3']


def plan():
    groups = []
    steps = []
    k0 = [('k', 0, g, KVS[0] + 16384 + 4096 * g, 8) for g in range(3, 8)]
    for i in range(8):
        base = WSTR * (i % 5)
        if i == OPT['tpos']:
            groups.append(('t', 0, 0, -1 << 20, 0))
        if i == OPT['tpos2']:
            groups.append(('t', 1, 0, -1 << 20, 0))
        if i == OPT['kpos']:
            groups += k0[:OPT['kn']]
        if i < 8 - OPT['wskip']:
            for g in range(3):
                groups.append(('x', i, g, base + 16384 + 4096 * g, i))
            for g in range(4):
                groups.append(('w', i, g, base + 4096 * g, i))
        steps.append(['W%d' % i, len(groups) - 1, i if OPT['strict'] else i - 1])
    for t, nm in enumerate(STEPS):
        base = KVS[t % 3]
        kv = lambda g: (nm[0].lower(), int(nm[1]), g, base + 16384 + 4096 * g, 8 + t)
        wo = lambda g: ('o', t >> 1, 4 * (t & 1) + g, base + 4096 * g, 8 + t)
        if t == 0:
            seq = k0[OPT['kt'] if OPT['kt'] else OPT['kn'] if OPT['kpos'] < 8 else 0:] + [kv(0), wo(0), kv(1), wo(1), kv(2), wo(2), wo(3)]
        elif t == 7:
            seq = [('h', hf, g, base + 16384 * (1 + hf) + 4096 * g, 15) for hf in range(2) for g in range(4)] + [wo(g) for g in range(4)]
        else:
            seq = []
            for q in range(4):
                seq += [wo(q), kv(2 * q), kv(2 * q + 1)]
        if OPT['nowo']:
            seq = [x for x in seq if x[0] != 'o']
        groups += seq
        if t < 7:
            steps.append([nm, len(groups) - 1, 8 + t])
        else:
            e = len(groups) - 1 - 4
            steps += [['V3a', e - 4, 15], ['V3b', e - 1, 15], ['V3c', e, 15]]
    return steps, groups


def loader(A):
    lX, lW, lK, lV, lWo, lT, lA, lZ, lH = 200, 204, 208, 212, 216, 220, 228, 196, 214
    A('v_lshrrev_b32 %s, 4, v1', v(lT))
    A('v_and_b32 %s, 15, v1', v(lT + 1))
    A('v_lshrrev_b32 %s, 3, v1', v(lT + 3))
    A('v_and_b32 %s, 7, v1', v(lT + 4))
    A('v_xor_b32 %s, %s, %s', v(lT + 4), v(lT + 4), v(lT))
    A('v_lshlrev_b32 %s, 4, %s', v(lT + 4), v(lT + 4))
    A('v_lshl_add_u32 %s, %s, 10, %s', v(lX), v(lT + 3), v(lT + 4))
    A('v_xor_b32 %s, 64, %s', v(lX + 1), v(lX))
    A('v_add_u32 %s, 0x%x, %s', v(lX + 2), 2 * 7168, v(lX))
    A('v_add_u32 %s, 0x%x, %s', v(lX + 3), 3 * 7168, v(lX + 1))
    A('v_add_u32 %s, 0x%x, %s', v(lX + 1), 7168, v(lX + 1))
    A('v_lshlrev_b32 %s, 2, %s', v(lT + 2), v(lT))
    A('v_xor_b32 %s, %s, %s', v(lT + 2), v(lT + 2), v(lT + 1))
    A('v_lshlrev_b32 %s, 4, %s', v(lT + 2), v(lT + 2))
    A('v_lshl_add_u32 %s, %s, 13, %s', v(lW), v(lT), v(lT + 2))
    for j in range(1, 4):
        A('v_add_u32 %s, 0x%x, %s', v(lW + j), j * (32768 - 1024), v(lW))
    A('s_mul_i32 %s, %s, 98304', s(sT), s(sB))
    A('s_lshl_b32 %s, %s, 8', s(sT + 1), s(sH))
    A('s_sub_u32 %s, 0x400000, %s', s(sT + 2), s(sT + 1))
    A('s_waitcnt lgkmcnt(0)')
    srd(A, sX, 4, s(sT), 98304)
    srd(A, sW, 10, s(sT + 1), s(sT + 2))
    stamp(A, 30)

    def setup2():
        A('s_lshl_b32 %s, %s, 5', s(sT), s(sB))
        A('s_add_u32 %s, %s, %s', s(sT), s(sT), s(sH))
        A('s_lshl_b32 %s, %s, 17', s(sT), s(sT))
        srd(A, sK, 6, s(sT), 131072)
        srd(A, sV, 8, s(sT), 131072)
        A('s_lshl_b32 %s, %s, 19', s(sT), s(sHg))
        A('s_xor_b32 %s, %s, %d', s(sT + 1), s(sHh), OPT['cx'])
        A('s_lshl_b32 %s, %s, %d', s(sT + 1), s(sT + 1), 8 - OPT['sp'])
        A('s_add_u32 %s, %s, %s', s(sT), s(sT), s(sT + 1))
        A('s_sub_u32 %s, 0x80000, %s', s(sT + 2), s(sT + 1))
        srd(A, sWo, 12, s(sT), s(sT + 2))
        A('v_lshl_add_u32 %s, %s, 8, %s', v(lV), v(lT), v(lT + 2))
        if OPT['sp'] == 0:
            A('v_lshl_add_u32 %s, %s, 10, %s', v(lWo), v(lT), v(lT + 2))
        else:
            if OPT['sp'] == 1:
                A('v_and_b32 %s, 0x7f, %s', v(lT + 3), v(lT + 2))
                A('v_lshrrev_b32 %s, 7, %s', v(lT + 4), v(lT + 2))
                A('v_lshl_add_u32 %s, %s, 9, %s', v(lT + 3), v(lT + 4), v(lT + 3))
            else:
                A('v_and_b32 %s, 0x3f, %s', v(lT + 3), v(lT + 2))
                A('v_lshrrev_b32 %s, 6, %s', v(lT + 4), v(lT + 2))
                A('v_lshl_add_u32 %s, %s, 8, %s', v(lT + 3), v(lT + 4), v(lT + 3))
            A('v_lshl_add_u32 %s, %s, 10, %s', v(lWo), v(lT), v(lT + 3))
        for j in range(1, 4):
            A('v_add_u32 %s, 0x%x, %s', v(lWo + j), j * (4096 - 1024), v(lWo))
        for j in range(4):
            A('v_add_u32 %s, %d, %s', v(lT + 3), 4 * j, v(lT))
            A('v_xor_b32 %s, %s, %s', v(lT + 3), v(lT + 3), v(lT + 1))
            A('v_lshlrev_b32 %s, 4, %s', v(lT + 3), v(lT + 3))
            A('v_lshl_add_u32 %s, %s, 8, %s', v(lK + j), v(lT), v(lT + 3))
        A('v_and_b32 %s, 1, %s', v(lT + 3), v(lT))
        A('v_lshlrev_b32 %s, 2, %s', v(lT + 3), v(lT + 3))
        A('v_and_b32 %s, 7, v1', v(lT + 4))
        A('v_xor_b32 %s, %s, %s', v(lT + 3), v(lT + 3), v(lT + 4))
        A('v_lshlrev_b32 %s, 4, %s', v(lT + 3), v(lT + 3))
        A('v_lshrrev_b32 %s, 3, v1', v(lT + 4))
        A('v_lshl_add_u32 %s, %s, 8, %s', v(lH), v(lT + 4), v(lT + 3))
        A('v_add_u32 %s, 0x400, %s', v(lH + 1), v(lH))
        wo_lane_base(A, lA, lT)
        A('v_mov_b32 %s, %s', v(vW3), v(lA))
        tail_srds(A)
        if OPT['capL']:
            A('s_xor_b32 vcc_lo, %s, %d', s(sHh), 1 ^ OPT['cx'])
            A('s_mov_b32 vcc_hi, 0')
        if OPT['rg']:
            A('s_lshl_b32 %s, %s, 12', s(sT + 8), s(sB))
        else:
            A('s_mov_b32 %s, 0', s(sT + 8))
        A('s_and_b32 %s, s2, 63', s(sT + 1))
        for j in range(1, 4):
            A('%s %s, %s, %d', 's_xor_b32' if OPT['xo'] else 's_add_u32', s(sT), s(sHh), j)
            A('s_and_b32 %s, %s, 3', s(sT), s(sT))
            if OPT['hx']:
                A('s_xor_b32 %s, %s, %d', s(sT), s(sT), OPT['hx'])
            A('s_lshl_b32 %s, %s, 6', s(sT), s(sT))
            A('s_add_u32 %s, %s, %s', s(sT), s(sT), s(sT + 1))
            A('s_mul_i32 %s, %s, 24576', s(sT + 10 + j), s(sT))
            A('s_lshl_b32 %s, %s, 8', s(sFo + j - 1), s(sT))
        A('v_lshrrev_b32 %s, 2, v1', v(lP))
        A('v_min_u32 %s, 2, %s', v(lP), v(lP))
        A('v_add_u32 %s, 1, %s', v(lP), v(lP))
        A('%s %s, %s, %s', 'v_xor_b32' if OPT['xo'] else 'v_add_u32', v(lP), s(sHh), v(lP))
        A('v_and_b32 %s, 3, %s', v(lP), v(lP))
        if OPT['hx']:
            A('v_xor_b32 %s, %d, %s', v(lP), OPT['hx'], v(lP))
        A('v_lshlrev_b32 %s, 6, %s', v(lP), v(lP))
        A('v_add_u32 %s, %s, %s', v(lP), s(sT + 1), v(lP))
        A('v_lshlrev_b32 %s, 8, %s', v(lP), v(lP))
        A('v_and_b32 %s, 3, v1', v(lP + 1))
        A('v_min_u32 %s, 2, %s', v(lP + 1), v(lP + 1))
        A('v_lshl_add_u32 %s, %s, 2, %s', v(lP), v(lP + 1), v(lP))
        A('v_mov_b64 %s, 0', v(lP + 2, 2))
        A('v_mov_b64 %s, 0', v(lZ, 2))
        A('v_mov_b64 %s, 0', v(lZ + 2, 2))
        A('s_lshl_b32 %s, s2, 8', s(sT))
        A('s_mov_b64 exec, 0xffff')
        A('buffer_store_dwordx4 %s, %s, %s, %s offen sc1', v(lZ, 4), v(vBl), s(sF, 4), s(sT))
        A('s_mov_b64 exec, -1')

    steps, groups = plan()
    st = dict(m0=None, key=None, so=None)
    sXo, sWq, sG, sOo, sGk, sGv, sRg = sT + 3, sT + 4, sT + 5, sT + 6, sT + 7, sT + 7, sT + 8

    def issue(gi):
        kind, j, g, lds, _ = groups[gi]
        if kind == 't':
            if OPT['tpos2'] < 9:
                A('s_bitcmp1_b32 s2, %d', OPT['tbit'])
                A('s_cbranch_scc%d L_nt%d', 1 - j, j)
            A('s_lshl_b32 %s, %s, 19', s(sT), s(sHg))
            A('s_lshr_b32 %s, s2, 3', s(sT + 1))
            A('s_lshl_b32 %s, %s, 14', s(sT + 1), s(sT + 1))
            A('s_add_u32 %s, %s, %s', s(sT), s(sT), s(sT + 1))
            A('v_lshl_add_u32 v251, v1, 7, %s', s(sT))
            A('v_add_u32 v252, 0x2000, v251')
            A('global_load_dword v250, v251, s[12:13]')
            A('global_load_dword v250, v252, s[12:13]')
            if OPT['tk']:
                A('v_lshlrev_b32 v253, 7, v1')
            for g in range(OPT['tk']):
                A('s_mov_b32 %s, 0x%x', s(sT), OPT['tko'] + 8192 * g)
                A('buffer_load_dword v250, v253, %s, %s offen %s', s(sK, 4), s(sT), OPT['tkp'])
            for g in range(3, 3 + OPT['kt']):
                A('s_mov_b32 m0, 0x%x', KVS[0] + 16384 + 4096 * g)
                A('s_add_u32 %s, %s, 0x%x', s(sG), s(sRg), 4096 * g)
                A('s_and_b32 %s, %s, 0x7000', s(sG), s(sG))
                dma(A, [lK, lK + 1, lK + 2, lK + 3], sK, sG, OPT['kv_pol'])
            st['m0'] = None
            if OPT['tpos2'] < 9:
                A.label('L_nt%d' % j)
            return
        if kind == 'h':
            for u in range(2):
                A('s_mov_b32 m0, 0x%x', lds + 2048 * u)
                A('s_add_u32 %s, %s, 0x%x', s(sG), s(sRg), 4096 * (2 * g + u))
                A('s_and_b32 %s, %s, 0x7000', s(sG), s(sG))
                A('s_or_b32 %s, %s, 0x%x', s(sG), s(sG), 3 * 32768 + 128 * j)
                for j2 in range(2):
                    A('buffer_load_dwordx4 %s, %s, %s offen offset:%d %s lds', v(lH + j2), s(sV, 4), s(sG), 1024 * j2, OPT['kv_pol'])
            st['m0'] = None
            return
        if kind == 'u':
            if g == 0:
                A('v_lshlrev_b32 v253, 7, v1')
            A('s_mov_b32 %s, 0x%x', s(sT), OPT['tko'] + 8192 * g)
            A('buffer_load_dword v250, v253, %s, %s offen %s', s(sK, 4), s(sT), OPT['tkp'])
            return
        if OPT['cap'] and steps[7][1] + OPT['cap0'] < gi < len(groups) - OPT['cap1']:
            A('s_waitcnt vmcnt(%d)', 4 * (OPT['cap'] - 1))
        if OPT['capL'] and steps[7][1] < gi < len(groups) - OPT['cap1']:
            A('s_cbranch_vccz L_cl%d', gi)
            A('s_waitcnt vmcnt(%d)', 4 * (OPT['capL'] - 1))
            A.label('L_cl%d' % gi)
        if st['m0'] is not None and 0 < lds - st['m0'] < 32768:
            A('s_addk_i32 m0, 0x%x', lds - st['m0'])
        else:
            A('s_mov_b32 m0, 0x%x', lds)
        st['m0'] = lds
        if kind == 'x':
            if g == 0:
                A('s_add_u32 %s, %s, %d', s(sT), s(sRot), j)
                A('s_and_b32 %s, %s, 7', s(sT), s(sT))
                A('s_lshl_b32 %s, %s, 7', s(sXo), s(sT))
                A('s_lshl_b32 %s, %s, 19', s(sWq), s(sT))
            else:
                A('s_add_u32 %s, %s, 0x8000', s(sXo), s(sXo))
            dma(A, [lX, lX + 1, lX + 2, lX + 3], sX, sXo, OPT['x_pol'])
        elif kind == 'w':
            if g:
                A('s_add_u32 %s, %s, 0x20000', s(sWq), s(sWq))
            dma(A, [lW, lW + 1, lW + 2, lW + 3], sW, sWq, OPT['w_pol'])
        elif kind == 'o':
            if g == 0:
                A('%s %s, %s, %d', 's_xor_b32' if OPT['xo'] else 's_add_u32', s(sT), s(sHh), j)
                A('s_and_b32 %s, %s, 3', s(sT), s(sT))
                A('s_lshl_b32 %s, %s, 17', s(sOo), s(sT))
            else:
                A('s_addk_i32 %s, 0x4000', s(sOo))
            dma(A, [lWo, lWo + 1, lWo + 2, lWo + 3], sWo, sOo, OPT['wo_pol'])
        else:
            sR = sGk if kind == 'k' else sGv
            if st.get(kind) == (j, g - 1):
                A('s_addk_i32 %s, 0x1000', s(sR))
            else:
                A('s_add_u32 %s, %s, 0x%x', s(sR), s(sRg), 4096 * g)
            st[kind] = (j, g)
            A('s_and_b32 %s, %s, 0x7000', s(sG), s(sR))
            if j:
                A('s_or_b32 %s, %s, 0x%x', s(sG), s(sG), j * 32768)
            if kind == 'k':
                dma(A, [lK, lK + 1, lK + 2, lK + 3], sK, sG, OPT['kv_pol'])
            else:
                dma(A, [lV] * 4, sV, sG, OPT['kv_pol'])

    def free(gi, cert):
        lds = groups[gi][3]
        return all(not (p[3] < lds + 4096 and lds < p[3] + 4096) or p[4] < cert for p in groups[:gi])

    nxt = 0
    cert = 0
    did2 = False
    pend = False
    for i, (name, e, c) in enumerate(steps):
        la = int(OPT['law'].split(',')[i]) if i < 8 else OPT['la1'] if (OPT['la1'] and i >= 13) else OPT['la']
        while nxt < len(groups) and nxt <= e + la and free(nxt, cert):
            if nxt == 11 and not did2:
                stamp(A, 31)
                setup2()
                did2 = True
            issue(nxt)
            nxt += 1
        assert nxt > e, (name, nxt, e)
        A('s_waitcnt vmcnt(%d)%s', min(60, sum({'t': 0 if OPT['tpos2'] < 9 else 2 + OPT['tk']}.get(x[0], 4) for x in groups[e + 1:nxt])), ' lgkmcnt(0)' if pend else '')
        pend = False
        if not 2 <= i <= 5 and OPT['prof'] != 9:
            stamp(A, 2 + i)
        A('s_barrier')
        cert = max(cert, c)
        if 8 <= i <= (14 if OPT['olast'] else 15):
            t = i - 8
            A('v_add_u32 %s, 0x%x, %s', v(lA + 1), KVS[t % 3], v(lA))
            wo_reads(A, t >> 1, t & 1, lA + 1)
            pend = True
        if name == 'W1':
            assert e > 11
            A('s_getreg_b32 %s, hwreg(HW_REG_XCC_ID, 0, 4)', s(sT))
            A('s_add_u32 %s, %s, 1', s(sT), s(sT))
            A('s_and_b32 %s, s2, 3', s(sT + 1))
            A('s_lshl_b32 %s, %s, 3', s(sT + 1), s(sT + 1))
            A('s_lshl_b32 %s, %s, %s', s(sAt), s(sT), s(sT + 1))
            A('s_and_b32 %s, s2, 0xfc', s(sT + 1))
            A('s_atomic_or %s, s[16:17], %s', s(sAt), s(sT + 1))
        if name == 'K0':
            A('ds_write_b64 %s, %s', v(vSt), v(lP + 2, 2))
            A('ds_write_b32 %s, %s offset:12', v(vSt), v(lP + 2))
        if name == 'K2':
            A('s_and_b32 %s, s2, 0xf8', s(sT))
            A('s_load_dwordx2 %s, s[16:17], %s', s(sFl + 4, 2), s(sT))
            A('s_and_b32 %s, s2, 0x3c', s(sT))
            for k in range(4):
                A('s_load_dword %s, s[16:17], %s', s(sFl + k), s(sT))
                if k < 3:
                    A('s_add_u32 %s, %s, 64', s(sT), s(sT))
        if name == 'V1':
            A('s_mov_b32 %s, 0', s(sT + 2))
            A.label('L_chk')
            A('s_and_b32 %s, s2, 3', s(sT))
            A('s_lshl_b32 %s, %s, 3', s(sT), s(sT))
            A('s_or_b32 %s, %s, 0x80000', s(sT), s(sT))
            for k in range(4):
                A('s_bfe_u32 %s, %s, %s', s(sFl + k), s(sFl + k), s(sT))
            A('s_min_u32 %s, %s, %s', s(sT), s(sFl), s(sFl + 1))
            A('s_min_u32 %s, %s, %s', s(sT + 1), s(sFl + 2), s(sFl + 3))
            A('s_min_u32 %s, %s, %s', s(sT), s(sT), s(sT + 1))
            A('s_add_u32 %s, %s, 0x7f7f7f7f', s(sFl + 4), s(sFl + 4))
            A('s_add_u32 %s, %s, 0x7f7f7f7f', s(sFl + 5), s(sFl + 5))
            A('s_and_b32 %s, %s, %s', s(sFl + 4), s(sFl + 4), s(sFl + 5))
            A('s_or_b32 %s, %s, 0x7f7f7f7f', s(sFl + 4), s(sFl + 4))
            A('s_cmp_eq_u32 %s, -1', s(sFl + 4))
            A('s_cselect_b32 %s, %s, 0', s(sT), s(sT))
            A('s_cmp_lg_u32 %s, 0', s(sT))
            A('s_cbranch_scc1 L_chk_ok')
            A('v_lshlrev_b32 %s, 2, v1', v(lZ))
            A('buffer_load_dword %s, %s, %s, 0 offen sc1', v(lZ + 1), v(lZ), s(sDbg, 4))
            A('s_bfe_u32 %s, s2, 0x40002', s(sT))
            A('s_waitcnt vmcnt(0)')
            for k in range(4):
                A('v_readlane_b32 %s, %s, %s', s(sFl + k), v(lZ + 1), s(sT))
                A('s_add_u32 %s, %s, 16', s(sT), s(sT))
            A('s_lshr_b32 %s, s2, 3', s(sT))
            A('s_lshl_b32 %s, %s, 1', s(sT), s(sT))
            A('v_readlane_b32 %s, %s, %s', s(sFl + 4), v(lZ + 1), s(sT))
            A('s_add_u32 %s, %s, 1', s(sT), s(sT))
            A('v_readlane_b32 %s, %s, %s', s(sFl + 5), v(lZ + 1), s(sT))
            A('s_add_u32 %s, %s, 1', s(sT + 2), s(sT + 2))
            A('s_cmp_lt_u32 %s, 0x%x', s(sT + 2), SPIN_MAX)
            A('s_cbranch_scc1 L_chk')
            A.label('L_chk_ok')
            if OPT['prof']:
                A('v_writelane_b32 v255, %s, 59', s(sT + 2))
            for k in range(1, 4):
                A('s_xor_b32 %s, %s, %s', s(sFl + k), s(sFl + k), s(sFl))
            A('s_or_b32 %s, %s, %s', s(sT), s(sFl + 1), s(sFl + 2))
            A('s_or_b32 %s, %s, %s', s(sLocal), s(sT), s(sFl + 3))
            if OPT['force_remote']:
                A('s_mov_b32 %s, 1', s(sLocal))
            A('v_mov_b32 %s, %s', v(lZ), s(sLocal))
            A('ds_write_b32 %s, %s offset:8', v(vSt), v(lZ))
    assert nxt == len(groups)

    tail_addr(A)
    A('s_mov_b32 %s, 0', s(sT + 2))
    A.label('L_poll0')
    poll(A, 0)
    A('s_add_u32 %s, %s, 1', s(sT + 2), s(sT + 2))
    A('s_cmp_ge_u32 %s, 0x%x', s(sT + 2), SPIN_MAX)
    A('s_waitcnt vmcnt(0)')
    A('s_cbranch_scc1 L_got0')
    A('v_cmp_ne_u32 vcc, 1, %s', v(lP + 1))
    A('s_cmp_lg_u64 vcc, 0')
    A('s_cbranch_scc1 L_poll0')
    A.label('L_got0')
    stamp(A, 40)
    copies(A, 0)
    stamp(A, 41)
    poll(A, 1)
    A('s_mov_b32 %s, 1', s(sTodo))
    if OPT['early_b']:
        A('s_call_b64 %s, L_bg', s(sRet, 2))
    else:
        A('s_waitcnt vmcnt(1)')
    A('s_branch L_bara')
    A.label('L_bg')
    A('s_waitcnt vmcnt(0)')
    A('v_cmp_ne_u32 vcc, 1, %s', v(lP + 1))
    A('s_cmp_lg_u64 vcc, 0')
    A('s_cbranch_scc1 L_bg_again')
    A.label('L_bg_go')
    stamp(A, 42)
    copies(A, 1)
    stamp(A, 43)
    A('s_mov_b32 %s, 0', s(sTodo))
    A('s_setpc_b64 %s', s(sRet, 2))
    A.label('L_bg_again')
    poll(A, 1)
    A('s_setpc_b64 %s', s(sRet, 2))


def qproj(A, vacc, vWa, vBa, vWb, vBb):
    L = Lds(A)
    FA = [[0 + 16 * p + 4 * mt for mt in range(4)] for p in range(2)]
    FB = [32, 36]
    QS = [0] + [sum(map(int, OPT['qs'][:i + 1])) for i in range(4)]

    def reads(ks):
        p = ks & 1
        out = [('ds_read_b128 %s, %s offset:%d' % (a(FB[p], 4), v(vBa + ks), 16384), ('B', ks))]
        for mt in range(4):
            for aa in range(2):
                out.append(('ds_read_b64_tr_b16 %s, %s offset:%d' % (a(FA[p][mt] + 2 * aa, 2), v(vWa + mt), (16 * ks + 4 * aa) * 256), ('A', ks, mt)))
        return out

    def addr_w():
        return ['v_add_u32 %s, %s, %s' % (v(vWa + mt), s(sSlot), v(vWb + mt)) for mt in range(4)]

    def addr_b():
        return ['v_add_u32 %s, %s, %s' % (v(vBa), s(sSlot), v(vBb))] + ['v_xor_b32 %s, %d, %s' % (v(vBa + k), 32 * k, v(vBa)) for k in range(1, 4)]

    def mfma(ks, mt):
        p = ks & 1
        if not OPT['qpw']:
            L.need(('B', ks), ('A', ks, mt))
        elif mt % 2 == 0:
            L.need(('B', ks), ('A', ks, mt + 1))
        A('%s %s, %s, %s, %s', MFMA, v(vacc + 16 * mt, 16), a(FA[p][mt], 4), a(FB[p], 4), v(vacc + 16 * mt, 16))

    A('s_mov_b32 %s, 0', s(sCnt))
    for o in addr_w() + addr_b():
        A(o)
    A('s_barrier')
    for t, tag in reads(0):
        L.read(t, tag)
    q0 = list(L.q)
    A.label('L_qp')
    for ks in range(3):
        nxt = reads(ks + 1)
        for mt in range(4):
            mfma(ks, mt)
            for t, tag in nxt[QS[mt]:QS[mt + 1]]:
                L.read(t, tag)
            if ks == 2 and mt == 3:
                A('s_add_u32 %s, %s, 0x%x', s(sSlot), s(sSlot), WSTR)
                A('s_cmp_eq_u32 %s, 0x%x', s(sSlot), WSTR * 5)
                A('s_cselect_b32 %s, 0, %s', s(sSlot), s(sSlot))
                for o in addr_w()[:2] + addr_b()[:1]:
                    A(o)
    qs = list(L.q)
    A('s_add_u32 %s, %s, 1', s(sCnt), s(sCnt))
    A('s_cmp_eq_u32 %s, 8', s(sCnt))
    A('s_cbranch_scc1 L_qp_last')
    nxt = reads(0)
    extra = [addr_w()[2:], addr_b()[1:], [], []]
    for mt in range(4):
        mfma(3, mt)
        if mt == 0:
            if OPT['strict']:
                L.drain()
            stampd(A, 32, 2)
            A('s_barrier')
            stampd(A, 33, 2)
        if mt == 0:
            for o in extra[0]:
                A(o)
        for t, tag in nxt[QS[mt]:QS[mt + 1]]:
            L.read(t, tag)
        for o in extra[mt] if mt else []:
            A(o)
    assert L.q == q0, (L.q, q0)
    A('s_branch L_qp')
    A.label('L_qp_last')
    L.q = qs
    for mt in range(4):
        mfma(3, mt)


def compute(A):
    vQ, vO, vS, vP = 4, 36, 100, 164
    vWb, vXb, vWa, vXa = 196, 200, 201, 205
    vKb, vKa, vVb, vVa = 209, 210, 218, 222
    vM, vL, vT, vOb, vOa, vD, vO3, vHb = 226, 228, 230, 238, 239, 244, 246, 236
    if OPT['pfcode'] == 1:
        A('s_cmp_lg_u32 %s, 1', s(sWave))
        A('s_cbranch_scc1 L_nopf')
        A('s_getpc_b64 %s', s(sT + 2, 2))
        A.label('L_pc')
        A('s_sub_u32 %s, %s, L_pc-%s_kernel', s(sT + 2), s(sT + 2), NAME)
        A('s_subb_u32 %s, %s, 0', s(sT + 3), s(sT + 3))
        A('s_lshr_b32 %s, s2, 3', s(sT))
        A('s_lshl_b32 %s, %s, 10', s(sT), s(sT))
        A('v_lshl_add_u32 %s, v1, 7, %s', v(vT), s(sT))
        A('v_min_u32 %s, L_end-%s_kernel, %s', v(vT), NAME, v(vT))
        A('s_mov_b64 exec, 0xff')
        A('global_load_dword v250, %s, %s', v(vT), s(sT + 2, 2))
        A('s_mov_b64 exec, -1')
        A.label('L_nopf')
    A('s_waitcnt lgkmcnt(0)')
    tail_srds(A)
    tr_lane_bases(A, vWb, 8, True, vT)
    A('v_and_b32 %s, 31, v1', v(vT))
    A('s_lshl_b32 %s, %s, 5', s(sT), s(sWave))
    A('v_add_u32 %s, %s, %s', v(vT), s(sT), v(vT))
    A('v_bfe_u32 %s, %s, 1, 3', v(vT + 1), v(vT))
    A('v_lshrrev_b32 %s, 5, v1', v(vT + 2))
    A('v_xor_b32 %s, %s, %s', v(vT + 1), v(vT + 1), v(vT + 2))
    A('v_lshlrev_b32 %s, 4, %s', v(vT + 1), v(vT + 1))
    A('v_lshl_add_u32 %s, %s, 7, %s', v(vXb), v(vT), v(vT + 1))
    A('v_and_b32 %s, 31, v1', v(vT))
    A('v_and_b32 %s, 15, v1', v(vT + 1))
    A('v_xor_b32 %s, %s, %s', v(vT + 1), v(vT + 1), v(vT + 2))
    A('v_lshlrev_b32 %s, 4, %s', v(vT + 1), v(vT + 1))
    A('v_lshl_add_u32 %s, %s, 8, %s', v(vKb), v(vT), v(vT + 1))
    A('v_add_u32 %s, 0x4000, %s', v(vKb), v(vKb))
    tr_lane_bases(A, vVb, 4, False, vT)
    for mt in range(4):
        A('v_add_u32 %s, 0x4000, %s', v(vVb + mt), v(vVb + mt))
    A('v_lshrrev_b32 %s, 5, v1', v(vT))
    A('v_bfe_u32 %s, v1, 2, 2', v(vT + 1))
    A('v_lshl_add_u32 %s, %s, 2, %s', v(vT), v(vT), v(vT + 1))
    A('v_lshlrev_b32 %s, 7, %s', v(vT), v(vT))
    A('v_bfe_u32 %s, v1, 4, 1', v(vT + 2))
    A('v_lshl_add_u32 %s, %s, 5, %s', v(vT), v(vT + 2), v(vT))
    A('v_and_b32 %s, 3, v1', v(vT + 2))
    A('v_lshl_add_u32 %s, %s, 3, %s', v(vT), v(vT + 2), v(vT))
    A('v_bfe_u32 %s, v1, 3, 1', v(vT + 1))
    A('v_lshl_add_u32 %s, %s, 6, %s', v(vHb), v(vT + 1), v(vT))
    A('v_add_u32 %s, 0x%x, %s', v(vHb), KVS[1] + 16384, v(vHb))
    A('v_xor_b32 %s, 64, %s', v(vHb + 1), v(vHb))
    wo_lane_base(A, vOb, vT)
    A('v_xor_b32 %s, 3, %s', v(vT + 2), v(vT + 1))
    A('v_lshl_add_u32 %s, %s, 6, %s', v(vO3), v(vT + 2), v(vT))
    for i in range(0, 64, 2):
        A('v_mov_b64 %s, 0', v(vS + i, 2))
    for i in range(0, 64, 2):
        A('v_mov_b64 %s, 0', v(vO + i, 2))
    A('v_mov_b32 %s, 0xff800000', v(vM))
    A('v_mov_b64 %s, 0', v(vL, 2))
    A('v_mov_b32 %s, 0', v(vT + 4))
    A('s_mov_b32 %s, 0x%x', s(sC), C_SCALE)
    A('s_mov_b32 %s, 0x%x', s(sC + 1), C_SCALE)
    A('s_mov_b32 %s, 0', s(sSlot))
    for i in range(3):
        A('s_mov_b32 %s, 0x%x', s(sS0 + i), KVS[(0, 2, 1)[i]])
    stamp(A, 1)
    stamp(A, 60, 's_memtime')
    qproj(A, vS, vWa, vXa, vWb, vXb)
    burn(A, 'q', OPT['probe_q'])
    stamp(A, 2)
    stamp(A, 61, 's_memtime')
    L = Lds(A)
    vAl = vT + 4
    vMx = vT
    NL, NE = OPT['nl'], OPT['ne']
    KF = [[32 * p + 4 * k for k in range(8)] for p in range(2)]
    VF = [[64 + 16 * p + 4 * mt for mt in range(4)] for p in range(2)]
    sKs, sVs, sNs = sS0, sS1, sS2

    def kread(t, k):
        return ('ds_read_b128 %s, %s offset:%d' % (a(KF[t & 1][k], 4), v(vKa + k), 8192 * t), ('K', t, k))

    def kaddr(slot):
        return ['v_add_u32 %s, %s, %s' % (v(vKa), s(slot), v(vKb))] + ['v_xor_b32 %s, %d, %s' % (v(vKa + k), 32 * k, v(vKa)) for k in range(1, 8)]

    def kstart():
        stampd(A, 6, 4)
        A('s_barrier')
        stampd(A, 7, 4)
        for k in range(8):
            L.read(*kread(0, k))

    A('s_mov_b32 %s, 0', s(sCnt))
    for o in kaddr(sKs):
        A(o)
    kstart()
    for i in range(32):
        A('v_cvt_pk_bf16_f32 %s, %s, %s', v(vQ + i), v(vS + 2 * i), v(vS + 2 * i + 1))
    q_att = list(L.q)
    A.label('L_att')

    def max_ops(t):
        r = vS + 16 * t
        ops = []
        if t == 0:
            ops.append('v_max3_f32 %s, %s, %s, %s' % (v(vMx), v(r), v(r + 1), v(vM)))
            rest = range(2, 16, 2)
        else:
            rest = range(0, 16, 2)
        for i in rest:
            ops.append('v_max3_f32 %s, %s, %s, %s' % (v(vMx), v(r + i), v(r + i + 1), v(vMx)))
        return ops

    fill = ['v_mul_f32 %s, %s, %s' % (v(vO + i), v(vAl), v(vO + i)) for i in range(64)]
    fill += ['v_add_u32 %s, %s, %s' % (v(vOa), s(sKs), v(vOb)), 'v_add_u32 %s, %s, %s' % (v(vO3 + 1), s(sKs), v(vO3))]
    fill += ['v_add_u32 %s, %s, %s' % (v(vVa + mt), s(sVs), v(vVb + mt)) for mt in range(4)]
    fill3 = kaddr(sNs)
    for t in range(4):
        mo = max_ops(t - 1) if t > 0 else []
        if t == 3:
            fill += fill3
        for k in range(8):
            if k % 2 == 0 or not OPT['pw']:
                L.need(('K', t, k + 1 if OPT['pw'] else k))
            A('%s %s, %s, %s, %s', MFMA, v(vS + 16 * t, 16), a(KF[t & 1][k], 4), v(vQ + 4 * k, 4), '0' if k == 0 else v(vS + 16 * t, 16))
            if t < 3:
                L.read(*kread(t + 1, k))
            if k >= 4 and mo:
                for o in mo[:2]:
                    A(o)
                mo = mo[2:]
                n = 1 if t < 3 else 2
            else:
                n = 3 if t < 3 else 4
            for o in fill[:n]:
                A(o)
            fill = fill[n:]
        assert not mo
    assert not fill, fill

    def wo_switch(tag, cases):
        for n, (c, t) in enumerate(cases):
            last = n == len(cases) - 1
            if not last:
                A('s_cmp_lg_u32 %s, %d', s(sCnt), c)
                A('s_cbranch_scc1 L_wo%s%d', tag, n + 1)
            wo_reads(A, t >> 1, t & 1, vOa)
            if t < 2:
                for f in range(4):
                    for aa in range(2):
                        A('ds_read_b64_tr_b16 %s, %s offset:%d', a(96 + 16 * t + 4 * f + 2 * aa, 2), v(vO3 + 1), (16 * f + 8 * aa) * 256)
            if not last:
                A('s_branch L_wo%sdone', tag)
                A.label('L_wo%s%d' % (tag, n + 1))
        A.label('L_wo%sdone' % tag)

    wo_switch('a', [(c, STEPS.index('K%d' % c)) for c in range(4)])
    for o in max_ops(3):
        A(o)
    A('v_mov_b32 %s, %s', v(vT + 1), v(vMx))
    A('v_add_u32 %s, %s, %s', v(vOa), s(sVs), v(vOb))
    A('v_permlane32_swap_b32 %s, %s', v(vT + 1), v(vMx))
    A('v_max_f32 %s, %s, %s', v(vMx), v(vMx), v(vT + 1))
    A('v_mul_f32 %s, %s, %s', v(vT + 2), s(sC), v(vMx))
    A('v_fma_f32 %s, %s, %s, -%s', v(vT + 3), v(vM), s(sC), v(vT + 2))
    A('v_exp_f32 %s, %s', v(vAl), v(vT + 3))
    A('v_mov_b32 %s, %s', v(vM), v(vMx))
    burn(A, 'k', OPT['probe_k'])
    fma = lambda i: A('v_pk_fma_f32 %s, %s, %s, %s op_sel_hi:[1,1,0] neg_lo:[0,0,1] neg_hi:[0,0,1]', v(vS + i, 2), v(vS + i, 2), s(sC, 2), v(vT + 2, 2))
    fma1 = lambda i: A('v_fma_f32 %s, %s, %s, -%s', v(vS + i), v(vS + i), s(sC), v(vT + 2))

    def part(lo, hi, dst, pre=None):
        fma(lo)
        A(pre if pre else 's_nop 0')
        for i in range(lo, hi, 2):
            if i + 2 < hi:
                fma(i + 2)
            A('v_exp_f32 %s, %s', v(vS + i), v(vS + i))
            A('v_exp_f32 %s, %s', v(vS + i + 1), v(vS + i + 1))
            if i > lo:
                A('v_pk_add_f32 %s, %s, %s', v(vL, 2), v(vL, 2), v(vS + i - 2, 2))
                A('v_cvt_pk_bf16_f32 %s, %s, %s', v(dst + (i - lo) // 2 - 1), v(vS + i - 2), v(vS + i - 1))
        A('v_pk_add_f32 %s, %s, %s', v(vL, 2), v(vL, 2), v(vS + hi - 2, 2))
        A('v_cvt_pk_bf16_f32 %s, %s, %s', v(dst + (hi - lo) // 2 - 1), v(vS + hi - 2), v(vS + hi - 1))

    def copy_p():
        for i in range(0, (64 - NL) // 2, 2):
            A('v_mov_b64 %s, %s', v(vP + NL // 2 + i, 2), v(vS + NL + i, 2))

    part(NL, 64 - NE, vS + NL, 'v_pk_mul_f32 %s, %s, %s op_sel_hi:[1,0]' % (v(vL, 2), v(vL, 2), v(vAl, 2)))
    rest = lambda: part(64 - NE, 64, vS + NL + (64 - NE - NL) // 2)
    A('s_cmp_eq_u32 %s, 0', s(sCnt))
    A('s_waitcnt lgkmcnt(0)')
    A('s_cbranch_scc1 L_first')
    stampd(A, 8, 4)
    A('s_barrier')
    stampd(A, 9, 4)

    def vread(p, mt, buf=None):
        b = VF[p & 1][mt] if buf is None else buf
        return [('ds_read_b64_tr_b16 %s, %s offset:%d' % (a(b + 2 * aa, 2), v(vVa + mt), (16 * p + 8 * aa) * 256), ('V', p, mt)) for aa in range(2)]

    def pv(p, mt, buf=None, wait=None):
        b = VF[p & 1][mt] if buf is None else buf
        if wait is None:
            L.need(('V', p, mt))
        elif wait:
            L.need(wait)
        A('%s %s, %s, %s, %s', MFMA, v(vO + 16 * mt, 16), a(b, 4), v(vP + 4 * p, 4), v(vO + 16 * mt, 16))

    def pv_range(p0, p1, beside=None, first=None):
        n0, n1, LK = 4 * p0, 4 * p1, OPT['lk']
        for n in range(n0, min(n0 + LK, n1)):
            for x in vread(n >> 2, n & 3):
                L.read(*x)
        if first:
            first()
        for n in range(n0, n1):
            pv(n >> 2, n & 3, None, None if not OPT['pw'] else ('V', n >> 2, (n & 3) + 1) if n % 2 == 0 else False)
            if n + LK < n1:
                for x in vread((n + LK) >> 2, (n + LK) & 3):
                    L.read(*x)
            if beside:
                beside(n)

    def late1(g):
        if g < NL:
            A('v_exp_f32 %s, %s', v(vS + g), v(vS + g))
        if g + 1 < NL:
            fma1(g + 1)
        if 1 <= g <= NL:
            A('v_add_f32 %s, %s, %s', v(vL + ((g - 1) & 1)), v(vS + g - 1), v(vL + ((g - 1) & 1)))
        if 3 <= g <= NL + 1 and g & 1:
            q = (g - 3) // 2
            A('v_cvt_pk_bf16_f32 %s, %s, %s', v(vP + q), v(vS + 2 * q), v(vS + 2 * q + 1))

    def late(n):
        for g in range(NL + 2):
            if min(33, g * 32 // NL) == n:
                late1(g)

    def first_v():
        rest()
        fma1(0)
        wo_switch('b', [(c, STEPS.index('V%d' % (c - 1))) for c in (1, 2, 3)])

    pv_range(0, 8, late, first_v)
    assert not L.q
    A('s_cmp_eq_u32 %s, 3', s(sCnt))
    A('s_cbranch_scc1 L_last')
    A('s_add_u32 %s, %s, 1', s(sCnt), s(sCnt))
    kstart()
    late(32)
    late(33)
    copy_p()
    A('s_mov_b32 %s, %s', s(sT), s(sKs))
    A('s_mov_b32 %s, %s', s(sKs), s(sNs))
    A('s_mov_b32 %s, %s', s(sNs), s(sVs))
    A('s_mov_b32 %s, %s', s(sVs), s(sT))
    assert L.q == q_att
    A('s_branch L_att')

    A.label('L_first')
    L.q = []
    part(0, NL, vP)
    A('s_add_u32 %s, %s, 1', s(sCnt), s(sCnt))
    kstart()
    rest()
    copy_p()
    A('s_mov_b32 %s, %s', s(sT), s(sKs))
    A('s_mov_b32 %s, %s', s(sKs), s(sNs))
    A('s_mov_b32 %s, %s', s(sNs), s(sT))
    A('s_branch L_att')

    A.label('L_last')
    L.q = []

    def hread(hf, n, buf):
        p, m = n >> 1, n & 1
        for aa in range(2):
            L.read('ds_read_b64_tr_b16 %s, %s offset:%d' % (a(64 + 4 * buf + 2 * aa, 2), v(vHb + m), 16384 * hf + (16 * p + 8 * aa) * 128), ('H', hf, n))

    def hpv(hf, n, buf, wait):
        p, m = n >> 1, n & 1
        if wait is not None:
            L.need(('H', hf, wait))
        acc = v(vO + 16 * (2 * hf + m), 16)
        A('%s %s, %s, %s, %s', MFMA, acc, a(64 + 4 * buf, 4), v(vP + 4 * p, 4), acc)

    def fin(f):
        for i in range(4):
            r = vO + 8 * f + 2 * i
            A('v_pk_mul_f32 %s, %s, %s op_sel_hi:[1,0]', v(r, 2), v(r, 2), v(vT, 2))
        for i in range(4):
            r = vO + 8 * f + 2 * i
            A('v_cvt_pk_bf16_f32 %s, %s, %s', v(vS + 4 * f + i), v(r), v(r + 1))
        A('buffer_store_dwordx4 %s, %s, %s, %s offen offset:%d sc1', v(vS + 4 * f, 4), v(vBl), s(sO, 4), s(sT + 6 + (f >> 2)), 1024 * (f & 3))

    stamp(A, 20)
    A('s_barrier')
    stamp(A, 21)
    A('ds_read_b32 %s, %s offset:8', v(vD), v(vSt))
    for n in range(6):
        hread(0, n, n)
    late(32)
    late(33)
    copy_p()
    for i in range(0, 32, 2):
        A('v_pk_mul_f32 %s, %s, %s op_sel_hi:[1,0]', v(vO + i, 2), v(vO + i, 2), v(vAl, 2))
    A('v_add_f32 %s, %s, %s', v(vL), v(vL), v(vL + 1))
    A('v_mov_b32 %s, %s', v(vT), v(vL))
    fill = ['v_mul_f32 %s, %s, %s' % (v(vO + i), v(vAl), v(vO + i)) for i in range(32, 64)]
    fill[4:4] = ['v_permlane32_swap_b32 %s, %s' % (v(vT), v(vL)), 'v_add_f32 %s, %s, %s' % (v(vL), v(vL), v(vT)), 'v_rcp_f32 %s, %s' % (v(vT), v(vL)),
                 'v_readfirstlane_b32 %s, %s' % (s(sLocal), v(vD))]
    for n in range(16):
        hpv(0, n, n % 8, n + 1 if n % 2 == 0 else None)
        if n + 6 < 16:
            hread(0, n + 6, (n + 6) % 8)
        for o in fill[:3]:
            A(o)
        fill = fill[3:]
        if n == 13:
            A('s_lshl_b32 %s, %s, 13', s(sT + 1), s(sWave))
            A('s_mul_i32 %s, s2, 24576', s(sT + 6))
            A('s_add_u32 %s, %s, %s', s(sT + 6), s(sT + 6), s(sT + 1))
            A('s_add_u32 %s, %s, 0x1000', s(sT + 7), s(sT + 6))
            A('s_add_u32 %s, %s, 0x%x', s(sT + 1), s(sT + 1), ROWN)
            A('v_add_u32 %s, %s, %s', v(vT + 2), s(sT + 1), v(vBl))
        if n == 14:
            A('s_lshl_b32 %s, s2, 8', s(sT + 8))
            A('s_lshl_b32 %s, %s, 2', s(sT + 1), s(sWave))
            A('s_add_u32 %s, %s, %s', s(sT + 8), s(sT + 8), s(sT + 1))
            A('s_lshl_b32 %s, %s, 12', s(sT + 1), s(sWave))
            A('v_add_u32 %s, %s, %s', v(vT + 3), s(sT + 1), v(vBl))
    assert not fill and not L.q
    A('s_barrier')
    for n in range(6):
        hread(1, n, n)
    for f in range(4):
        fin(f)
    stamp(A, 22)
    for n in range(12):
        hpv(1, n, n % 8, n + 1 if n % 2 == 0 else None)
        if n + 6 < 12:
            hread(1, n + 6, (n + 6) % 8)
        if n >= 8:
            A('ds_write_b128 %s, %s offset:%d', v(vT + 2), v(vS + 4 * (n - 8), 4), 1024 * (n - 8))
    A('s_barrier')
    stamp(A, 3)
    for i, n in enumerate((12, 14, 13, 15)):
        hread(1, n, 4 + i)
    tail_addr(A)
    for i, n in enumerate((12, 14, 13, 15)):
        hpv(1, n, 4 + i, n)
    for f in range(4, 8):
        if f - 4 == OPT['fa']:
            A('s_waitcnt vmcnt(%d)', f - 4)
            flag(A, 0)
        fin(f)
    stamp(A, 4)
    if OPT['fa'] == 4:
        A('s_waitcnt vmcnt(4)')
        flag(A, 0)
    for f in range(4, 8):
        A('ds_write_b128 %s, %s offset:%d', v(vT + 2), v(vS + 4 * f, 4), 1024 * f)
    for f in range(8):
        A('%s %s, %s, %s, %s', MFMA, a(AX, 16), a(96 + 4 * f, 4), v(vS + 4 * f, 4), '0' if f == 0 else a(AX, 16))
        if f == 3:
            A('s_mov_b64 exec, 1')
            A('s_waitcnt lgkmcnt(0)')
            A('ds_add_u32 %s, %s', v(vSt), v(vOne))
            A('s_mov_b64 exec, -1')
            A('s_nop 1')
    if OPT['fb'] < 0:
        A('s_waitcnt vmcnt(%d)', 1 if OPT['fa'] == 4 else 0)
        flag(A, 1)
        stamp(A, 5)
    for i in range(4):
        A('ds_write_b128 %s, %s offset:%d', v(vT + 3), a(AX + 4 * i, 4), XFER + 1024 * i)


def tail(A):
    vU = 230
    vPk = 212
    NB = 6

    def run(units, pre=None, beside=None):
        L = Lds(A)

        def rd(i):
            j, qt, f = units[i]
            base, off = (vB2, ROWN - RB[2]) if j == 0 else (vB2, 0) if j == 3 else (vB1, RB[j - 1] - RB[0])
            L.read('ds_read_b128 %s, %s offset:%d' % (a(4 * (i % NB), 4), v(base), off + qt * 8192 + f * 1024), i)

        for i in range(NB - 1):
            rd(i)
        if pre:
            pre()
        for i, (j, qt, f) in enumerate(units):
            L.need(i)
            acc = v(vAcc + 16 * qt, 16)
            A('%s %s, %s, %s, %s', MFMA, acc, a(AWO + 32 * j + 4 * f, 4), a(4 * (i % NB), 4), '0' if (j == 0 and f == 0) else acc)
            if i + NB - 1 < len(units):
                rd(i + NB - 1)
            if beside:
                beside(i)

    A('s_mov_b32 %s, 0', s(sT + 2))
    A('s_mov_b32 %s, 0', s(sTodo))
    A.label('L_own')
    A('ds_read_b32 %s, %s', v(vU), v(vSt))
    A('s_add_u32 %s, %s, 1', s(sT + 2), s(sT + 2))
    A('s_waitcnt lgkmcnt(0)')
    A('v_readfirstlane_b32 %s, %s', s(sT), v(vU))
    A('s_cmp_ge_u32 %s, 0x%x', s(sT + 2), SPIN_MAX)
    A('s_cbranch_scc1 L_own_go')
    A('s_cmp_lg_u32 %s, 3', s(sT))
    A('s_cbranch_scc1 L_own')
    A.label('L_own_go')
    stamp(A, 23)

    def beside_own(i):
        if i == OPT['fb']:
            A('s_waitcnt vmcnt(%d)', 1 if OPT['fa'] == 4 else 0)
            flag(A, 1)
            stamp(A, 5)

    run([(0, qt, f) for qt in range(3) for f in range(8)], None, beside_own)
    stamp(A, 24)
    A.label('L_bara')
    A('s_barrier')
    stamp(A, 54)

    def pre_a():
        A('s_cmp_lg_u32 %s, 3', s(sWave))
        A('s_cbranch_scc1 L_nox')
        for i in range(12):
            A('ds_read_b128 %s, %s offset:%d', v(vAcc + 4 * i, 4), v(vBl), XFER + 1024 * i)
        A('s_waitcnt lgkmcnt(0)')
        A.label('L_nox')

    def check(tag):
        A('s_cmp_eq_u32 %s, 0', s(sTodo))
        A('s_cbranch_scc1 L_ck%s', tag)
        A('s_call_b64 %s, L_bg', s(sRet, 2))
        A.label('L_ck%s' % tag)

    def beside_a(i):
        if str(i) in OPT['ckp'].split(','):
            check(str(i))
        if 8 <= i < 16:
            f, aa = (i - 8) >> 1, i & 1
            A('ds_read_b64_tr_b16 %s, %s offset:%d', a(AWO + 112 + 4 * f + 2 * aa, 2), v(vW3), KVS[1] + (16 * f + 8 * aa) * 256)

    run([(j, qt, f) for j in (1, 2, 3) for qt in range(3) for f in range(4)], pre_a, beside_a)
    stamp(A, 55)
    A('s_mov_b32 %s, 0', s(sT + 2))
    A.label('L_spinb')
    A('s_cmp_eq_u32 %s, 0', s(sTodo))
    A('s_cbranch_scc1 L_haveb')
    A('s_call_b64 %s, L_bg', s(sRet, 2))
    A('s_add_u32 %s, %s, 1', s(sT + 2), s(sT + 2))
    A('s_cmp_lt_u32 %s, 0x%x', s(sT + 2), SPIN_MAX)
    A('s_cbranch_scc1 L_spinb')
    A.label('L_haveb')
    A('v_lshlrev_b32 %s, 8, v1', v(vU + 1))
    A('s_waitcnt vmcnt(0)')
    A('s_barrier')
    stamp(A, 56)

    def fin_ops(qt):
        ops = []
        for t in range(2):
            o = 2 * qt + t
            r = vAcc + 8 * o
            for i in range(4):
                ops.append('v_cvt_pk_bf16_f32 %s, %s, %s' % (v(vPk + 4 * t + i), v(r + 2 * i), v(r + 2 * i + 1)))
            ops.append('buffer_store_dwordx4 %s, %s, %s, %s offen offset:%d sc1' % (v(vPk + 4 * t, 4), v(vBl), s(sPo, 4), s(sPst + o // 3), 1024 * (o % 3)))
        return ops

    pend = []

    def beside_b(i):
        if i in (15, 27):
            pend.extend(fin_ops(i // 12 - 1))
        for o in pend[:3]:
            A(o)
        del pend[:3]

    run([(j, qt, f) for qt in range(3) for j in (1, 2, 3) for f in range(4, 8)], None, beside_b)
    assert not pend
    stamp(A, 25)
    for o in fin_ops(2):
        A(o)
    stamp(A, 26)
    if OPT['f2']:
        A('s_mov_b64 exec, 1')
        A('s_waitcnt vmcnt(3)')
        A('buffer_store_dword %s, %s, %s, %s offen offset:128 sc1', v(vOne), v(vU + 1), s(sF, 4), s(sF2))
        A('s_mov_b64 exec, 2')
        A('s_waitcnt vmcnt(1)')
    else:
        A('s_mov_b64 exec, 3')
        A('s_waitcnt vmcnt(0)')
    A('buffer_store_dword %s, %s, %s, %s offen offset:128 sc1', v(vOne), v(vU + 1), s(sF, 4), s(sF2))
    A('s_mov_b64 exec, -1')
    stamp(A, 27)
    A('s_cmp_lg_u32 %s, 3', s(sWave))
    A('s_cbranch_scc1 L_red')
    stamp_flush(A)
    A('s_endpgm')

    A.label('L_red')
    vR, vF = 4, 40
    sGot, sLd2, sNew, sSp = sT + 6, sT + 7, sT + 8, sT + 9
    A('s_mul_i32 %s, s2, 24576', s(sT))
    A('s_lshl_b32 %s, %s, 10', s(sT + 1), s(sWave))
    A('s_add_u32 %s, %s, %s', s(sT), s(sT), s(sT + 1))
    A('s_lshl_b32 %s, s2, 8', s(sT + 3))
    A('v_and_b32 %s, 7, v1', v(vU))
    A('v_lshlrev_b32 %s, 2, %s', v(vU), v(vU))
    A('s_mov_b32 %s, 0', s(sGot))
    A('s_mov_b32 %s, 0', s(sLd2))
    A('s_mov_b32 %s, 0', s(sSp))
    A('buffer_load_dword %s, %s, %s, %s offen offset:128 sc1', v(vU + 1), v(vU), s(sF, 4), s(sT + 3))
    A('s_and_b32 %s, %s, 1', s(sT + 1), s(sHg))
    A('s_mul_i32 %s, %s, 3', s(sT + 1), s(sT + 1))
    A('s_add_u32 %s, %s, %s', s(sT + 1), s(sT + 1), s(sWave))
    A('s_lshr_b32 %s, %s, 1', s(sT + 2), s(sT + 1))
    A('s_lshl_b32 %s, %s, 15', s(sT + 2), s(sT + 2))
    A('s_and_b32 %s, %s, 1', s(sT + 1), s(sT + 1))
    A('s_lshl_b32 %s, %s, 5', s(sT + 1), s(sT + 1))
    A('s_add_u32 %s, %s, %s', s(sT + 2), s(sT + 2), s(sT + 1))
    A('s_lshr_b32 %s, %s, 1', s(sT + 1), s(sHg))
    if OPT['sp'] == 1:
        A('s_lshr_b32 %s, %s, 1', s(sT + 4), s(sT + 1))
        A('s_lshl_b32 %s, %s, 9', s(sT + 4), s(sT + 4))
        A('s_add_u32 %s, %s, %s', s(sT + 2), s(sT + 2), s(sT + 4))
        A('s_and_b32 %s, %s, 1', s(sT + 1), s(sT + 1))
    A('s_lshl_b32 %s, %s, %d', s(sT + 1), s(sT + 1), 8 if OPT['sp'] == 2 else 6)
    A('s_add_u32 %s, %s, %s', s(sT + 2), s(sT + 2), s(sT + 1))
    A('s_xor_b32 %s, %s, %d', s(sT + 1), s(sHh), OPT['cx'])
    A('s_lshl_b32 %s, %s, %d', s(sT + 1), s(sT + 1), 8 - OPT['sp'])
    A('s_add_u32 %s, %s, %s', s(sT + 2), s(sT + 2), s(sT + 1))
    A('v_and_b32 %s, 31, v1', v(vU + 2))
    A('v_lshlrev_b32 %s, 10, %s', v(vU + 2), v(vU + 2))
    A('v_lshrrev_b32 %s, 5, v1', v(vU + 3))
    A('v_lshl_add_u32 %s, %s, 4, %s', v(vU + 2), v(vU + 3), v(vU + 2))
    A.label('L_p2')
    A('s_waitcnt vmcnt(0)')
    A('v_cmp_eq_u32 vcc, 1, %s', v(vU + 1))
    A('s_andn2_b32 %s, %s, %s', s(sT + 4), s(sGot), s(sLd2))
    A('s_mov_b32 %s, %s', s(sLd2), s(sGot))
    A('s_and_b32 %s, vcc_lo, 0xff', s(sNew))
    if not OPT['early2']:
        A('s_cmp_eq_u32 %s, 0xff', s(sNew))
        A('s_cselect_b32 %s, 0xff, 0', s(sNew))
    A('s_andn2_b32 %s, %s, %s', s(sNew), s(sNew), s(sGot))
    A('s_cbranch_scc0 L_p2_noload')
    A('s_or_b32 %s, %s, %s', s(sGot), s(sGot), s(sNew))
    for k in range(8):
        A('s_bitcmp1_b32 %s, %d', s(sNew), k)
        A('s_cbranch_scc0 L_p2_l%d', k)
        if k < 2:
            A('buffer_load_dwordx4 %s, %s, %s, %s offen offset:%d sc1', v(vR + 4 * k, 4), v(vBl), s(sPo, 4), s(sT), 3072 * k)
        else:
            A('s_add_u32 %s, %s, 0x%x', s(sT + 1), s(sT), 3072 * k)
            A('buffer_load_dwordx4 %s, %s, %s, %s offen sc1', v(vR + 4 * k, 4), v(vBl), s(sPo, 4), s(sT + 1))
        A.label('L_p2_l%d' % k)
    A.label('L_p2_noload')
    A('s_cmp_eq_u32 %s, 0xff', s(sGot))
    A('s_cbranch_scc1 L_p2_nopoll')
    if OPT['slp2']:
        A('s_sleep %d', OPT['slp2'])
    A('buffer_load_dword %s, %s, %s, %s offen offset:128 sc1', v(vU + 1), v(vU), s(sF, 4), s(sT + 3))
    A.label('L_p2_nopoll')
    A('s_cmp_eq_u32 %s, 0', s(sT + 4))
    A('s_cbranch_scc1 L_p2_nounp')
    for k in range(8):
        A('s_bitcmp1_b32 %s, %d', s(sT + 4), k)
        A('s_cbranch_scc0 L_p2_u%d', k)
        for i in range(4):
            A('v_lshlrev_b32 %s, 16, %s', v(vF + 8 * k + 2 * i), v(vR + 4 * k + i))
            A('v_and_b32 %s, 0xffff0000, %s', v(vF + 8 * k + 2 * i + 1), v(vR + 4 * k + i))
        A.label('L_p2_u%d' % k)
    A.label('L_p2_nounp')
    A('s_cmp_eq_u32 %s, 0xff', s(sLd2))
    A('s_cbranch_scc1 L_p2_done')
    A('s_add_u32 %s, %s, 1', s(sSp), s(sSp))
    A('s_cmp_lt_u32 %s, 0x%x', s(sSp), SPIN_MAX)
    A('s_cbranch_scc1 L_p2')
    A('s_waitcnt vmcnt(0)')
    A.label('L_p2_done')
    burn(A, 't', OPT['probe_t'])
    stamp(A, 28)
    for step in (8, 16, 32):
        for k in range(0, 64, 2 * step):
            for i in range(0, 8, 2):
                A('v_pk_add_f32 %s, %s, %s', v(vF + k + i, 2), v(vF + k + i, 2), v(vF + k + step + i, 2))
    for i in range(4):
        A('v_cvt_pk_bf16_f32 %s, %s, %s', v(vR + i), v(vF + 2 * i), v(vF + 2 * i + 1))
    if not OPT['noout']:
        A('buffer_store_dwordx4 %s, %s, %s, %s offen %s', v(vR, 4), v(vU + 2), s(sOut, 4), s(sT + 2), OPT['out_pol'])
    if OPT['prof']:
        A('s_waitcnt vmcnt(0)')
        stamp(A, 29)
        stamp_flush(A)


def kernel():
    A = Asm()
    A('s_cmp_ge_u32 s2, 256')
    A('s_cbranch_scc1 L_end')
    if OPT['prof']:
        A('s_memrealtime s[92:93]')
    A('s_load_dwordx4 s[4:7], s[0:1], 0')
    A('s_load_dwordx4 s[8:11], s[0:1], 16')
    A('s_load_dwordx4 s[12:15], s[0:1], 32')
    A('s_load_dwordx4 s[16:19], s[0:1], 48')
    A('v_and_b32 v1, 63, v0')
    if OPT['pfcode'] == 2:
        A('s_getpc_b64 %s', s(sT + 2, 2))
        A.label('L_pc')
        A('s_lshr_b32 %s, s2, 3', s(sT))
        A('s_lshl_b32 %s, %s, 10', s(sT), s(sT))
        A('v_lshl_add_u32 v2, v1, 7, %s', s(sT))
        A('v_min_u32 v2, L_end-L_pc, v2')
        A('s_mov_b64 exec, 0xff')
        A('global_load_dword v250, v2, %s', s(sT + 2, 2))
        A('s_mov_b64 exec, -1')
    A('v_lshrrev_b32 v2, 6, v0')
    A('v_readfirstlane_b32 %s, v2', s(sWave))
    if OPT['prof']:
        A('v_mov_b32 v255, 0')
        A('s_waitcnt lgkmcnt(0)')
        A('v_writelane_b32 v255, s92, 0')
        stamp(A, 58)
    if OPT['badmap']:
        A('s_and_b32 s3, s2, 31')
        A('s_lshl_b32 s3, s3, 3')
        A('s_lshr_b32 s2, s2, 5')
        A('s_or_b32 s2, s2, s3')
    A('s_and_b32 %s, s2, 7', s(sHg))
    A('s_bfe_u32 %s, s2, 0x30003', s(sB))
    A('s_lshr_b32 %s, s2, 6', s(sHh))
    if OPT['hx']:
        A('s_xor_b32 %s, %s, %d', s(sHh), s(sHh), OPT['hx'])
    A('s_lshl_b32 %s, %s, 2', s(sH), s(sHg))
    A('s_add_u32 %s, %s, %s', s(sH), s(sH), s(sHh))
    A('s_lshl_b32 %s, %s, 1', s(sRot), s(sHh))
    A('s_add_u32 %s, %s, %s', s(sRot), s(sRot), s(sB))
    A('s_cmp_lg_u32 %s, 3', s(sWave))
    A('s_cbranch_scc1 L_compute')
    loader(A)
    A.label('L_compute')
    compute(A)
    tail(A)
    A.label('L_end')
    A('s_endpgm')
    return A.lines


HEADER = """
; standalone__mha_block_cached__near_ridge: out = softmax((x Wq) K^T / sqrt(128)) V Wo in one launch.
; One workgroup per (batch b, head h = 4*hg + hh): wg = hg | b<<3 | hh<<6.  Waves 0-2 own 32 queries each, wave 3 streams
; x / Wq / K / V / Wo into LDS (LDS-DMA, swizzled on the source side).  Everything is computed transposed (queries = MFMA
; Flags are reset by their workgroup and announced in d_debug (byte per workgroup = die id + 1) before anyone trusts them.
; @launch grid=(256,1,1) block=(256,1,1) lds=163840
"""


def main():
    k, n = pad_hazards(kernel())
    out = [HEADER.strip(),
           '.amdgcn_target "amdgcn-amd-amdhsa--gfx950"', '.text',
           '.globl %s_kernel\n.p2align 8\n.type %s_kernel,@function\n%s_kernel:' % (NAME, NAME, NAME)]
    out += k
    out.append('''.section .rodata,"a"
.p2align 6
.amdhsa_kernel %s_kernel
  .amdhsa_next_free_vgpr 512
  .amdhsa_next_free_sgpr 102
  .amdhsa_accum_offset 256
  .amdhsa_group_segment_fixed_size 0
  .amdhsa_kernarg_size 64
  .amdhsa_user_sgpr_count 2
  .amdhsa_user_sgpr_kernarg_segment_ptr 1
  .amdhsa_system_sgpr_workgroup_id_x 1
.end_amdhsa_kernel''' % NAME)
    open(sys.argv[1], 'w').write('\n'.join(out) + '\n')
    print('wrote', sys.argv[1], 'pads', n)


main()
```

```python
import sys
from asmlib import Asm, pad_hazards, v, a, s

OPT = dict(kv_pol='nt', w_pol='', x_pol='', wo_pol='', prof=0, la=8, law='8,11,14,18,21,21,21,21', pfcode=2, force_remote=0, early2=1, ovl=0, cap1=24, la1=10, slp1=0, slp2=0, noout=0, wb=0, badmap=0, probe_t=0, probe_k=0, probe_q=0, pl=0, touch=0, mgr1=0, off3=1, fa=0, fb=0, kt=5, early_b=1, ckp='5,13,21,29', qpw=0, qs='3330', tpos2=7, tbit=6, f2=1, ne=8, pw=1, v3='4,2,2', olast=1, cx=2, sp=0, nl=24, rsl=1, nochain=1, plm=0xff, kpos=8, kn=5, tpos=2, upos=4, tk=0, tko=0, tkp='', capL=0, capLn=60, clsm=1, lk=6, wskip=0, o_pol='sc1', clean=0, vpoll=1, plp='', lim=0, ldma='', st='0',  xo=0, cap=9, cap0=0, hx=0, nowo=0, rg=1, pkpub=0, strict=0, pkfin=1, nfin=6, dsw=4, ws_off=0, out_pol='', p_pol='sc1')
for arg in sys.argv[2:]:
    k, val = arg.split('=')
    OPT[k] = int(val, 0) if isinstance(OPT[k], int) else val

NAME = 'standalone__mha_block_cached__near_ridge'
C_SCALE = 0x3e0293ee
MFMA = 'v_mfma_f32_32x32x16_bf16'
WS_O, WS_P, WS_F = OPT['ws_off'], OPT['ws_off'] + (6 << 20), OPT['ws_off'] + (12 << 20)
SPIN_MAX = 1 << 20
WSTR = 28672
KVS = [114688, 0, 65536]
RB = [65536, 90112, 114688]
ROWN = 139264
XFER = 53248
AX = 32
STAT = 49152

sX, sK, sV, sW, sWo, sO, sPo, sF, sOut, sDbg = 20, 24, 28, 32, 36, 56, 60, 64, 68, 72
sWave, sHg, sB, sHh, sH, sRot = 40, 41, 43, 44, 45, 46
sSlot, sCnt, sC = 47, 48, 50
sS0, sS1, sS2, sLocal, sSel = 52, 53, 54, 55, 42
sIss, sLand, sDone, sPst = 52, 53, 54, 94
sFo = 99
sT = 76
AWO = 128
vBl = 240
vW3 = 238
vB1, vB2, vOne, vL0 = 242, 243, 248, 249
sF2, sTodo, sRet = 96, 49, 22
vSt = 241
lP = 234
vAcc = 4


class Lds:
    def __init__(self, A):
        self.A = A
        self.q = []

    def read(self, text, tag):
        self.A(text)
        self.q.append(tag)

    def need(self, *tags):
        idx = max([i for i, t in enumerate(self.q) if t in tags], default=-1)
        if idx < 0:
            return
        n = len(self.q) - 1 - idx
        self.A('s_waitcnt lgkmcnt(%d)', min(n, 15))
        self.q = self.q[idx + 1:]

    def drain(self):
        if self.q:
            self.A('s_waitcnt lgkmcnt(0)')
        self.q = []


def srd(A, d, base, off, size):
    if off is None:
        A('s_mov_b32 %s, %s', s(d), s(base))
        A('s_mov_b32 %s, %s', s(d + 1), s(base + 1))
    else:
        A('s_add_u32 %s, %s, %s', s(d), s(base), off)
        A('s_addc_u32 %s, %s, 0', s(d + 1), s(base + 1))
    A('s_mov_b32 %s, %s', s(d + 2), size if isinstance(size, str) else '0x%x' % size)
    A('s_mov_b32 %s, 0x20000', s(d + 3))


def stamp(A, idx, op='s_memrealtime'):
    if not OPT['prof'] or (OPT['prof'] == 9 and idx not in (0, 2, 3, 25, 29, 58)):
        return
    if OPT['prof'] in (3, 4) and idx not in map(int, OPT['st'].split(',')):
        return
    A('%s s[90:91]', op)
    A('s_waitcnt lgkmcnt(0)')
    A('v_writelane_b32 v255, s90, %d', idx)


def stampd(A, base, mul, cnt=None, lvl=2):
    if OPT['prof'] != lvl:
        return
    A('s_memrealtime s[90:91]')
    A('s_mul_i32 m0, %s, %d', s(sCnt if cnt is None else cnt), mul)
    A('s_add_u32 m0, m0, %d', base)
    A('s_waitcnt lgkmcnt(0)')
    A('v_writelane_b32 v255, s90, m0')


def stamp_flush(A):
    if not OPT['prof']:
        return
    A('s_lshl_b32 s92, s2, 2')
    A('s_add_u32 s92, s92, %s', s(sWave))
    A('s_lshl_b32 s92, s92, 8')
    A('s_add_u32 s92, s92, 0x%x', 128 << 20)
    srd(A, 24, 18, 's92', 256)
    A('v_lshlrev_b32 v254, 2, v1')
    A('buffer_store_dword v255, v254, s[24:27], 0 offen')


def dma(A, voffs, srdreg, soff, pol):
    for j in range(4):
        A('buffer_load_dwordx4 %s, %s, %s offen offset:%d %s lds', v(voffs[j]), s(srdreg, 4), s(soff), 1024 * j, pol)


def tr_lane_base(A, vt, hrow, sigma):
    A('v_lshrrev_b32 %s, 5, v1', v(vt))
    A('v_mul_u32_u24 %s, %d, %s', v(vt), hrow, v(vt))
    A('v_bfe_u32 %s, v1, 2, 2', v(vt + 1))
    A('v_add_u32 %s, %s, %s', v(vt), v(vt), v(vt + 1))
    A('v_lshlrev_b32 %s, 8, %s', v(vt), v(vt))
    A('v_bfe_u32 %s, v1, 4, 1', v(vt + 2))
    A('v_lshl_add_u32 %s, %s, 5, %s', v(vt), v(vt + 2), v(vt))
    if sigma:
        A('v_and_b32 %s, 1, v1', v(vt + 2))
        A('v_lshl_add_u32 %s, %s, 4, %s', v(vt), v(vt + 2), v(vt))
        A('v_bfe_u32 %s, v1, 1, 1', v(vt + 2))
        A('v_lshl_add_u32 %s, %s, 3, %s', v(vt), v(vt + 2), v(vt))
    else:
        A('v_and_b32 %s, 3, v1', v(vt + 2))
        A('v_lshl_add_u32 %s, %s, 3, %s', v(vt), v(vt + 2), v(vt))


def tr_lane_bases(A, vdst, hrow, sigma, vt):
    tr_lane_base(A, vt, hrow, sigma)
    for mt in range(4):
        A('v_xor_b32 %s, %d, %s', v(vt + 2), mt, v(vt + 1))
        A('v_lshl_add_u32 %s, %s, 6, %s', v(vdst + mt), v(vt + 2), v(vt))


def wo_lane_base(A, vdst, vt):
    tr_lane_base(A, vt, 4, True)
    A('v_xor_b32 %s, %s, %s', v(vt + 2), s(sWave), v(vt + 1))
    A('v_lshl_add_u32 %s, %s, 6, %s', v(vdst), v(vt + 2), v(vt))


def wo_reads(A, j, half, vaddr):
    for f in range(4):
        for aa in range(2):
            A('ds_read_b64_tr_b16 %s, %s offset:%d', a(AWO + 32 * j + 16 * half + 4 * f + 2 * aa, 2), v(vaddr), (16 * f + 8 * aa) * 256)


sFl, sFb = 4, sF
sAt = 98
sMa, sMb = 96, 97


def check_land(A, tag):
    A('s_cmp_eq_u32 %s, 14', s(sLand))
    A('s_cbranch_scc1 L_cl_%s', tag)
    A('s_getreg_b32 %s, hwreg(HW_REG_IB_STS)', s(sT))
    A('s_and_b32 %s, %s, 15', s(sT + 1), s(sT))
    A('s_bfe_u32 %s, %s, 0x20016', s(sT), s(sT))
    A('s_lshl4_add_u32 %s, %s, %s', s(sT), s(sT), s(sT + 1))
    A('s_cmp_le_u32 %s, 48', s(sT))
    A('s_cselect_b32 %s, %s, 0', s(sT + 1), s(sMb))
    A('s_cmp_le_u32 %s, 24', s(sT))
    A('s_cselect_b32 %s, %s, %s', s(sT + 1), s(sMa), s(sT + 1))
    A('s_cmp_eq_u32 %s, 0', s(sT))
    A('s_cselect_b32 %s, %s, %s', s(sT + 1), s(sIss), s(sT + 1))
    A('s_andn2_b32 %s, %s, %s', s(sT), s(sT + 1), s(sLand))
    A('s_cbranch_scc0 L_cl_%s', tag)
    A('s_or_b32 %s, %s, %s', s(sLand), s(sLand), s(sT + 1))
    A('v_mov_b32 %s, %s', v(lP + 1), s(sLand))
    A('ds_write_b32 %s, %s offset:4', v(vSt), v(lP + 1))
    if OPT['wb']:
        A('s_lshr_b32 %s, s2, 3', s(sT))
        A('s_xor_b32 %s, %s, %d', s(sT), s(sT), OPT['wb'] - 1)
        A('s_lshl_b32 %s, %s, 4', s(sT), s(sT))
        A('s_or_b32 %s, %s, %s', s(sT), s(sT), s(sLand))
        A('s_cmp_eq_u32 %s, 14', s(sT))
        A('s_cbranch_scc0 L_cl_%s', tag)
        A('buffer_wbl2 sc1')
    stampd(A, 50, 1, 93, 4)
    if OPT['prof'] == 4:
        A('s_add_u32 s93, s93, 1')
    A.label('L_cl_%s' % tag)


def burn(A, tag, n):
    if not n:
        return
    A('s_mov_b32 s98, %d', n)
    A.label('L_burn_' + tag)
    for i in range(14):
        A('v_mov_b32 v252, v253')
    A('s_sub_u32 s98, s98, 1')
    A('s_cmp_lg_u32 s98, 0')
    A('s_cbranch_scc1 L_burn_%s', tag)


def flag(A, hf):
    A('s_cmp_eq_u32 %s, 0', s(sLocal))
    A('s_cbranch_scc1 L_fl%d', hf)
    A('buffer_store_dword %s, %s, %s, %s offen offset:%d sc1', v(vOne), v(vL0), s(sF, 4), s(sT + 8), 16 * hf)
    A('s_branch L_fd%d', hf)
    A.label('L_fl%d' % hf)
    A('buffer_store_dword %s, %s, %s, %s offen offset:%d', v(vOne), v(vL0), s(sF, 4), s(sT + 8), 16 * hf)
    A.label('L_fd%d' % hf)


def poll(A, hf):
    A('buffer_load_dword %s, %s, %s, 0 offen offset:%d sc1', v(lP + 1), v(lP), s(sF, 4), 16 * hf)


def copies(A, hf):
    for j in range(1, 4):
        for w in range(3):
            A('s_mov_b32 m0, 0x%x', RB[j - 1] + 8192 * w + 4096 * hf)
            A('s_add_u32 %s, %s, 0x%x', s(sT), s(sT + 10 + j), 8192 * w + 4096 * hf)
            dma(A, [vBl] * 4, sO, sT, 'sc1')


def tail_addr(A):
    A('s_and_b32 %s, s2, 0xf8', s(sT))
    A('s_lshl_b32 %s, %s, 1', s(sT + 1), s(sWave))
    A('s_add_u32 %s, %s, %s', s(sT + 2), s(sT), s(sT + 1))
    A('s_mul_i32 %s, %s, 24576', s(sT), s(sT + 2))
    A('s_mul_i32 %s, %s, 3072', s(sT + 1), s(sHg))
    A('s_add_u32 %s, %s, %s', s(sPst), s(sT), s(sT + 1))
    A('s_add_u32 %s, %s, 24576', s(sPst + 1), s(sPst))
    A('s_lshl_b32 %s, %s, 8', s(sT + 2), s(sT + 2))
    A('s_lshl_b32 %s, %s, 2', s(sT + 1), s(sHg))
    A('s_add_u32 %s, %s, %s', s(sF2), s(sT + 2), s(sT + 1))


def tail_srds(A):
    srd(A, sO, 18, '0x%x' % WS_O if WS_O else None, 256 * 24576)
    srd(A, sPo, 18, '0x%x' % WS_P, 256 * 24576)
    srd(A, sF, 18, '0x%x' % WS_F, 256 * 256)
    srd(A, sDbg, 16, None, 256)
    A('s_mul_i32 %s, %s, 98304', s(sT), s(sB))
    srd(A, sOut, 14, s(sT), 98304)
    A('v_lshlrev_b32 %s, 4, v1', v(vBl))
    A('v_mov_b32 %s, 0x%x', v(vSt), STAT)
    A('v_add_u32 %s, 0x%x, %s', v(vB1), RB[0], v(vBl))
    A('v_add_u32 %s, 0x%x, %s', v(vB2), RB[2], v(vBl))
    A('v_mov_b32 %s, 1', v(vOne))
    A('v_min_u32 %s, 1, v1', v(vL0))
    A('v_lshlrev_b32 %s, 30, %s', v(vL0), v(vL0))


V3 = list(map(int, OPT['v3'].split(',')))
assert sum(V3) == 8 and V3[-1] == 2
STEPS = ['K0', 'K1', 'V0', 'K2', 'V1', 'K3', 'V2', 'V3']


def plan():
    groups = []
    steps = []
    k0 = [('k', 0, g, KVS[0] + 16384 + 4096 * g, 8) for g in range(3, 8)]
    for i in range(8):
        base = WSTR * (i % 5)
        if i == OPT['tpos']:
            groups.append(('t', 0, 0, -1 << 20, 0))
        if i == OPT['tpos2']:
            groups.append(('t', 1, 0, -1 << 20, 0))
        if i == OPT['kpos']:
            groups += k0[:OPT['kn']]
        if i < 8 - OPT['wskip']:
            for g in range(3):
                groups.append(('x', i, g, base + 16384 + 4096 * g, i))
            for g in range(4):
                groups.append(('w', i, g, base + 4096 * g, i))
        steps.append(['W%d' % i, len(groups) - 1, i if OPT['strict'] else i - 1])
    for t, nm in enumerate(STEPS):
        base = KVS[t % 3]
        kv = lambda g: (nm[0].lower(), int(nm[1]), g, base + 16384 + 4096 * g, 8 + t)
        wo = lambda g: ('o', t >> 1, 4 * (t & 1) + g, base + 4096 * g, 8 + t)
        if t == 0:
            seq = k0[OPT['kt'] if OPT['kt'] else OPT['kn'] if OPT['kpos'] < 8 else 0:] + [kv(0), wo(0), kv(1), wo(1), kv(2), wo(2), wo(3)]
        elif t == 7:
            seq = [('h', hf, g, base + 16384 * (1 + hf) + 4096 * g, 15) for hf in range(2) for g in range(4)] + [wo(g) for g in range(4)]
        else:
            seq = []
            for q in range(4):
                seq += [wo(q), kv(2 * q), kv(2 * q + 1)]
        if OPT['nowo']:
            seq = [x for x in seq if x[0] != 'o']
        groups += seq
        if t < 7:
            steps.append([nm, len(groups) - 1, 8 + t])
        else:
            e = len(groups) - 1 - 4
            steps += [['V3a', e - 4, 15], ['V3b', e - 1, 15], ['V3c', e, 15]]
    return steps, groups


def loader(A):
    lX, lW, lK, lV, lWo, lT, lA, lZ, lH = 200, 204, 208, 212, 216, 220, 228, 196, 214
    A('v_lshrrev_b32 %s, 4, v1', v(lT))
    A('v_and_b32 %s, 15, v1', v(lT + 1))
    A('v_lshrrev_b32 %s, 3, v1', v(lT + 3))
    A('v_and_b32 %s, 7, v1', v(lT + 4))
    A('v_xor_b32 %s, %s, %s', v(lT + 4), v(lT + 4), v(lT))
    A('v_lshlrev_b32 %s, 4, %s', v(lT + 4), v(lT + 4))
    A('v_lshl_add_u32 %s, %s, 10, %s', v(lX), v(lT + 3), v(lT + 4))
    A('v_xor_b32 %s, 64, %s', v(lX + 1), v(lX))
    A('v_add_u32 %s, 0x%x, %s', v(lX + 2), 2 * 7168, v(lX))
    A('v_add_u32 %s, 0x%x, %s', v(lX + 3), 3 * 7168, v(lX + 1))
    A('v_add_u32 %s, 0x%x, %s', v(lX + 1), 7168, v(lX + 1))
    A('v_lshlrev_b32 %s, 2, %s', v(lT + 2), v(lT))
    A('v_xor_b32 %s, %s, %s', v(lT + 2), v(lT + 2), v(lT + 1))
    A('v_lshlrev_b32 %s, 4, %s', v(lT + 2), v(lT + 2))
    A('v_lshl_add_u32 %s, %s, 13, %s', v(lW), v(lT), v(lT + 2))
    for j in range(1, 4):
        A('v_add_u32 %s, 0x%x, %s', v(lW + j), j * (32768 - 1024), v(lW))
    A('s_mul_i32 %s, %s, 98304', s(sT), s(sB))
    A('s_lshl_b32 %s, %s, 8', s(sT + 1), s(sH))
    A('s_sub_u32 %s, 0x400000, %s', s(sT + 2), s(sT + 1))
    A('s_waitcnt lgkmcnt(0)')
    srd(A, sX, 4, s(sT), 98304)
    srd(A, sW, 10, s(sT + 1), s(sT + 2))
    stamp(A, 30)

    def setup2():
        A('s_lshl_b32 %s, %s, 5', s(sT), s(sB))
        A('s_add_u32 %s, %s, %s', s(sT), s(sT), s(sH))
        A('s_lshl_b32 %s, %s, 17', s(sT), s(sT))
        srd(A, sK, 6, s(sT), 131072)
        srd(A, sV, 8, s(sT), 131072)
        A('s_lshl_b32 %s, %s, 19', s(sT), s(sHg))
        A('s_xor_b32 %s, %s, %d', s(sT + 1), s(sHh), OPT['cx'])
        A('s_lshl_b32 %s, %s, %d', s(sT + 1), s(sT + 1), 8 - OPT['sp'])
        A('s_add_u32 %s, %s, %s', s(sT), s(sT), s(sT + 1))
        A('s_sub_u32 %s, 0x80000, %s', s(sT + 2), s(sT + 1))
        srd(A, sWo, 12, s(sT), s(sT + 2))
        A('v_lshl_add_u32 %s, %s, 8, %s', v(lV), v(lT), v(lT + 2))
        if OPT['sp'] == 0:
            A('v_lshl_add_u32 %s, %s, 10, %s', v(lWo), v(lT), v(lT + 2))
        else:
            if OPT['sp'] == 1:
                A('v_and_b32 %s, 0x7f, %s', v(lT + 3), v(lT + 2))
                A('v_lshrrev_b32 %s, 7, %s', v(lT + 4), v(lT + 2))
                A('v_lshl_add_u32 %s, %s, 9, %s', v(lT + 3), v(lT + 4), v(lT + 3))
            else:
                A('v_and_b32 %s, 0x3f, %s', v(lT + 3), v(lT + 2))
                A('v_lshrrev_b32 %s, 6, %s', v(lT + 4), v(lT + 2))
                A('v_lshl_add_u32 %s, %s, 8, %s', v(lT + 3), v(lT + 4), v(lT + 3))
            A('v_lshl_add_u32 %s, %s, 10, %s', v(lWo), v(lT), v(lT + 3))
        for j in range(1, 4):
            A('v_add_u32 %s, 0x%x, %s', v(lWo + j), j * (4096 - 1024), v(lWo))
        for j in range(4):
            A('v_add_u32 %s, %d, %s', v(lT + 3), 4 * j, v(lT))
            A('v_xor_b32 %s, %s, %s', v(lT + 3), v(lT + 3), v(lT + 1))
            A('v_lshlrev_b32 %s, 4, %s', v(lT + 3), v(lT + 3))
            A('v_lshl_add_u32 %s, %s, 8, %s', v(lK + j), v(lT), v(lT + 3))
        A('v_and_b32 %s, 1, %s', v(lT + 3), v(lT))
        A('v_lshlrev_b32 %s, 2, %s', v(lT + 3), v(lT + 3))
        A('v_and_b32 %s, 7, v1', v(lT + 4))
        A('v_xor_b32 %s, %s, %s', v(lT + 3), v(lT + 3), v(lT + 4))
        A('v_lshlrev_b32 %s, 4, %s', v(lT + 3), v(lT + 3))
        A('v_lshrrev_b32 %s, 3, v1', v(lT + 4))
        A('v_lshl_add_u32 %s, %s, 8, %s', v(lH), v(lT + 4), v(lT + 3))
        A('v_add_u32 %s, 0x400, %s', v(lH + 1), v(lH))
        wo_lane_base(A, lA, lT)
        A('v_mov_b32 %s, %s', v(vW3), v(lA))
        tail_srds(A)
        if OPT['capL']:
            A('s_xor_b32 vcc_lo, %s, %d', s(sHh), 1 ^ OPT['cx'])
            A('s_mov_b32 vcc_hi, 0')
        if OPT['rg']:
            A('s_lshl_b32 %s, %s, 12', s(sT + 8), s(sB))
        else:
            A('s_mov_b32 %s, 0', s(sT + 8))
        A('s_and_b32 %s, s2, 63', s(sT + 1))
        for j in range(1, 4):
            A('%s %s, %s, %d', 's_xor_b32' if OPT['xo'] else 's_add_u32', s(sT), s(sHh), j)
            A('s_and_b32 %s, %s, 3', s(sT), s(sT))
            if OPT['hx']:
                A('s_xor_b32 %s, %s, %d', s(sT), s(sT), OPT['hx'])
            A('s_lshl_b32 %s, %s, 6', s(sT), s(sT))
            A('s_add_u32 %s, %s, %s', s(sT), s(sT), s(sT + 1))
            A('s_mul_i32 %s, %s, 24576', s(sT + 10 + j), s(sT))
            A('s_lshl_b32 %s, %s, 8', s(sFo + j - 1), s(sT))
        A('v_lshrrev_b32 %s, 2, v1', v(lP))
        A('v_min_u32 %s, 2, %s', v(lP), v(lP))
        A('v_add_u32 %s, 1, %s', v(lP), v(lP))
        A('%s %s, %s, %s', 'v_xor_b32' if OPT['xo'] else 'v_add_u32', v(lP), s(sHh), v(lP))
        A('v_and_b32 %s, 3, %s', v(lP), v(lP))
        if OPT['hx']:
            A('v_xor_b32 %s, %d, %s', v(lP), OPT['hx'], v(lP))
        A('v_lshlrev_b32 %s, 6, %s', v(lP), v(lP))
        A('v_add_u32 %s, %s, %s', v(lP), s(sT + 1), v(lP))
        A('v_lshlrev_b32 %s, 8, %s', v(lP), v(lP))
        A('v_and_b32 %s, 3, v1', v(lP + 1))
        A('v_min_u32 %s, 2, %s', v(lP + 1), v(lP + 1))
        A('v_lshl_add_u32 %s, %s, 2, %s', v(lP), v(lP + 1), v(lP))
        A('v_mov_b64 %s, 0', v(lP + 2, 2))
        A('v_mov_b64 %s, 0', v(lZ, 2))
        A('v_mov_b64 %s, 0', v(lZ + 2, 2))
        A('s_lshl_b32 %s, s2, 8', s(sT))
        A('s_mov_b64 exec, 0xffff')
        A('buffer_store_dwordx4 %s, %s, %s, %s offen sc1', v(lZ, 4), v(vBl), s(sF, 4), s(sT))
        A('s_mov_b64 exec, -1')

    steps, groups = plan()
    st = dict(m0=None, key=None, so=None)
    sXo, sWq, sG, sOo, sGk, sGv, sRg = sT + 3, sT + 4, sT + 5, sT + 6, sT + 7, sT + 7, sT + 8

    def issue(gi):
        kind, j, g, lds, _ = groups[gi]
        if kind == 't':
            if OPT['tpos2'] < 9:
                A('s_bitcmp1_b32 s2, %d', OPT['tbit'])
                A('s_cbranch_scc%d L_nt%d', 1 - j, j)
            A('s_lshl_b32 %s, %s, 19', s(sT), s(sHg))
            A('s_lshr_b32 %s, s2, 3', s(sT + 1))
            A('s_lshl_b32 %s, %s, 14', s(sT + 1), s(sT + 1))
            A('s_add_u32 %s, %s, %s', s(sT), s(sT), s(sT + 1))
            A('v_lshl_add_u32 v251, v1, 7, %s', s(sT))
            A('v_add_u32 v252, 0x2000, v251')
            A('global_load_dword v250, v251, s[12:13]')
            A('global_load_dword v250, v252, s[12:13]')
            if OPT['tk']:
                A('v_lshlrev_b32 v253, 7, v1')
            for g in range(OPT['tk']):
                A('s_mov_b32 %s, 0x%x', s(sT), OPT['tko'] + 8192 * g)
                A('buffer_load_dword v250, v253, %s, %s offen %s', s(sK, 4), s(sT), OPT['tkp'])
            for g in range(3, 3 + OPT['kt']):
                A('s_mov_b32 m0, 0x%x', KVS[0] + 16384 + 4096 * g)
                A('s_add_u32 %s, %s, 0x%x', s(sG), s(sRg), 4096 * g)
                A('s_and_b32 %s, %s, 0x7000', s(sG), s(sG))
                dma(A, [lK, lK + 1, lK + 2, lK + 3], sK, sG, OPT['kv_pol'])
            st['m0'] = None
            if OPT['tpos2'] < 9:
                A.label('L_nt%d' % j)
            return
        if kind == 'h':
            for u in range(2):
                A('s_mov_b32 m0, 0x%x', lds + 2048 * u)
                A('s_add_u32 %s, %s, 0x%x', s(sG), s(sRg), 4096 * (2 * g + u))
                A('s_and_b32 %s, %s, 0x7000', s(sG), s(sG))
                A('s_or_b32 %s, %s, 0x%x', s(sG), s(sG), 3 * 32768 + 128 * j)
                for j2 in range(2):
                    A('buffer_load_dwordx4 %s, %s, %s offen offset:%d %s lds', v(lH + j2), s(sV, 4), s(sG), 1024 * j2, OPT['kv_pol'])
            st['m0'] = None
            return
        if kind == 'u':
            if g == 0:
                A('v_lshlrev_b32 v253, 7, v1')
            A('s_mov_b32 %s, 0x%x', s(sT), OPT['tko'] + 8192 * g)
            A('buffer_load_dword v250, v253, %s, %s offen %s', s(sK, 4), s(sT), OPT['tkp'])
            return
        if OPT['cap'] and steps[7][1] + OPT['cap0'] < gi < len(groups) - OPT['cap1']:
            A('s_waitcnt vmcnt(%d)', 4 * (OPT['cap'] - 1))
        if OPT['capL'] and steps[7][1] < gi < len(groups) - OPT['cap1']:
            A('s_cbranch_vccz L_cl%d', gi)
            A('s_waitcnt vmcnt(%d)', 4 * (OPT['capL'] - 1))
            A.label('L_cl%d' % gi)
        if st['m0'] is not None and 0 < lds - st['m0'] < 32768:
            A('s_addk_i32 m0, 0x%x', lds - st['m0'])
        else:
            A('s_mov_b32 m0, 0x%x', lds)
        st['m0'] = lds
        if kind == 'x':
            if g == 0:
                A('s_add_u32 %s, %s, %d', s(sT), s(sRot), j)
                A('s_and_b32 %s, %s, 7', s(sT), s(sT))
                A('s_lshl_b32 %s, %s, 7', s(sXo), s(sT))
                A('s_lshl_b32 %s, %s, 19', s(sWq), s(sT))
            else:
                A('s_add_u32 %s, %s, 0x8000', s(sXo), s(sXo))
            dma(A, [lX, lX + 1, lX + 2, lX + 3], sX, sXo, OPT['x_pol'])
        elif kind == 'w':
            if g:
                A('s_add_u32 %s, %s, 0x20000', s(sWq), s(sWq))
            dma(A, [lW, lW + 1, lW + 2, lW + 3], sW, sWq, OPT['w_pol'])
        elif kind == 'o':
            if g == 0:
                A('%s %s, %s, %d', 's_xor_b32' if OPT['xo'] else 's_add_u32', s(sT), s(sHh), j)
                A('s_and_b32 %s, %s, 3', s(sT), s(sT))
                A('s_lshl_b32 %s, %s, 17', s(sOo), s(sT))
            else:
                A('s_addk_i32 %s, 0x4000', s(sOo))
            dma(A, [lWo, lWo + 1, lWo + 2, lWo + 3], sWo, sOo, OPT['wo_pol'])
        else:
            sR = sGk if kind == 'k' else sGv
            if st.get(kind) == (j, g - 1):
                A('s_addk_i32 %s, 0x1000', s(sR))
            else:
                A('s_add_u32 %s, %s, 0x%x', s(sR), s(sRg), 4096 * g)
            st[kind] = (j, g)
            A('s_and_b32 %s, %s, 0x7000', s(sG), s(sR))
            if j:
                A('s_or_b32 %s, %s, 0x%x', s(sG), s(sG), j * 32768)
            if kind == 'k':
                dma(A, [lK, lK + 1, lK + 2, lK + 3], sK, sG, OPT['kv_pol'])
            else:
                dma(A, [lV] * 4, sV, sG, OPT['kv_pol'])

    def free(gi, cert):
        lds = groups[gi][3]
        return all(not (p[3] < lds + 4096 and lds < p[3] + 4096) or p[4] < cert for p in groups[:gi])

    nxt = 0
    cert = 0
    did2 = False
    pend = False
    for i, (name, e, c) in enumerate(steps):
        la = int(OPT['law'].split(',')[i]) if i < 8 else OPT['la1'] if (OPT['la1'] and i >= 13) else OPT['la']
        while nxt < len(groups) and nxt <= e + la and free(nxt, cert):
            if nxt == 11 and not did2:
                stamp(A, 31)
                setup2()
                did2 = True
            issue(nxt)
            nxt += 1
        assert nxt > e, (name, nxt, e)
        A('s_waitcnt vmcnt(%d)%s', min(60, sum({'t': 0 if OPT['tpos2'] < 9 else 2 + OPT['tk']}.get(x[0], 4) for x in groups[e + 1:nxt])), ' lgkmcnt(0)' if pend else '')
        pend = False
        if not 2 <= i <= 5 and OPT['prof'] != 9:
            stamp(A, 2 + i)
        A('s_barrier')
        cert = max(cert, c)
        if 8 <= i <= (14 if OPT['olast'] else 15):
            t = i - 8
            A('v_add_u32 %s, 0x%x, %s', v(lA + 1), KVS[t % 3], v(lA))
            wo_reads(A, t >> 1, t & 1, lA + 1)
            pend = True
        if name == 'W1':
            assert e > 11
            A('s_getreg_b32 %s, hwreg(HW_REG_XCC_ID, 0, 4)', s(sT))
            A('s_add_u32 %s, %s, 1', s(sT), s(sT))
            A('s_and_b32 %s, s2, 3', s(sT + 1))
            A('s_lshl_b32 %s, %s, 3', s(sT + 1), s(sT + 1))
            A('s_lshl_b32 %s, %s, %s', s(sAt), s(sT), s(sT + 1))
            A('s_and_b32 %s, s2, 0xfc', s(sT + 1))
            A('s_atomic_or %s, s[16:17], %s', s(sAt), s(sT + 1))
        if name == 'K0':
            A('ds_write_b64 %s, %s', v(vSt), v(lP + 2, 2))
            A('ds_write_b32 %s, %s offset:12', v(vSt), v(lP + 2))
        if name == 'K2':
            A('s_and_b32 %s, s2, 0xf8', s(sT))
            A('s_load_dwordx2 %s, s[16:17], %s', s(sFl + 4, 2), s(sT))
            A('s_and_b32 %s, s2, 0x3c', s(sT))
            for k in range(4):
                A('s_load_dword %s, s[16:17], %s', s(sFl + k), s(sT))
                if k < 3:
                    A('s_add_u32 %s, %s, 64', s(sT), s(sT))
        if name == 'V1':
            A('s_mov_b32 %s, 0', s(sT + 2))
            A.label('L_chk')
            A('s_and_b32 %s, s2, 3', s(sT))
            A('s_lshl_b32 %s, %s, 3', s(sT), s(sT))
            A('s_or_b32 %s, %s, 0x80000', s(sT), s(sT))
            for k in range(4):
                A('s_bfe_u32 %s, %s, %s', s(sFl + k), s(sFl + k), s(sT))
            A('s_min_u32 %s, %s, %s', s(sT), s(sFl), s(sFl + 1))
            A('s_min_u32 %s, %s, %s', s(sT + 1), s(sFl + 2), s(sFl + 3))
            A('s_min_u32 %s, %s, %s', s(sT), s(sT), s(sT + 1))
            A('s_add_u32 %s, %s, 0x7f7f7f7f', s(sFl + 4), s(sFl + 4))
            A('s_add_u32 %s, %s, 0x7f7f7f7f', s(sFl + 5), s(sFl + 5))
            A('s_and_b32 %s, %s, %s', s(sFl + 4), s(sFl + 4), s(sFl + 5))
            A('s_or_b32 %s, %s, 0x7f7f7f7f', s(sFl + 4), s(sFl + 4))
            A('s_cmp_eq_u32 %s, -1', s(sFl + 4))
            A('s_cselect_b32 %s, %s, 0', s(sT), s(sT))
            A('s_cmp_lg_u32 %s, 0', s(sT))
            A('s_cbranch_scc1 L_chk_ok')
            A('v_lshlrev_b32 %s, 2, v1', v(lZ))
            A('buffer_load_dword %s, %s, %s, 0 offen sc1', v(lZ + 1), v(lZ), s(sDbg, 4))
            A('s_bfe_u32 %s, s2, 0x40002', s(sT))
            A('s_waitcnt vmcnt(0)')
            for k in range(4):
                A('v_readlane_b32 %s, %s, %s', s(sFl + k), v(lZ + 1), s(sT))
                A('s_add_u32 %s, %s, 16', s(sT), s(sT))
            A('s_lshr_b32 %s, s2, 3', s(sT))
            A('s_lshl_b32 %s, %s, 1', s(sT), s(sT))
            A('v_readlane_b32 %s, %s, %s', s(sFl + 4), v(lZ + 1), s(sT))
            A('s_add_u32 %s, %s, 1', s(sT), s(sT))
            A('v_readlane_b32 %s, %s, %s', s(sFl + 5), v(lZ + 1), s(sT))
            A('s_add_u32 %s, %s, 1', s(sT + 2), s(sT + 2))
            A('s_cmp_lt_u32 %s, 0x%x', s(sT + 2), SPIN_MAX)
            A('s_cbranch_scc1 L_chk')
            A.label('L_chk_ok')
            if OPT['prof']:
                A('v_writelane_b32 v255, %s, 59', s(sT + 2))
            for k in range(1, 4):
                A('s_xor_b32 %s, %s, %s', s(sFl + k), s(sFl + k), s(sFl))
            A('s_or_b32 %s, %s, %s', s(sT), s(sFl + 1), s(sFl + 2))
            A('s_or_b32 %s, %s, %s', s(sLocal), s(sT), s(sFl + 3))
            if OPT['force_remote']:
                A('s_mov_b32 %s, 1', s(sLocal))
            A('v_mov_b32 %s, %s', v(lZ), s(sLocal))
            A('ds_write_b32 %s, %s offset:8', v(vSt), v(lZ))
    assert nxt == len(groups)

    tail_addr(A)
    A('s_mov_b32 %s, 0', s(sT + 2))
    A.label('L_poll0')
    poll(A, 0)
    A('s_add_u32 %s, %s, 1', s(sT + 2), s(sT + 2))
    A('s_cmp_ge_u32 %s, 0x%x', s(sT + 2), SPIN_MAX)
    A('s_waitcnt vmcnt(0)')
    A('s_cbranch_scc1 L_got0')
    A('v_cmp_ne_u32 vcc, 1, %s', v(lP + 1))
    A('s_cmp_lg_u64 vcc, 0')
    A('s_cbranch_scc1 L_poll0')
    A.label('L_got0')
    stamp(A, 40)
    copies(A, 0)
    stamp(A, 41)
    poll(A, 1)
    A('s_mov_b32 %s, 1', s(sTodo))
    if OPT['early_b']:
        A('s_call_b64 %s, L_bg', s(sRet, 2))
    else:
        A('s_waitcnt vmcnt(1)')
    A('s_branch L_bara')
    A.label('L_bg')
    A('s_waitcnt vmcnt(0)')
    A('v_cmp_ne_u32 vcc, 1, %s', v(lP + 1))
    A('s_cmp_lg_u64 vcc, 0')
    A('s_cbranch_scc1 L_bg_again')
    A.label('L_bg_go')
    stamp(A, 42)
    copies(A, 1)
    stamp(A, 43)
    A('s_mov_b32 %s, 0', s(sTodo))
    A('s_setpc_b64 %s', s(sRet, 2))
    A.label('L_bg_again')
    poll(A, 1)
    A('s_setpc_b64 %s', s(sRet, 2))


def qproj(A, vacc, vWa, vBa, vWb, vBb):
    L = Lds(A)
    FA = [[0 + 16 * p + 4 * mt for mt in range(4)] for p in range(2)]
    FB = [32, 36]
    QS = [0] + [sum(map(int, OPT['qs'][:i + 1])) for i in range(4)]

    def reads(ks):
        p = ks & 1
        out = [('ds_read_b128 %s, %s offset:%d' % (a(FB[p], 4), v(vBa + ks), 16384), ('B', ks))]
        for mt in range(4):
            for aa in range(2):
                out.append(('ds_read_b64_tr_b16 %s, %s offset:%d' % (a(FA[p][mt] + 2 * aa, 2), v(vWa + mt), (16 * ks + 4 * aa) * 256), ('A', ks, mt)))
        return out

    def addr_w():
        return ['v_add_u32 %s, %s, %s' % (v(vWa + mt), s(sSlot), v(vWb + mt)) for mt in range(4)]

    def addr_b():
        return ['v_add_u32 %s, %s, %s' % (v(vBa), s(sSlot), v(vBb))] + ['v_xor_b32 %s, %d, %s' % (v(vBa + k), 32 * k, v(vBa)) for k in range(1, 4)]

    def mfma(ks, mt):
        p = ks & 1
        if not OPT['qpw']:
            L.need(('B', ks), ('A', ks, mt))
        elif mt % 2 == 0:
            L.need(('B', ks), ('A', ks, mt + 1))
        A('%s %s, %s, %s, %s', MFMA, v(vacc + 16 * mt, 16), a(FA[p][mt], 4), a(FB[p], 4), v(vacc + 16 * mt, 16))

    A('s_mov_b32 %s, 0', s(sCnt))
    for o in addr_w() + addr_b():
        A(o)
    A('s_barrier')
    for t, tag in reads(0):
        L.read(t, tag)
    q0 = list(L.q)
    A.label('L_qp')
    for ks in range(3):
        nxt = reads(ks + 1)
        for mt in range(4):
            mfma(ks, mt)
            for t, tag in nxt[QS[mt]:QS[mt + 1]]:
                L.read(t, tag)
            if ks == 2 and mt == 3:
                A('s_add_u32 %s, %s, 0x%x', s(sSlot), s(sSlot), WSTR)
                A('s_cmp_eq_u32 %s, 0x%x', s(sSlot), WSTR * 5)
                A('s_cselect_b32 %s, 0, %s', s(sSlot), s(sSlot))
                for o in addr_w()[:2] + addr_b()[:1]:
                    A(o)
    qs = list(L.q)
    A('s_add_u32 %s, %s, 1', s(sCnt), s(sCnt))
    A('s_cmp_eq_u32 %s, 8', s(sCnt))
    A('s_cbranch_scc1 L_qp_last')
    nxt = reads(0)
    extra = [addr_w()[2:], addr_b()[1:], [], []]
    for mt in range(4):
        mfma(3, mt)
        if mt == 0:
            if OPT['strict']:
                L.drain()
            stampd(A, 32, 2)
            A('s_barrier')
            stampd(A, 33, 2)
        if mt == 0:
            for o in extra[0]:
                A(o)
        for t, tag in nxt[QS[mt]:QS[mt + 1]]:
            L.read(t, tag)
        for o in extra[mt] if mt else []:
            A(o)
    assert L.q == q0, (L.q, q0)
    A('s_branch L_qp')
    A.label('L_qp_last')
    L.q = qs
    for mt in range(4):
        mfma(3, mt)


def compute(A):
    vQ, vO, vS, vP = 4, 36, 100, 164
    vWb, vXb, vWa, vXa = 196, 200, 201, 205
    vKb, vKa, vVb, vVa = 209, 210, 218, 222
    vM, vL, vT, vOb, vOa, vD, vO3, vHb = 226, 228, 230, 238, 239, 244, 246, 236
    if OPT['pfcode'] == 1:
        A('s_cmp_lg_u32 %s, 1', s(sWave))
        A('s_cbranch_scc1 L_nopf')
        A('s_getpc_b64 %s', s(sT + 2, 2))
        A.label('L_pc')
        A('s_sub_u32 %s, %s, L_pc-%s_kernel', s(sT + 2), s(sT + 2), NAME)
        A('s_subb_u32 %s, %s, 0', s(sT + 3), s(sT + 3))
        A('s_lshr_b32 %s, s2, 3', s(sT))
        A('s_lshl_b32 %s, %s, 10', s(sT), s(sT))
        A('v_lshl_add_u32 %s, v1, 7, %s', v(vT), s(sT))
        A('v_min_u32 %s, L_end-%s_kernel, %s', v(vT), NAME, v(vT))
        A('s_mov_b64 exec, 0xff')
        A('global_load_dword v250, %s, %s', v(vT), s(sT + 2, 2))
        A('s_mov_b64 exec, -1')
        A.label('L_nopf')
    A('s_waitcnt lgkmcnt(0)')
    tail_srds(A)
    tr_lane_bases(A, vWb, 8, True, vT)
    A('v_and_b32 %s, 31, v1', v(vT))
    A('s_lshl_b32 %s, %s, 5', s(sT), s(sWave))
    A('v_add_u32 %s, %s, %s', v(vT), s(sT), v(vT))
    A('v_bfe_u32 %s, %s, 1, 3', v(vT + 1), v(vT))
    A('v_lshrrev_b32 %s, 5, v1', v(vT + 2))
    A('v_xor_b32 %s, %s, %s', v(vT + 1), v(vT + 1), v(vT + 2))
    A('v_lshlrev_b32 %s, 4, %s', v(vT + 1), v(vT + 1))
    A('v_lshl_add_u32 %s, %s, 7, %s', v(vXb), v(vT), v(vT + 1))
    A('v_and_b32 %s, 31, v1', v(vT))
    A('v_and_b32 %s, 15, v1', v(vT + 1))
    A('v_xor_b32 %s, %s, %s', v(vT + 1), v(vT + 1), v(vT + 2))
    A('v_lshlrev_b32 %s, 4, %s', v(vT + 1), v(vT + 1))
    A('v_lshl_add_u32 %s, %s, 8, %s', v(vKb), v(vT), v(vT + 1))
    A('v_add_u32 %s, 0x4000, %s', v(vKb), v(vKb))
    tr_lane_bases(A, vVb, 4, False, vT)
    for mt in range(4):
        A('v_add_u32 %s, 0x4000, %s', v(vVb + mt), v(vVb + mt))
    A('v_lshrrev_b32 %s, 5, v1', v(vT))
    A('v_bfe_u32 %s, v1, 2, 2', v(vT + 1))
    A('v_lshl_add_u32 %s, %s, 2, %s', v(vT), v(vT), v(vT + 1))
    A('v_lshlrev_b32 %s, 7, %s', v(vT), v(vT))
    A('v_bfe_u32 %s, v1, 4, 1', v(vT + 2))
    A('v_lshl_add_u32 %s, %s, 5, %s', v(vT), v(vT + 2), v(vT))
    A('v_and_b32 %s, 3, v1', v(vT + 2))
    A('v_lshl_add_u32 %s, %s, 3, %s', v(vT), v(vT + 2), v(vT))
    A('v_bfe_u32 %s, v1, 3, 1', v(vT + 1))
    A('v_lshl_add_u32 %s, %s, 6, %s', v(vHb), v(vT + 1), v(vT))
    A('v_add_u32 %s, 0x%x, %s', v(vHb), KVS[1] + 16384, v(vHb))
    A('v_xor_b32 %s, 64, %s', v(vHb + 1), v(vHb))
    wo_lane_base(A, vOb, vT)
    A('v_xor_b32 %s, 3, %s', v(vT + 2), v(vT + 1))
    A('v_lshl_add_u32 %s, %s, 6, %s', v(vO3), v(vT + 2), v(vT))
    for i in range(0, 64, 2):
        A('v_mov_b64 %s, 0', v(vS + i, 2))
    for i in range(0, 64, 2):
        A('v_mov_b64 %s, 0', v(vO + i, 2))
    A('v_mov_b32 %s, 0xff800000', v(vM))
    A('v_mov_b64 %s, 0', v(vL, 2))
    A('v_mov_b32 %s, 0', v(vT + 4))
    A('s_mov_b32 %s, 0x%x', s(sC), C_SCALE)
    A('s_mov_b32 %s, 0x%x', s(sC + 1), C_SCALE)
    A('s_mov_b32 %s, 0', s(sSlot))
    for i in range(3):
        A('s_mov_b32 %s, 0x%x', s(sS0 + i), KVS[(0, 2, 1)[i]])
    stamp(A, 1)
    stamp(A, 60, 's_memtime')
    qproj(A, vS, vWa, vXa, vWb, vXb)
    burn(A, 'q', OPT['probe_q'])
    stamp(A, 2)
    stamp(A, 61, 's_memtime')
    L = Lds(A)
    vAl = vT + 4
    vMx = vT
    NL, NE = OPT['nl'], OPT['ne']
    KF = [[32 * p + 4 * k for k in range(8)] for p in range(2)]
    VF = [[64 + 16 * p + 4 * mt for mt in range(4)] for p in range(2)]
    sKs, sVs, sNs = sS0, sS1, sS2

    def kread(t, k):
        return ('ds_read_b128 %s, %s offset:%d' % (a(KF[t & 1][k], 4), v(vKa + k), 8192 * t), ('K', t, k))

    def kaddr(slot):
        return ['v_add_u32 %s, %s, %s' % (v(vKa), s(slot), v(vKb))] + ['v_xor_b32 %s, %d, %s' % (v(vKa + k), 32 * k, v(vKa)) for k in range(1, 8)]

    def kstart():
        stampd(A, 6, 4)
        A('s_barrier')
        stampd(A, 7, 4)
        for k in range(8):
            L.read(*kread(0, k))

    A('s_mov_b32 %s, 0', s(sCnt))
    for o in kaddr(sKs):
        A(o)
    kstart()
    for i in range(32):
        A('v_cvt_pk_bf16_f32 %s, %s, %s', v(vQ + i), v(vS + 2 * i), v(vS + 2 * i + 1))
    q_att = list(L.q)
    A.label('L_att')

    def max_ops(t):
        r = vS + 16 * t
        ops = []
        if t == 0:
            ops.append('v_max3_f32 %s, %s, %s, %s' % (v(vMx), v(r), v(r + 1), v(vM)))
            rest = range(2, 16, 2)
        else:
            rest = range(0, 16, 2)
        for i in rest:
            ops.append('v_max3_f32 %s, %s, %s, %s' % (v(vMx), v(r + i), v(r + i + 1), v(vMx)))
        return ops

    fill = ['v_mul_f32 %s, %s, %s' % (v(vO + i), v(vAl), v(vO + i)) for i in range(64)]
    fill += ['v_add_u32 %s, %s, %s' % (v(vOa), s(sKs), v(vOb)), 'v_add_u32 %s, %s, %s' % (v(vO3 + 1), s(sKs), v(vO3))]
    fill += ['v_add_u32 %s, %s, %s' % (v(vVa + mt), s(sVs), v(vVb + mt)) for mt in range(4)]
    fill3 = kaddr(sNs)
    for t in range(4):
        mo = max_ops(t - 1) if t > 0 else []
        if t == 3:
            fill += fill3
        for k in range(8):
            if k % 2 == 0 or not OPT['pw']:
                L.need(('K', t, k + 1 if OPT['pw'] else k))
            A('%s %s, %s, %s, %s', MFMA, v(vS + 16 * t, 16), a(KF[t & 1][k], 4), v(vQ + 4 * k, 4), '0' if k == 0 else v(vS + 16 * t, 16))
            if t < 3:
                L.read(*kread(t + 1, k))
            if k >= 4 and mo:
                for o in mo[:2]:
                    A(o)
                mo = mo[2:]
                n = 1 if t < 3 else 2
            else:
                n = 3 if t < 3 else 4
            for o in fill[:n]:
                A(o)
            fill = fill[n:]
        assert not mo
    assert not fill, fill

    def wo_switch(tag, cases):
        for n, (c, t) in enumerate(cases):
            last = n == len(cases) - 1
            if not last:
                A('s_cmp_lg_u32 %s, %d', s(sCnt), c)
                A('s_cbranch_scc1 L_wo%s%d', tag, n + 1)
            wo_reads(A, t >> 1, t & 1, vOa)
            if t < 2:
                for f in range(4):
                    for aa in range(2):
                        A('ds_read_b64_tr_b16 %s, %s offset:%d', a(96 + 16 * t + 4 * f + 2 * aa, 2), v(vO3 + 1), (16 * f + 8 * aa) * 256)
            if not last:
                A('s_branch L_wo%sdone', tag)
                A.label('L_wo%s%d' % (tag, n + 1))
        A.label('L_wo%sdone' % tag)

    wo_switch('a', [(c, STEPS.index('K%d' % c)) for c in range(4)])
    for o in max_ops(3):
        A(o)
    A('v_mov_b32 %s, %s', v(vT + 1), v(vMx))
    A('v_add_u32 %s, %s, %s', v(vOa), s(sVs), v(vOb))
    A('v_permlane32_swap_b32 %s, %s', v(vT + 1), v(vMx))
    A('v_max_f32 %s, %s, %s', v(vMx), v(vMx), v(vT + 1))
    A('v_mul_f32 %s, %s, %s', v(vT + 2), s(sC), v(vMx))
    A('v_fma_f32 %s, %s, %s, -%s', v(vT + 3), v(vM), s(sC), v(vT + 2))
    A('v_exp_f32 %s, %s', v(vAl), v(vT + 3))
    A('v_mov_b32 %s, %s', v(vM), v(vMx))
    burn(A, 'k', OPT['probe_k'])
    fma = lambda i: A('v_pk_fma_f32 %s, %s, %s, %s op_sel_hi:[1,1,0] neg_lo:[0,0,1] neg_hi:[0,0,1]', v(vS + i, 2), v(vS + i, 2), s(sC, 2), v(vT + 2, 2))
    fma1 = lambda i: A('v_fma_f32 %s, %s, %s, -%s', v(vS + i), v(vS + i), s(sC), v(vT + 2))

    def part(lo, hi, dst, pre=None):
        fma(lo)
        A(pre if pre else 's_nop 0')
        for i in range(lo, hi, 2):
            if i + 2 < hi:
                fma(i + 2)
            A('v_exp_f32 %s, %s', v(vS + i), v(vS + i))
            A('v_exp_f32 %s, %s', v(vS + i + 1), v(vS + i + 1))
            if i > lo:
                A('v_pk_add_f32 %s, %s, %s', v(vL, 2), v(vL, 2), v(vS + i - 2, 2))
                A('v_cvt_pk_bf16_f32 %s, %s, %s', v(dst + (i - lo) // 2 - 1), v(vS + i - 2), v(vS + i - 1))
        A('v_pk_add_f32 %s, %s, %s', v(vL, 2), v(vL, 2), v(vS + hi - 2, 2))
        A('v_cvt_pk_bf16_f32 %s, %s, %s', v(dst + (hi - lo) // 2 - 1), v(vS + hi - 2), v(vS + hi - 1))

    def copy_p():
        for i in range(0, (64 - NL) // 2, 2):
            A('v_mov_b64 %s, %s', v(vP + NL // 2 + i, 2), v(vS + NL + i, 2))

    part(NL, 64 - NE, vS + NL, 'v_pk_mul_f32 %s, %s, %s op_sel_hi:[1,0]' % (v(vL, 2), v(vL, 2), v(vAl, 2)))
    rest = lambda: part(64 - NE, 64, vS + NL + (64 - NE - NL) // 2)
    A('s_cmp_eq_u32 %s, 0', s(sCnt))
    A('s_waitcnt lgkmcnt(0)')
    A('s_cbranch_scc1 L_first')
    stampd(A, 8, 4)
    A('s_barrier')
    stampd(A, 9, 4)

    def vread(p, mt, buf=None):
        b = VF[p & 1][mt] if buf is None else buf
        return [('ds_read_b64_tr_b16 %s, %s offset:%d' % (a(b + 2 * aa, 2), v(vVa + mt), (16 * p + 8 * aa) * 256), ('V', p, mt)) for aa in range(2)]

    def pv(p, mt, buf=None, wait=None):
        b = VF[p & 1][mt] if buf is None else buf
        if wait is None:
            L.need(('V', p, mt))
        elif wait:
            L.need(wait)
        A('%s %s, %s, %s, %s', MFMA, v(vO + 16 * mt, 16), a(b, 4), v(vP + 4 * p, 4), v(vO + 16 * mt, 16))

    def pv_range(p0, p1, beside=None, first=None):
        n0, n1, LK = 4 * p0, 4 * p1, OPT['lk']
        for n in range(n0, min(n0 + LK, n1)):
            for x in vread(n >> 2, n & 3):
                L.read(*x)
        if first:
            first()
        for n in range(n0, n1):
            pv(n >> 2, n & 3, None, None if not OPT['pw'] else ('V', n >> 2, (n & 3) + 1) if n % 2 == 0 else False)
            if n + LK < n1:
                for x in vread((n + LK) >> 2, (n + LK) & 3):
                    L.read(*x)
            if beside:
                beside(n)

    def late1(g):
        if g < NL:
            A('v_exp_f32 %s, %s', v(vS + g), v(vS + g))
        if g + 1 < NL:
            fma1(g + 1)
        if 1 <= g <= NL:
            A('v_add_f32 %s, %s, %s', v(vL + ((g - 1) & 1)), v(vS + g - 1), v(vL + ((g - 1) & 1)))
        if 3 <= g <= NL + 1 and g & 1:
            q = (g - 3) // 2
            A('v_cvt_pk_bf16_f32 %s, %s, %s', v(vP + q), v(vS + 2 * q), v(vS + 2 * q + 1))

    def late(n):
        for g in range(NL + 2):
            if min(33, g * 32 // NL) == n:
                late1(g)

    def first_v():
        rest()
        fma1(0)
        wo_switch('b', [(c, STEPS.index('V%d' % (c - 1))) for c in (1, 2, 3)])

    pv_range(0, 8, late, first_v)
    assert not L.q
    A('s_cmp_eq_u32 %s, 3', s(sCnt))
    A('s_cbranch_scc1 L_last')
    A('s_add_u32 %s, %s, 1', s(sCnt), s(sCnt))
    kstart()
    late(32)
    late(33)
    copy_p()
    A('s_mov_b32 %s, %s', s(sT), s(sKs))
    A('s_mov_b32 %s, %s', s(sKs), s(sNs))
    A('s_mov_b32 %s, %s', s(sNs), s(sVs))
    A('s_mov_b32 %s, %s', s(sVs), s(sT))
    assert L.q == q_att
    A('s_branch L_att')

    A.label('L_first')
    L.q = []
    part(0, NL, vP)
    A('s_add_u32 %s, %s, 1', s(sCnt), s(sCnt))
    kstart()
    rest()
    copy_p()
    A('s_mov_b32 %s, %s', s(sT), s(sKs))
    A('s_mov_b32 %s, %s', s(sKs), s(sNs))
    A('s_mov_b32 %s, %s', s(sNs), s(sT))
    A('s_branch L_att')

    A.label('L_last')
    L.q = []

    def hread(hf, n, buf):
        p, m = n >> 1, n & 1
        for aa in range(2):
            L.read('ds_read_b64_tr_b16 %s, %s offset:%d' % (a(64 + 4 * buf + 2 * aa, 2), v(vHb + m), 16384 * hf + (16 * p + 8 * aa) * 128), ('H', hf, n))

    def hpv(hf, n, buf, wait):
        p, m = n >> 1, n & 1
        if wait is not None:
            L.need(('H', hf, wait))
        acc = v(vO + 16 * (2 * hf + m), 16)
        A('%s %s, %s, %s, %s', MFMA, acc, a(64 + 4 * buf, 4), v(vP + 4 * p, 4), acc)

    def fin(f):
        for i in range(4):
            r = vO + 8 * f + 2 * i
            A('v_pk_mul_f32 %s, %s, %s op_sel_hi:[1,0]', v(r, 2), v(r, 2), v(vT, 2))
        for i in range(4):
            r = vO + 8 * f + 2 * i
            A('v_cvt_pk_bf16_f32 %s, %s, %s', v(vS + 4 * f + i), v(r), v(r + 1))
        A('buffer_store_dwordx4 %s, %s, %s, %s offen offset:%d sc1', v(vS + 4 * f, 4), v(vBl), s(sO, 4), s(sT + 6 + (f >> 2)), 1024 * (f & 3))

    stamp(A, 20)
    A('s_barrier')
    stamp(A, 21)
    A('ds_read_b32 %s, %s offset:8', v(vD), v(vSt))
    for n in range(6):
        hread(0, n, n)
    late(32)
    late(33)
    copy_p()
    for i in range(0, 32, 2):
        A('v_pk_mul_f32 %s, %s, %s op_sel_hi:[1,0]', v(vO + i, 2), v(vO + i, 2), v(vAl, 2))
    A('v_add_f32 %s, %s, %s', v(vL), v(vL), v(vL + 1))
    A('v_mov_b32 %s, %s', v(vT), v(vL))
    fill = ['v_mul_f32 %s, %s, %s' % (v(vO + i), v(vAl), v(vO + i)) for i in range(32, 64)]
    fill[4:4] = ['v_permlane32_swap_b32 %s, %s' % (v(vT), v(vL)), 'v_add_f32 %s, %s, %s' % (v(vL), v(vL), v(vT)), 'v_rcp_f32 %s, %s' % (v(vT), v(vL)),
                 'v_readfirstlane_b32 %s, %s' % (s(sLocal), v(vD))]
    for n in range(16):
        hpv(0, n, n % 8, n + 1 if n % 2 == 0 else None)
        if n + 6 < 16:
            hread(0, n + 6, (n + 6) % 8)
        for o in fill[:3]:
            A(o)
        fill = fill[3:]
        if n == 13:
            A('s_lshl_b32 %s, %s, 13', s(sT + 1), s(sWave))
            A('s_mul_i32 %s, s2, 24576', s(sT + 6))
            A('s_add_u32 %s, %s, %s', s(sT + 6), s(sT + 6), s(sT + 1))
            A('s_add_u32 %s, %s, 0x1000', s(sT + 7), s(sT + 6))
            A('s_add_u32 %s, %s, 0x%x', s(sT + 1), s(sT + 1), ROWN)
            A('v_add_u32 %s, %s, %s', v(vT + 2), s(sT + 1), v(vBl))
        if n == 14:
            A('s_lshl_b32 %s, s2, 8', s(sT + 8))
            A('s_lshl_b32 %s, %s, 2', s(sT + 1), s(sWave))
            A('s_add_u32 %s, %s, %s', s(sT + 8), s(sT + 8), s(sT + 1))
            A('s_lshl_b32 %s, %s, 12', s(sT + 1), s(sWave))
            A('v_add_u32 %s, %s, %s', v(vT + 3), s(sT + 1), v(vBl))
    assert not fill and not L.q
    A('s_barrier')
    for n in range(6):
        hread(1, n, n)
    for f in range(4):
        fin(f)
    stamp(A, 22)
    for n in range(12):
        hpv(1, n, n % 8, n + 1 if n % 2 == 0 else None)
        if n + 6 < 12:
            hread(1, n + 6, (n + 6) % 8)
        if n >= 8:
            A('ds_write_b128 %s, %s offset:%d', v(vT + 2), v(vS + 4 * (n - 8), 4), 1024 * (n - 8))
    A('s_barrier')
    stamp(A, 3)
    for i, n in enumerate((12, 14, 13, 15)):
        hread(1, n, 4 + i)
    tail_addr(A)
    for i, n in enumerate((12, 14, 13, 15)):
        hpv(1, n, 4 + i, n)
    for f in range(4, 8):
        if f - 4 == OPT['fa']:
            A('s_waitcnt vmcnt(%d)', f - 4)
            flag(A, 0)
        fin(f)
    stamp(A, 4)
    if OPT['fa'] == 4:
        A('s_waitcnt vmcnt(4)')
        flag(A, 0)
    for f in range(4, 8):
        A('ds_write_b128 %s, %s offset:%d', v(vT + 2), v(vS + 4 * f, 4), 1024 * f)
    for f in range(8):
        A('%s %s, %s, %s, %s', MFMA, a(AX, 16), a(96 + 4 * f, 4), v(vS + 4 * f, 4), '0' if f == 0 else a(AX, 16))
        if f == 3:
            A('s_mov_b64 exec, 1')
            A('s_waitcnt lgkmcnt(0)')
            A('ds_add_u32 %s, %s', v(vSt), v(vOne))
            A('s_mov_b64 exec, -1')
            A('s_nop 1')
    if OPT['fb'] < 0:
        A('s_waitcnt vmcnt(%d)', 1 if OPT['fa'] == 4 else 0)
        flag(A, 1)
        stamp(A, 5)
    for i in range(4):
        A('ds_write_b128 %s, %s offset:%d', v(vT + 3), a(AX + 4 * i, 4), XFER + 1024 * i)


def tail(A):
    vU = 230
    vPk = 212
    NB = 6

    def run(units, pre=None, beside=None):
        L = Lds(A)

        def rd(i):
            j, qt, f = units[i]
            base, off = (vB2, ROWN - RB[2]) if j == 0 else (vB2, 0) if j == 3 else (vB1, RB[j - 1] - RB[0])
            L.read('ds_read_b128 %s, %s offset:%d' % (a(4 * (i % NB), 4), v(base), off + qt * 8192 + f * 1024), i)

        for i in range(NB - 1):
            rd(i)
        if pre:
            pre()
        for i, (j, qt, f) in enumerate(units):
            L.need(i)
            acc = v(vAcc + 16 * qt, 16)
            A('%s %s, %s, %s, %s', MFMA, acc, a(AWO + 32 * j + 4 * f, 4), a(4 * (i % NB), 4), '0' if (j == 0 and f == 0) else acc)
            if i + NB - 1 < len(units):
                rd(i + NB - 1)
            if beside:
                beside(i)

    A('s_mov_b32 %s, 0', s(sT + 2))
    A('s_mov_b32 %s, 0', s(sTodo))
    A.label('L_own')
    A('ds_read_b32 %s, %s', v(vU), v(vSt))
    A('s_add_u32 %s, %s, 1', s(sT + 2), s(sT + 2))
    A('s_waitcnt lgkmcnt(0)')
    A('v_readfirstlane_b32 %s, %s', s(sT), v(vU))
    A('s_cmp_ge_u32 %s, 0x%x', s(sT + 2), SPIN_MAX)
    A('s_cbranch_scc1 L_own_go')
    A('s_cmp_lg_u32 %s, 3', s(sT))
    A('s_cbranch_scc1 L_own')
    A.label('L_own_go')
    stamp(A, 23)

    def beside_own(i):
        if i == OPT['fb']:
            A('s_waitcnt vmcnt(%d)', 1 if OPT['fa'] == 4 else 0)
            flag(A, 1)
            stamp(A, 5)

    run([(0, qt, f) for qt in range(3) for f in range(8)], None, beside_own)
    stamp(A, 24)
    A.label('L_bara')
    A('s_barrier')
    stamp(A, 54)

    def pre_a():
        A('s_cmp_lg_u32 %s, 3', s(sWave))
        A('s_cbranch_scc1 L_nox')
        for i in range(12):
            A('ds_read_b128 %s, %s offset:%d', v(vAcc + 4 * i, 4), v(vBl), XFER + 1024 * i)
        A('s_waitcnt lgkmcnt(0)')
        A.label('L_nox')

    def check(tag):
        A('s_cmp_eq_u32 %s, 0', s(sTodo))
        A('s_cbranch_scc1 L_ck%s', tag)
        A('s_call_b64 %s, L_bg', s(sRet, 2))
        A.label('L_ck%s' % tag)

    def beside_a(i):
        if str(i) in OPT['ckp'].split(','):
            check(str(i))
        if 8 <= i < 16:
            f, aa = (i - 8) >> 1, i & 1
            A('ds_read_b64_tr_b16 %s, %s offset:%d', a(AWO + 112 + 4 * f + 2 * aa, 2), v(vW3), KVS[1] + (16 * f + 8 * aa) * 256)

    run([(j, qt, f) for j in (1, 2, 3) for qt in range(3) for f in range(4)], pre_a, beside_a)
    stamp(A, 55)
    A('s_mov_b32 %s, 0', s(sT + 2))
    A.label('L_spinb')
    A('s_cmp_eq_u32 %s, 0', s(sTodo))
    A('s_cbranch_scc1 L_haveb')
    A('s_call_b64 %s, L_bg', s(sRet, 2))
    A('s_add_u32 %s, %s, 1', s(sT + 2), s(sT + 2))
    A('s_cmp_lt_u32 %s, 0x%x', s(sT + 2), SPIN_MAX)
    A('s_cbranch_scc1 L_spinb')
    A.label('L_haveb')
    A('v_lshlrev_b32 %s, 8, v1', v(vU + 1))
    A('s_waitcnt vmcnt(0)')
    A('s_barrier')
    stamp(A, 56)

    def fin_ops(qt):
        ops = []
        for t in range(2):
            o = 2 * qt + t
            r = vAcc + 8 * o
            for i in range(4):
                ops.append('v_cvt_pk_bf16_f32 %s, %s, %s' % (v(vPk + 4 * t + i), v(r + 2 * i), v(r + 2 * i + 1)))
            ops.append('buffer_store_dwordx4 %s, %s, %s, %s offen offset:%d sc1' % (v(vPk + 4 * t, 4), v(vBl), s(sPo, 4), s(sPst + o // 3), 1024 * (o % 3)))
        return ops

    pend = []

    def beside_b(i):
        if i in (15, 27):
            pend.extend(fin_ops(i // 12 - 1))
        for o in pend[:3]:
            A(o)
        del pend[:3]

    run([(j, qt, f) for qt in range(3) for j in (1, 2, 3) for f in range(4, 8)], None, beside_b)
    assert not pend
    stamp(A, 25)
    for o in fin_ops(2):
        A(o)
    stamp(A, 26)
    if OPT['f2']:
        A('s_mov_b64 exec, 1')
        A('s_waitcnt vmcnt(3)')
        A('buffer_store_dword %s, %s, %s, %s offen offset:128 sc1', v(vOne), v(vU + 1), s(sF, 4), s(sF2))
        A('s_mov_b64 exec, 2')
        A('s_waitcnt vmcnt(1)')
    else:
        A('s_mov_b64 exec, 3')
        A('s_waitcnt vmcnt(0)')
    A('buffer_store_dword %s, %s, %s, %s offen offset:128 sc1', v(vOne), v(vU + 1), s(sF, 4), s(sF2))
    A('s_mov_b64 exec, -1')
    stamp(A, 27)
    A('s_cmp_lg_u32 %s, 3', s(sWave))
    A('s_cbranch_scc1 L_red')
    stamp_flush(A)
    A('s_endpgm')

    A.label('L_red')
    vR, vF = 4, 40
    sGot, sLd2, sNew, sSp = sT + 6, sT + 7, sT + 8, sT + 9
    A('s_mul_i32 %s, s2, 24576', s(sT))
    A('s_lshl_b32 %s, %s, 10', s(sT + 1), s(sWave))
    A('s_add_u32 %s, %s, %s', s(sT), s(sT), s(sT + 1))
    A('s_lshl_b32 %s, s2, 8', s(sT + 3))
    A('v_and_b32 %s, 7, v1', v(vU))
    A('v_lshlrev_b32 %s, 2, %s', v(vU), v(vU))
    A('s_mov_b32 %s, 0', s(sGot))
    A('s_mov_b32 %s, 0', s(sLd2))
    A('s_mov_b32 %s, 0', s(sSp))
    A('buffer_load_dword %s, %s, %s, %s offen offset:128 sc1', v(vU + 1), v(vU), s(sF, 4), s(sT + 3))
    A('s_and_b32 %s, %s, 1', s(sT + 1), s(sHg))
    A('s_mul_i32 %s, %s, 3', s(sT + 1), s(sT + 1))
    A('s_add_u32 %s, %s, %s', s(sT + 1), s(sT + 1), s(sWave))
    A('s_lshr_b32 %s, %s, 1', s(sT + 2), s(sT + 1))
    A('s_lshl_b32 %s, %s, 15', s(sT + 2), s(sT + 2))
    A('s_and_b32 %s, %s, 1', s(sT + 1), s(sT + 1))
    A('s_lshl_b32 %s, %s, 5', s(sT + 1), s(sT + 1))
    A('s_add_u32 %s, %s, %s', s(sT + 2), s(sT + 2), s(sT + 1))
    A('s_lshr_b32 %s, %s, 1', s(sT + 1), s(sHg))
    if OPT['sp'] == 1:
        A('s_lshr_b32 %s, %s, 1', s(sT + 4), s(sT + 1))
        A('s_lshl_b32 %s, %s, 9', s(sT + 4), s(sT + 4))
        A('s_add_u32 %s, %s, %s', s(sT + 2), s(sT + 2), s(sT + 4))
        A('s_and_b32 %s, %s, 1', s(sT + 1), s(sT + 1))
    A('s_lshl_b32 %s, %s, %d', s(sT + 1), s(sT + 1), 8 if OPT['sp'] == 2 else 6)
    A('s_add_u32 %s, %s, %s', s(sT + 2), s(sT + 2), s(sT + 1))
    A('s_xor_b32 %s, %s, %d', s(sT + 1), s(sHh), OPT['cx'])
    A('s_lshl_b32 %s, %s, %d', s(sT + 1), s(sT + 1), 8 - OPT['sp'])
    A('s_add_u32 %s, %s, %s', s(sT + 2), s(sT + 2), s(sT + 1))
    A('v_and_b32 %s, 31, v1', v(vU + 2))
    A('v_lshlrev_b32 %s, 10, %s', v(vU + 2), v(vU + 2))
    A('v_lshrrev_b32 %s, 5, v1', v(vU + 3))
    A('v_lshl_add_u32 %s, %s, 4, %s', v(vU + 2), v(vU + 3), v(vU + 2))
    A.label('L_p2')
    A('s_waitcnt vmcnt(0)')
    A('v_cmp_eq_u32 vcc, 1, %s', v(vU + 1))
    A('s_andn2_b32 %s, %s, %s', s(sT + 4), s(sGot), s(sLd2))
    A('s_mov_b32 %s, %s', s(sLd2), s(sGot))
    A('s_and_b32 %s, vcc_lo, 0xff', s(sNew))
    if not OPT['early2']:
        A('s_cmp_eq_u32 %s, 0xff', s(sNew))
        A('s_cselect_b32 %s, 0xff, 0', s(sNew))
    A('s_andn2_b32 %s, %s, %s', s(sNew), s(sNew), s(sGot))
    A('s_cbranch_scc0 L_p2_noload')
    A('s_or_b32 %s, %s, %s', s(sGot), s(sGot), s(sNew))
    for k in range(8):
        A('s_bitcmp1_b32 %s, %d', s(sNew), k)
        A('s_cbranch_scc0 L_p2_l%d', k)
        if k < 2:
            A('buffer_load_dwordx4 %s, %s, %s, %s offen offset:%d sc1', v(vR + 4 * k, 4), v(vBl), s(sPo, 4), s(sT), 3072 * k)
        else:
            A('s_add_u32 %s, %s, 0x%x', s(sT + 1), s(sT), 3072 * k)
            A('buffer_load_dwordx4 %s, %s, %s, %s offen sc1', v(vR + 4 * k, 4), v(vBl), s(sPo, 4), s(sT + 1))
        A.label('L_p2_l%d' % k)
    A.label('L_p2_noload')
    A('s_cmp_eq_u32 %s, 0xff', s(sGot))
    A('s_cbranch_scc1 L_p2_nopoll')
    if OPT['slp2']:
        A('s_sleep %d', OPT['slp2'])
    A('buffer_load_dword %s, %s, %s, %s offen offset:128 sc1', v(vU + 1), v(vU), s(sF, 4), s(sT + 3))
    A.label('L_p2_nopoll')
    A('s_cmp_eq_u32 %s, 0', s(sT + 4))
    A('s_cbranch_scc1 L_p2_nounp')
    for k in range(8):
        A('s_bitcmp1_b32 %s, %d', s(sT + 4), k)
        A('s_cbranch_scc0 L_p2_u%d', k)
        for i in range(4):
            A('v_lshlrev_b32 %s, 16, %s', v(vF + 8 * k + 2 * i), v(vR + 4 * k + i))
            A('v_and_b32 %s, 0xffff0000, %s', v(vF + 8 * k + 2 * i + 1), v(vR + 4 * k + i))
        A.label('L_p2_u%d' % k)
    A.label('L_p2_nounp')
    A('s_cmp_eq_u32 %s, 0xff', s(sLd2))
    A('s_cbranch_scc1 L_p2_done')
    A('s_add_u32 %s, %s, 1', s(sSp), s(sSp))
    A('s_cmp_lt_u32 %s, 0x%x', s(sSp), SPIN_MAX)
    A('s_cbranch_scc1 L_p2')
    A('s_waitcnt vmcnt(0)')
    A.label('L_p2_done')
    burn(A, 't', OPT['probe_t'])
    stamp(A, 28)
    for step in (8, 16, 32):
        for k in range(0, 64, 2 * step):
            for i in range(0, 8, 2):
                A('v_pk_add_f32 %s, %s, %s', v(vF + k + i, 2), v(vF + k + i, 2), v(vF + k + step + i, 2))
    for i in range(4):
        A('v_cvt_pk_bf16_f32 %s, %s, %s', v(vR + i), v(vF + 2 * i), v(vF + 2 * i + 1))
    if not OPT['noout']:
        A('buffer_store_dwordx4 %s, %s, %s, %s offen %s', v(vR, 4), v(vU + 2), s(sOut, 4), s(sT + 2), OPT['out_pol'])
    if OPT['prof']:
        A('s_waitcnt vmcnt(0)')
        stamp(A, 29)
        stamp_flush(A)


def kernel():
    A = Asm()
    A('s_cmp_ge_u32 s2, 256')
    A('s_cbranch_scc1 L_end')
    if OPT['prof']:
        A('s_memrealtime s[92:93]')
    A('s_load_dwordx4 s[4:7], s[0:1], 0')
    A('s_load_dwordx4 s[8:11], s[0:1], 16')
    A('s_load_dwordx4 s[12:15], s[0:1], 32')
    A('s_load_dwordx4 s[16:19], s[0:1], 48')
    A('v_and_b32 v1, 63, v0')
    if OPT['pfcode'] == 2:
        A('s_getpc_b64 %s', s(sT + 2, 2))
        A.label('L_pc')
        A('s_lshr_b32 %s, s2, 3', s(sT))
        A('s_lshl_b32 %s, %s, 10', s(sT), s(sT))
        A('v_lshl_add_u32 v2, v1, 7, %s', s(sT))
        A('v_min_u32 v2, L_end-L_pc, v2')
        A('s_mov_b64 exec, 0xff')
        A('global_load_dword v250, v2, %s', s(sT + 2, 2))
        A('s_mov_b64 exec, -1')
    A('v_lshrrev_b32 v2, 6, v0')
    A('v_readfirstlane_b32 %s, v2', s(sWave))
    if OPT['prof']:
        A('v_mov_b32 v255, 0')
        A('s_waitcnt lgkmcnt(0)')
        A('v_writelane_b32 v255, s92, 0')
        stamp(A, 58)
    if OPT['badmap']:
        A('s_and_b32 s3, s2, 31')
        A('s_lshl_b32 s3, s3, 3')
        A('s_lshr_b32 s2, s2, 5')
        A('s_or_b32 s2, s2, s3')
    A('s_and_b32 %s, s2, 7', s(sHg))
    A('s_bfe_u32 %s, s2, 0x30003', s(sB))
    A('s_lshr_b32 %s, s2, 6', s(sHh))
    if OPT['hx']:
        A('s_xor_b32 %s, %s, %d', s(sHh), s(sHh), OPT['hx'])
    A('s_lshl_b32 %s, %s, 2', s(sH), s(sHg))
    A('s_add_u32 %s, %s, %s', s(sH), s(sH), s(sHh))
    A('s_lshl_b32 %s, %s, 1', s(sRot), s(sHh))
    A('s_add_u32 %s, %s, %s', s(sRot), s(sRot), s(sB))
    A('s_cmp_lg_u32 %s, 3', s(sWave))
    A('s_cbranch_scc1 L_compute')
    loader(A)
    A.label('L_compute')
    compute(A)
    tail(A)
    A.label('L_end')
    A('s_endpgm')
    return A.lines


HEADER = """
; standalone__mha_block_cached__near_ridge: out = softmax((x Wq) K^T / sqrt(128)) V Wo in one launch (generated by gen/gen21.py).
; One workgroup per (batch b, head h = 4*hg + hh): wg = hg | b<<3 | hh<<6.  Waves 0-2 own 32 queries each, wave 3 streams
; x / Wq / K / V / Wo into LDS (LDS-DMA, swizzled on the source side).  Everything is computed transposed (queries = MFMA
; Output projection: the four heads of a group exchange O through ws in two column halves (the last V block arrives
; column-wise, so the first half is under way early); each member multiplies the group's 512 columns with 128 output
; Hand-offs: write-through stores, wait for the acknowledge, then a flag.  Flags are reset by their own workgroup, which
; then reports in d_debug (one byte per workgroup = die id + 1); nobody trusts or sets a foreign flag before seeing that byte.
; @launch grid=(256,1,1) block=(256,1,1) lds=163840
"""


def main():
    k, n = pad_hazards(kernel())
    out = [HEADER.strip(),
           '.amdgcn_target "amdgcn-amd-amdhsa--gfx950"', '.text',
           '.globl %s_kernel\n.p2align 8\n.type %s_kernel,@function\n%s_kernel:' % (NAME, NAME, NAME)]
    out += k
    out.append('''.section .rodata,"a"
.p2align 6
.amdhsa_kernel %s_kernel
  .amdhsa_next_free_vgpr 512
  .amdhsa_next_free_sgpr 102
  .amdhsa_accum_offset 256
  .amdhsa_group_segment_fixed_size 0
  .amdhsa_kernarg_size 64
  .amdhsa_user_sgpr_count 2
  .amdhsa_user_sgpr_kernarg_segment_ptr 1
  .amdhsa_system_sgpr_workgroup_id_x 1
.end_amdhsa_kernel''' % NAME)
    open(sys.argv[1], 'w').write('\n'.join(out) + '\n')
    print('wrote', sys.argv[1], 'pads', n)


main()
```

```python
import sys
from asmlib import Asm, pad_hazards, v, a, s

OPT = dict(kv_pol='nt', w_pol='', x_pol='', wo_pol='', prof=0, la=8, law='8,11,14,18,21,21,21,21', pfcode=2, force_remote=0, early2=1, ovl=0, cap1=24, la1=10, slp1=0, slp2=0, noout=0, wb=0, badmap=0, probe_t=0, probe_k=0, probe_q=0, pl=0, touch=0, mgr1=0, off3=1, fa=0, fb=4, al=6, b1=0, nf0=4, nfa=5, kt=5, early_b=1, ckp='5,13,21,29', qpw=0, qs='3330', tpos2=7, tbit=6, f2=1, ne=8, pw=1, v3='4,2,2', olast=1, cx=2, sp=0, nl=24, rsl=1, nochain=1, plm=0xff, kpos=8, kn=5, tpos=2, upos=4, tk=0, tko=0, tkp='', capL=0, capLn=60, clsm=1, lk=6, wskip=0, o_pol='sc1', clean=0, vpoll=1, plp='', lim=0, ldma='', st='0',  xo=0, cap=9, cap0=0, hx=0, nowo=0, rg=1, pkpub=0, strict=0, pkfin=1, nfin=6, dsw=4, ws_off=0, out_pol='', p_pol='sc1')
for arg in sys.argv[2:]:
    k, val = arg.split('=')
    OPT[k] = int(val, 0) if isinstance(OPT[k], int) else val

NAME = 'standalone__mha_block_cached__near_ridge'
C_SCALE = 0x3e0293ee
MFMA = 'v_mfma_f32_32x32x16_bf16'
WS_O, WS_P, WS_F = OPT['ws_off'], OPT['ws_off'] + (6 << 20), OPT['ws_off'] + (12 << 20)
SPIN_MAX = 1 << 20
WSTR = 28672
KVS = [114688, 0, 65536]
RB = [65536, 90112, 114688]
ROWN = 139264
XFER = 53248
AX = 32
STAT = 49152

sX, sK, sV, sW, sWo, sO, sPo, sF, sOut, sDbg = 20, 24, 28, 32, 36, 56, 60, 64, 68, 72
sWave, sHg, sB, sHh, sH, sRot = 40, 41, 43, 44, 45, 46
sSlot, sCnt, sC = 47, 48, 50
sS0, sS1, sS2, sLocal, sSel = 52, 53, 54, 55, 42
sIss, sLand, sDone, sPst = 52, 53, 54, 94
sFo = 99
sT = 76
AWO = 128
vBl = 240
vW3 = 238
vB1, vB2, vOne, vL0 = 242, 243, 248, 249
sF2, sTodo, sRet = 96, 49, 22
vSt = 241
lP = 234
vAcc = 4


class Lds:
    def __init__(self, A):
        self.A = A
        self.q = []

    def read(self, text, tag):
        self.A(text)
        self.q.append(tag)

    def need(self, *tags):
        idx = max([i for i, t in enumerate(self.q) if t in tags], default=-1)
        if idx < 0:
            return
        n = len(self.q) - 1 - idx
        self.A('s_waitcnt lgkmcnt(%d)', min(n, 15))
        self.q = self.q[idx + 1:]

    def drain(self):
        if self.q:
            self.A('s_waitcnt lgkmcnt(0)')
        self.q = []


def srd(A, d, base, off, size):
    if off is None:
        A('s_mov_b32 %s, %s', s(d), s(base))
        A('s_mov_b32 %s, %s', s(d + 1), s(base + 1))
    else:
        A('s_add_u32 %s, %s, %s', s(d), s(base), off)
        A('s_addc_u32 %s, %s, 0', s(d + 1), s(base + 1))
    A('s_mov_b32 %s, %s', s(d + 2), size if isinstance(size, str) else '0x%x' % size)
    A('s_mov_b32 %s, 0x20000', s(d + 3))


def stamp(A, idx, op='s_memrealtime'):
    if not OPT['prof'] or (OPT['prof'] == 9 and idx not in (0, 2, 3, 25, 29, 58)):
        return
    if OPT['prof'] in (3, 4) and idx not in map(int, OPT['st'].split(',')):
        return
    A('%s s[90:91]', op)
    A('s_waitcnt lgkmcnt(0)')
    A('v_writelane_b32 v255, s90, %d', idx)


def stampd(A, base, mul, cnt=None, lvl=2):
    if OPT['prof'] != lvl:
        return
    A('s_memrealtime s[90:91]')
    A('s_mul_i32 m0, %s, %d', s(sCnt if cnt is None else cnt), mul)
    A('s_add_u32 m0, m0, %d', base)
    A('s_waitcnt lgkmcnt(0)')
    A('v_writelane_b32 v255, s90, m0')


def stamp_flush(A):
    if not OPT['prof']:
        return
    A('s_lshl_b32 s92, s2, 2')
    A('s_add_u32 s92, s92, %s', s(sWave))
    A('s_lshl_b32 s92, s92, 8')
    A('s_add_u32 s92, s92, 0x%x', 128 << 20)
    srd(A, 24, 18, 's92', 256)
    A('v_lshlrev_b32 v254, 2, v1')
    A('buffer_store_dword v255, v254, s[24:27], 0 offen')


def dma(A, voffs, srdreg, soff, pol):
    for j in range(4):
        A('buffer_load_dwordx4 %s, %s, %s offen offset:%d %s lds', v(voffs[j]), s(srdreg, 4), s(soff), 1024 * j, pol)


def tr_lane_base(A, vt, hrow, sigma):
    A('v_lshrrev_b32 %s, 5, v1', v(vt))
    A('v_mul_u32_u24 %s, %d, %s', v(vt), hrow, v(vt))
    A('v_bfe_u32 %s, v1, 2, 2', v(vt + 1))
    A('v_add_u32 %s, %s, %s', v(vt), v(vt), v(vt + 1))
    A('v_lshlrev_b32 %s, 8, %s', v(vt), v(vt))
    A('v_bfe_u32 %s, v1, 4, 1', v(vt + 2))
    A('v_lshl_add_u32 %s, %s, 5, %s', v(vt), v(vt + 2), v(vt))
    if sigma:
        A('v_and_b32 %s, 1, v1', v(vt + 2))
        A('v_lshl_add_u32 %s, %s, 4, %s', v(vt), v(vt + 2), v(vt))
        A('v_bfe_u32 %s, v1, 1, 1', v(vt + 2))
        A('v_lshl_add_u32 %s, %s, 3, %s', v(vt), v(vt + 2), v(vt))
    else:
        A('v_and_b32 %s, 3, v1', v(vt + 2))
        A('v_lshl_add_u32 %s, %s, 3, %s', v(vt), v(vt + 2), v(vt))


def tr_lane_bases(A, vdst, hrow, sigma, vt):
    tr_lane_base(A, vt, hrow, sigma)
    for mt in range(4):
        A('v_xor_b32 %s, %d, %s', v(vt + 2), mt, v(vt + 1))
        A('v_lshl_add_u32 %s, %s, 6, %s', v(vdst + mt), v(vt + 2), v(vt))


def wo_lane_base(A, vdst, vt):
    tr_lane_base(A, vt, 4, True)
    A('v_xor_b32 %s, %s, %s', v(vt + 2), s(sWave), v(vt + 1))
    A('v_lshl_add_u32 %s, %s, 6, %s', v(vdst), v(vt + 2), v(vt))


def wo_reads(A, j, half, vaddr):
    for f in range(4):
        for aa in range(2):
            A('ds_read_b64_tr_b16 %s, %s offset:%d', a(AWO + 32 * j + 16 * half + 4 * f + 2 * aa, 2), v(vaddr), (16 * f + 8 * aa) * 256)


sFl, sFb = 4, sF
sAt = 98
sMa, sMb = 96, 97


def check_land(A, tag):
    A('s_cmp_eq_u32 %s, 14', s(sLand))
    A('s_cbranch_scc1 L_cl_%s', tag)
    A('s_getreg_b32 %s, hwreg(HW_REG_IB_STS)', s(sT))
    A('s_and_b32 %s, %s, 15', s(sT + 1), s(sT))
    A('s_bfe_u32 %s, %s, 0x20016', s(sT), s(sT))
    A('s_lshl4_add_u32 %s, %s, %s', s(sT), s(sT), s(sT + 1))
    A('s_cmp_le_u32 %s, 48', s(sT))
    A('s_cselect_b32 %s, %s, 0', s(sT + 1), s(sMb))
    A('s_cmp_le_u32 %s, 24', s(sT))
    A('s_cselect_b32 %s, %s, %s', s(sT + 1), s(sMa), s(sT + 1))
    A('s_cmp_eq_u32 %s, 0', s(sT))
    A('s_cselect_b32 %s, %s, %s', s(sT + 1), s(sIss), s(sT + 1))
    A('s_andn2_b32 %s, %s, %s', s(sT), s(sT + 1), s(sLand))
    A('s_cbranch_scc0 L_cl_%s', tag)
    A('s_or_b32 %s, %s, %s', s(sLand), s(sLand), s(sT + 1))
    A('v_mov_b32 %s, %s', v(lP + 1), s(sLand))
    A('ds_write_b32 %s, %s offset:4', v(vSt), v(lP + 1))
    if OPT['wb']:
        A('s_lshr_b32 %s, s2, 3', s(sT))
        A('s_xor_b32 %s, %s, %d', s(sT), s(sT), OPT['wb'] - 1)
        A('s_lshl_b32 %s, %s, 4', s(sT), s(sT))
        A('s_or_b32 %s, %s, %s', s(sT), s(sT), s(sLand))
        A('s_cmp_eq_u32 %s, 14', s(sT))
        A('s_cbranch_scc0 L_cl_%s', tag)
        A('buffer_wbl2 sc1')
    stampd(A, 50, 1, 93, 4)
    if OPT['prof'] == 4:
        A('s_add_u32 s93, s93, 1')
    A.label('L_cl_%s' % tag)


def burn(A, tag, n):
    if not n:
        return
    A('s_mov_b32 s98, %d', n)
    A.label('L_burn_' + tag)
    for i in range(14):
        A('v_mov_b32 v252, v253')
    A('s_sub_u32 s98, s98, 1')
    A('s_cmp_lg_u32 s98, 0')
    A('s_cbranch_scc1 L_burn_%s', tag)


def flag(A, hf):
    A('s_cmp_eq_u32 %s, 0', s(sLocal))
    A('s_cbranch_scc1 L_fl%d', hf)
    A('buffer_store_dword %s, %s, %s, %s offen offset:%d sc1', v(vOne), v(vL0), s(sF, 4), s(sT + 8), 16 * hf)
    A('s_branch L_fd%d', hf)
    A.label('L_fl%d' % hf)
    A('buffer_store_dword %s, %s, %s, %s offen offset:%d', v(vOne), v(vL0), s(sF, 4), s(sT + 8), 16 * hf)
    A.label('L_fd%d' % hf)


def poll(A, hf):
    A('buffer_load_dword %s, %s, %s, 0 offen offset:%d sc1', v(lP + 1), v(lP), s(sF, 4), 16 * hf)


def copies(A, hf):
    for j in range(1, 4):
        for w in range(3):
            A('s_mov_b32 m0, 0x%x', RB[j - 1] + 8192 * w + 4096 * hf)
            A('s_add_u32 %s, %s, 0x%x', s(sT), s(sT + 10 + j), 8192 * w + 4096 * hf)
            dma(A, [vBl] * 4, sO, sT, 'sc1')


def tail_addr(A):
    A('s_and_b32 %s, s2, 0xf8', s(sT))
    A('s_lshl_b32 %s, %s, 1', s(sT + 1), s(sWave))
    A('s_add_u32 %s, %s, %s', s(sT + 2), s(sT), s(sT + 1))
    A('s_mul_i32 %s, %s, 24576', s(sT), s(sT + 2))
    A('s_mul_i32 %s, %s, 3072', s(sT + 1), s(sHg))
    A('s_add_u32 %s, %s, %s', s(sPst), s(sT), s(sT + 1))
    A('s_add_u32 %s, %s, 24576', s(sPst + 1), s(sPst))
    A('s_lshl_b32 %s, %s, 8', s(sT + 2), s(sT + 2))
    A('s_lshl_b32 %s, %s, 2', s(sT + 1), s(sHg))
    A('s_add_u32 %s, %s, %s', s(sF2), s(sT + 2), s(sT + 1))


def tail_srds(A):
    srd(A, sO, 18, '0x%x' % WS_O if WS_O else None, 256 * 24576)
    srd(A, sPo, 18, '0x%x' % WS_P, 256 * 24576)
    srd(A, sF, 18, '0x%x' % WS_F, 256 * 256)
    srd(A, sDbg, 16, None, 256)
    A('s_mul_i32 %s, %s, 98304', s(sT), s(sB))
    srd(A, sOut, 14, s(sT), 98304)
    A('v_lshlrev_b32 %s, 4, v1', v(vBl))
    A('v_mov_b32 %s, 0x%x', v(vSt), STAT)
    A('v_add_u32 %s, 0x%x, %s', v(vB1), RB[0], v(vBl))
    A('v_add_u32 %s, 0x%x, %s', v(vB2), RB[2], v(vBl))
    A('v_mov_b32 %s, 1', v(vOne))
    A('v_min_u32 %s, 1, v1', v(vL0))
    A('v_lshlrev_b32 %s, 30, %s', v(vL0), v(vL0))


V3 = list(map(int, OPT['v3'].split(',')))
assert sum(V3) == 8 and V3[-1] == 2
STEPS = ['K0', 'K1', 'V0', 'K2', 'V1', 'K3', 'V2', 'V3']


def plan():
    groups = []
    steps = []
    k0 = [('k', 0, g, KVS[0] + 16384 + 4096 * g, 8) for g in range(3, 8)]
    for i in range(8):
        base = WSTR * (i % 5)
        if i == OPT['tpos']:
            groups.append(('t', 0, 0, -1 << 20, 0))
        if i == OPT['tpos2']:
            groups.append(('t', 1, 0, -1 << 20, 0))
        if i == OPT['kpos']:
            groups += k0[:OPT['kn']]
        if i < 8 - OPT['wskip']:
            for g in range(3):
                groups.append(('x', i, g, base + 16384 + 4096 * g, i))
            for g in range(4):
                groups.append(('w', i, g, base + 4096 * g, i))
        steps.append(['W%d' % i, len(groups) - 1, i if OPT['strict'] else i - 1])
    for t, nm in enumerate(STEPS):
        base = KVS[t % 3]
        kv = lambda g: (nm[0].lower(), int(nm[1]), g, base + 16384 + 4096 * g, 8 + t)
        wo = lambda g: ('o', t >> 1, 4 * (t & 1) + g, base + 4096 * g, 8 + t)
        if t == 0:
            seq = k0[OPT['kt'] if OPT['kt'] else OPT['kn'] if OPT['kpos'] < 8 else 0:] + [kv(0), wo(0), kv(1), wo(1), kv(2), wo(2), wo(3)]
        elif t == 7:
            seq = [('h', hf, g, base + 16384 * (1 + hf) + 4096 * g, 15) for hf in range(2) for g in range(4)] + [wo(g) for g in range(4)]
        else:
            seq = []
            for q in range(4):
                seq += [wo(q), kv(2 * q), kv(2 * q + 1)]
        if OPT['nowo']:
            seq = [x for x in seq if x[0] != 'o']
        groups += seq
        if t < 7:
            steps.append([nm, len(groups) - 1, 8 + t])
        else:
            e = len(groups) - 1 - 4
            steps += [['V3a', e - 4, 15], ['V3b', e, 15]] if OPT['b1'] else [['V3a', e - 4, 15], ['V3b', e - 1, 15], ['V3c', e, 15]]
    return steps, groups


def loader(A):
    lX, lW, lK, lV, lWo, lT, lA, lZ, lH = 200, 204, 208, 212, 216, 220, 228, 196, 214
    A('v_lshrrev_b32 %s, 4, v1', v(lT))
    A('v_and_b32 %s, 15, v1', v(lT + 1))
    A('v_lshrrev_b32 %s, 3, v1', v(lT + 3))
    A('v_and_b32 %s, 7, v1', v(lT + 4))
    A('v_xor_b32 %s, %s, %s', v(lT + 4), v(lT + 4), v(lT))
    A('v_lshlrev_b32 %s, 4, %s', v(lT + 4), v(lT + 4))
    A('v_lshl_add_u32 %s, %s, 10, %s', v(lX), v(lT + 3), v(lT + 4))
    A('v_xor_b32 %s, 64, %s', v(lX + 1), v(lX))
    A('v_add_u32 %s, 0x%x, %s', v(lX + 2), 2 * 7168, v(lX))
    A('v_add_u32 %s, 0x%x, %s', v(lX + 3), 3 * 7168, v(lX + 1))
    A('v_add_u32 %s, 0x%x, %s', v(lX + 1), 7168, v(lX + 1))
    A('v_lshlrev_b32 %s, 2, %s', v(lT + 2), v(lT))
    A('v_xor_b32 %s, %s, %s', v(lT + 2), v(lT + 2), v(lT + 1))
    A('v_lshlrev_b32 %s, 4, %s', v(lT + 2), v(lT + 2))
    A('v_lshl_add_u32 %s, %s, 13, %s', v(lW), v(lT), v(lT + 2))
    for j in range(1, 4):
        A('v_add_u32 %s, 0x%x, %s', v(lW + j), j * (32768 - 1024), v(lW))
    A('s_mul_i32 %s, %s, 98304', s(sT), s(sB))
    A('s_lshl_b32 %s, %s, 8', s(sT + 1), s(sH))
    A('s_sub_u32 %s, 0x400000, %s', s(sT + 2), s(sT + 1))
    A('s_waitcnt lgkmcnt(0)')
    srd(A, sX, 4, s(sT), 98304)
    srd(A, sW, 10, s(sT + 1), s(sT + 2))
    stamp(A, 30)

    def setup2():
        A('s_lshl_b32 %s, %s, 5', s(sT), s(sB))
        A('s_add_u32 %s, %s, %s', s(sT), s(sT), s(sH))
        A('s_lshl_b32 %s, %s, 17', s(sT), s(sT))
        srd(A, sK, 6, s(sT), 131072)
        srd(A, sV, 8, s(sT), 131072)
        A('s_lshl_b32 %s, %s, 19', s(sT), s(sHg))
        A('s_xor_b32 %s, %s, %d', s(sT + 1), s(sHh), OPT['cx'])
        A('s_lshl_b32 %s, %s, %d', s(sT + 1), s(sT + 1), 8 - OPT['sp'])
        A('s_add_u32 %s, %s, %s', s(sT), s(sT), s(sT + 1))
        A('s_sub_u32 %s, 0x80000, %s', s(sT + 2), s(sT + 1))
        srd(A, sWo, 12, s(sT), s(sT + 2))
        A('v_lshl_add_u32 %s, %s, 8, %s', v(lV), v(lT), v(lT + 2))
        if OPT['sp'] == 0:
            A('v_lshl_add_u32 %s, %s, 10, %s', v(lWo), v(lT), v(lT + 2))
        else:
            if OPT['sp'] == 1:
                A('v_and_b32 %s, 0x7f, %s', v(lT + 3), v(lT + 2))
                A('v_lshrrev_b32 %s, 7, %s', v(lT + 4), v(lT + 2))
                A('v_lshl_add_u32 %s, %s, 9, %s', v(lT + 3), v(lT + 4), v(lT + 3))
            else:
                A('v_and_b32 %s, 0x3f, %s', v(lT + 3), v(lT + 2))
                A('v_lshrrev_b32 %s, 6, %s', v(lT + 4), v(lT + 2))
                A('v_lshl_add_u32 %s, %s, 8, %s', v(lT + 3), v(lT + 4), v(lT + 3))
            A('v_lshl_add_u32 %s, %s, 10, %s', v(lWo), v(lT), v(lT + 3))
        for j in range(1, 4):
            A('v_add_u32 %s, 0x%x, %s', v(lWo + j), j * (4096 - 1024), v(lWo))
        for j in range(4):
            A('v_add_u32 %s, %d, %s', v(lT + 3), 4 * j, v(lT))
            A('v_xor_b32 %s, %s, %s', v(lT + 3), v(lT + 3), v(lT + 1))
            A('v_lshlrev_b32 %s, 4, %s', v(lT + 3), v(lT + 3))
            A('v_lshl_add_u32 %s, %s, 8, %s', v(lK + j), v(lT), v(lT + 3))
        A('v_and_b32 %s, 1, %s', v(lT + 3), v(lT))
        A('v_lshlrev_b32 %s, 2, %s', v(lT + 3), v(lT + 3))
        A('v_and_b32 %s, 7, v1', v(lT + 4))
        A('v_xor_b32 %s, %s, %s', v(lT + 3), v(lT + 3), v(lT + 4))
        A('v_lshlrev_b32 %s, 4, %s', v(lT + 3), v(lT + 3))
        A('v_lshrrev_b32 %s, 3, v1', v(lT + 4))
        A('v_lshl_add_u32 %s, %s, 8, %s', v(lH), v(lT + 4), v(lT + 3))
        A('v_add_u32 %s, 0x400, %s', v(lH + 1), v(lH))
        wo_lane_base(A, lA, lT)
        A('v_mov_b32 %s, %s', v(vW3), v(lA))
        tail_srds(A)
        if OPT['capL']:
            A('s_xor_b32 vcc_lo, %s, %d', s(sHh), 1 ^ OPT['cx'])
            A('s_mov_b32 vcc_hi, 0')
        if OPT['rg']:
            A('s_lshl_b32 %s, %s, 12', s(sT + 8), s(sB))
        else:
            A('s_mov_b32 %s, 0', s(sT + 8))
        A('s_and_b32 %s, s2, 63', s(sT + 1))
        for j in range(1, 4):
            A('%s %s, %s, %d', 's_xor_b32' if OPT['xo'] else 's_add_u32', s(sT), s(sHh), j)
            A('s_and_b32 %s, %s, 3', s(sT), s(sT))
            if OPT['hx']:
                A('s_xor_b32 %s, %s, %d', s(sT), s(sT), OPT['hx'])
            A('s_lshl_b32 %s, %s, 6', s(sT), s(sT))
            A('s_add_u32 %s, %s, %s', s(sT), s(sT), s(sT + 1))
            A('s_mul_i32 %s, %s, 24576', s(sT + 10 + j), s(sT))
            A('s_lshl_b32 %s, %s, 8', s(sFo + j - 1), s(sT))
        A('v_lshrrev_b32 %s, 2, v1', v(lP))
        A('v_min_u32 %s, 2, %s', v(lP), v(lP))
        A('v_add_u32 %s, 1, %s', v(lP), v(lP))
        A('%s %s, %s, %s', 'v_xor_b32' if OPT['xo'] else 'v_add_u32', v(lP), s(sHh), v(lP))
        A('v_and_b32 %s, 3, %s', v(lP), v(lP))
        if OPT['hx']:
            A('v_xor_b32 %s, %d, %s', v(lP), OPT['hx'], v(lP))
        A('v_lshlrev_b32 %s, 6, %s', v(lP), v(lP))
        A('v_add_u32 %s, %s, %s', v(lP), s(sT + 1), v(lP))
        A('v_lshlrev_b32 %s, 8, %s', v(lP), v(lP))
        A('v_and_b32 %s, 3, v1', v(lP + 1))
        A('v_min_u32 %s, 2, %s', v(lP + 1), v(lP + 1))
        A('v_lshl_add_u32 %s, %s, 2, %s', v(lP), v(lP + 1), v(lP))
        A('v_mov_b64 %s, 0', v(lP + 2, 2))
        A('v_mov_b64 %s, 0', v(lZ, 2))
        A('v_mov_b64 %s, 0', v(lZ + 2, 2))
        A('s_lshl_b32 %s, s2, 8', s(sT))
        A('s_mov_b64 exec, 0xffff')
        A('buffer_store_dwordx4 %s, %s, %s, %s offen sc1', v(lZ, 4), v(vBl), s(sF, 4), s(sT))
        A('s_mov_b64 exec, -1')

    steps, groups = plan()
    st = dict(m0=None, key=None, so=None)
    sXo, sWq, sG, sOo, sGk, sGv, sRg = sT + 3, sT + 4, sT + 5, sT + 6, sT + 7, sT + 7, sT + 8

    def issue(gi):
        kind, j, g, lds, _ = groups[gi]
        if kind == 't':
            if OPT['tpos2'] < 9:
                A('s_bitcmp1_b32 s2, %d', OPT['tbit'])
                A('s_cbranch_scc%d L_nt%d', 1 - j, j)
            A('s_lshl_b32 %s, %s, 19', s(sT), s(sHg))
            A('s_lshr_b32 %s, s2, 3', s(sT + 1))
            A('s_lshl_b32 %s, %s, 14', s(sT + 1), s(sT + 1))
            A('s_add_u32 %s, %s, %s', s(sT), s(sT), s(sT + 1))
            A('v_lshl_add_u32 v251, v1, 7, %s', s(sT))
            A('v_add_u32 v252, 0x2000, v251')
            A('global_load_dword v250, v251, s[12:13]')
            A('global_load_dword v250, v252, s[12:13]')
            if OPT['tk']:
                A('v_lshlrev_b32 v253, 7, v1')
            for g in range(OPT['tk']):
                A('s_mov_b32 %s, 0x%x', s(sT), OPT['tko'] + 8192 * g)
                A('buffer_load_dword v250, v253, %s, %s offen %s', s(sK, 4), s(sT), OPT['tkp'])
            for g in range(3, 3 + OPT['kt']):
                A('s_mov_b32 m0, 0x%x', KVS[0] + 16384 + 4096 * g)
                A('s_add_u32 %s, %s, 0x%x', s(sG), s(sRg), 4096 * g)
                A('s_and_b32 %s, %s, 0x7000', s(sG), s(sG))
                dma(A, [lK, lK + 1, lK + 2, lK + 3], sK, sG, OPT['kv_pol'])
            st['m0'] = None
            if OPT['tpos2'] < 9:
                A.label('L_nt%d' % j)
            return
        if kind == 'h':
            for u in range(2):
                A('s_mov_b32 m0, 0x%x', lds + 2048 * u)
                A('s_add_u32 %s, %s, 0x%x', s(sG), s(sRg), 4096 * (2 * g + u))
                A('s_and_b32 %s, %s, 0x7000', s(sG), s(sG))
                A('s_or_b32 %s, %s, 0x%x', s(sG), s(sG), 3 * 32768 + 128 * j)
                for j2 in range(2):
                    A('buffer_load_dwordx4 %s, %s, %s offen offset:%d %s lds', v(lH + j2), s(sV, 4), s(sG), 1024 * j2, OPT['kv_pol'])
            st['m0'] = None
            return
        if kind == 'u':
            if g == 0:
                A('v_lshlrev_b32 v253, 7, v1')
            A('s_mov_b32 %s, 0x%x', s(sT), OPT['tko'] + 8192 * g)
            A('buffer_load_dword v250, v253, %s, %s offen %s', s(sK, 4), s(sT), OPT['tkp'])
            return
        if OPT['cap'] and steps[7][1] + OPT['cap0'] < gi < len(groups) - OPT['cap1']:
            A('s_waitcnt vmcnt(%d)', 4 * (OPT['cap'] - 1))
        if OPT['capL'] and steps[7][1] < gi < len(groups) - OPT['cap1']:
            A('s_cbranch_vccz L_cl%d', gi)
            A('s_waitcnt vmcnt(%d)', 4 * (OPT['capL'] - 1))
            A.label('L_cl%d' % gi)
        if st['m0'] is not None and 0 < lds - st['m0'] < 32768:
            A('s_addk_i32 m0, 0x%x', lds - st['m0'])
        else:
            A('s_mov_b32 m0, 0x%x', lds)
        st['m0'] = lds
        if kind == 'x':
            if g == 0:
                A('s_add_u32 %s, %s, %d', s(sT), s(sRot), j)
                A('s_and_b32 %s, %s, 7', s(sT), s(sT))
                A('s_lshl_b32 %s, %s, 7', s(sXo), s(sT))
                A('s_lshl_b32 %s, %s, 19', s(sWq), s(sT))
            else:
                A('s_add_u32 %s, %s, 0x8000', s(sXo), s(sXo))
            dma(A, [lX, lX + 1, lX + 2, lX + 3], sX, sXo, OPT['x_pol'])
        elif kind == 'w':
            if g:
                A('s_add_u32 %s, %s, 0x20000', s(sWq), s(sWq))
            dma(A, [lW, lW + 1, lW + 2, lW + 3], sW, sWq, OPT['w_pol'])
        elif kind == 'o':
            if g == 0:
                A('%s %s, %s, %d', 's_xor_b32' if OPT['xo'] else 's_add_u32', s(sT), s(sHh), j)
                A('s_and_b32 %s, %s, 3', s(sT), s(sT))
                A('s_lshl_b32 %s, %s, 17', s(sOo), s(sT))
            else:
                A('s_addk_i32 %s, 0x4000', s(sOo))
            dma(A, [lWo, lWo + 1, lWo + 2, lWo + 3], sWo, sOo, OPT['wo_pol'])
        else:
            sR = sGk if kind == 'k' else sGv
            if st.get(kind) == (j, g - 1):
                A('s_addk_i32 %s, 0x1000', s(sR))
            else:
                A('s_add_u32 %s, %s, 0x%x', s(sR), s(sRg), 4096 * g)
            st[kind] = (j, g)
            A('s_and_b32 %s, %s, 0x7000', s(sG), s(sR))
            if j:
                A('s_or_b32 %s, %s, 0x%x', s(sG), s(sG), j * 32768)
            if kind == 'k':
                dma(A, [lK, lK + 1, lK + 2, lK + 3], sK, sG, OPT['kv_pol'])
            else:
                dma(A, [lV] * 4, sV, sG, OPT['kv_pol'])

    def free(gi, cert):
        lds = groups[gi][3]
        return all(not (p[3] < lds + 4096 and lds < p[3] + 4096) or p[4] < cert for p in groups[:gi])

    nxt = 0
    cert = 0
    did2 = False
    pend = False
    for i, (name, e, c) in enumerate(steps):
        la = int(OPT['law'].split(',')[i]) if i < 8 else OPT['la1'] if (OPT['la1'] and i >= 13) else OPT['la']
        while nxt < len(groups) and nxt <= e + la and free(nxt, cert):
            if nxt == 11 and not did2:
                stamp(A, 31)
                setup2()
                did2 = True
            issue(nxt)
            nxt += 1
        assert nxt > e, (name, nxt, e)
        A('s_waitcnt vmcnt(%d)%s', min(60, sum({'t': 0 if OPT['tpos2'] < 9 else 2 + OPT['tk']}.get(x[0], 4) for x in groups[e + 1:nxt])), ' lgkmcnt(0)' if pend else '')
        pend = False
        if not 2 <= i <= 5 and OPT['prof'] != 9:
            stamp(A, 2 + i)
        A('s_barrier')
        cert = max(cert, c)
        if 8 <= i <= (14 if OPT['olast'] else 15):
            t = i - 8
            A('v_add_u32 %s, 0x%x, %s', v(lA + 1), KVS[t % 3], v(lA))
            wo_reads(A, t >> 1, t & 1, lA + 1)
            pend = True
        if name == 'W1':
            assert e > 11
            A('s_getreg_b32 %s, hwreg(HW_REG_XCC_ID, 0, 4)', s(sT))
            A('s_add_u32 %s, %s, 1', s(sT), s(sT))
            A('s_and_b32 %s, s2, 3', s(sT + 1))
            A('s_lshl_b32 %s, %s, 3', s(sT + 1), s(sT + 1))
            A('s_lshl_b32 %s, %s, %s', s(sAt), s(sT), s(sT + 1))
            A('s_and_b32 %s, s2, 0xfc', s(sT + 1))
            A('s_atomic_or %s, s[16:17], %s', s(sAt), s(sT + 1))
        if name == 'K0':
            A('ds_write_b64 %s, %s', v(vSt), v(lP + 2, 2))
            A('ds_write_b32 %s, %s offset:12', v(vSt), v(lP + 2))
        if name == 'K2':
            A('s_and_b32 %s, s2, 0xf8', s(sT))
            A('s_load_dwordx2 %s, s[16:17], %s', s(sFl + 4, 2), s(sT))
            A('s_and_b32 %s, s2, 0x3c', s(sT))
            for k in range(4):
                A('s_load_dword %s, s[16:17], %s', s(sFl + k), s(sT))
                if k < 3:
                    A('s_add_u32 %s, %s, 64', s(sT), s(sT))
        if name == 'V1':
            A('s_mov_b32 %s, 0', s(sT + 2))
            A.label('L_chk')
            A('s_and_b32 %s, s2, 3', s(sT))
            A('s_lshl_b32 %s, %s, 3', s(sT), s(sT))
            A('s_or_b32 %s, %s, 0x80000', s(sT), s(sT))
            for k in range(4):
                A('s_bfe_u32 %s, %s, %s', s(sFl + k), s(sFl + k), s(sT))
            A('s_min_u32 %s, %s, %s', s(sT), s(sFl), s(sFl + 1))
            A('s_min_u32 %s, %s, %s', s(sT + 1), s(sFl + 2), s(sFl + 3))
            A('s_min_u32 %s, %s, %s', s(sT), s(sT), s(sT + 1))
            A('s_add_u32 %s, %s, 0x7f7f7f7f', s(sFl + 4), s(sFl + 4))
            A('s_add_u32 %s, %s, 0x7f7f7f7f', s(sFl + 5), s(sFl + 5))
            A('s_and_b32 %s, %s, %s', s(sFl + 4), s(sFl + 4), s(sFl + 5))
            A('s_or_b32 %s, %s, 0x7f7f7f7f', s(sFl + 4), s(sFl + 4))
            A('s_cmp_eq_u32 %s, -1', s(sFl + 4))
            A('s_cselect_b32 %s, %s, 0', s(sT), s(sT))
            A('s_cmp_lg_u32 %s, 0', s(sT))
            A('s_cbranch_scc1 L_chk_ok')
            A('v_lshlrev_b32 %s, 2, v1', v(lZ))
            A('buffer_load_dword %s, %s, %s, 0 offen sc1', v(lZ + 1), v(lZ), s(sDbg, 4))
            A('s_bfe_u32 %s, s2, 0x40002', s(sT))
            A('s_waitcnt vmcnt(0)')
            for k in range(4):
                A('v_readlane_b32 %s, %s, %s', s(sFl + k), v(lZ + 1), s(sT))
                A('s_add_u32 %s, %s, 16', s(sT), s(sT))
            A('s_lshr_b32 %s, s2, 3', s(sT))
            A('s_lshl_b32 %s, %s, 1', s(sT), s(sT))
            A('v_readlane_b32 %s, %s, %s', s(sFl + 4), v(lZ + 1), s(sT))
            A('s_add_u32 %s, %s, 1', s(sT), s(sT))
            A('v_readlane_b32 %s, %s, %s', s(sFl + 5), v(lZ + 1), s(sT))
            A('s_add_u32 %s, %s, 1', s(sT + 2), s(sT + 2))
            A('s_cmp_lt_u32 %s, 0x%x', s(sT + 2), SPIN_MAX)
            A('s_cbranch_scc1 L_chk')
            A.label('L_chk_ok')
            if OPT['prof']:
                A('v_writelane_b32 v255, %s, 59', s(sT + 2))
            for k in range(1, 4):
                A('s_xor_b32 %s, %s, %s', s(sFl + k), s(sFl + k), s(sFl))
            A('s_or_b32 %s, %s, %s', s(sT), s(sFl + 1), s(sFl + 2))
            A('s_or_b32 %s, %s, %s', s(sLocal), s(sT), s(sFl + 3))
            if OPT['force_remote']:
                A('s_mov_b32 %s, 1', s(sLocal))
            A('v_mov_b32 %s, %s', v(lZ), s(sLocal))
            A('ds_write_b32 %s, %s offset:8', v(vSt), v(lZ))
    assert nxt == len(groups)

    tail_addr(A)
    A('s_mov_b32 %s, 0', s(sT + 2))
    A.label('L_poll0')
    poll(A, 0)
    A('s_add_u32 %s, %s, 1', s(sT + 2), s(sT + 2))
    A('s_cmp_ge_u32 %s, 0x%x', s(sT + 2), SPIN_MAX)
    A('s_waitcnt vmcnt(0)')
    A('s_cbranch_scc1 L_got0')
    A('v_cmp_ne_u32 vcc, 1, %s', v(lP + 1))
    A('s_cmp_lg_u64 vcc, 0')
    A('s_cbranch_scc1 L_poll0')
    A.label('L_got0')
    stamp(A, 40)
    copies(A, 0)
    stamp(A, 41)
    poll(A, 1)
    A('s_mov_b32 %s, 1', s(sTodo))
    if OPT['early_b']:
        A('s_call_b64 %s, L_bg', s(sRet, 2))
    else:
        A('s_waitcnt vmcnt(1)')
    A('s_branch L_bara')
    A.label('L_bg')
    A('s_waitcnt vmcnt(0)')
    A('v_cmp_ne_u32 vcc, 1, %s', v(lP + 1))
    A('s_cmp_lg_u64 vcc, 0')
    A('s_cbranch_scc1 L_bg_again')
    A.label('L_bg_go')
    stamp(A, 42)
    copies(A, 1)
    stamp(A, 43)
    A('s_mov_b32 %s, 0', s(sTodo))
    A('s_setpc_b64 %s', s(sRet, 2))
    A.label('L_bg_again')
    poll(A, 1)
    A('s_setpc_b64 %s', s(sRet, 2))


def qproj(A, vacc, vWa, vBa, vWb, vBb):
    L = Lds(A)
    FA = [[0 + 16 * p + 4 * mt for mt in range(4)] for p in range(2)]
    FB = [32, 36]
    QS = [0] + [sum(map(int, OPT['qs'][:i + 1])) for i in range(4)]

    def reads(ks):
        p = ks & 1
        out = [('ds_read_b128 %s, %s offset:%d' % (a(FB[p], 4), v(vBa + ks), 16384), ('B', ks))]
        for mt in range(4):
            for aa in range(2):
                out.append(('ds_read_b64_tr_b16 %s, %s offset:%d' % (a(FA[p][mt] + 2 * aa, 2), v(vWa + mt), (16 * ks + 4 * aa) * 256), ('A', ks, mt)))
        return out

    def addr_w():
        return ['v_add_u32 %s, %s, %s' % (v(vWa + mt), s(sSlot), v(vWb + mt)) for mt in range(4)]

    def addr_b():
        return ['v_add_u32 %s, %s, %s' % (v(vBa), s(sSlot), v(vBb))] + ['v_xor_b32 %s, %d, %s' % (v(vBa + k), 32 * k, v(vBa)) for k in range(1, 4)]

    def mfma(ks, mt):
        p = ks & 1
        if not OPT['qpw']:
            L.need(('B', ks), ('A', ks, mt))
        elif mt % 2 == 0:
            L.need(('B', ks), ('A', ks, mt + 1))
        A('%s %s, %s, %s, %s', MFMA, v(vacc + 16 * mt, 16), a(FA[p][mt], 4), a(FB[p], 4), v(vacc + 16 * mt, 16))

    A('s_mov_b32 %s, 0', s(sCnt))
    for o in addr_w() + addr_b():
        A(o)
    A('s_barrier')
    for t, tag in reads(0):
        L.read(t, tag)
    q0 = list(L.q)
    if OPT['al']:
        A('.p2align %d', OPT['al'])
    A.label('L_qp')
    for ks in range(3):
        nxt = reads(ks + 1)
        for mt in range(4):
            mfma(ks, mt)
            for t, tag in nxt[QS[mt]:QS[mt + 1]]:
                L.read(t, tag)
            if ks == 2 and mt == 3:
                A('s_add_u32 %s, %s, 0x%x', s(sSlot), s(sSlot), WSTR)
                A('s_cmp_eq_u32 %s, 0x%x', s(sSlot), WSTR * 5)
                A('s_cselect_b32 %s, 0, %s', s(sSlot), s(sSlot))
                for o in addr_w()[:2] + addr_b()[:1]:
                    A(o)
    qs = list(L.q)
    A('s_add_u32 %s, %s, 1', s(sCnt), s(sCnt))
    A('s_cmp_eq_u32 %s, 8', s(sCnt))
    A('s_cbranch_scc1 L_qp_last')
    nxt = reads(0)
    extra = [addr_w()[2:], addr_b()[1:], [], []]
    for mt in range(4):
        mfma(3, mt)
        if mt == 0:
            if OPT['strict']:
                L.drain()
            stampd(A, 32, 2)
            A('s_barrier')
            stampd(A, 33, 2)
        if mt == 0:
            for o in extra[0]:
                A(o)
        for t, tag in nxt[QS[mt]:QS[mt + 1]]:
            L.read(t, tag)
        for o in extra[mt] if mt else []:
            A(o)
    assert L.q == q0, (L.q, q0)
    A('s_branch L_qp')
    A.label('L_qp_last')
    L.q = qs
    for mt in range(4):
        mfma(3, mt)


def compute(A):
    vQ, vO, vS, vP = 4, 36, 100, 164
    vWb, vXb, vWa, vXa = 196, 200, 201, 205
    vKb, vKa, vVb, vVa = 209, 210, 218, 222
    vM, vL, vT, vOb, vOa, vD, vO3, vHb = 226, 228, 230, 238, 239, 244, 246, 236
    if OPT['pfcode'] == 1:
        A('s_cmp_lg_u32 %s, 1', s(sWave))
        A('s_cbranch_scc1 L_nopf')
        A('s_getpc_b64 %s', s(sT + 2, 2))
        A.label('L_pc')
        A('s_sub_u32 %s, %s, L_pc-%s_kernel', s(sT + 2), s(sT + 2), NAME)
        A('s_subb_u32 %s, %s, 0', s(sT + 3), s(sT + 3))
        A('s_lshr_b32 %s, s2, 3', s(sT))
        A('s_lshl_b32 %s, %s, 10', s(sT), s(sT))
        A('v_lshl_add_u32 %s, v1, 7, %s', v(vT), s(sT))
        A('v_min_u32 %s, L_end-%s_kernel, %s', v(vT), NAME, v(vT))
        A('s_mov_b64 exec, 0xff')
        A('global_load_dword v250, %s, %s', v(vT), s(sT + 2, 2))
        A('s_mov_b64 exec, -1')
        A.label('L_nopf')
    A('s_waitcnt lgkmcnt(0)')
    tail_srds(A)
    tr_lane_bases(A, vWb, 8, True, vT)
    A('v_and_b32 %s, 31, v1', v(vT))
    A('s_lshl_b32 %s, %s, 5', s(sT), s(sWave))
    A('v_add_u32 %s, %s, %s', v(vT), s(sT), v(vT))
    A('v_bfe_u32 %s, %s, 1, 3', v(vT + 1), v(vT))
    A('v_lshrrev_b32 %s, 5, v1', v(vT + 2))
    A('v_xor_b32 %s, %s, %s', v(vT + 1), v(vT + 1), v(vT + 2))
    A('v_lshlrev_b32 %s, 4, %s', v(vT + 1), v(vT + 1))
    A('v_lshl_add_u32 %s, %s, 7, %s', v(vXb), v(vT), v(vT + 1))
    A('v_and_b32 %s, 31, v1', v(vT))
    A('v_and_b32 %s, 15, v1', v(vT + 1))
    A('v_xor_b32 %s, %s, %s', v(vT + 1), v(vT + 1), v(vT + 2))
    A('v_lshlrev_b32 %s, 4, %s', v(vT + 1), v(vT + 1))
    A('v_lshl_add_u32 %s, %s, 8, %s', v(vKb), v(vT), v(vT + 1))
    A('v_add_u32 %s, 0x4000, %s', v(vKb), v(vKb))
    tr_lane_bases(A, vVb, 4, False, vT)
    for mt in range(4):
        A('v_add_u32 %s, 0x4000, %s', v(vVb + mt), v(vVb + mt))
    A('v_lshrrev_b32 %s, 5, v1', v(vT))
    A('v_bfe_u32 %s, v1, 2, 2', v(vT + 1))
    A('v_lshl_add_u32 %s, %s, 2, %s', v(vT), v(vT), v(vT + 1))
    A('v_lshlrev_b32 %s, 7, %s', v(vT), v(vT))
    A('v_bfe_u32 %s, v1, 4, 1', v(vT + 2))
    A('v_lshl_add_u32 %s, %s, 5, %s', v(vT), v(vT + 2), v(vT))
    A('v_and_b32 %s, 3, v1', v(vT + 2))
    A('v_lshl_add_u32 %s, %s, 3, %s', v(vT), v(vT + 2), v(vT))
    A('v_bfe_u32 %s, v1, 3, 1', v(vT + 1))
    A('v_lshl_add_u32 %s, %s, 6, %s', v(vHb), v(vT + 1), v(vT))
    A('v_add_u32 %s, 0x%x, %s', v(vHb), KVS[1] + 16384, v(vHb))
    A('v_xor_b32 %s, 64, %s', v(vHb + 1), v(vHb))
    wo_lane_base(A, vOb, vT)
    A('v_xor_b32 %s, 3, %s', v(vT + 2), v(vT + 1))
    A('v_lshl_add_u32 %s, %s, 6, %s', v(vO3), v(vT + 2), v(vT))
    for i in range(0, 64, 2):
        A('v_mov_b64 %s, 0', v(vS + i, 2))
    for i in range(0, 64, 2):
        A('v_mov_b64 %s, 0', v(vO + i, 2))
    A('v_mov_b32 %s, 0xff800000', v(vM))
    A('v_mov_b64 %s, 0', v(vL, 2))
    A('v_mov_b32 %s, 0', v(vT + 4))
    A('s_mov_b32 %s, 0x%x', s(sC), C_SCALE)
    A('s_mov_b32 %s, 0x%x', s(sC + 1), C_SCALE)
    A('s_mov_b32 %s, 0', s(sSlot))
    for i in range(3):
        A('s_mov_b32 %s, 0x%x', s(sS0 + i), KVS[(0, 2, 1)[i]])
    stamp(A, 1)
    stamp(A, 60, 's_memtime')
    qproj(A, vS, vWa, vXa, vWb, vXb)
    burn(A, 'q', OPT['probe_q'])
    stamp(A, 2)
    stamp(A, 61, 's_memtime')
    L = Lds(A)
    vAl = vT + 4
    vMx = vT
    NL, NE = OPT['nl'], OPT['ne']
    KF = [[32 * p + 4 * k for k in range(8)] for p in range(2)]
    VF = [[64 + 16 * p + 4 * mt for mt in range(4)] for p in range(2)]
    sKs, sVs, sNs = sS0, sS1, sS2

    def kread(t, k):
        return ('ds_read_b128 %s, %s offset:%d' % (a(KF[t & 1][k], 4), v(vKa + k), 8192 * t), ('K', t, k))

    def kaddr(slot):
        return ['v_add_u32 %s, %s, %s' % (v(vKa), s(slot), v(vKb))] + ['v_xor_b32 %s, %d, %s' % (v(vKa + k), 32 * k, v(vKa)) for k in range(1, 8)]

    def kstart():
        stampd(A, 6, 4)
        A('s_barrier')
        stampd(A, 7, 4)
        for k in range(8):
            L.read(*kread(0, k))

    A('s_mov_b32 %s, 0', s(sCnt))
    for o in kaddr(sKs):
        A(o)
    kstart()
    for i in range(32):
        A('v_cvt_pk_bf16_f32 %s, %s, %s', v(vQ + i), v(vS + 2 * i), v(vS + 2 * i + 1))
    q_att = list(L.q)
    if OPT['al']:
        A('.p2align %d', OPT['al'])
    A.label('L_att')

    def max_ops(t):
        r = vS + 16 * t
        ops = []
        if t == 0:
            ops.append('v_max3_f32 %s, %s, %s, %s' % (v(vMx), v(r), v(r + 1), v(vM)))
            rest = range(2, 16, 2)
        else:
            rest = range(0, 16, 2)
        for i in rest:
            ops.append('v_max3_f32 %s, %s, %s, %s' % (v(vMx), v(r + i), v(r + i + 1), v(vMx)))
        return ops

    fill = ['v_mul_f32 %s, %s, %s' % (v(vO + i), v(vAl), v(vO + i)) for i in range(64)]
    fill += ['v_add_u32 %s, %s, %s' % (v(vOa), s(sKs), v(vOb)), 'v_add_u32 %s, %s, %s' % (v(vO3 + 1), s(sKs), v(vO3))]
    fill += ['v_add_u32 %s, %s, %s' % (v(vVa + mt), s(sVs), v(vVb + mt)) for mt in range(4)]
    fill3 = kaddr(sNs)
    for t in range(4):
        mo = max_ops(t - 1) if t > 0 else []
        if t == 3:
            fill += fill3
        for k in range(8):
            if k % 2 == 0 or not OPT['pw']:
                L.need(('K', t, k + 1 if OPT['pw'] else k))
            A('%s %s, %s, %s, %s', MFMA, v(vS + 16 * t, 16), a(KF[t & 1][k], 4), v(vQ + 4 * k, 4), '0' if k == 0 else v(vS + 16 * t, 16))
            if t < 3:
                L.read(*kread(t + 1, k))
            if k >= 4 and mo:
                for o in mo[:2]:
                    A(o)
                mo = mo[2:]
                n = 1 if t < 3 else 2
            else:
                n = 3 if t < 3 else 4
            for o in fill[:n]:
                A(o)
            fill = fill[n:]
        assert not mo
    assert not fill, fill

    def wo_switch(tag, cases):
        for n, (c, t) in enumerate(cases):
            last = n == len(cases) - 1
            if not last:
                A('s_cmp_lg_u32 %s, %d', s(sCnt), c)
                A('s_cbranch_scc1 L_wo%s%d', tag, n + 1)
            wo_reads(A, t >> 1, t & 1, vOa)
            if t < 2:
                for f in range(4):
                    for aa in range(2):
                        A('ds_read_b64_tr_b16 %s, %s offset:%d', a(96 + 16 * t + 4 * f + 2 * aa, 2), v(vO3 + 1), (16 * f + 8 * aa) * 256)
            if not last:
                A('s_branch L_wo%sdone', tag)
                A.label('L_wo%s%d' % (tag, n + 1))
        A.label('L_wo%sdone' % tag)

    wo_switch('a', [(c, STEPS.index('K%d' % c)) for c in range(4)])
    for o in max_ops(3):
        A(o)
    A('v_mov_b32 %s, %s', v(vT + 1), v(vMx))
    A('v_add_u32 %s, %s, %s', v(vOa), s(sVs), v(vOb))
    A('v_permlane32_swap_b32 %s, %s', v(vT + 1), v(vMx))
    A('v_max_f32 %s, %s, %s', v(vMx), v(vMx), v(vT + 1))
    A('v_mul_f32 %s, %s, %s', v(vT + 2), s(sC), v(vMx))
    A('v_fma_f32 %s, %s, %s, -%s', v(vT + 3), v(vM), s(sC), v(vT + 2))
    A('v_exp_f32 %s, %s', v(vAl), v(vT + 3))
    A('v_mov_b32 %s, %s', v(vM), v(vMx))
    burn(A, 'k', OPT['probe_k'])
    fma = lambda i: A('v_pk_fma_f32 %s, %s, %s, %s op_sel_hi:[1,1,0] neg_lo:[0,0,1] neg_hi:[0,0,1]', v(vS + i, 2), v(vS + i, 2), s(sC, 2), v(vT + 2, 2))
    fma1 = lambda i: A('v_fma_f32 %s, %s, %s, -%s', v(vS + i), v(vS + i), s(sC), v(vT + 2))

    def part(lo, hi, dst, pre=None):
        fma(lo)
        A(pre if pre else 's_nop 0')
        for i in range(lo, hi, 2):
            if i + 2 < hi:
                fma(i + 2)
            A('v_exp_f32 %s, %s', v(vS + i), v(vS + i))
            A('v_exp_f32 %s, %s', v(vS + i + 1), v(vS + i + 1))
            if i > lo:
                A('v_pk_add_f32 %s, %s, %s', v(vL, 2), v(vL, 2), v(vS + i - 2, 2))
                A('v_cvt_pk_bf16_f32 %s, %s, %s', v(dst + (i - lo) // 2 - 1), v(vS + i - 2), v(vS + i - 1))
        A('v_pk_add_f32 %s, %s, %s', v(vL, 2), v(vL, 2), v(vS + hi - 2, 2))
        A('v_cvt_pk_bf16_f32 %s, %s, %s', v(dst + (hi - lo) // 2 - 1), v(vS + hi - 2), v(vS + hi - 1))

    def copy_p():
        for i in range(0, (64 - NL) // 2, 2):
            A('v_mov_b64 %s, %s', v(vP + NL // 2 + i, 2), v(vS + NL + i, 2))

    part(NL, 64 - NE, vS + NL, 'v_pk_mul_f32 %s, %s, %s op_sel_hi:[1,0]' % (v(vL, 2), v(vL, 2), v(vAl, 2)))
    rest = lambda: part(64 - NE, 64, vS + NL + (64 - NE - NL) // 2)
    A('s_cmp_eq_u32 %s, 0', s(sCnt))
    A('s_waitcnt lgkmcnt(0)')
    A('s_cbranch_scc1 L_first')
    stampd(A, 8, 4)
    A('s_barrier')
    stampd(A, 9, 4)

    def vread(p, mt, buf=None):
        b = VF[p & 1][mt] if buf is None else buf
        return [('ds_read_b64_tr_b16 %s, %s offset:%d' % (a(b + 2 * aa, 2), v(vVa + mt), (16 * p + 8 * aa) * 256), ('V', p, mt)) for aa in range(2)]

    def pv(p, mt, buf=None, wait=None):
        b = VF[p & 1][mt] if buf is None else buf
        if wait is None:
            L.need(('V', p, mt))
        elif wait:
            L.need(wait)
        A('%s %s, %s, %s, %s', MFMA, v(vO + 16 * mt, 16), a(b, 4), v(vP + 4 * p, 4), v(vO + 16 * mt, 16))

    def pv_range(p0, p1, beside=None, first=None):
        n0, n1, LK = 4 * p0, 4 * p1, OPT['lk']
        for n in range(n0, min(n0 + LK, n1)):
            for x in vread(n >> 2, n & 3):
                L.read(*x)
        if first:
            first()
        for n in range(n0, n1):
            pv(n >> 2, n & 3, None, None if not OPT['pw'] else ('V', n >> 2, (n & 3) + 1) if n % 2 == 0 else False)
            if n + LK < n1:
                for x in vread((n + LK) >> 2, (n + LK) & 3):
                    L.read(*x)
            if beside:
                beside(n)

    def late1(g):
        if g < NL:
            A('v_exp_f32 %s, %s', v(vS + g), v(vS + g))
        if g + 1 < NL:
            fma1(g + 1)
        if 1 <= g <= NL:
            A('v_add_f32 %s, %s, %s', v(vL + ((g - 1) & 1)), v(vS + g - 1), v(vL + ((g - 1) & 1)))
        if 3 <= g <= NL + 1 and g & 1:
            q = (g - 3) // 2
            A('v_cvt_pk_bf16_f32 %s, %s, %s', v(vP + q), v(vS + 2 * q), v(vS + 2 * q + 1))

    def late(n):
        for g in range(NL + 2):
            if min(33, g * 32 // NL) == n:
                late1(g)

    def first_v():
        rest()
        fma1(0)
        wo_switch('b', [(c, STEPS.index('V%d' % (c - 1))) for c in (1, 2, 3)])

    pv_range(0, 8, late, first_v)
    assert not L.q
    A('s_cmp_eq_u32 %s, 3', s(sCnt))
    A('s_cbranch_scc1 L_last')
    A('s_add_u32 %s, %s, 1', s(sCnt), s(sCnt))
    kstart()
    late(32)
    late(33)
    copy_p()
    A('s_mov_b32 %s, %s', s(sT), s(sKs))
    A('s_mov_b32 %s, %s', s(sKs), s(sNs))
    A('s_mov_b32 %s, %s', s(sNs), s(sVs))
    A('s_mov_b32 %s, %s', s(sVs), s(sT))
    assert L.q == q_att
    A('s_branch L_att')

    A.label('L_first')
    L.q = []
    part(0, NL, vP)
    A('s_add_u32 %s, %s, 1', s(sCnt), s(sCnt))
    kstart()
    rest()
    copy_p()
    A('s_mov_b32 %s, %s', s(sT), s(sKs))
    A('s_mov_b32 %s, %s', s(sKs), s(sNs))
    A('s_mov_b32 %s, %s', s(sNs), s(sT))
    A('s_branch L_att')

    A.label('L_last')
    L.q = []

    def hread(hf, n, buf):
        p, m = n >> 1, n & 1
        for aa in range(2):
            L.read('ds_read_b64_tr_b16 %s, %s offset:%d' % (a(64 + 4 * buf + 2 * aa, 2), v(vHb + m), 16384 * hf + (16 * p + 8 * aa) * 128), ('H', hf, n))

    def hpv(hf, n, buf, wait):
        p, m = n >> 1, n & 1
        if wait is not None:
            L.need(('H', hf, wait))
        acc = v(vO + 16 * (2 * hf + m), 16)
        A('%s %s, %s, %s, %s', MFMA, acc, a(64 + 4 * buf, 4), v(vP + 4 * p, 4), acc)

    def fin(f):
        for i in range(4):
            r = vO + 8 * f + 2 * i
            A('v_pk_mul_f32 %s, %s, %s op_sel_hi:[1,0]', v(r, 2), v(r, 2), v(vT, 2))
        for i in range(4):
            r = vO + 8 * f + 2 * i
            A('v_cvt_pk_bf16_f32 %s, %s, %s', v(vS + 4 * f + i), v(r), v(r + 1))
        A('buffer_store_dwordx4 %s, %s, %s, %s offen offset:%d sc1', v(vS + 4 * f, 4), v(vBl), s(sO, 4), s(sT + 6 + (f >> 2)), 1024 * (f & 3))

    stamp(A, 20)
    A('s_barrier')
    stamp(A, 21)
    A('ds_read_b32 %s, %s offset:8', v(vD), v(vSt))
    for n in range(6):
        hread(0, n, n)
    late(32)
    late(33)
    copy_p()
    for i in range(0, 32, 2):
        A('v_pk_mul_f32 %s, %s, %s op_sel_hi:[1,0]', v(vO + i, 2), v(vO + i, 2), v(vAl, 2))
    A('v_add_f32 %s, %s, %s', v(vL), v(vL), v(vL + 1))
    A('v_mov_b32 %s, %s', v(vT), v(vL))
    fill = ['v_mul_f32 %s, %s, %s' % (v(vO + i), v(vAl), v(vO + i)) for i in range(32, 64)]
    fill[4:4] = ['v_permlane32_swap_b32 %s, %s' % (v(vT), v(vL)), 'v_add_f32 %s, %s, %s' % (v(vL), v(vL), v(vT)), 'v_rcp_f32 %s, %s' % (v(vT), v(vL)),
                 'v_readfirstlane_b32 %s, %s' % (s(sLocal), v(vD))]
    for n in range(16):
        hpv(0, n, n % 8, n + 1 if n % 2 == 0 else None)
        if n + 6 < 16:
            hread(0, n + 6, (n + 6) % 8)
        for o in fill[:3]:
            A(o)
        fill = fill[3:]
        if n == 13:
            A('s_lshl_b32 %s, %s, 13', s(sT + 1), s(sWave))
            A('s_mul_i32 %s, s2, 24576', s(sT + 6))
            A('s_add_u32 %s, %s, %s', s(sT + 6), s(sT + 6), s(sT + 1))
            A('s_add_u32 %s, %s, 0x1000', s(sT + 7), s(sT + 6))
            A('s_add_u32 %s, %s, 0x%x', s(sT + 1), s(sT + 1), ROWN)
            A('v_add_u32 %s, %s, %s', v(vT + 2), s(sT + 1), v(vBl))
        if n == 14:
            A('s_lshl_b32 %s, s2, 8', s(sT + 8))
            A('s_lshl_b32 %s, %s, 2', s(sT + 1), s(sWave))
            A('s_add_u32 %s, %s, %s', s(sT + 8), s(sT + 8), s(sT + 1))
            A('s_lshl_b32 %s, %s, 12', s(sT + 1), s(sWave))
            A('v_add_u32 %s, %s, %s', v(vT + 3), s(sT + 1), v(vBl))
    assert not fill and not L.q

    def fin_list(f):
        ops = []
        for i in range(8):
            ops.append('v_mul_f32 %s, %s, %s' % (v(vO + 8 * f + i), v(vT), v(vO + 8 * f + i)))
        for i in range(4):
            r = vO + 8 * f + 2 * i
            ops.append('v_cvt_pk_bf16_f32 %s, %s, %s' % (v(vS + 4 * f + i), v(r), v(r + 1)))
        ops.append('buffer_store_dwordx4 %s, %s, %s, %s offen offset:%d sc1' % (v(vS + 4 * f, 4), v(vBl), s(sO, 4), s(sT + 6 + (f >> 2)), 1024 * (f & 3)))
        return ops

    A('s_barrier')
    if OPT['b1']:
        stamp(A, 3)
    seq = list(range(12)) + [12, 14, 13, 15]
    n1 = 16 if OPT['b1'] else 12
    for i in range(6):
        hread(1, seq[i], i)
    nf0 = OPT['nf0']
    for f in range(nf0):
        fin(f)
    pend = sum([fin_list(f) for f in range(nf0, 4)], [])
    stamp(A, 22)
    wr = 0
    for i in range(n1):
        hpv(1, seq[i], i % 8, seq[i + 1] if i % 2 == 0 else None)
        if i + 6 < n1:
            hread(1, seq[i + 6], (i + 6) % 8)
        for o in pend[:OPT['nfa']]:
            A(o)
        pend = pend[OPT['nfa']:]
        if i >= 8 and not pend and wr < 4:
            A('ds_write_b128 %s, %s offset:%d', v(vT + 2), v(vS + 4 * wr, 4), 1024 * wr)
            wr += 1
    for o in pend:
        A(o)
    if not OPT['b1']:
        A('s_barrier')
        stamp(A, 3)
        for i in range(12, 16):
            hread(1, seq[i], i % 8)
    tail_addr(A)
    if not OPT['b1']:
        for i in range(12, 16):
            hpv(1, seq[i], i % 8, seq[i])
    for f in range(wr, 4):
        A('ds_write_b128 %s, %s offset:%d', v(vT + 2), v(vS + 4 * f, 4), 1024 * f)
    for f in range(4, 8):
        if f - 4 == OPT['fa']:
            A('s_waitcnt vmcnt(%d)', f - 4)
            flag(A, 0)
        fin(f)
    stamp(A, 4)
    if OPT['fa'] == 4:
        A('s_waitcnt vmcnt(4)')
        flag(A, 0)
    for f in range(4, 8):
        A('ds_write_b128 %s, %s offset:%d', v(vT + 2), v(vS + 4 * f, 4), 1024 * f)
    for f in range(8):
        A('%s %s, %s, %s, %s', MFMA, a(AX, 16), a(96 + 4 * f, 4), v(vS + 4 * f, 4), '0' if f == 0 else a(AX, 16))
        if f == 3:
            A('s_mov_b64 exec, 1')
            A('s_waitcnt lgkmcnt(0)')
            A('ds_add_u32 %s, %s', v(vSt), v(vOne))
            A('s_mov_b64 exec, -1')
            A('s_nop 1')
    if OPT['fb'] < 0:
        A('s_waitcnt vmcnt(%d)', 1 if OPT['fa'] == 4 else 0)
        flag(A, 1)
        stamp(A, 5)
    for i in range(4):
        A('ds_write_b128 %s, %s offset:%d', v(vT + 3), a(AX + 4 * i, 4), XFER + 1024 * i)


def tail(A):
    vU = 230
    vPk = 212
    NB = 6

    def run(units, pre=None, beside=None):
        L = Lds(A)

        def rd(i):
            j, qt, f = units[i]
            base, off = (vB2, ROWN - RB[2]) if j == 0 else (vB2, 0) if j == 3 else (vB1, RB[j - 1] - RB[0])
            L.read('ds_read_b128 %s, %s offset:%d' % (a(4 * (i % NB), 4), v(base), off + qt * 8192 + f * 1024), i)

        for i in range(NB - 1):
            rd(i)
        if pre:
            pre()
        for i, (j, qt, f) in enumerate(units):
            L.need(i)
            acc = v(vAcc + 16 * qt, 16)
            A('%s %s, %s, %s, %s', MFMA, acc, a(AWO + 32 * j + 4 * f, 4), a(4 * (i % NB), 4), '0' if (j == 0 and f == 0) else acc)
            if i + NB - 1 < len(units):
                rd(i + NB - 1)
            if beside:
                beside(i)

    A('s_mov_b32 %s, 0', s(sT + 2))
    A('s_mov_b32 %s, 0', s(sTodo))
    A.label('L_own')
    A('ds_read_b32 %s, %s', v(vU), v(vSt))
    A('s_add_u32 %s, %s, 1', s(sT + 2), s(sT + 2))
    A('s_waitcnt lgkmcnt(0)')
    A('v_readfirstlane_b32 %s, %s', s(sT), v(vU))
    A('s_cmp_ge_u32 %s, 0x%x', s(sT + 2), SPIN_MAX)
    A('s_cbranch_scc1 L_own_go')
    A('s_cmp_lg_u32 %s, 3', s(sT))
    A('s_cbranch_scc1 L_own')
    A.label('L_own_go')
    stamp(A, 23)

    def beside_own(i):
        if i == OPT['fb']:
            A('s_waitcnt vmcnt(%d)', 1 if OPT['fa'] == 4 else 0)
            flag(A, 1)
            stamp(A, 5)

    run([(0, qt, f) for qt in range(3) for f in range(8)], None, beside_own)
    stamp(A, 24)
    A.label('L_bara')
    A('s_barrier')
    stamp(A, 54)

    def pre_a():
        A('s_cmp_lg_u32 %s, 3', s(sWave))
        A('s_cbranch_scc1 L_nox')
        for i in range(12):
            A('ds_read_b128 %s, %s offset:%d', v(vAcc + 4 * i, 4), v(vBl), XFER + 1024 * i)
        A('s_waitcnt lgkmcnt(0)')
        A.label('L_nox')

    def check(tag):
        A('s_cmp_eq_u32 %s, 0', s(sTodo))
        A('s_cbranch_scc1 L_ck%s', tag)
        A('s_call_b64 %s, L_bg', s(sRet, 2))
        A.label('L_ck%s' % tag)

    def beside_a(i):
        if str(i) in OPT['ckp'].split(','):
            check(str(i))
        if 8 <= i < 16:
            f, aa = (i - 8) >> 1, i & 1
            A('ds_read_b64_tr_b16 %s, %s offset:%d', a(AWO + 112 + 4 * f + 2 * aa, 2), v(vW3), KVS[1] + (16 * f + 8 * aa) * 256)

    run([(j, qt, f) for j in (1, 2, 3) for qt in range(3) for f in range(4)], pre_a, beside_a)
    stamp(A, 55)
    A('s_mov_b32 %s, 0', s(sT + 2))
    A.label('L_spinb')
    A('s_cmp_eq_u32 %s, 0', s(sTodo))
    A('s_cbranch_scc1 L_haveb')
    A('s_call_b64 %s, L_bg', s(sRet, 2))
    A('s_add_u32 %s, %s, 1', s(sT + 2), s(sT + 2))
    A('s_cmp_lt_u32 %s, 0x%x', s(sT + 2), SPIN_MAX)
    A('s_cbranch_scc1 L_spinb')
    A.label('L_haveb')
    A('v_lshlrev_b32 %s, 8, v1', v(vU + 1))
    A('s_waitcnt vmcnt(0)')
    A('s_barrier')
    stamp(A, 56)

    def fin_ops(qt):
        ops = []
        for t in range(2):
            o = 2 * qt + t
            r = vAcc + 8 * o
            for i in range(4):
                ops.append('v_cvt_pk_bf16_f32 %s, %s, %s' % (v(vPk + 4 * t + i), v(r + 2 * i), v(r + 2 * i + 1)))
            ops.append('buffer_store_dwordx4 %s, %s, %s, %s offen offset:%d sc1' % (v(vPk + 4 * t, 4), v(vBl), s(sPo, 4), s(sPst + o // 3), 1024 * (o % 3)))
        return ops

    pend = []

    def beside_b(i):
        if i in (15, 27):
            pend.extend(fin_ops(i // 12 - 1))
        for o in pend[:3]:
            A(o)
        del pend[:3]

    run([(j, qt, f) for qt in range(3) for j in (1, 2, 3) for f in range(4, 8)], None, beside_b)
    assert not pend
    stamp(A, 25)
    for o in fin_ops(2):
        A(o)
    stamp(A, 26)
    if OPT['f2']:
        A('s_mov_b64 exec, 1')
        A('s_waitcnt vmcnt(3)')
        A('buffer_store_dword %s, %s, %s, %s offen offset:128 sc1', v(vOne), v(vU + 1), s(sF, 4), s(sF2))
        A('s_mov_b64 exec, 2')
        A('s_waitcnt vmcnt(1)')
    else:
        A('s_mov_b64 exec, 3')
        A('s_waitcnt vmcnt(0)')
    A('buffer_store_dword %s, %s, %s, %s offen offset:128 sc1', v(vOne), v(vU + 1), s(sF, 4), s(sF2))
    A('s_mov_b64 exec, -1')
    stamp(A, 27)
    A('s_cmp_lg_u32 %s, 3', s(sWave))
    A('s_cbranch_scc1 L_red')
    stamp_flush(A)
    A('s_endpgm')

    A.label('L_red')
    vR, vF = 4, 40
    sGot, sLd2, sNew, sSp = sT + 6, sT + 7, sT + 8, sT + 9
    A('s_mul_i32 %s, s2, 24576', s(sT))
    A('s_lshl_b32 %s, %s, 10', s(sT + 1), s(sWave))
    A('s_add_u32 %s, %s, %s', s(sT), s(sT), s(sT + 1))
    A('s_lshl_b32 %s, s2, 8', s(sT + 3))
    A('v_and_b32 %s, 7, v1', v(vU))
    A('v_lshlrev_b32 %s, 2, %s', v(vU), v(vU))
    A('s_mov_b32 %s, 0', s(sGot))
    A('s_mov_b32 %s, 0', s(sLd2))
    A('s_mov_b32 %s, 0', s(sSp))
    A('buffer_load_dword %s, %s, %s, %s offen offset:128 sc1', v(vU + 1), v(vU), s(sF, 4), s(sT + 3))
    A('s_and_b32 %s, %s, 1', s(sT + 1), s(sHg))
    A('s_mul_i32 %s, %s, 3', s(sT + 1), s(sT + 1))
    A('s_add_u32 %s, %s, %s', s(sT + 1), s(sT + 1), s(sWave))
    A('s_lshr_b32 %s, %s, 1', s(sT + 2), s(sT + 1))
    A('s_lshl_b32 %s, %s, 15', s(sT + 2), s(sT + 2))
    A('s_and_b32 %s, %s, 1', s(sT + 1), s(sT + 1))
    A('s_lshl_b32 %s, %s, 5', s(sT + 1), s(sT + 1))
    A('s_add_u32 %s, %s, %s', s(sT + 2), s(sT + 2), s(sT + 1))
    A('s_lshr_b32 %s, %s, 1', s(sT + 1), s(sHg))
    if OPT['sp'] == 1:
        A('s_lshr_b32 %s, %s, 1', s(sT + 4), s(sT + 1))
        A('s_lshl_b32 %s, %s, 9', s(sT + 4), s(sT + 4))
        A('s_add_u32 %s, %s, %s', s(sT + 2), s(sT + 2), s(sT + 4))
        A('s_and_b32 %s, %s, 1', s(sT + 1), s(sT + 1))
    A('s_lshl_b32 %s, %s, %d', s(sT + 1), s(sT + 1), 8 if OPT['sp'] == 2 else 6)
    A('s_add_u32 %s, %s, %s', s(sT + 2), s(sT + 2), s(sT + 1))
    A('s_xor_b32 %s, %s, %d', s(sT + 1), s(sHh), OPT['cx'])
    A('s_lshl_b32 %s, %s, %d', s(sT + 1), s(sT + 1), 8 - OPT['sp'])
    A('s_add_u32 %s, %s, %s', s(sT + 2), s(sT + 2), s(sT + 1))
    A('v_and_b32 %s, 31, v1', v(vU + 2))
    A('v_lshlrev_b32 %s, 10, %s', v(vU + 2), v(vU + 2))
    A('v_lshrrev_b32 %s, 5, v1', v(vU + 3))
    A('v_lshl_add_u32 %s, %s, 4, %s', v(vU + 2), v(vU + 3), v(vU + 2))
    A.label('L_p2')
    A('s_waitcnt vmcnt(0)')
    A('v_cmp_eq_u32 vcc, 1, %s', v(vU + 1))
    A('s_andn2_b32 %s, %s, %s', s(sT + 4), s(sGot), s(sLd2))
    A('s_mov_b32 %s, %s', s(sLd2), s(sGot))
    A('s_and_b32 %s, vcc_lo, 0xff', s(sNew))
    if not OPT['early2']:
        A('s_cmp_eq_u32 %s, 0xff', s(sNew))
        A('s_cselect_b32 %s, 0xff, 0', s(sNew))
    A('s_andn2_b32 %s, %s, %s', s(sNew), s(sNew), s(sGot))
    A('s_cbranch_scc0 L_p2_noload')
    A('s_or_b32 %s, %s, %s', s(sGot), s(sGot), s(sNew))
    for k in range(8):
        A('s_bitcmp1_b32 %s, %d', s(sNew), k)
        A('s_cbranch_scc0 L_p2_l%d', k)
        if k < 2:
            A('buffer_load_dwordx4 %s, %s, %s, %s offen offset:%d sc1', v(vR + 4 * k, 4), v(vBl), s(sPo, 4), s(sT), 3072 * k)
        else:
            A('s_add_u32 %s, %s, 0x%x', s(sT + 1), s(sT), 3072 * k)
            A('buffer_load_dwordx4 %s, %s, %s, %s offen sc1', v(vR + 4 * k, 4), v(vBl), s(sPo, 4), s(sT + 1))
        A.label('L_p2_l%d' % k)
    A.label('L_p2_noload')
    A('s_cmp_eq_u32 %s, 0xff', s(sGot))
    A('s_cbranch_scc1 L_p2_nopoll')
    if OPT['slp2']:
        A('s_sleep %d', OPT['slp2'])
    A('buffer_load_dword %s, %s, %s, %s offen offset:128 sc1', v(vU + 1), v(vU), s(sF, 4), s(sT + 3))
    A.label('L_p2_nopoll')
    A('s_cmp_eq_u32 %s, 0', s(sT + 4))
    A('s_cbranch_scc1 L_p2_nounp')
    for k in range(8):
        A('s_bitcmp1_b32 %s, %d', s(sT + 4), k)
        A('s_cbranch_scc0 L_p2_u%d', k)
        for i in range(4):
            A('v_lshlrev_b32 %s, 16, %s', v(vF + 8 * k + 2 * i), v(vR + 4 * k + i))
            A('v_and_b32 %s, 0xffff0000, %s', v(vF + 8 * k + 2 * i + 1), v(vR + 4 * k + i))
        A.label('L_p2_u%d' % k)
    A.label('L_p2_nounp')
    A('s_cmp_eq_u32 %s, 0xff', s(sLd2))
    A('s_cbranch_scc1 L_p2_done')
    A('s_add_u32 %s, %s, 1', s(sSp), s(sSp))
    A('s_cmp_lt_u32 %s, 0x%x', s(sSp), SPIN_MAX)
    A('s_cbranch_scc1 L_p2')
    A('s_waitcnt vmcnt(0)')
    A.label('L_p2_done')
    burn(A, 't', OPT['probe_t'])
    stamp(A, 28)
    for step in (8, 16, 32):
        for k in range(0, 64, 2 * step):
            for i in range(0, 8, 2):
                A('v_pk_add_f32 %s, %s, %s', v(vF + k + i, 2), v(vF + k + i, 2), v(vF + k + step + i, 2))
    for i in range(4):
        A('v_cvt_pk_bf16_f32 %s, %s, %s', v(vR + i), v(vF + 2 * i), v(vF + 2 * i + 1))
    if not OPT['noout']:
        A('buffer_store_dwordx4 %s, %s, %s, %s offen %s', v(vR, 4), v(vU + 2), s(sOut, 4), s(sT + 2), OPT['out_pol'])
    if OPT['prof']:
        A('s_waitcnt vmcnt(0)')
        stamp(A, 29)
        stamp_flush(A)


def kernel():
    A = Asm()
    A('s_cmp_ge_u32 s2, 256')
    A('s_cbranch_scc1 L_end')
    if OPT['prof']:
        A('s_memrealtime s[92:93]')
    A('s_load_dwordx4 s[4:7], s[0:1], 0')
    A('s_load_dwordx4 s[8:11], s[0:1], 16')
    A('s_load_dwordx4 s[12:15], s[0:1], 32')
    A('s_load_dwordx4 s[16:19], s[0:1], 48')
    A('v_and_b32 v1, 63, v0')
    if OPT['pfcode'] == 2:
        A('s_getpc_b64 %s', s(sT + 2, 2))
        A.label('L_pc')
        A('s_lshr_b32 %s, s2, 3', s(sT))
        A('s_lshl_b32 %s, %s, 10', s(sT), s(sT))
        A('v_lshl_add_u32 v2, v1, 7, %s', s(sT))
        A('v_min_u32 v2, L_end-L_pc, v2')
        A('s_mov_b64 exec, 0xff')
        A('global_load_dword v250, v2, %s', s(sT + 2, 2))
        A('s_mov_b64 exec, -1')
    A('v_lshrrev_b32 v2, 6, v0')
    A('v_readfirstlane_b32 %s, v2', s(sWave))
    if OPT['prof']:
        A('v_mov_b32 v255, 0')
        A('s_waitcnt lgkmcnt(0)')
        A('v_writelane_b32 v255, s92, 0')
        stamp(A, 58)
    if OPT['badmap']:
        A('s_and_b32 s3, s2, 31')
        A('s_lshl_b32 s3, s3, 3')
        A('s_lshr_b32 s2, s2, 5')
        A('s_or_b32 s2, s2, s3')
    A('s_and_b32 %s, s2, 7', s(sHg))
    A('s_bfe_u32 %s, s2, 0x30003', s(sB))
    A('s_lshr_b32 %s, s2, 6', s(sHh))
    if OPT['hx']:
        A('s_xor_b32 %s, %s, %d', s(sHh), s(sHh), OPT['hx'])
    A('s_lshl_b32 %s, %s, 2', s(sH), s(sHg))
    A('s_add_u32 %s, %s, %s', s(sH), s(sH), s(sHh))
    A('s_lshl_b32 %s, %s, 1', s(sRot), s(sHh))
    A('s_add_u32 %s, %s, %s', s(sRot), s(sRot), s(sB))
    A('s_cmp_lg_u32 %s, 3', s(sWave))
    A('s_cbranch_scc1 L_compute')
    loader(A)
    if OPT['al']:
        A('.p2align %d', OPT['al'])
    A.label('L_compute')
    compute(A)
    tail(A)
    A.label('L_end')
    A('s_endpgm')
    return A.lines


HEADER = """
; standalone__mha_block_cached__near_ridge: out = softmax((x Wq) K^T / sqrt(128)) V Wo in one launch (generated by gen/gen22.py).
; One workgroup per (batch b, head h = 4*hg + hh): wg = hg | b<<3 | hh<<6.  Waves 0-2 own 32 queries each, wave 3 streams
; x / Wq / K / V / Wo into LDS (LDS-DMA, swizzled on the source side).  Everything is computed transposed (queries = MFMA
; Output projection: the four heads of a group exchange O through ws in two column halves (the last V block arrives
; column-wise, so the first half is under way early); each member multiplies the group's 512 columns with 128 output
; Hand-offs: write-through stores, wait for the acknowledge, then a flag.  Flags are reset by their own workgroup, which
; then reports in d_debug (one byte per workgroup = die id + 1); nobody trusts or sets a foreign flag before seeing that byte.
; @launch grid=(256,1,1) block=(256,1,1) lds=163840
"""


def main():
    k, n = pad_hazards(kernel())
    out = [HEADER.strip(),
           '.amdgcn_target "amdgcn-amd-amdhsa--gfx950"', '.text',
           '.globl %s_kernel\n.p2align 8\n.type %s_kernel,@function\n%s_kernel:' % (NAME, NAME, NAME)]
    out += k
    out.append('''.section .rodata,"a"
.p2align 6
.amdhsa_kernel %s_kernel
  .amdhsa_next_free_vgpr 512
  .amdhsa_next_free_sgpr 102
  .amdhsa_accum_offset 256
  .amdhsa_group_segment_fixed_size 0
  .amdhsa_kernarg_size 64
  .amdhsa_user_sgpr_count 2
  .amdhsa_user_sgpr_kernarg_segment_ptr 1
  .amdhsa_system_sgpr_workgroup_id_x 1
.end_amdhsa_kernel''' % NAME)
    open(sys.argv[1], 'w').write('\n'.join(out) + '\n')
    print('wrote', sys.argv[1], 'pads', n)


main()
```
